```python
import torch

def _softmax(x, axis=-1):
    return torch.softmax(x, dim=axis)
def _gelu(x):
    return torch.nn.functional.gelu(x, approximate="tanh")
def _silu(x):
    return torch.nn.functional.silu(x)
def _sigmoid(x):
    return torch.sigmoid(x)
def _layernorm(x, axis=-1, eps=1e-5):
    m = x.mean(dim=axis, keepdim=True)
    v = x.var(dim=axis, keepdim=True, unbiased=False)
    return (x - m) / torch.sqrt(v + eps)
def _scatter_add(tgt, idx, src, axis=0):
    return tgt.clone().index_add_(axis, idx, src)
def _segment_sum(src, seg, n):
    out = torch.zeros((n,) + src.shape[1:], dtype=src.dtype)
    return out.index_add_(0, seg, src)
def _pad(x, pw):
    flat = tuple(v for pair in reversed(pw) for v in pair)
    return torch.nn.functional.pad(x, flat)

kernel_name = 'gated_mix__grouped_kv_mqa__grouped_kv_mqa__prompt'

def setup_inputs():

    _w = (lambda a: (lambda t: t.to(torch.bfloat16) if t.is_floating_point() else t)(torch.as_tensor(a)))
    def _A_setup():
        B, S, D, H = 1, 2048, 1024, 32
        Dh = D // H
        return {
            "x": _w((lambda *s: torch.randn(*s, dtype=torch.bfloat16) * 0.05)(B, S, D)),
            "wq": _w((lambda *s: torch.randn(*s, dtype=torch.bfloat16) * 0.8)(D, H * Dh)),
            "wk": _w((lambda *s: torch.randn(*s, dtype=torch.bfloat16) * 0.8)(D, Dh)),
            "wv": _w((lambda *s: torch.randn(*s, dtype=torch.bfloat16) * 0.05)(D, Dh)),
            "wo": _w((lambda *s: torch.randn(*s, dtype=torch.bfloat16) * 0.05)(H * Dh, D)),
        }
    _A_in = _A_setup()

    def _B_setup():
        B, S, D, H = 1, 2048, 1024, 32
        Dh = D // H
        return {
            "x": _w((lambda *s: torch.randn(*s, dtype=torch.bfloat16) * 0.05)(B, S, D)),
            "wq": _w((lambda *s: torch.randn(*s, dtype=torch.bfloat16) * 0.8)(D, H * Dh)),
            "wk": _w((lambda *s: torch.randn(*s, dtype=torch.bfloat16) * 0.8)(D, Dh)),
            "wv": _w((lambda *s: torch.randn(*s, dtype=torch.bfloat16) * 0.05)(D, Dh)),
            "wo": _w((lambda *s: torch.randn(*s, dtype=torch.bfloat16) * 0.05)(H * Dh, D)),
        }
    _B_in = _B_setup()

    return {
        "A_x": _A_in["x"],
        "A_wq": _A_in["wq"],
        "A_wk": _A_in["wk"],
        "A_wv": _A_in["wv"],
        "A_wo": _A_in["wo"],
        "B_x": _B_in["x"],
        "B_wq": _B_in["wq"],
        "B_wk": _B_in["wk"],
        "B_wv": _B_in["wv"],
        "B_wo": _B_in["wo"],
        "gate_w": _w((lambda *s: torch.randn(*s, dtype=torch.bfloat16) * 0.05)(1024) * 16.0),
    }

def reference(A_x, A_wq, A_wk, A_wv, A_wo, B_x, B_wq, B_wk, B_wv, B_wo, gate_w):
    def _A_ref(x, wq, wk, wv, wo):
        B, S, D = x.shape
        H = 32
        Dh = D // H
        q = (lambda x, *d: x.permute(*d))((x @ wq).reshape(B, S, H, Dh), 0, 2, 1, 3)
        k = x @ wk
        v = x @ wv
        scores = torch.einsum("bhqd,bkd->bhqk", q, k) * (Dh ** -0.5)
        p = _softmax(scores, axis=-1)
        o = torch.einsum("bhqk,bkd->bhqd", p, v)
        return (lambda x, *d: x.permute(*d))(o, 0, 2, 1, 3).reshape(B, S, H * Dh) @ wo

    def _B_ref(x, wq, wk, wv, wo):
        B, S, D = x.shape
        H = 32
        Dh = D // H
        q = (lambda x, *d: x.permute(*d))((x @ wq).reshape(B, S, H, Dh), 0, 2, 1, 3)
        k = x @ wk
        v = x @ wv
        scores = torch.einsum("bhqd,bkd->bhqk", q, k) * (Dh ** -0.5)
        p = _softmax(scores, axis=-1)
        o = torch.einsum("bhqk,bkd->bhqd", p, v)
        return (lambda x, *d: x.permute(*d))(o, 0, 2, 1, 3).reshape(B, S, H * Dh) @ wo

    x = A_x
    g = _sigmoid((x * gate_w).sum(-1, keepdims=True))
    a = _A_ref(x, A_wq, A_wk, A_wv, A_wo)
    b = _B_ref(x, B_wq, B_wk, B_wv, B_wo)
    return g * a + (1 - g) * b
```

```python
class Asm:
    def __init__(self):
        self.lines = []
    def __call__(self, s):
        for ln in s.split("\n"):
            self.lines.append("    " + ln.strip() if not ln.strip().endswith(":") else ln.strip())
    def raw(self, s):
        self.lines.append(s)
    def label(self, s):
        self.lines.append(s + ":")
    def comment(self, s):
        self.lines.append("    ; " + s)
    def text(self):
        return "\n".join(self.lines) + "\n"

def vr(b, n=1):
    return f"v{b}" if n == 1 else f"v[{b}:{b+n-1}]"
def ar(b, n=1):
    return f"a{b}" if n == 1 else f"a[{b}:{b+n-1}]"
def sr(b, n=1):
    return f"s{b}" if n == 1 else f"s[{b}:{b+n-1}]"

def kernel_header(A, name):
    A.raw(f".globl {name}")
    A.raw(".p2align 8")
    A.raw(f".type {name},@function")
    A.label(name)

def kernel_desc(name, nvgpr, accum, nsgpr=102):
    return f""".amdhsa_kernel {name}
  .amdhsa_next_free_vgpr {nvgpr}
  .amdhsa_next_free_sgpr {nsgpr}
  .amdhsa_accum_offset {accum}
  .amdhsa_group_segment_fixed_size 0
  .amdhsa_kernarg_size 112
  .amdhsa_user_sgpr_count 2
  .amdhsa_user_sgpr_kernarg_segment_ptr 1
  .amdhsa_system_sgpr_workgroup_id_x 1
.end_amdhsa_kernel
"""

def srd(A, d, lo, hi, nbytes):
    A(f"s_mov_b32 s{d}, s{lo}")
    A(f"s_mov_b32 s{d+1}, s{hi}")
    A(f"s_mov_b32 s{d+2}, {nbytes}")
    A(f"s_mov_b32 s{d+3}, 0x00020000")
```

```python
import sys, math, struct
from asmlib import *

NAME = "gated_mix__grouped_kv_mqa__grouped_kv_mqa__prompt"
WS_KV = 0
WS_G = 0x80000
WS_OF = 0x100000
WS_USED = 0x900000

def f32bits(x):
    return struct.unpack("<I", struct.pack("<f", x))[0]
KSCALE = f32bits(math.log2(math.e) / math.sqrt(32.0))
LOG2E = f32bits(math.log2(math.e))

def gen_kv(A):
    name = "kv_kernel"
    kernel_header(A, name)
    A("s_cmp_ge_u32 s2, 256")
    A("s_cbranch_scc1 L_kv_end")
    A("s_load_dwordx2 s[4:5], s[0:1], 0")
    A("s_load_dwordx2 s[6:7], s[0:1], 16")
    A("s_load_dwordx2 s[24:25], s[0:1], 24")
    A("s_load_dwordx2 s[26:27], s[0:1], 56")
    A("s_load_dwordx2 s[28:29], s[0:1], 64")
    A("s_load_dwordx2 s[30:31], s[0:1], 80")
    A("s_load_dwordx2 s[32:33], s[0:1], 104")
    A("s_lshr_b32 s34, s2, 6")
    A("s_and_b32 s35, s2, 7")
    A("s_lshl_b32 s35, s35, 3")
    A("s_lshr_b32 s36, s2, 3")
    A("s_and_b32 s36, s36, 7")
    A("s_add_u32 s35, s35, s36")
    A("v_lshrrev_b32 v1, 6, v0")
    A("v_and_b32 v2, 63, v0")
    A("v_readfirstlane_b32 s20, v1")
    A("v_lshrrev_b32 v3, 5, v2")
    A("v_and_b32 v4, 31, v2")
    A("v_xor_b32 v5, v4, v3")
    A("v_lshlrev_b32 v5, 4, v5")
    A("v_lshl_add_u32 v5, v3, 11, v5")
    A("v_lshl_add_u32 v5, v1, 9, v5")
    A("v_lshlrev_b32 v6, 4, v2")
    A("v_lshl_add_u32 v6, v1, 14, v6")
    A("s_waitcnt lgkmcnt(0)")
    A("s_cmp_eq_u32 s34, 1")
    A("s_cselect_b64 s[6:7], s[24:25], s[6:7]")
    A("s_cmp_eq_u32 s34, 2")
    A("s_cselect_b64 s[6:7], s[26:27], s[6:7]")
    A("s_cmp_eq_u32 s34, 3")
    A("s_cselect_b64 s[6:7], s[28:29], s[6:7]")
    srd(A, 8, 4, 5, 2048*1024*2)
    srd(A, 12, 6, 7, 1024*32*2)
    srd(A, 16, 32, 33, WS_USED)
    srd(A, 40, 30, 31, 2048)
    A("s_lshl_b32 s37, s35, 16")
    A("s_lshl_b32 s38, s20, 14")
    A("s_add_u32 s39, s38, 65536")
    for t in range(16):
        A(f"s_add_u32 m0, s38, {t*1024}")
        A(f"v_xor_b32 v7, {((2*t) & 15) << 4}, v5")
        A(f"buffer_load_dwordx4 v7, s[8:11], s37 offen lds")
        A(f"s_add_u32 s37, s37, 4096")
        if t % 4 == 0:
            g = t // 4
            A(f"s_add_u32 m0, s39, {g*4096}")
            A(f"s_movk_i32 s44, {g*4096}")
            for q in range(4):
                A(f"buffer_load_dwordx4 v6, s[12:15], s44 offen offset:{q*1024} lds" if q else f"buffer_load_dwordx4 v6, s[12:15], s44 offen lds")
    A("v_lshlrev_b32 v8, 4, v3")
    A("v_lshl_add_u32 v8, v1, 9, v8")
    A("s_cmp_lg_u32 s34, 0")
    A("s_cbranch_scc1 L_kv_nogate_ld")
    for s in range(16):
        A(f"buffer_load_dwordx4 {vr(128+4*s,4)}, v8, s[40:43], 0 offen offset:{32*s}")
    A.label("L_kv_nogate_ld")
    A("v_and_b32 v9, 15, v4")
    A("v_xor_b32 v9, v9, v3")
    A("v_lshlrev_b32 v9, 4, v9")
    A("v_lshl_add_u32 v9, v4, 9, v9")
    A("v_lshl_add_u32 v9, v1, 14, v9")
    for s in range(8):
        A(f"v_xor_b32 v{10+s}, {(2*s) << 4}, v9")
    A("v_bfe_u32 v18, v2, 2, 2")
    A("v_lshl_add_u32 v18, v3, 3, v18")
    A("v_lshlrev_b32 v18, 6, v18")
    A("v_bfe_u32 v19, v2, 4, 1")
    A("v_lshl_add_u32 v18, v19, 5, v18")
    A("v_and_b32 v19, 3, v2")
    A("v_lshl_add_u32 v18, v19, 3, v18")
    A("v_lshl_add_u32 v18, v1, 14, v18")
    A("v_add_u32 v18, 0x10000, v18")
    for i in range(32, 64):
        A(f"v_mov_b32 v{i}, 0")
    A("s_waitcnt vmcnt(0)")
    def rd(s):
        xb = 64 + 4*(s % 8); wb = 96 + 4*(s % 8)
        A(f"ds_read_b128 {vr(xb,4)}, v{10 + (s % 8)} offset:{256*(s//8)}")
        A(f"ds_read_b64_tr_b16 {vr(wb,2)}, v18 offset:{1024*s}")
        A(f"ds_read_b64_tr_b16 {vr(wb+2,2)}, v18 offset:{1024*s+256}")
    def body(kind):
        rd(0); rd(1)
        for g in range(8):
            if g < 7:
                rd(2*g+2); rd(2*g+3)
                A("s_waitcnt lgkmcnt(6)")
            else:
                A("s_waitcnt lgkmcnt(0)")
            for s in (2*g, 2*g+1):
                xb = 64 + 4*(s % 8); wb = 96 + 4*(s % 8)
                if kind == 'V':
                    A(f"v_mfma_f32_32x32x16_bf16 v[32:47], {vr(xb,4)}, {vr(wb,4)}, v[32:47]")
                else:
                    A(f"v_mfma_f32_32x32x16_bf16 v[32:47], {vr(wb,4)}, {vr(xb,4)}, v[32:47]")
                if kind == 'KG':
                    A(f"v_mfma_f32_32x32x16_bf16 v[48:63], {vr(128+4*s,4)}, {vr(xb,4)}, v[48:63]")
    A("s_bitcmp1_b32 s34, 0")
    A("s_cbranch_scc1 L_kv_V")
    A("s_cmp_eq_u32 s34, 0")
    A("s_cbranch_scc1 L_kv_KG")
    body('K')
    A("s_branch L_kv_red")
    A.label("L_kv_KG")
    body('KG')
    A("s_branch L_kv_red")
    A.label("L_kv_V")
    body('V')
    A.label("L_kv_red")
    A("s_nop 15")
    for rg in range(4):
        A(f"ds_write_b128 v6, {vr(32+4*rg,4)} offset:{1024*rg}")
    A("v_lshlrev_b32 v20, 2, v2")
    A("v_lshl_add_u32 v21, v1, 14, v20")
    A("ds_write_b32 v21, v48 offset:4096")
    A("s_waitcnt lgkmcnt(0)")
    A("s_barrier")
    A("v_lshlrev_b32 v22, 4, v2")
    A("v_lshl_add_u32 v22, v1, 10, v22")
    for ww in range(4):
        A(f"ds_read_b128 {vr(64+4*ww,4)}, v22 offset:{16384*ww}")
    for ww in range(4):
        A(f"ds_read_b32 v{80+ww}, v20 offset:{16384*ww+4096}")
    A("s_waitcnt lgkmcnt(0)")
    for e in range(4):
        A(f"v_add_f32 v{64+e}, v{64+e}, v{68+e}")
        A(f"v_add_f32 v{72+e}, v{72+e}, v{76+e}")
    for e in range(4):
        A(f"v_add_f32 v{64+e}, v{64+e}, v{72+e}")
    A("s_mov_b32 s45, 1.0")
    A("s_bitcmp1_b32 s34, 0")
    A(f"s_cselect_b32 s45, s45, {KSCALE:#x}")
    for e in range(4):
        A(f"v_mul_f32 v{64+e}, s45, v{64+e}")
    A("v_cvt_pk_bf16_f32 v68, v64, v65")
    A("v_cvt_pk_bf16_f32 v69, v66, v67")
    A("v_bfe_u32 v23, v4, 2, 1")
    A("v_bfe_u32 v24, v4, 3, 1")
    A("v_and_b32 v25, 0x13, v4")
    A("v_lshl_add_u32 v25, v23, 3, v25")
    A("v_lshl_add_u32 v25, v24, 2, v25")
    A("s_bitcmp1_b32 s34, 0")
    A("s_cselect_b64 vcc, -1, 0")
    A("v_cndmask_b32 v25, v25, v4, vcc")
    A("v_lshl_add_u32 v25, v3, 5, v25")
    A("v_lshlrev_b32 v25, 4, v25")
    A("s_lshr_b32 s46, s34, 1")
    A("s_lshl_b32 s46, s46, 18")
    A("s_lshl_b32 s47, s35, 12")
    A("s_add_u32 s46, s46, s47")
    A("s_and_b32 s47, s34, 1")
    A("s_lshl_b32 s47, s47, 11")
    A("s_add_u32 s46, s46, s47")
    A("s_lshr_b32 s47, s20, 1")
    A("s_lshl_b32 s47, s47, 10")
    A("s_add_u32 s46, s46, s47")
    A("s_and_b32 s47, s20, 1")
    A("s_lshl_b32 s47, s47, 3")
    A("s_add_u32 s46, s46, s47")
    if WS_KV: A(f"s_add_u32 s46, s46, {WS_KV}")
    A("buffer_store_dwordx2 v[68:69], v25, s[16:19], s46 offen")
    A("s_or_b32 s47, s34, s20")
    A("s_cmp_lg_u32 s47, 0")
    A("s_cbranch_scc1 L_kv_end")
    A("v_add_f32 v80, v80, v81")
    A("v_add_f32 v82, v82, v83")
    A("v_add_f32 v80, v80, v82")
    A(f"v_mul_f32 v80, {LOG2E ^ 0x80000000:#x}, v80")
    A("v_exp_f32 v80, v80")
    A("s_nop 0")
    A("v_add_f32 v80, 1.0, v80")
    A("v_rcp_f32 v80, v80")
    A("v_lshlrev_b32 v26, 2, v4")
    A("s_lshl_b32 s46, s35, 7")
    A(f"s_add_u32 s46, s46, {WS_G}")
    A("buffer_store_dword v80, v26, s[16:19], s46 offen")
    A.label("L_kv_end")
    A("s_endpgm")
    return kernel_desc(name, 192, 192, 64)

def gen_attn(A):
    name = "attn_kernel"
    kernel_header(A, name)
    S0, C0, O0, Q0 = 32, 96, 160, 224
    L0, KB0, VB0, SEL = 0, 16, 32, 48
    vL, vH, vL31, vW_ = 1, 2, 3, 4
    vXd, vWd = 8, 12
    vXr, vWr = 16, 20
    vKV, vIDX, vT0, vT1, vG = 22, 23, 24, 25, 26
    vLane16 = 28
    ACC = S0
    FR = C0
    A("s_cmp_ge_u32 s2, 256")
    A("s_cbranch_scc1 L_at_end")
    A("s_load_dwordx2 s[4:5], s[0:1], 0")
    A("s_load_dwordx2 s[6:7], s[0:1], 8")
    A("s_load_dwordx2 s[24:25], s[0:1], 48")
    A("s_load_dwordx2 s[26:27], s[0:1], 104")
    A("s_and_b32 s28, s2, 1")
    A("s_bfe_u32 s29, s2, 0x20001")
    A("s_bfe_u32 s30, s2, 0x20003")
    A("s_lshl_b32 s29, s29, 2")
    A("s_add_u32 s29, s29, s30")
    A("s_lshr_b32 s30, s2, 5")
    A(f"v_lshrrev_b32 v{vW_}, 6, v0")
    A(f"v_and_b32 v{vL}, 63, v0")
    A(f"v_readfirstlane_b32 s20, v{vW_}")
    A(f"v_lshrrev_b32 v{vH}, 5, v{vL}")
    A(f"v_and_b32 v{vL31}, 31, v{vL}")
    A(f"v_lshlrev_b32 v{vLane16}, 4, v{vL}")
    A(f"v_lshrrev_b32 v{vT0}, 3, v{vL}")
    A(f"v_lshl_add_u32 v{vT0}, v{vW_}, 5, v{vT0}")
    A(f"v_lshlrev_b32 v{vT0}, 11, v{vT0}")
    A(f"v_lshrrev_b32 v{vT1}, 4, v{vL}")
    A(f"v_and_b32 v5, 7, v{vL}")
    A(f"v_xor_b32 v5, v5, v{vT1}")
    A(f"v_lshl_add_u32 v{vXd}, v5, 4, v{vT0}")
    A(f"v_xor_b32 v{vXd+1}, 64, v{vXd}")
    A(f"v_add_u32 v{vXd+1}, {16384-1024}, v{vXd+1}")
    A(f"v_add_u32 v{vXd+2}, {2*(16384-1024)}, v{vXd}")
    A(f"v_add_u32 v{vXd+3}, {2*(16384-1024)}, v{vXd+1}")
    A(f"v_lshl_add_u32 v{vT0}, v{vW_}, 4, v{vT1}")
    A(f"v_lshlrev_b32 v{vT0}, 11, v{vT0}")
    A(f"v_lshlrev_b32 v{vT1}, 2, v{vT1}")
    A(f"v_and_b32 v5, 15, v{vL}")
    A(f"v_xor_b32 v5, v5, v{vT1}")
    A(f"v_lshl_add_u32 v{vWd}, v5, 4, v{vT0}")
    for t in range(1, 4):
        A(f"v_add_u32 v{vWd+t}, {t*(8192-1024)}, v{vWd}")
    A("s_waitcnt lgkmcnt(0)")
    A("s_cmp_eq_u32 s28, 1")
    A("s_cselect_b64 s[6:7], s[24:25], s[6:7]")
    srd(A, 8, 4, 5, 2048*1024*2)
    srd(A, 12, 6, 7, 1024*1024*2)
    srd(A, 16, 26, 27, WS_USED)
    A("s_lshl_b32 s32, s29, 18")
    A("s_lshl_b32 s33, s30, 8")
    A("s_movk_i32 s34, 128")
    A("s_mov_b32 s35, 0x20000")
    A("s_lshl_b32 s36, s20, 12")
    A("s_mov_b32 s37, 0")
    def dma_item(interleave=None):
        I = []
        I.append("s_add_u32 m0, s37, s36")
        I.append("s_nop 0")
        for t in range(4):
            I.append(f"buffer_load_dwordx4 v{vXd+t}, s[8:11], s32 offen offset:{1024*t} lds")
        I.append("s_add_u32 m0, m0, 0x4000")
        I.append("s_add_u32 s32, s32, s34")
        for t in range(4):
            I.append(f"buffer_load_dwordx4 v{vWd+t}, s[12:15], s33 offen offset:{1024*t} lds")
        I.append("s_add_u32 s33, s33, s35")
        I.append("s_add_u32 s37, s37, 0x8000")
        I.append("s_and_b32 s37, s37, 0x1ffff")
        return I
    for it in range(3):
        for x in dma_item(): A(x)
    A("s_lshr_b32 s22, s20, 1")
    A("s_and_b32 s21, s20, 1")
    A(f"v_bfe_u32 v{vT0}, v{vL}, 1, 3")
    A(f"v_xor_b32 v{vT0}, v{vT0}, v{vH}")
    A(f"v_lshlrev_b32 v{vT0}, 4, v{vT0}")
    A(f"v_lshl_add_u32 v{vT0}, v{vL31}, 7, v{vT0}")
    A(f"s_lshl_b32 s38, s22, 13")
    A(f"v_add_u32 v{vXr}, s38, v{vT0}")
    for s in range(1, 4):
        A(f"v_xor_b32 v{vXr+s}, {(2*s) << 4}, v{vXr}")
    A(f"v_bfe_u32 v{vT0}, v{vL}, 2, 2")
    A(f"v_lshl_add_u32 v{vT1}, v{vH}, 3, v{vT0}")
    A(f"v_lshlrev_b32 v{vT1}, 8, v{vT1}")
    A(f"s_lshl_b32 s38, s21, 1")
    A(f"v_xor_b32 v{vT0}, s38, v{vT0}")
    A(f"v_lshl_add_u32 v{vT1}, v{vT0}, 6, v{vT1}")
    A(f"v_bfe_u32 v{vT0}, v{vL}, 4, 1")
    A(f"v_lshl_add_u32 v{vT1}, v{vT0}, 5, v{vT1}")
    A(f"v_and_b32 v{vT0}, 3, v{vL}")
    A(f"v_lshl_add_u32 v{vT1}, v{vT0}, 3, v{vT1}")
    A(f"v_add_u32 v{vWr}, 0x4000, v{vT1}")
    A(f"v_xor_b32 v{vWr+1}, 64, v{vWr}")
    for i in range(64):
        A(f"v_mov_b32 v{ACC+i}, 0")
    for i in range(16):
        A(f"v_mov_b32 v{FR+16+i}, 0")
    A("s_mov_b32 s39, 0")
    def rd_frags(s):
        p = FR + 16*(s % 2)
        I = []
        I.append(f"ds_read_b128 {vr(p,4)}, v{vXr+s}")
        I.append(f"ds_read_b64_tr_b16 {vr(p+8,2)}, v{vWr} offset:{4096*s}")
        I.append(f"ds_read_b64_tr_b16 {vr(p+10,2)}, v{vWr} offset:{4096*s+1024}")
        I.append(f"ds_read_b128 {vr(p+4,4)}, v{vXr+s} offset:4096")
        I.append(f"ds_read_b64_tr_b16 {vr(p+12,2)}, v{vWr+1} offset:{4096*s}")
        I.append(f"ds_read_b64_tr_b16 {vr(p+14,2)}, v{vWr+1} offset:{4096*s+1024}")
        return I
    def mfmas(s):
        p = FR + 16*(s % 2)
        I = []
        for (a, t) in ((0, 0), (0, 1), (1, 0), (1, 1)):
            u = 2*a + t
            I.append(f"v_mfma_f32_32x32x16_bf16 {vr(ACC+16*u,16)}, {vr(p+8+4*a,4)}, {vr(p+4*t,4)}, {vr(ACC+16*u,16)}")
        return I
    A.raw(".p2align 6")
    A.label("L_at_gemm")
    A("s_waitcnt vmcnt(16) lgkmcnt(0)")
    A("s_barrier")
    A("s_cmp_lg_u32 s39, 13")
    A("s_cbranch_scc1 L_at_noswitch")
    A("s_lshl_b32 s40, s28, 18")
    A("s_add_u32 s8, s26, s40")
    A("s_addc_u32 s9, s27, 0")
    if WS_KV:
        A(f"s_add_u32 s8, s8, {WS_KV}")
        A("s_addc_u32 s9, s9, 0")
    A("s_mov_b32 s10, 0x40000")
    A("s_mov_b32 s12, s8")
    A("s_mov_b32 s13, s9")
    A("s_mov_b32 s14, 0x40000")
    A("s_mov_b32 s32, 0")
    A("s_mov_b32 s33, 0x4000")
    A("s_mov_b32 s34, 0x8000")
    A("s_mov_b32 s35, 0x8000")
    for t in range(4):
        A(f"v_add_u32 v{vXd+t}, s36, v{vLane16}")
        A(f"v_add_u32 v{vWd+t}, s36, v{vLane16}")
    A.label("L_at_noswitch")
    D = dma_item()
    for s in range(4):
        R = rd_frags(s)
        M = mfmas((s + 3) % 4)
        if s > 0:
            A("s_waitcnt lgkmcnt(0)")
        seq = []
        if s == 0:
            for x in R: A(x)
            nd = 0
            for m in M:
                A(m)
                for _ in range(2):
                    if D: A(D.pop(0))
        else:
            for k, m in enumerate(M):
                A(m)
                if k < 3:
                    A(R[2*k]); A(R[2*k+1])
                for _ in range(1 if k < 3 else 2):
                    if D: A(D.pop(0))
    while D: A(D.pop(0))
    for rg in (vXr, vXr+1, vXr+2, vXr+3, vWr, vWr+1):
        A(f"v_add_u32 v{rg}, 0x8000, v{rg}")
        A(f"v_and_b32 v{rg}, 0x1ffff, v{rg}")
    A("s_add_u32 s39, s39, 1")
    A("s_cmp_lt_u32 s39, 16")
    A("s_cbranch_scc1 L_at_gemm")
    A("s_waitcnt vmcnt(16) lgkmcnt(0)")
    A("s_barrier")
    for m in mfmas(3): A(m)
    for x in dma_item(): A(x)
    A(f"v_lshlrev_b32 v{vT0}, 2, v{vL31}")
    A("s_lshl_b32 s40, s29, 9")
    A("s_lshl_b32 s41, s22, 8")
    A("s_add_u32 s40, s40, s41")
    A(f"s_add_u32 s40, s40, {WS_G}")
    A(f"buffer_load_dword v{vG}, v{vT0}, s[16:19], s40 offen")
    A(f"buffer_load_dword v{vG+1}, v{vT0}, s[16:19], s40 offen offset:128")
    A(f"v_mov_b32 v{vKV}, v{vLane16}")
    A(f"ds_read_b128 {ar(KB0,4)}, v{vKV}")
    A(f"ds_read_b128 {ar(KB0+4,4)}, v{vKV} offset:1024")
    A(f"ds_read_b128 {ar(VB0,4)}, v{vKV} offset:2048")
    A(f"ds_read_b128 {ar(VB0+4,4)}, v{vKV} offset:3072")
    A(f"v_mov_b32 v{vIDX}, 0xdddddddd")
    A(f"v_bfe_u32 v{vT0}, v{vL}, 2, 1")
    A(f"v_cmp_eq_u32 vcc, 0, v{vT0}")
    A(f"v_mov_b32 v{vT1}, 0x3f803f80")
    A("s_nop 1")
    A(f"v_cndmask_b32 v{vT0}, 0, v{vT1}, vcc")
    A(f"v_cndmask_b32 v{vT1}, v{vT1}, 0, vcc")
    A(f"v_accvgpr_write_b32 a{SEL}, v{vT0}")
    A(f"v_accvgpr_write_b32 a{SEL+1}, v{vT0}")
    A(f"v_accvgpr_write_b32 a{SEL+2}, v{vT1}")
    A(f"v_accvgpr_write_b32 a{SEL+3}, v{vT1}")
    for i in range(16):
        A(f"v_accvgpr_write_b32 a{L0+i}, 0")
    for i in range(8):
        A(f"v_accvgpr_write_b32 a{VB0+8+i}, 0")
    for i in range(64):
        A(f"v_mov_b32 v{O0+i}, 0")
    for u in range(4):
        for j in range(8):
            A(f"v_cvt_pk_bf16_f32 v{Q0+8*u+j}, v{ACC+16*u+2*j}, v{ACC+16*u+2*j+1}")
    A("s_waitcnt lgkmcnt(0)")
    for u in range(4):
        A(f"v_mfma_f32_32x32x16_bf16 {vr(S0+16*u,16)}, {ar(KB0,4)}, {vr(Q0+8*u,4)}, 0")
    for u in range(4):
        A(f"v_mfma_f32_32x32x16_bf16 {vr(S0+16*u,16)}, {ar(KB0+4,4)}, {vr(Q0+8*u+4,4)}, {vr(S0+16*u,16)}")
    A("s_nop 15")
    def max_to_C(u, src, first=True):
        b = src
        A(f"v_max3_f32 v{b}, v{b}, v{b+1}, v{b+2}")
        for j in range(3, 15, 2):
            A(f"v_max3_f32 v{b}, v{b}, v{b+j}, v{b+j+1}")
        A(f"v_max_f32 v{b}, v{b}, v{b+15}")
    def fill_C(u, b):
        A(f"v_mov_b32 v{b+1}, v{b}")
        A("s_nop 1")
        A(f"v_permlane32_swap_b32 v{b}, v{b+1}")
        A("s_nop 1")
        A(f"v_max_f32 v{b}, v{b}, v{b+1}")
        A(f"v_sub_f32 v{C0+16*u}, 0, v{b}")
        A(f"v_sub_f32 v{C0+16*u+1}, 0, v{b}")
        for j in range(2, 16, 2):
            A(f"v_mov_b64 {vr(C0+16*u+j,2)}, {vr(C0+16*u,2)}")
    for u in range(4):
        max_to_C(u, S0+16*u)
    for u in range(4):
        fill_C(u, S0+16*u)
    for i in range(16):
        A(f"v_mov_b32 v{S0+48+i}, 0")
    A("s_nop 1")
    A(f"v_mfma_f32_32x32x16_bf16 {vr(S0,16)}, {ar(KB0,4)}, {vr(Q0,4)}, {vr(C0,16)}")
    A(f"v_mfma_f32_32x32x16_bf16 {vr(S0,16)}, {ar(KB0+4,4)}, {vr(Q0+4,4)}, {vr(S0,16)}")
    A("s_mov_b32 s39, 0")
    A("s_mov_b32 s42, 0")
    A("s_nop 15")
    def PV(u0, p0):
        return [
            f"v_smfmac_f32_32x32x32_bf16 {vr(O0+16*u0,16)}, {ar(VB0+8*p0,4)}, {vr(S0+16*u0,8)}, v{vIDX}",
            f"v_smfmac_f32_32x32x32_bf16 {vr(O0+16*u0,16)}, {ar(VB0+8*p0+4,4)}, {vr(S0+16*u0+8,8)}, v{vIDX}",
            f"v_smfmac_f32_16x16x64_bf16 {ar(L0+4*u0,4)}, {ar(SEL,4)}, {vr(S0+16*u0,8)}, v{vIDX}",
            f"v_smfmac_f32_16x16x64_bf16 {ar(L0+4*u0,4)}, {ar(SEL,4)}, {vr(S0+16*u0+8,8)}, v{vIDX}",
        ]
    A.raw(".p2align 6")
    A.label("L_at_loop")
    for i in range(8):
        for u in range(4):
            u1 = (u + 1) % 4; i1 = i + (1 if u == 3 else 0)
            u0 = (u + 3) % 4; i0 = i - (1 if u == 0 else 0)
            P = PV(u0, i0 % 2)
            M = [
                f"v_mfma_f32_32x32x16_bf16 {vr(S0+16*u1,16)}, {ar(KB0+8*(i1%2),4)}, {vr(Q0+8*u1,4)}, {vr(C0+16*u1,16)}",
                P[0],
                f"v_mfma_f32_32x32x16_bf16 {vr(S0+16*u1,16)}, {ar(KB0+8*(i1%2)+4,4)}, {vr(Q0+8*u1+4,4)}, {vr(S0+16*u1,16)}",
                P[1], P[2], P[3],
            ]
            X = [[] for _ in range(6)]
            tt = (i + 1) % 8
            pn = (i + 1) % 2
            if i == 7 and u == 0:
                A("s_waitcnt vmcnt(16) lgkmcnt(0)")
                A("s_barrier")
                A("s_add_u32 s42, s42, 0x8000")
                A("s_and_b32 s42, s42, 0x1ffff")
                A(f"v_add_u32 v{vKV}, s42, v{vLane16}")
            if u == 0:
                X[1].append(f"ds_read_b128 {ar(KB0+8*pn,4)}, v{vKV} offset:{4096*tt}")
                X[3].append(f"ds_read_b128 {ar(KB0+8*pn+4,4)}, v{vKV} offset:{4096*tt+1024}")
            if u == 1:
                X[0].append("s_waitcnt lgkmcnt(2)")
            if u == 2:
                X[1].append(f"ds_read_b128 {ar(VB0+8*pn,4)}, v{vKV} offset:{4096*tt+2048}")
                X[3].append(f"ds_read_b128 {ar(VB0+8*pn+4,4)}, v{vKV} offset:{4096*tt+3072}")
                X[5].append("s_waitcnt lgkmcnt(2)")
            if i == 7:
                if u == 0:
                    X[2].append("s_add_u32 m0, s37, s36")
                    X[4].append(f"buffer_load_dwordx4 v{vXd}, s[8:11], s32 offen lds")
                    X[5].append(f"buffer_load_dwordx4 v{vXd+1}, s[8:11], s32 offen offset:1024 lds")
                if u == 1:
                    X[1].append(f"buffer_load_dwordx4 v{vXd+2}, s[8:11], s32 offen offset:2048 lds")
                    X[3].append(f"buffer_load_dwordx4 v{vXd+3}, s[8:11], s32 offen offset:3072 lds")
                    X[4].append("s_add_u32 m0, m0, 0x4000")
                    X[4].append("s_add_u32 s32, s32, s34")
                    X[5].append(f"buffer_load_dwordx4 v{vWd}, s[12:15], s33 offen lds")
                if u == 2:
                    X[4].append(f"buffer_load_dwordx4 v{vWd+1}, s[12:15], s33 offen offset:1024 lds")
                if u == 3:
                    X[1].append(f"buffer_load_dwordx4 v{vWd+2}, s[12:15], s33 offen offset:2048 lds")
                    X[3].append(f"buffer_load_dwordx4 v{vWd+3}, s[12:15], s33 offen offset:3072 lds")
                    X[4].append("s_add_u32 s33, s33, s35")
                    X[4].append("s_add_u32 s37, s37, 0x8000")
                    X[5].append("s_and_b32 s37, s37, 0x1ffff")
                    X[5].append("s_add_u32 s39, s39, 1")
            E = [f"v_exp_f32 v{S0+16*u+j}, v{S0+16*u+j}" for j in range(16)]
            ne = [3, 3, 3, 3, 2, 2]
            for k in range(6):
                A(M[k])
                for x in X[k]: A(x)
                for _ in range(ne[k]): A(E.pop(0))
    A("s_cmp_lt_u32 s39, 8")
    A("s_cbranch_scc1 L_at_loop")
    A("s_nop 1")
    for x in PV(3, 1): A(x)
    A.label("L_at_fin")
    A("s_nop 15")
    A("s_nop 3")
    for u in range(4):
        A(f"v_accvgpr_read_b32 v{S0+u}, a{L0+4*u}")
    A(f"v_add_f32 v{vT1}, v{S0}, v{S0+1}")
    A(f"v_add_f32 v{vT0}, v{S0+2}, v{S0+3}")
    A(f"v_add_f32 v{vT0}, v{vT0}, v{vT1}")
    A(f"v_mov_b32 v{vT1}, 0x4e800000")
    A(f"v_cmp_nlt_f32 vcc, v{vT0}, v{vT1}")
    A("s_nop 4")
    A("s_cmp_lg_u64 vcc, 0")
    A("s_cbranch_scc1 L_at_slow")
    A.label("L_at_store")
    A("s_waitcnt vmcnt(0)")
    A("s_cmp_eq_u32 s28, 0")
    A("s_cbranch_scc1 L_at_gate_ok")
    A(f"v_sub_f32 v{vG}, 1.0, v{vG}")
    A(f"v_sub_f32 v{vG+1}, 1.0, v{vG+1}")
    A.label("L_at_gate_ok")
    for u in range(4):
        A(f"v_rcp_f32 v{S0+u}, v{S0+u}")
    A("s_nop 0")
    for u in range(4):
        A(f"v_mul_f32 v{S0+u}, v{S0+u}, v{vG+(u&1)}")
    A("s_lshl_b32 s40, s29, 2")
    A("s_lshl_b32 s41, s22, 1")
    A("s_add_u32 s40, s40, s41")
    A("s_lshl_b32 s40, s40, 17")
    A("s_lshl_b32 s41, s28, 5")
    A("s_lshl_b32 s43, s30, 2")
    A("s_add_u32 s41, s41, s43")
    A("s_lshl_b32 s43, s21, 1")
    A("s_add_u32 s41, s41, s43")
    A("s_lshl_b32 s41, s41, 11")
    A("s_add_u32 s40, s40, s41")
    A(f"s_add_u32 s40, s40, {WS_OF}")
    A("s_add_u32 s41, s40, 0x20000")
    for u in range(4):
        a, t = u >> 1, u & 1
        for j in range(16):
            A(f"v_mul_f32 v{O0+16*u+j}, v{O0+16*u+j}, v{S0+u}")
        for j in range(8):
            A(f"v_cvt_pk_bf16_f32 v{C0+8*u+j}, v{O0+16*u+2*j}, v{O0+16*u+2*j+1}")
        for f in range(2):
            A(f"buffer_store_dwordx4 {vr(C0+8*u+4*f,4)}, v{vLane16}, s[16:19], s{40+t} offen offset:{2048*a+1024*f}")
    A("s_endpgm")
    A.label("L_at_slow")
    A("s_waitcnt vmcnt(0) lgkmcnt(0)")
    for u in range(4):
        A(f"v_mov_b32 v{O0+u}, 0xff7fffff")
    A("s_mov_b32 s39, 0")
    A.label("L_at_slow1")
    A(f"buffer_load_dwordx4 {ar(KB0,4)}, v{vLane16}, s[8:11], s39 offen")
    A(f"buffer_load_dwordx4 {ar(KB0+4,4)}, v{vLane16}, s[8:11], s39 offen offset:1024")
    A("s_waitcnt vmcnt(0)")
    for u in range(4):
        A(f"v_mfma_f32_32x32x16_bf16 {vr(S0+16*u,16)}, {ar(KB0,4)}, {vr(Q0+8*u,4)}, 0")
    for u in range(4):
        A(f"v_mfma_f32_32x32x16_bf16 {vr(S0+16*u,16)}, {ar(KB0+4,4)}, {vr(Q0+8*u+4,4)}, {vr(S0+16*u,16)}")
    A("s_nop 15")
    for u in range(4):
        for j in range(0, 16, 2):
            A(f"v_max3_f32 v{O0+u}, v{O0+u}, v{S0+16*u+j}, v{S0+16*u+j+1}")
    A("s_add_u32 s39, s39, 0x1000")
    A("s_cmp_lt_u32 s39, 0x40000")
    A("s_cbranch_scc1 L_at_slow1")
    for u in range(4):
        A(f"v_mov_b32 v{S0+16*u}, v{O0+u}")
        fill_C(u, S0+16*u)
    for i in range(16):
        A(f"v_accvgpr_write_b32 a{L0+i}, 0")
    for i in range(64):
        A(f"v_mov_b32 v{O0+i}, 0")
    A("s_mov_b32 s39, 0")
    A.label("L_at_slow2")
    A(f"buffer_load_dwordx4 {ar(KB0,4)}, v{vLane16}, s[8:11], s39 offen")
    A(f"buffer_load_dwordx4 {ar(KB0+4,4)}, v{vLane16}, s[8:11], s39 offen offset:1024")
    A(f"buffer_load_dwordx4 {ar(VB0,4)}, v{vLane16}, s[8:11], s39 offen offset:2048")
    A(f"buffer_load_dwordx4 {ar(VB0+4,4)}, v{vLane16}, s[8:11], s39 offen offset:3072")
    A("s_waitcnt vmcnt(0)")
    for u in range(4):
        A(f"v_mfma_f32_32x32x16_bf16 {vr(S0+16*u,16)}, {ar(KB0,4)}, {vr(Q0+8*u,4)}, {vr(C0+16*u,16)}")
    for u in range(4):
        A(f"v_mfma_f32_32x32x16_bf16 {vr(S0+16*u,16)}, {ar(KB0+4,4)}, {vr(Q0+8*u+4,4)}, {vr(S0+16*u,16)}")
    A("s_nop 15")
    for j in range(64):
        A(f"v_exp_f32 v{S0+j}, v{S0+j}")
    A("s_nop 1")
    for u in range(4):
        for x in PV(u, 0): A(x)
    A("s_nop 15")
    A("s_add_u32 s39, s39, 0x1000")
    A("s_cmp_lt_u32 s39, 0x40000")
    A("s_cbranch_scc1 L_at_slow2")
    A("s_nop 15")
    for u in range(4):
        A(f"v_accvgpr_read_b32 v{S0+u}, a{L0+4*u}")
    A("s_branch L_at_store")
    A.label("L_at_end")
    A("s_endpgm")
    return kernel_desc(name, 256 + 52, 256, 64)

def gen_out(A):
    name = "out_kernel"
    kernel_header(A, name)
    NSLOT = 6
    SLOT = 24576
    vL, vH, vL31, vW_ = 1, 2, 3, 4
    vOd, vWd = 8, 9
    vOr, vWr = 12, 13
    vOr0, vWr0 = 14, 15
    vT0, vT1 = 16, 17
    ACC = 32
    FR = 64
    A("s_cmp_ge_u32 s2, 256")
    A("s_cbranch_scc1 L_o_end")
    A("s_load_dwordx2 s[4:5], s[0:1], 32")
    A("s_load_dwordx2 s[6:7], s[0:1], 72")
    A("s_load_dwordx2 s[24:25], s[0:1], 88")
    A("s_load_dwordx2 s[26:27], s[0:1], 104")
    A("s_and_b32 s28, s2, 1")
    A("s_bfe_u32 s29, s2, 0x20001")
    A("s_bfe_u32 s30, s2, 0x20003")
    A("s_lshl_b32 s29, s29, 2")
    A("s_add_u32 s29, s29, s30")
    A("s_lshr_b32 s30, s2, 5")
    A("s_lshl_b32 s28, s28, 3")
    A("s_add_u32 s30, s30, s28")
    A(f"v_lshrrev_b32 v{vW_}, 6, v0")
    A(f"v_and_b32 v{vL}, 63, v0")
    A(f"v_readfirstlane_b32 s20, v{vW_}")
    A(f"v_lshrrev_b32 v{vH}, 5, v{vL}")
    A(f"v_and_b32 v{vL31}, 31, v{vL}")
    A(f"v_lshlrev_b32 v{vOd}, 4, v{vL}")
    A(f"v_lshrrev_b32 v{vT0}, 3, v{vL}")
    A(f"v_lshl_add_u32 v{vT0}, v{vW_}, 4, v{vT0}")
    A(f"v_lshlrev_b32 v{vT0}, 11, v{vT0}")
    A(f"v_bfe_u32 v{vT1}, v{vL}, 4, 1")
    A(f"v_lshlrev_b32 v{vT1}, 2, v{vT1}")
    A(f"v_and_b32 v5, 7, v{vL}")
    A(f"v_xor_b32 v5, v5, v{vT1}")
    A(f"v_lshl_add_u32 v{vWd}, v5, 4, v{vT0}")
    A(f"v_add_u32 v{vWd+1}, {16384-1024}, v{vWd}")
    A("s_waitcnt lgkmcnt(0)")
    srd(A, 8, 26, 27, WS_USED)
    srd(A, 12, 4, 5, 1024*1024*2)
    srd(A, 16, 24, 25, 2048*1024*2)
    A("s_lshl_b32 s32, s29, 2")
    A("s_add_u32 s32, s32, s20")
    A("s_lshl_b32 s32, s32, 17")
    A(f"s_add_u32 s32, s32, {WS_OF}")
    A("s_lshl_b32 s33, s30, 7")
    A("s_mov_b32 s31, s33")
    A("s_lshl_b32 s36, s20, 12")
    A("s_lshl_b32 s35, s20, 11")
    A("s_add_u32 s35, s35, 0x4000")
    A("s_mov_b32 s37, 0")
    A("s_mov_b32 s38, 0")
    def dma_item():
        I = []
        I.append("s_add_u32 m0, s37, s36")
        I.append("s_nop 0")
        for t in range(4):
            I.append(f"buffer_load_dwordx4 v{vOd}, s[8:11], s32 offen offset:{1024*t} lds")
        I.append("s_add_u32 m0, s37, s35")
        I.append("s_add_u32 s32, s32, 0x1000")
        for t in range(2):
            I.append(f"buffer_load_dwordx4 v{vWd+t}, s[12:15], s33 offen offset:{1024*t} lds")
        I.append("s_add_u32 s33, s33, 0x20000")
        I.append(f"s_add_u32 s37, s37, {SLOT}")
        I.append(f"s_cmp_eq_u32 s37, {SLOT*NSLOT}")
        I.append("s_cselect_b32 s37, 0, s37")
        I.append("s_add_u32 s38, s38, 1")
        I.append("s_cmp_eq_u32 s38, 16")
        I.append("s_cselect_b32 s12, s6, s12")
        I.append("s_cselect_b32 s13, s7, s13")
        I.append("s_cselect_b32 s33, s31, s33")
        I.append("s_cmp_eq_u32 s38, 32")
        I.append("s_cselect_b32 s10, 0, s10")
        return I
    for it in range(NSLOT - 1):
        for x in dma_item(): A(x)
    A("s_lshr_b32 s22, s20, 1")
    A("s_and_b32 s21, s20, 1")
    A("s_lshl_b32 s40, s22, 13")
    A(f"v_add_u32 v{vOr0}, s40, v{vOd}")
    A(f"v_bfe_u32 v{vT0}, v{vL}, 2, 2")
    A(f"v_lshl_add_u32 v{vT1}, v{vH}, 2, v{vT0}")
    A(f"v_lshlrev_b32 v{vT1}, 7, v{vT1}")
    A(f"v_bfe_u32 v{vT0}, v{vL}, 3, 1")
    A(f"v_xor_b32 v{vT0}, s21, v{vT0}")
    A(f"v_lshl_add_u32 v{vT1}, v{vT0}, 6, v{vT1}")
    A(f"v_bfe_u32 v{vT0}, v{vL}, 4, 1")
    A(f"v_lshl_add_u32 v{vT1}, v{vT0}, 5, v{vT1}")
    A(f"v_and_b32 v{vT0}, 1, v{vL}")
    A(f"v_lshl_add_u32 v{vT1}, v{vT0}, 4, v{vT1}")
    A(f"v_bfe_u32 v{vT0}, v{vL}, 1, 1")
    A(f"v_lshl_add_u32 v{vT1}, v{vT0}, 3, v{vT1}")
    A(f"v_add_u32 v{vWr0}, 0x4000, v{vT1}")
    for i in range(32):
        A(f"v_mov_b32 v{ACC+i}, 0")
    for i in range(12):
        A(f"v_mov_b32 v{FR+12+i}, 0")
    A("s_mov_b32 s39, 0")
    A("s_mov_b32 s42, 0")
    def rd_frags(s):
        p = FR + 12*(s % 2)
        return [
            f"ds_read_b64_tr_b16 {vr(p+8,2)}, v{vWr} offset:{2048*s}",
            f"ds_read_b64_tr_b16 {vr(p+10,2)}, v{vWr} offset:{2048*s+1024}",
            f"ds_read_b128 {vr(p,4)}, v{vOr} offset:{1024*s}",
            f"ds_read_b128 {vr(p+4,4)}, v{vOr} offset:{1024*s+4096}",
        ]
    def mfmas(s):
        p = FR + 12*(s % 2)
        return [f"v_mfma_f32_32x32x16_bf16 {vr(ACC+16*t,16)}, {vr(p+8,4)}, {vr(p+4*t,4)}, {vr(ACC+16*t,16)}" for t in range(2)]
    A.raw(".p2align 6")
    A.label("L_o_loop")
    A(f"v_add_u32 v{vOr}, s42, v{vOr0}")
    A(f"v_add_u32 v{vWr}, s42, v{vWr0}")
    A(f"s_waitcnt vmcnt({6*(NSLOT-2)}) lgkmcnt(0)")
    A("s_barrier")
    D = dma_item()
    for s in range(4):
        R = rd_frags(s); M = mfmas((s + 3) % 4)
        if s > 0: A("s_waitcnt lgkmcnt(0)")
        if s == 0:
            for x in R: A(x)
            for m in M:
                A(m)
                for _ in range(3):
                    if D: A(D.pop(0))
        else:
            for k, m in enumerate(M):
                A(m)
                A(R[2*k]); A(R[2*k+1])
                for _ in range(3):
                    if D: A(D.pop(0))
    while D: A(D.pop(0))
    A(f"s_add_u32 s42, s42, {SLOT}")
    A(f"s_cmp_eq_u32 s42, {SLOT*NSLOT}")
    A("s_cselect_b32 s42, 0, s42")
    A("s_add_u32 s39, s39, 1")
    A("s_cmp_lt_u32 s39, 32")
    A("s_cbranch_scc1 L_o_loop")
    A("s_waitcnt lgkmcnt(0)")
    for m in mfmas(3): A(m)
    A(f"v_lshlrev_b32 v{vT0}, 11, v{vL31}")
    A(f"v_lshl_add_u32 v{vT0}, v{vH}, 4, v{vT0}")
    A("s_lshl_b32 s40, s29, 18")
    A("s_lshl_b32 s41, s22, 17")
    A("s_add_u32 s40, s40, s41")
    A("s_lshl_b32 s41, s30, 7")
    A("s_add_u32 s40, s40, s41")
    A("s_lshl_b32 s41, s21, 6")
    A("s_add_u32 s40, s40, s41")
    A("s_add_u32 s41, s40, 0x10000")
    A("s_nop 15")
    for t in range(2):
        for j in range(8):
            A(f"v_cvt_pk_bf16_f32 v{FR+8*t+j}, v{ACC+16*t+2*j}, v{ACC+16*t+2*j+1}")
        for f in range(2):
            A(f"buffer_store_dwordx4 {vr(FR+8*t+4*f,4)}, v{vT0}, s[16:19], s{40+t} offen offset:{32*f}")
    A("s_waitcnt vmcnt(0)")
    A.label("L_o_end")
    A("s_endpgm")
    return kernel_desc(name, 96, 96, 64)

def main(path):
    ref = open("cdna_kernels/" + NAME + ".s.ref").read().split("\n")
    hdr = [l for l in ref if l.startswith(";") and "@launch" not in l and "Override" not in l and "grid=ceil" not in l]
    A = Asm()
    for l in hdr: A.raw(l)
    A.raw("; @launch kernel=kv_kernel grid=(256,1,1) block=(256,1,1) lds=131072")
    A.raw("; @launch kernel=attn_kernel grid=(256,1,1) block=(256,1,1) lds=131072")
    A.raw("; @launch kernel=out_kernel grid=(256,1,1) block=(256,1,1) lds=147456")
    A.raw('.amdgcn_target "amdgcn-amd-amdhsa--gfx950"')
    A.raw(".text")
    descs = [gen_kv(A), gen_attn(A), gen_out(A)]
    A.raw('.section .rodata,"a"')
    for d in descs:
        A.raw(".p2align 6")
        A.raw(d)
    open(path, "w").write(A.text())

if __name__ == "__main__":
    main(sys.argv[1] if len(sys.argv) > 1 else "cdna_kernels/" + NAME + ".s")
```

```python
import sys, math, struct, os
from asmlib import *

NAME = "gated_mix__grouped_kv_mqa__grouped_kv_mqa__prompt"
WS_KV = 0
WS_G = 0x80000
WS_OF = 0x100000
WS_USED = 0x900000
STAMP = os.environ.get("STAMP", "0") == "1"
VAR = os.environ.get("VAR", "")
WS_ST = 0xA00000

FINE = os.environ.get("FINE", "0") == "1"
def fstamp(A, k):
    if FINE: _stamp(A, k)
def stamp(A, k):
    if FINE and k not in (0,): return
    _stamp(A, k)
def _stamp(A, k):
    if not STAMP: return
    A("s_waitcnt lgkmcnt(0)")
    A(f"s_memtime s[96:97]")
    A(f"s_memrealtime s[98:99]")
    A("s_waitcnt lgkmcnt(0)")
    A(f"s_mov_b32 s{76+k}, s96")
    A(f"s_mov_b32 s{84+k}, s98")
def stamp_flush(A, kern, n, wsl, wsh, wave_sgpr):
    if not STAMP: return
    A(f"s_mov_b32 s92, s{wsl}")
    A(f"s_mov_b32 s93, s{wsh}")
    A(f"s_mov_b32 s94, {WS_ST + 0x40000}")
    A("s_mov_b32 s95, 0x00020000")
    A("s_lshl_b32 s96, s2, 2")
    A(f"s_add_u32 s96, s96, s{wave_sgpr}")
    A("s_lshl_b32 s96, s96, 6")
    A(f"s_add_u32 s96, s96, {WS_ST + kern*0x10000}")
    A("v_mov_b32 v1, 0")
    for k in range(n):
        A(f"v_mov_b32 v2, s{76+k}")
        A(f"buffer_store_dword v2, v1, s[92:95], s96 offen offset:{4*k}")
        A("s_nop 1")
        A(f"v_mov_b32 v2, s{84+k}")
        A(f"buffer_store_dword v2, v1, s[92:95], s96 offen offset:{32+4*k}")
        A("s_nop 1")

def f32bits(x):
    return struct.unpack("<I", struct.pack("<f", x))[0]
KSCALE = f32bits(math.log2(math.e) / math.sqrt(32.0))
LOG2E = f32bits(math.log2(math.e))

def weave(A, M, streams):
    for k, m in enumerate(M):
        A(m)
        for items, q in streams:
            for _ in range(q(k)):
                if items:
                    x = items.pop(0)
                    if isinstance(x, (list, tuple)):
                        for y in x: A(y)
                    else: A(x)
    for items, q in streams:
        while items:
            x = items.pop(0)
            if isinstance(x, (list, tuple)):
                for y in x: A(y)
            else: A(x)

LDS_SCR = 0x20000
LDS_DUMMY = 0x20000 + 0x4800
LDS_ATTN = LDS_DUMMY + 0x400

def gen_attn(A):
    name = "attn_kernel"
    kernel_header(A, name)
    S0, C0, O0, Q0 = 32, 96, 160, 224
    L0, KB0, VB0, SEL, GF, FR = 0, 16, 32, 48, 64, 128
    vL, vH, vL31, vW_ = 1, 2, 3, 4
    vXd, vWd = 8, 12
    vXr, vWr = 16, 20
    vKV, vIDX, vT0, vT1, vG = 22, 23, 24, 25, 26
    vLane16, vLin, vPoll, vT2 = 28, 29, 30, 31
    ACC = S0
    PACC, GACC = Q0, Q0 + 16
    vPd, vPr, vPw = C0, C0 + 4, C0 + 8
    vRed = C0 + 12
    A("s_cmp_ge_u32 s2, 256")
    A("s_cbranch_scc1 L_at_end")
    stamp(A, 0)
    A("s_load_dwordx8 s[4:11], s[0:1], 0")
    A("s_load_dwordx2 s[64:65], s[0:1], 32")
    A("s_load_dwordx8 s[12:19], s[0:1], 48")
    A("s_load_dwordx2 s[66:67], s[0:1], 80")
    A("s_load_dwordx4 s[24:27], s[0:1], 96")
    A("s_and_b32 s28, s2, 1")
    A("s_bfe_u32 s29, s2, 0x20001")
    A("s_bfe_u32 s30, s2, 0x20003")
    A("s_lshl_b32 s29, s29, 2")
    A("s_add_u32 s29, s29, s30")
    A("s_lshr_b32 s30, s2, 5")
    A("s_lshr_b32 s31, s2, 7")
    A("s_and_b32 s23, s30, 3")
    A("s_lshl_b32 s33, s29, 2")
    A("s_add_u32 s33, s33, s23")
    A("s_lshl_b32 s34, s31, 1")
    A("s_add_u32 s34, s34, s23")
    A("s_and_b32 s34, s34, 3")
    A("s_and_b32 s37, s29, 3")
    A("s_lshl_b32 s37, s37, 1")
    A("s_add_u32 s37, s37, s30")
    A("s_lshl_b32 s37, s37, 1")
    A("s_and_b32 s37, s37, 15")
    A("s_lshl_b32 s38, s29, 18")
    A("s_lshl_b32 s39, s30, 8")
    A(f"v_lshrrev_b32 v{vW_}, 6, v0")
    A(f"v_and_b32 v{vL}, 63, v0")
    A(f"v_readfirstlane_b32 s20, v{vW_}")
    A(f"v_lshrrev_b32 v{vH}, 5, v{vL}")
    A(f"v_and_b32 v{vL31}, 31, v{vL}")
    A(f"v_lshlrev_b32 v{vLane16}, 4, v{vL}")
    A(f"v_lshl_add_u32 v{vLin}, v{vW_}, 12, v{vLane16}")
    A(f"v_lshrrev_b32 v{vT0}, 3, v{vL}")
    A(f"v_lshl_add_u32 v{vT0}, v{vW_}, 5, v{vT0}")
    A(f"v_lshlrev_b32 v{vT0}, 11, v{vT0}")
    A(f"v_lshrrev_b32 v{vT1}, 4, v{vL}")
    A(f"v_and_b32 v5, 7, v{vL}")
    A(f"v_xor_b32 v5, v5, v{vT1}")
    A(f"v_lshl_add_u32 v{vXd}, v5, 4, v{vT0}")
    A(f"v_xor_b32 v{vXd+1}, 64, v{vXd}")
    A(f"v_add_u32 v{vXd+1}, {16384-1024}, v{vXd+1}")
    A(f"v_add_u32 v{vXd+2}, {2*(16384-1024)}, v{vXd}")
    A(f"v_add_u32 v{vXd+3}, {2*(16384-1024)}, v{vXd+1}")
    A(f"v_lshl_add_u32 v{vT0}, v{vW_}, 4, v{vT1}")
    A(f"v_lshlrev_b32 v{vT0}, 11, v{vT0}")
    A(f"v_lshlrev_b32 v{vT1}, 2, v{vT1}")
    A(f"v_and_b32 v5, 15, v{vL}")
    A(f"v_xor_b32 v5, v5, v{vT1}")
    A(f"v_lshl_add_u32 v{vWd}, v5, 4, v{vT0}")
    for t in range(1, 4):
        A(f"v_add_u32 v{vWd+t}, {t*(8192-1024)}, v{vWd}")
    A("s_waitcnt lgkmcnt(0)")
    fstamp(A, 1)
    A("s_cmp_eq_u32 s28, 1")
    A("s_cselect_b64 s[6:7], s[12:13], s[6:7]")
    A("s_cselect_b64 s[8:9], s[14:15], s[8:9]")
    A("s_cselect_b64 s[10:11], s[16:17], s[10:11]")
    A("s_cmp_eq_u32 s31, 1")
    A("s_cselect_b64 s[8:9], s[10:11], s[8:9]")
    A("s_cselect_b64 s[64:65], s[18:19], s[64:65]")
    srd(A, 40, 8, 9, 1024*32*2)
    srd(A, 8, 4, 5, 2048*1024*2)
    srd(A, 12, 6, 7, 1024*1024*2)
    srd(A, 56, 66, 67, 2048)
    A("s_lshl_b32 s36, s20, 12")
    A("s_lshl_b32 s35, s33, 16")
    def dma_P(n):
        slot = (n % 4) * 0x8000
        I = []
        I.append([f"s_add_u32 m0, s36, {slot}", "s_lshl_b32 s48, s34, 9", "s_add_u32 s48, s48, s35",
                  f"buffer_load_dwordx4 v{vPd}, s[8:11], s48 offen lds"])
        for t in range(1, 4):
            I.append(f"buffer_load_dwordx4 v{vPd+t}, s[8:11], s48 offen offset:{1024*t} lds")
        I.append([f"s_add_u32 m0, s36, {slot+0x4000}", "s_lshl_b32 s49, s34, 14",
                  f"buffer_load_dwordx4 v{vLin}, s[40:43], s49 offen lds"])
        for t in range(1, 4):
            I.append(f"buffer_load_dwordx4 v{vLin}, s[40:43], s49 offen offset:{1024*t} lds")
        I.append(["s_add_u32 s34, s34, 1", "s_and_b32 s34, s34, 3"])
        return I
    def dma_G(n):
        slot = (n % 4) * 0x8000
        I = []
        I.append([f"s_add_u32 m0, s36, {slot}", "s_lshl_b32 s48, s37, 7", "s_add_u32 s48, s48, s38",
                  f"buffer_load_dwordx4 v{vXd}, s[8:11], s48 offen lds"])
        for t in range(1, 4):
            I.append(f"buffer_load_dwordx4 v{vXd+t}, s[8:11], s48 offen offset:{1024*t} lds")
        I.append([f"s_add_u32 m0, s36, {slot+0x4000}", "s_lshl_b32 s49, s37, 17", "s_add_u32 s49, s49, s39",
                  f"buffer_load_dwordx4 v{vWd}, s[12:15], s49 offen lds"])
        for t in range(1, 4):
            I.append(f"buffer_load_dwordx4 v{vWd+t}, s[12:15], s49 offen offset:{1024*t} lds")
        I.append(["s_add_u32 s37, s37, 1", "s_and_b32 s37, s37, 15"])
        return I
    def dma_C(c):
        slot = (c % 4) * 0x8000
        I = []
        I.append([f"s_add_u32 m0, s36, {slot}", f"s_mov_b32 s48, {c*0x8000}",
                  f"buffer_load_dwordx4 v{vLin}, s[44:47], s48 offen sc1 lds"])
        for t in range(1, 4):
            I.append(f"buffer_load_dwordx4 v{vLin}, s[44:47], s48 offen offset:{1024*t} sc1 lds")
        I.append([f"s_add_u32 m0, s36, {slot+0x4000}", f"s_mov_b32 s49, {c*0x8000+0x4000}",
                  f"buffer_load_dwordx4 v{vLin}, s[44:47], s49 offen sc1 lds"])
        for t in range(1, 4):
            I.append(f"buffer_load_dwordx4 v{vLin}, s[44:47], s49 offen offset:{1024*t} sc1 lds")
        return I
    def flat(I):
        for x in I:
            if isinstance(x, (list, tuple)):
                for y in x: A(y)
            else: A(x)
    ORDER = ["G", "G", "P", "P", "P", "P"] + ["G"] * 14
    PIDX = {n: k for k, n in enumerate([n for n in range(20) if ORDER[n] == "P"])}
    PLAST = max(PIDX)
    def dma(n):
        if n >= 20: return dma_C(n - 20)
        return dma_P(n) if ORDER[n] == "P" else dma_G(n)
    A(f"s_mov_b32 m0, {LDS_DUMMY}")
    A("s_bfe_u32 s48, s2, 0x40003")
    A("s_lshl_b32 s48, s48, 12")
    A("s_lshl_b32 s49, s20, 10")
    A("s_add_u32 s48, s48, s49")
    A(f"buffer_load_dwordx4 v{vLane16}, s[40:43], s48 offen lds")
    flat(dma(0))
    fstamp(A, 2)
    srd(A, 16, 26, 27, WS_USED)
    srd(A, 52, 64, 65, 1024*1024*2)
    srd(A, 60, 24, 25, 256)
    A("s_lshl_b32 s48, s28, 18")
    A("s_add_u32 s44, s26, s48")
    A("s_addc_u32 s45, s27, 0")
    A("s_mov_b32 s46, 0x40000")
    A("s_mov_b32 s47, 0x00020000")
    A("s_lshr_b32 s22, s20, 1")
    A("s_and_b32 s21, s20, 1")
    A("s_bfe_u32 s68, s2, 0x40003")
    A("s_lshl_b32 s68, s68, 2")
    A("s_add_u32 s68, s68, s20")
    A("s_lshl_b32 s68, s68, 15")
    A("s_lshl_b32 s69, s28, 10")
    A("s_add_u32 s68, s68, s69")
    A("s_or_b32 s70, s28, s31")
    A(f"v_lshl_add_u32 v{vT0}, v{vW_}, 3, v{vH}")
    A(f"v_and_b32 v{vT1}, 15, v{vT0}")
    A(f"v_xor_b32 v{vT1}, v{vT1}, v{vL31}")
    A(f"v_lshlrev_b32 v{vT1}, 4, v{vT1}")
    A(f"v_lshl_add_u32 v{vPd}, v{vT0}, 11, v{vT1}")
    for t in range(1, 4):
        A(f"v_xor_b32 v{vPd+t}, {(2*t) << 4}, v{vPd}")
        A(f"v_add_u32 v{vPd+t}, {t*(4096-1024)}, v{vPd+t}")
    A(f"v_lshl_add_u32 v{vT0}, v{vW_}, 3, v{vH}")
    A(f"v_and_b32 v{vT1}, 15, v{vL31}")
    A(f"v_xor_b32 v{vT0}, v{vT0}, v{vT1}")
    A(f"v_lshlrev_b32 v{vT0}, 4, v{vT0}")
    A(f"v_lshl_add_u32 v{vPr}, v{vL31}, 9, v{vT0}")
    for s in range(1, 4):
        A(f"v_xor_b32 v{vPr+s}, {(2*s) << 4}, v{vPr}")
    A(f"v_bfe_u32 v{vT0}, v{vL}, 2, 2")
    A(f"v_lshl_add_u32 v{vT0}, v{vH}, 3, v{vT0}")
    A(f"v_lshl_add_u32 v{vT0}, v{vW_}, 6, v{vT0}")
    A(f"v_lshlrev_b32 v{vT0}, 6, v{vT0}")
    A(f"v_bfe_u32 v{vT1}, v{vL}, 4, 1")
    A(f"v_lshl_add_u32 v{vT0}, v{vT1}, 5, v{vT0}")
    A(f"v_and_b32 v{vT1}, 3, v{vL}")
    A(f"v_lshl_add_u32 v{vT0}, v{vT1}, 3, v{vT0}")
    A(f"v_add_u32 v{vPw}, 0x4000, v{vT0}")
    A(f"v_bfe_u32 v{vT0}, v{vL}, 1, 3")
    A(f"v_xor_b32 v{vT0}, v{vT0}, v{vH}")
    A(f"v_lshlrev_b32 v{vT0}, 4, v{vT0}")
    A(f"v_lshl_add_u32 v{vT0}, v{vL31}, 7, v{vT0}")
    A(f"s_lshl_b32 s48, s22, 13")
    A(f"v_add_u32 v{vXr}, s48, v{vT0}")
    for s in range(1, 4):
        A(f"v_xor_b32 v{vXr+s}, {(2*s) << 4}, v{vXr}")
    A(f"v_bfe_u32 v{vT0}, v{vL}, 2, 2")
    A(f"v_lshl_add_u32 v{vT1}, v{vH}, 3, v{vT0}")
    A(f"v_lshlrev_b32 v{vT1}, 8, v{vT1}")
    A(f"s_lshl_b32 s48, s21, 1")
    A(f"v_xor_b32 v{vT0}, s48, v{vT0}")
    A(f"v_lshl_add_u32 v{vT1}, v{vT0}, 6, v{vT1}")
    A(f"v_bfe_u32 v{vT0}, v{vL}, 4, 1")
    A(f"v_lshl_add_u32 v{vT1}, v{vT0}, 5, v{vT1}")
    A(f"v_and_b32 v{vT0}, 3, v{vL}")
    A(f"v_lshl_add_u32 v{vT1}, v{vT0}, 3, v{vT1}")
    A(f"v_add_u32 v{vWr}, 0x4000, v{vT1}")
    A(f"v_xor_b32 v{vWr+1}, 64, v{vWr}")
    for i in range(0, 32, 2):
        A(f"v_mov_b64 {vr(PACC+i,2)}, 0")
    for i in range(0, 64, 2):
        A(f"v_mov_b64 {vr(ACC+i,2)}, 0")
    fstamp(A, 3)
    flat(dma(1))
    fstamp(A, 4)
    stamp(A, 1)
    def rd_P(n):
        off = (n % 2) * 0x8000
        b = FR + 64*(n % 2)
        R = []
        for s in range(4):
            R.append(f"ds_read_b128 {ar(b+8*s,4)}, v{vPr+s} offset:{off}")
            R.append(f"ds_read_b64_tr_b16 {ar(b+8*s+4,2)}, v{vPw} offset:{off+1024*s}")
            R.append(f"ds_read_b64_tr_b16 {ar(b+8*s+6,2)}, v{vPw} offset:{off+1024*s+256}")
        return R
    def mf_P(n):
        b = FR + 64*(n % 2)
        A("s_cmp_eq_u32 s31, 1")
        A(f"s_cbranch_scc1 L_at_pv{n}")
        for s in range(4):
            A(f"v_mfma_f32_32x32x16_bf16 {vr(PACC,16)}, {ar(b+8*s+4,4)}, {ar(b+8*s,4)}, {vr(PACC,16)}")
        A("s_cmp_lg_u32 s70, 0")
        A(f"s_cbranch_scc1 L_at_pj{n}")
        for s in range(4):
            A(f"v_mfma_f32_32x32x16_bf16 {vr(GACC,16)}, {ar(GF+16*PIDX[n]+4*s,4)}, {ar(b+8*s,4)}, {vr(GACC,16)}")
        A(f"s_branch L_at_pj{n}")
        A.label(f"L_at_pv{n}")
        for s in range(4):
            A(f"v_mfma_f32_32x32x16_bf16 {vr(PACC,16)}, {ar(b+8*s,4)}, {ar(b+8*s+4,4)}, {vr(PACC,16)}")
        A.label(f"L_at_pj{n}")
    def rd_G(n):
        off = (n % 2) * 0x8000
        b = FR + 64*(n % 2)
        R = []
        for s in range(4):
            p = b + 16*s
            R.append(f"ds_read_b128 {ar(p,4)}, v{vXr+s} offset:{off}")
            R.append(f"ds_read_b64_tr_b16 {ar(p+8,2)}, v{vWr} offset:{off+4096*s}")
            R.append(f"ds_read_b64_tr_b16 {ar(p+10,2)}, v{vWr} offset:{off+4096*s+1024}")
            R.append(f"ds_read_b128 {ar(p+4,4)}, v{vXr+s} offset:{off+4096}")
            R.append(f"ds_read_b64_tr_b16 {ar(p+12,2)}, v{vWr+1} offset:{off+4096*s}")
            R.append(f"ds_read_b64_tr_b16 {ar(p+14,2)}, v{vWr+1} offset:{off+4096*s+1024}")
        return R
    def mf_G(n, by_u=False):
        b = FR + 64*(n % 2)
        M = []
        order = [(s, a, t) for s in range(4) for a in range(2) for t in range(2)]
        if by_u: order = [(s, a, t) for a in range(2) for t in range(2) for s in range(4)]
        for (s, a, t) in order:
            p = b + 16*s; u = 2*a + t
            M.append(f"v_mfma_f32_32x32x16_bf16 {vr(ACC+16*u,16)}, {ar(p+8+4*a,4)}, {ar(p+4*t,4)}, {vr(ACC+16*u,16)}")
        return M
    def toggle(regs):
        return [f"v_xor_b32 v{r}, 0x10000, v{r}" for r in regs]
    Pregs = [vPr+s for s in range(4)] + [vPw]
    Gregs = [vXr+s for s in range(4)] + [vWr, vWr+1]
    side = []
    side.append(f"v_mov_b32 v{vIDX}, 0xdddddddd")
    side += [f"v_and_b32 v{vT0}, 7, v{vL}", f"v_mov_b32 v{vT1}, 0x3f803f80", f"v_cmp_eq_u32 vcc, 0, v{vT0}", "s_nop 1",
             f"v_cndmask_b32 v{vT2}, 0, v{vT1}, vcc", f"v_cmp_eq_u32 vcc, 4, v{vT0}", "s_nop 1",
             f"v_cndmask_b32 v{vT1}, 0, v{vT1}, vcc",
             f"v_accvgpr_write_b32 a{SEL}, v{vT2}", f"v_accvgpr_write_b32 a{SEL+1}, v{vT2}",
             f"v_accvgpr_write_b32 a{SEL+2}, v{vT1}", f"v_accvgpr_write_b32 a{SEL+3}, v{vT1}"]
    side += [f"v_accvgpr_write_b32 a{L0+i}, 0" for i in range(16)]
    side += [f"v_accvgpr_write_b32 a{VB0+8+i}, 0" for i in range(8)]
    side += [f"v_mov_b64 {vr(O0+i,2)}, 0" for i in range(0, 64, 2)]
    side.append(f"v_mov_b32 v{vKV}, v{vLane16}")
    hi = {"P": 0, "G": 0}
    for n in range(20):
        A.comment(f"---- iteration {n} ({ORDER[n]})")
        A(f"s_waitcnt vmcnt({9 if n in (8, 9, 17) else 8}) lgkmcnt(0)")
        A("s_barrier")
        if n == 6: stamp(A, 2)
        if n == 0: fstamp(A, 5)
        if n == 1: fstamp(A, 6)
        D = dma(n + 2)
        assert hi[ORDER[n]] == (n >> 1) & 1
        R = rd_P(n) if ORDER[n] == "P" else rd_G(n)
        V = []
        T = []
        if n + 1 < 20 and hi[ORDER[n+1]] != ((n + 1) >> 1) & 1:
            T = toggle(Pregs if ORDER[n+1] == "P" else Gregs)
            hi[ORDER[n+1]] ^= 1
        if n == 18:
            A(f"v_cmp_ne_u32 vcc, 4, v{vPoll}")
            A("s_nop 4")
            A("s_cmp_eq_u64 vcc, 0")
            A("s_cbranch_scc1 L_at_flags_ok")
            A("s_mov_b32 s50, 0")
            A.label("L_at_spin")
            A("s_add_u32 s50, s50, 1")
            A("s_cmp_gt_u32 s50, 0x40000")
            A("s_cbranch_scc1 L_at_flags_ok")
            A("s_sleep 8")
            A(f"buffer_load_dword v{vPoll}, v{vT2}, s[60:63], 0 offen sc1")
            A("s_waitcnt vmcnt(0)")
            A(f"v_cmp_ne_u32 vcc, 4, v{vPoll}")
            A("s_nop 4")
            A("s_cmp_eq_u64 vcc, 0")
            A("s_cbranch_scc0 L_at_spin")
            A.label("L_at_flags_ok")
        if n == 0:
            A("s_cmp_lg_u32 s70, 0")
            A("s_cbranch_scc1 L_at_nogf")
            A(f"v_lshlrev_b32 v{vT0}, 4, v{vH}")
            A(f"v_lshl_add_u32 v{vT0}, v{vW_}, 7, v{vT0}")
            A("s_mov_b32 s50, s34")
            for q in range(4):
                A("s_lshl_b32 s51, s50, 9")
                for s in range(4):
                    A(f"buffer_load_dwordx4 {ar(GF+16*q+4*s,4)}, v{vT0}, s[56:59], s51 offen offset:{32*s}")
                A("s_add_u32 s50, s50, 1")
                A("s_and_b32 s50, s50, 3")
            A.label("L_at_nogf")
        if n == 0 or ORDER[n-1] == "P":
            for x in R: A(x)
            flat(D[:4])
            if n > 0: mf_P(n - 1)
            flat(D[4:])
            for x in T: A(x)
            if n - 1 == PLAST:
                A(f"s_mul_i32 s50, s20, 0x1200")
                A(f"s_add_u32 s50, s50, {LDS_SCR}")
                A(f"v_add_u32 v{vRed}, s50, v{vLane16}")
                A(f"v_lshlrev_b32 v{vRed+1}, 2, v{vL}")
                A(f"v_add_u32 v{vRed+2}, s50, v{vRed+1}")
                A("s_nop 7")
                for rg in range(4):
                    A(f"ds_write_b128 v{vRed}, {vr(PACC+4*rg,4)} offset:{1024*rg}")
                A(f"ds_write_b32 v{vRed+2}, v{GACC} offset:4096")
                A(f"v_lshl_add_u32 v{vRed}, v{vW_}, 10, v{vLane16}")
                A(f"v_add_u32 v{vRed}, {LDS_SCR}, v{vRed}")
                A(f"v_add_u32 v{vRed+2}, {LDS_SCR+4096}, v{vRed+1}")
            continue
        if n == 7:
            assert PLAST == 5
            for ww in range(4):
                A(f"ds_read_b128 {vr(Q0+4*ww,4)}, v{vRed} offset:{0x1200*ww}")
            for ww in range(4):
                A(f"ds_read_b32 v{Q0+16+ww}, v{vRed+2} offset:{0x1200*ww}")
            V += ["s_nop 0", "s_nop 0", "s_waitcnt lgkmcnt(6)"]
        post = []
        if n == 7:
            for e in range(0, 4, 2):
                V.append([f"v_add_f32 v{Q0+e}, v{Q0+e}, v{Q0+4+e}", f"v_add_f32 v{Q0+8+e}, v{Q0+8+e}, v{Q0+12+e}",
                          f"v_add_f32 v{Q0+e+1}, v{Q0+e+1}, v{Q0+5+e}", f"v_add_f32 v{Q0+9+e}, v{Q0+9+e}, v{Q0+13+e}"])
            V.append([f"v_add_f32 v{Q0+e}, v{Q0+e}, v{Q0+8+e}" for e in range(4)])
            V.append(["s_mov_b32 s50, 1.0", "s_cmp_eq_u32 s31, 1", f"s_cselect_b32 s50, s50, {KSCALE:#x}", "s_cselect_b64 vcc, -1, 0"])
            V.append([f"v_mul_f32 v{Q0+e}, s50, v{Q0+e}" for e in range(4)])
            V.append([f"v_cvt_pk_bf16_f32 v{Q0+4}, v{Q0}, v{Q0+1}", f"v_cvt_pk_bf16_f32 v{Q0+5}, v{Q0+2}, v{Q0+3}"])
            V.append([f"v_bfe_u32 v{vT0}, v{vL31}, 2, 1", f"v_bfe_u32 v{vT1}, v{vL31}, 3, 1", f"v_and_b32 v{vRed}, 0x13, v{vL31}"])
            V.append([f"v_lshl_add_u32 v{vRed}, v{vT0}, 3, v{vRed}", f"v_lshl_add_u32 v{vRed}, v{vT1}, 2, v{vRed}",
                      f"v_cndmask_b32 v{vRed}, v{vRed}, v{vL31}, vcc"])
            V.append([f"v_lshl_add_u32 v{vRed}, v{vH}, 5, v{vRed}", f"v_lshlrev_b32 v{vRed}, 4, v{vRed}"])
            V.append(["s_lshl_b32 s50, s33, 12", "s_lshl_b32 s51, s31, 11", "s_add_u32 s50, s50, s51", "s_lshl_b32 s51, s22, 10"])
            V.append(["s_add_u32 s50, s50, s51", "s_lshl_b32 s51, s21, 3", "s_add_u32 s50, s50, s51"])
            V.append([f"v_add_f32 v{Q0+16}, v{Q0+16}, v{Q0+17}", f"v_add_f32 v{Q0+18}, v{Q0+18}, v{Q0+19}", f"v_add_f32 v{Q0+16}, v{Q0+16}, v{Q0+18}"])
            V.append([f"v_mul_f32 v{Q0+16}, {LOG2E ^ 0x80000000:#x}, v{Q0+16}", f"v_exp_f32 v{Q0+16}, v{Q0+16}", "s_nop 0",
                      f"v_add_f32 v{Q0+16}, 1.0, v{Q0+16}", f"v_rcp_f32 v{Q0+16}, v{Q0+16}", f"v_lshlrev_b32 v{vRed+1}, 2, v{vL31}"])
            post.append(f"buffer_store_dwordx2 {vr(Q0+4,2)}, v{vRed}, s[44:47], s50 offen sc1")
            post.append("s_or_b32 s51, s70, s20")
            post.append("s_cmp_lg_u32 s51, 0")
            post.append("s_cbranch_scc1 L_at_nogst")
            post.append("s_lshl_b32 s51, s33, 7")
            post.append(f"s_add_u32 s51, s51, {WS_G}")
            post.append(f"buffer_store_dword v{Q0+16}, v{vRed+1}, s[16:19], s51 offen sc1")
            post.append("L_at_nogst:")
        if n == 10:
            post.append("s_cmp_lg_u32 s20, 0")
            post.append("s_cbranch_scc1 L_at_nosig")
            post.append("s_and_b32 s50, s2, 63")
            post.append("s_lshl_b32 s50, s50, 2")
            post.append(f"v_mov_b32 v{vT0}, 1")
            post.append(f"v_mov_b32 v{vT1}, 0")
            post.append("s_mov_b64 exec, 1")
            post.append(f"buffer_atomic_add v{vT0}, v{vT1}, s[60:63], s50 offen sc1")
            post.append("s_mov_b64 exec, -1")
            post.append("L_at_nosig:")
        if 11 <= n <= 15:
            for _ in range(16):
                if side: V.append(side.pop(0))
        if n == 16:
            assert not side
            V.append(f"v_lshlrev_b32 v{vT2}, 2, v{vL}")
            post.append(f"buffer_load_dword v{vPoll}, v{vT2}, s[60:63], 0 offen sc1")
        M = mf_G(n - 1)
        weave(A, M, [(R, lambda k: 2), (D, lambda k: 1 if k % 2 == 1 else 0), (V, lambda k: 1), (T, lambda k: 2 if k >= 12 else 0)])
        for x in post: A(x)
    A("s_waitcnt vmcnt(8) lgkmcnt(0)")
    A("s_barrier")
    stamp(A, 3)
    A(f"ds_read_b128 {ar(KB0,4)}, v{vKV}")
    A(f"ds_read_b128 {ar(KB0+4,4)}, v{vKV} offset:1024")
    A(f"ds_read_b128 {ar(VB0,4)}, v{vKV} offset:2048")
    A(f"ds_read_b128 {ar(VB0+4,4)}, v{vKV} offset:3072")
    D = dma_C(2) + dma_C(3)
    D.append([f"v_lshlrev_b32 v{vT0}, 2, v{vL31}", "s_lshl_b32 s50, s29, 9", "s_lshl_b32 s51, s22, 8", "s_add_u32 s50, s50, s51",
              f"s_add_u32 s50, s50, {WS_G}", f"buffer_load_dword v{vG}, v{vT0}, s[16:19], s50 offen sc1",
              f"buffer_load_dword v{vG+1}, v{vT0}, s[16:19], s50 offen offset:128 sc1"])
    weave(A, mf_G(19, by_u=True), [(D, lambda k: 1)])
    A("s_nop 7")
    def cvtQ(u):
        for j in range(8):
            A(f"v_cvt_pk_bf16_f32 v{Q0+8*u+j}, v{ACC+16*u+2*j}, v{ACC+16*u+2*j+1}")
    def QK(u, c):
        return [f"v_mfma_f32_32x32x16_bf16 {vr(S0+16*u,16)}, {ar(KB0,4)}, {vr(Q0+8*u,4)}, {c}",
                f"v_mfma_f32_32x32x16_bf16 {vr(S0+16*u,16)}, {ar(KB0+4,4)}, {vr(Q0+8*u+4,4)}, {vr(S0+16*u,16)}"]
    A("s_waitcnt lgkmcnt(0)")
    for u in range(4):
        cvtQ(u)
        A("s_nop 1")
        for x in QK(u, "0"): A(x)
    A("s_nop 7")
    def max16(b):
        A(f"v_max3_f32 v{b}, v{b}, v{b+1}, v{b+2}")
        for j in range(3, 15, 2):
            A(f"v_max3_f32 v{b}, v{b}, v{b+j}, v{b+j+1}")
        A(f"v_max_f32 v{b}, v{b}, v{b+15}")
    def fill_C(u, b):
        A(f"v_mov_b32 v{b+1}, v{b}")
        A("s_nop 1")
        A(f"v_permlane32_swap_b32 v{b}, v{b+1}")
        A("s_nop 1")
        A(f"v_max_f32 v{b}, v{b}, v{b+1}")
        A(f"v_sub_f32 v{C0+16*u}, 0, v{b}")
        A(f"v_sub_f32 v{C0+16*u+1}, 0, v{b}")
        for j in range(2, 16, 2):
            A(f"v_mov_b64 {vr(C0+16*u+j,2)}, {vr(C0+16*u,2)}")
    max16(S0)
    fill_C(0, S0)
    A("s_nop 1")
    for x in QK(0, vr(C0, 16)): A(x)
    for u in range(1, 4):
        max16(S0+16*u)
        fill_C(u, S0+16*u)
    for i in range(0, 16, 2):
        A(f"v_mov_b64 {vr(S0+48+i,2)}, 0")
    A("s_mov_b32 s39, 0")
    A("s_mov_b32 s71, 0")
    A("s_mov_b32 s37, 0")
    A("s_mov_b32 s32, 0x20000")
    def PV(u0, p0):
        return [
            f"v_smfmac_f32_32x32x32_bf16 {vr(O0+16*u0,16)}, {ar(VB0+8*p0,4)}, {vr(S0+16*u0,8)}, v{vIDX}",
            f"v_smfmac_f32_32x32x32_bf16 {vr(O0+16*u0,16)}, {ar(VB0+8*p0+4,4)}, {vr(S0+16*u0+8,8)}, v{vIDX}",
            f"v_smfmac_f32_16x16x64_bf16 {ar(L0+4*u0,4)}, {ar(SEL,4)}, {vr(S0+16*u0,8)}, v{vIDX}",
            f"v_smfmac_f32_16x16x64_bf16 {ar(L0+4*u0,4)}, {ar(SEL,4)}, {vr(S0+16*u0+8,8)}, v{vIDX}",
        ]
    stamp(A, 4)
    A.raw(".p2align 6")
    A.label("L_at_loop")
    for i in range(8):
        for u in range(4):
            u1 = (u + 1) % 4; i1 = i + (1 if u == 3 else 0)
            u0 = (u + 3) % 4; i0 = i - (1 if u == 0 else 0)
            P = PV(u0, i0 % 2)
            M = [
                f"v_mfma_f32_32x32x16_bf16 {vr(S0+16*u1,16)}, {ar(KB0+8*(i1%2),4)}, {vr(Q0+8*u1,4)}, {vr(C0+16*u1,16)}",
                P[0],
                f"v_mfma_f32_32x32x16_bf16 {vr(S0+16*u1,16)}, {ar(KB0+8*(i1%2)+4,4)}, {vr(Q0+8*u1+4,4)}, {vr(S0+16*u1,16)}",
                P[1], P[2], P[3],
            ]
            X = [[] for _ in range(6)]
            tt = (i + 1) % 8
            pn = (i + 1) % 2
            if i == 7 and u == 0:
                A("s_waitcnt vmcnt(16) lgkmcnt(0)")
                A("s_barrier")
                A("s_add_u32 s71, s71, 0x8000")
                A("s_and_b32 s71, s71, 0x1ffff")
                A(f"v_add_u32 v{vKV}, s71, v{vLane16}")
            if u == 0:
                X[1].append(f"ds_read_b128 {ar(KB0+8*pn,4)}, v{vKV} offset:{4096*tt}")
                X[3].append(f"ds_read_b128 {ar(KB0+8*pn+4,4)}, v{vKV} offset:{4096*tt+1024}")
            if u == 1:
                X[0].append("s_waitcnt lgkmcnt(2)")
            if u == 2:
                X[1].append(f"ds_read_b128 {ar(VB0+8*pn,4)}, v{vKV} offset:{4096*tt+2048}")
                X[3].append(f"ds_read_b128 {ar(VB0+8*pn+4,4)}, v{vKV} offset:{4096*tt+3072}")
                X[5].append("s_waitcnt lgkmcnt(2)")
            if i in (2, 4) and u == 1 and "nopf" not in VAR:
                X[2].append(f"s_mov_b32 m0, {LDS_DUMMY}")
                X[4].append(f"buffer_load_dwordx4 v{vLane16}, s[52:55], s68 offen lds")
                X[5].append("s_add_u32 s68, s68, 0x800")
            if i == 7:
                ld = lambda t: f"buffer_load_dwordx4 v{vLin}, s[44:47], s32 offen offset:{1024*t} sc1 lds"
                if u == 0:
                    X[2].append("s_add_u32 m0, s37, s36")
                    X[4].append(ld(0))
                    X[5].append(ld(1))
                if u == 1:
                    X[1].append(ld(2))
                    X[3].append(ld(3))
                    X[4].append("s_add_u32 m0, m0, 0x4000")
                    X[4].append("s_add_u32 s32, s32, 0x4000")
                    X[5].append(ld(0))
                if u == 2:
                    X[4].append(ld(1))
                if u == 3:
                    X[1].append(ld(2))
                    X[3].append(ld(3))
                    X[4].append("s_add_u32 s32, s32, 0x4000")
                    X[4].append("s_add_u32 s37, s37, 0x8000")
                    X[5].append("s_and_b32 s37, s37, 0x1ffff")
                    X[5].append("s_add_u32 s39, s39, 1")
            E = [f"v_exp_f32 v{S0+16*u+j}, v{S0+16*u+j}" for j in range(16)]
            ne = [3, 3, 3, 3, 2, 2]
            for k in range(6):
                A(M[k])
                for x in X[k]: A(x)
                for _ in range(ne[k]): A(E.pop(0))
    A("s_cmp_lt_u32 s39, 8")
    A("s_cbranch_scc1 L_at_loop")
    A("s_nop 1")
    for x in PV(3, 1): A(x)
    stamp(A, 5)
    A("s_nop 15")
    A("s_nop 3")
    for u in range(4):
        A(f"v_accvgpr_read_b32 v{S0+u}, a{L0+4*u}")
    A(f"v_add_f32 v{vT1}, v{S0}, v{S0+1}")
    A(f"v_add_f32 v{vT0}, v{S0+2}, v{S0+3}")
    A(f"v_add_f32 v{vT0}, v{vT0}, v{vT1}")
    A(f"v_mov_b32 v{vT1}, {0x4e800000 if 'forceslow' not in VAR else 0x3f000000:#x}")
    A(f"v_cmp_nlt_f32 vcc, v{vT0}, v{vT1}")
    A("s_nop 4")
    A("s_cmp_lg_u64 vcc, 0")
    A("s_cbranch_scc1 L_at_slow")
    A.label("L_at_store")
    A("s_waitcnt vmcnt(0)")
    A("s_cmp_eq_u32 s28, 0")
    A("s_cbranch_scc1 L_at_gate_ok")
    A(f"v_sub_f32 v{vG}, 1.0, v{vG}")
    A(f"v_sub_f32 v{vG+1}, 1.0, v{vG+1}")
    A.label("L_at_gate_ok")
    for u in range(4):
        A(f"v_rcp_f32 v{S0+u}, v{S0+u}")
    A("s_nop 0")
    for u in range(4):
        A(f"v_mul_f32 v{S0+u}, v{S0+u}, v{vG+(u&1)}")
    A("s_lshl_b32 s48, s29, 2")
    A("s_lshl_b32 s49, s22, 1")
    A("s_add_u32 s48, s48, s49")
    A("s_lshl_b32 s48, s48, 17")
    A("s_lshl_b32 s49, s28, 5")
    A("s_lshl_b32 s50, s30, 2")
    A("s_add_u32 s49, s49, s50")
    A("s_lshl_b32 s50, s21, 1")
    A("s_add_u32 s49, s49, s50")
    A("s_lshl_b32 s49, s49, 11")
    A("s_add_u32 s48, s48, s49")
    A(f"s_add_u32 s48, s48, {WS_OF}")
    A("s_add_u32 s49, s48, 0x20000")
    for u in range(4):
        a, t = u >> 1, u & 1
        for j in range(16):
            A(f"v_mul_f32 v{O0+16*u+j}, v{O0+16*u+j}, v{S0+u}")
        for j in range(8):
            A(f"v_cvt_pk_bf16_f32 v{C0+8*u+j}, v{O0+16*u+2*j}, v{O0+16*u+2*j+1}")
        for f in range(2):
            A(f"buffer_store_dwordx4 {vr(C0+8*u+4*f,4)}, v{vLane16}, s[16:19], s{48+t} offen offset:{2048*a+1024*f}")
    if STAMP:
        A("s_waitcnt vmcnt(0)")
        stamp(A, 6)
        stamp_flush(A, 0, 7, 26, 27, 20)
    A("s_endpgm")
    A.label("L_at_slow")
    A("s_waitcnt vmcnt(0) lgkmcnt(0)")
    for u in range(4):
        A(f"v_mov_b32 v{O0+u}, 0xff7fffff")
    A("s_mov_b32 s39, 0")
    A.label("L_at_slow1")
    A(f"buffer_load_dwordx4 {ar(KB0,4)}, v{vLane16}, s[44:47], s39 offen sc1")
    A(f"buffer_load_dwordx4 {ar(KB0+4,4)}, v{vLane16}, s[44:47], s39 offen offset:1024 sc1")
    A("s_waitcnt vmcnt(0)")
    for u in range(4):
        for x in QK(u, "0"): A(x)
    A("s_nop 15")
    for u in range(4):
        for j in range(0, 16, 2):
            A(f"v_max3_f32 v{O0+u}, v{O0+u}, v{S0+16*u+j}, v{S0+16*u+j+1}")
    A("s_add_u32 s39, s39, 0x1000")
    A("s_cmp_lt_u32 s39, 0x40000")
    A("s_cbranch_scc1 L_at_slow1")
    for u in range(4):
        A(f"v_mov_b32 v{S0+16*u}, v{O0+u}")
        fill_C(u, S0+16*u)
    for i in range(16):
        A(f"v_accvgpr_write_b32 a{L0+i}, 0")
    for i in range(64):
        A(f"v_mov_b32 v{O0+i}, 0")
    A("s_mov_b32 s39, 0")
    A.label("L_at_slow2")
    A(f"buffer_load_dwordx4 {ar(KB0,4)}, v{vLane16}, s[44:47], s39 offen sc1")
    A(f"buffer_load_dwordx4 {ar(KB0+4,4)}, v{vLane16}, s[44:47], s39 offen offset:1024 sc1")
    A(f"buffer_load_dwordx4 {ar(VB0,4)}, v{vLane16}, s[44:47], s39 offen offset:2048 sc1")
    A(f"buffer_load_dwordx4 {ar(VB0+4,4)}, v{vLane16}, s[44:47], s39 offen offset:3072 sc1")
    A("s_waitcnt vmcnt(0)")
    for u in range(4):
        for x in QK(u, vr(C0+16*u, 16)): A(x)
    A("s_nop 15")
    for j in range(64):
        A(f"v_exp_f32 v{S0+j}, v{S0+j}")
    A("s_nop 1")
    for u in range(4):
        for x in PV(u, 0): A(x)
    A("s_nop 15")
    A("s_add_u32 s39, s39, 0x1000")
    A("s_cmp_lt_u32 s39, 0x40000")
    A("s_cbranch_scc1 L_at_slow2")
    A("s_nop 15")
    for u in range(4):
        A(f"v_accvgpr_read_b32 v{S0+u}, a{L0+4*u}")
    A("s_branch L_at_store")
    A.label("L_at_end")
    A("s_endpgm")
    return kernel_desc(name, 512, 256, 102)

def gen_out(A):
    name = "out_kernel"
    kernel_header(A, name)
    DEPTH = int(os.environ.get('ODEPTH', '2'))
    NSLOT = DEPTH + 1
    SLOT = 24576
    vL, vH, vL31, vW_ = 1, 2, 3, 4
    vOd, vWd = 8, 9
    vOr, vWr = 12, 13
    vOr0, vWr0 = 14, 15
    vT0, vT1 = 16, 17
    ACC = 32
    FR = 64
    A("s_cmp_ge_u32 s2, 256")
    A("s_cbranch_scc1 L_o_end")
    stamp(A, 0)
    A("s_load_dwordx2 s[4:5], s[0:1], 32")
    A("s_load_dwordx2 s[6:7], s[0:1], 72")
    A("s_load_dwordx2 s[24:25], s[0:1], 88")
    A("s_load_dwordx2 s[26:27], s[0:1], 104")
    A("s_and_b32 s28, s2, 1")
    A("s_bfe_u32 s29, s2, 0x20001")
    A("s_bfe_u32 s30, s2, 0x20003")
    A("s_lshl_b32 s29, s29, 2")
    A("s_add_u32 s29, s29, s30")
    A("s_lshr_b32 s30, s2, 5")
    A("s_lshl_b32 s28, s28, 3")
    A("s_add_u32 s30, s30, s28")
    A(f"v_lshrrev_b32 v{vW_}, 6, v0")
    A(f"v_and_b32 v{vL}, 63, v0")
    A(f"v_readfirstlane_b32 s20, v{vW_}")
    A(f"v_lshrrev_b32 v{vH}, 5, v{vL}")
    A(f"v_and_b32 v{vL31}, 31, v{vL}")
    A(f"v_lshlrev_b32 v{vOd}, 4, v{vL}")
    A(f"v_lshrrev_b32 v{vT0}, 3, v{vL}")
    A(f"v_lshl_add_u32 v{vT0}, v{vW_}, 4, v{vT0}")
    A(f"v_lshlrev_b32 v{vT0}, 11, v{vT0}")
    A(f"v_bfe_u32 v{vT1}, v{vL}, 4, 1")
    A(f"v_lshlrev_b32 v{vT1}, 2, v{vT1}")
    A(f"v_and_b32 v5, 7, v{vL}")
    A(f"v_xor_b32 v5, v5, v{vT1}")
    A(f"v_lshl_add_u32 v{vWd}, v5, 4, v{vT0}")
    A(f"v_add_u32 v{vWd+1}, {16384-1024}, v{vWd}")
    A("s_lshl_b32 s46, s29, 2")
    A("s_add_u32 s46, s46, s20")
    A("s_lshl_b32 s46, s46, 17")
    A(f"s_add_u32 s46, s46, {WS_OF}")
    A("s_lshl_b32 s31, s30, 7")
    A("s_lshl_b32 s36, s20, 12")
    A("s_lshl_b32 s35, s20, 11")
    A("s_add_u32 s35, s35, 0x4000")
    A("s_mov_b32 s37, 0")
    A("s_mov_b32 s38, 0")
    A("s_and_b32 s44, s2, 1")
    A("s_xor_b32 s44, s44, 1")
    A("s_lshl_b32 s44, s44, 4")
    A("s_lshr_b32 s45, s2, 5")
    A("s_lshl_b32 s45, s45, 1")
    A("s_add_u32 s44, s44, s45")
    A("s_waitcnt lgkmcnt(0)")
    srd(A, 8, 26, 27, WS_USED)
    srd(A, 12, 4, 5, 1024*1024*2)
    srd(A, 16, 24, 25, 2048*1024*2)
    def dma_item():
        I = []
        I.append(["s_lshl_b32 s32, s44, 12", "s_add_u32 m0, s37, s36", "s_add_u32 s32, s32, s46",
                  f"buffer_load_dwordx4 v{vOd}, s[8:11], s32 offen lds"])
        I.append(["s_cmp_ge_u32 s44, 16", "s_cselect_b32 s12, s6, s4", "s_cselect_b32 s13, s7, s5",
                  f"buffer_load_dwordx4 v{vOd}, s[8:11], s32 offen offset:1024 lds"])
        I.append(["s_and_b32 s33, s44, 15", "s_lshl_b32 s33, s33, 17", "s_add_u32 s33, s33, s31",
                  f"buffer_load_dwordx4 v{vOd}, s[8:11], s32 offen offset:2048 lds"])
        I.append(["s_add_u32 s44, s44, 1", "s_and_b32 s44, s44, 31",
                  f"buffer_load_dwordx4 v{vOd}, s[8:11], s32 offen offset:3072 lds"])
        I.append(["s_add_u32 m0, s37, s35", f"s_add_u32 s37, s37, {SLOT}",
                  f"buffer_load_dwordx4 v{vWd}, s[12:15], s33 offen lds"])
        I.append([f"s_cmp_eq_u32 s37, {SLOT*NSLOT}", "s_cselect_b32 s37, 0, s37",
                  f"buffer_load_dwordx4 v{vWd+1}, s[12:15], s33 offen offset:1024 lds"])
        I.append(["s_add_u32 s38, s38, 1", "s_cmp_eq_u32 s38, 32", "s_cselect_b32 s10, 0, s10", "s_cselect_b32 s14, 0, s14"])
        return I
    for it in range(DEPTH):
        for x in dma_item():
            for y in x: A(y)
    A("s_lshr_b32 s22, s20, 1")
    A("s_and_b32 s21, s20, 1")
    A("s_lshl_b32 s40, s22, 13")
    A(f"v_add_u32 v{vOr0}, s40, v{vOd}")
    A(f"v_bfe_u32 v{vT0}, v{vL}, 2, 2")
    A(f"v_lshl_add_u32 v{vT1}, v{vH}, 2, v{vT0}")
    A(f"v_lshlrev_b32 v{vT1}, 7, v{vT1}")
    A(f"v_bfe_u32 v{vT0}, v{vL}, 3, 1")
    A(f"v_xor_b32 v{vT0}, s21, v{vT0}")
    A(f"v_lshl_add_u32 v{vT1}, v{vT0}, 6, v{vT1}")
    A(f"v_bfe_u32 v{vT0}, v{vL}, 4, 1")
    A(f"v_lshl_add_u32 v{vT1}, v{vT0}, 5, v{vT1}")
    A(f"v_and_b32 v{vT0}, 1, v{vL}")
    A(f"v_lshl_add_u32 v{vT1}, v{vT0}, 4, v{vT1}")
    A(f"v_bfe_u32 v{vT0}, v{vL}, 1, 1")
    A(f"v_lshl_add_u32 v{vT1}, v{vT0}, 3, v{vT1}")
    A(f"v_add_u32 v{vWr0}, 0x4000, v{vT1}")
    for i in range(0, 32, 2):
        A(f"v_mov_b64 {vr(ACC+i,2)}, 0")
    for i in range(0, 48, 2):
        A(f"v_mov_b64 {vr(FR+48+i,2)}, 0")
    A("s_mov_b32 s39, 0")
    A("s_mov_b32 s42, 0")
    A(f"v_mov_b32 v{vOr}, v{vOr0}")
    A(f"v_mov_b32 v{vWr}, v{vWr0}")
    def rd_frags(p):
        R = []
        for s in range(4):
            b = FR + 48*p + 12*s
            R += [
                f"ds_read_b64_tr_b16 {vr(b+8,2)}, v{vWr} offset:{2048*s}",
                f"ds_read_b64_tr_b16 {vr(b+10,2)}, v{vWr} offset:{2048*s+1024}",
                f"ds_read_b128 {vr(b,4)}, v{vOr} offset:{1024*s}",
                f"ds_read_b128 {vr(b+4,4)}, v{vOr} offset:{1024*s+4096}",
            ]
        return R
    def mfmas(p):
        M = []
        for s in range(4):
            b = FR + 48*p + 12*s
            M += [f"v_mfma_f32_32x32x16_bf16 {vr(ACC+16*t,16)}, {vr(b+8,4)}, {vr(b+4*t,4)}, {vr(ACC+16*t,16)}" for t in range(2)]
        return M
    stamp(A, 1)
    A.raw(".p2align 6")
    A.label("L_o_loop")
    for p in range(2):
        A(f"s_waitcnt vmcnt({6*(DEPTH-1)}) lgkmcnt(0)")
        A("s_barrier")
        D = dma_item()
        T = [[f"s_add_u32 s42, s42, {SLOT}", f"s_cmp_eq_u32 s42, {SLOT*NSLOT}", "s_cselect_b32 s42, 0, s42",
              f"v_add_u32 v{vOr}, s42, v{vOr0}", f"v_add_u32 v{vWr}, s42, v{vWr0}"]]
        R = rd_frags(p); M = mfmas(1 - p)
        weave(A, M, [(R, lambda k: 3), (D, lambda k: 1), (T, lambda k: 1 if k == 7 else 0)])
    A("s_add_u32 s39, s39, 2")
    A("s_cmp_lt_u32 s39, 32")
    A("s_cbranch_scc1 L_o_loop")
    A("s_waitcnt lgkmcnt(0)")
    stamp(A, 2)
    for m in mfmas(1): A(m)
    A(f"v_lshlrev_b32 v{vT0}, 11, v{vL31}")
    A(f"v_lshl_add_u32 v{vT0}, v{vH}, 4, v{vT0}")
    A("s_lshl_b32 s40, s29, 18")
    A("s_lshl_b32 s41, s22, 17")
    A("s_add_u32 s40, s40, s41")
    A("s_lshl_b32 s41, s30, 7")
    A("s_add_u32 s40, s40, s41")
    A("s_lshl_b32 s41, s21, 6")
    A("s_add_u32 s40, s40, s41")
    A("s_add_u32 s41, s40, 0x10000")
    A("s_nop 7")
    for t in range(2):
        for j in range(8):
            A(f"v_cvt_pk_bf16_f32 v{FR+8*t+j}, v{ACC+16*t+2*j}, v{ACC+16*t+2*j+1}")
        for f in range(2):
            A(f"buffer_store_dwordx4 {vr(FR+8*t+4*f,4)}, v{vT0}, s[16:19], s{40+t} offen offset:{32*f}")
    A("s_waitcnt vmcnt(0)")
    stamp(A, 3)
    stamp_flush(A, 1, 4, 26, 27, 20)
    A.label("L_o_end")
    A("s_endpgm")
    return kernel_desc(name, 160, 160, 102), SLOT*NSLOT

def main(path):
    ref = open("cdna_kernels/" + NAME + ".s.ref").read().split("\n")
    hdr = [l for l in ref if l.startswith(";") and "@launch" not in l and "Override" not in l and "grid=ceil" not in l]
    B = Asm()
    d1 = gen_attn(B)
    d2, olds = gen_out(B)
    A = Asm()
    for l in hdr: A.raw(l)
    A.raw(f"; @launch kernel=attn_kernel grid=(256,1,1) block=(256,1,1) lds={LDS_ATTN}")
    A.raw(f"; @launch kernel=out_kernel grid=(256,1,1) block=(256,1,1) lds={max(olds, 83968)}")
    A.raw('.amdgcn_target "amdgcn-amd-amdhsa--gfx950"')
    A.raw(".text")
    A.lines += B.lines
    A.raw('.section .rodata,"a"')
    for d in (d1, d2):
        A.raw(".p2align 6")
        A.raw(d)
    open(path, "w").write(A.text())

if __name__ == "__main__":
    main(sys.argv[1] if len(sys.argv) > 1 else "cdna_kernels/" + NAME + ".s")
```

```python
import sys, math, struct, os
from asmlib import *

NAME = "gated_mix__grouped_kv_mqa__grouped_kv_mqa__prompt"
WS_KV = 0
WS_G = 0x80000
WS_OF = 0x100000
WS_USED = 0x900000
STAMP = os.environ.get("STAMP", "0") == "1"
VAR = os.environ.get("VAR", "")
WS_ST = 0xA00000

FINE = os.environ.get("FINE", "0") == "1"
TS = os.environ.get("TS", "0")
def tstamp(A):
    if TS == "0": return
    A("s_waitcnt lgkmcnt(0)")
    A("s_memtime s[96:97]")
    A("s_memrealtime s[98:99]")
    A("s_waitcnt lgkmcnt(0)")
    A("v_mov_b32 v6, s96")
    A("v_mov_b32 v7, s98")
    A("v_mov_b32 v5, 0")
    A("buffer_store_dwordx2 v[6:7], v5, s[92:95], s100 offen")
    A("s_add_u32 s100, s100, 8")
def tstamp_init(A, wsl, wsh, wave_sgpr, kern):
    if TS == "0": return
    A(f"s_mov_b32 s92, s{wsl}")
    A(f"s_mov_b32 s93, s{wsh}")
    A(f"s_mov_b32 s94, {0xC00000}")
    A("s_mov_b32 s95, 0x00020000")
    A("s_lshl_b32 s100, s2, 2")
    A(f"s_add_u32 s100, s100, s{wave_sgpr}")
    A("s_lshl_b32 s100, s100, 9")
    A(f"s_add_u32 s100, s100, {0xA00000 + kern*0x80000}")
def fstamp(A, k):
    if FINE: _stamp(A, k)
def stamp(A, k):
    if FINE and k not in (0,): return
    _stamp(A, k)
def _stamp(A, k):
    if not STAMP: return
    A("s_waitcnt lgkmcnt(0)")
    A(f"s_memtime s[96:97]")
    A(f"s_memrealtime s[98:99]")
    A("s_waitcnt lgkmcnt(0)")
    A(f"s_mov_b32 s{76+k}, s96")
    A(f"s_mov_b32 s{84+k}, s98")
def stamp_flush(A, kern, n, wsl, wsh, wave_sgpr):
    if not STAMP: return
    A(f"s_mov_b32 s92, s{wsl}")
    A(f"s_mov_b32 s93, s{wsh}")
    A(f"s_mov_b32 s94, {WS_ST + 0x40000}")
    A("s_mov_b32 s95, 0x00020000")
    A("s_lshl_b32 s96, s2, 2")
    A(f"s_add_u32 s96, s96, s{wave_sgpr}")
    A("s_lshl_b32 s96, s96, 6")
    A(f"s_add_u32 s96, s96, {WS_ST + kern*0x10000}")
    A("v_mov_b32 v1, 0")
    for k in range(n):
        A(f"v_mov_b32 v2, s{76+k}")
        A(f"buffer_store_dword v2, v1, s[92:95], s96 offen offset:{4*k}")
        A("s_nop 1")
        A(f"v_mov_b32 v2, s{84+k}")
        A(f"buffer_store_dword v2, v1, s[92:95], s96 offen offset:{32+4*k}")
        A("s_nop 1")

def f32bits(x):
    return struct.unpack("<I", struct.pack("<f", x))[0]
KSCALE = f32bits(math.log2(math.e) / math.sqrt(32.0))
LOG2E = f32bits(math.log2(math.e))

def weave(A, M, streams):
    for k, m in enumerate(M):
        A(m)
        for items, q in streams:
            for _ in range(q(k)):
                if items:
                    x = items.pop(0)
                    if isinstance(x, (list, tuple)):
                        for y in x: A(y)
                    else: A(x)
    for items, q in streams:
        while items:
            x = items.pop(0)
            if isinstance(x, (list, tuple)):
                for y in x: A(y)
            else: A(x)

LDS_SCR = 0x20000
LDS_DUMMY = 0x20000 + 0x4800
LDS_ATTN = LDS_DUMMY + 0x400

def gen_attn(A):
    name = "attn_kernel"
    kernel_header(A, name)
    S0, C0, O0, Q0 = 32, 96, 160, 224
    L0, KB0, VB0, SEL, GF, FR = 0, 16, 32, 48, 64, 128
    vL, vH, vL31, vW_ = 1, 2, 3, 4
    vXd, vWd = 8, 12
    vXr, vWr = 16, 20
    vKV, vIDX, vT0, vT1, vG = 22, 23, 24, 25, 26
    vLane16, vLin, vPoll, vT2 = 28, 29, 30, 31
    ACC = S0
    PACC, GACC = Q0, Q0 + 16
    vPd, vPr, vPw = C0, C0 + 4, C0 + 8
    vRed = C0 + 12
    A("s_cmp_ge_u32 s2, 256")
    A("s_cbranch_scc1 L_at_end")
    stamp(A, 0)
    if "noepf" not in VAR:
        A("s_getpc_b64 s[72:73]")
        for k in range(1, 7):
            A(f"s_load_dword s74, s[72:73], {128*k}")
    A("s_load_dwordx8 s[4:11], s[0:1], 0")
    A("s_load_dwordx2 s[64:65], s[0:1], 32")
    A("s_load_dwordx8 s[12:19], s[0:1], 48")
    A("s_load_dwordx2 s[66:67], s[0:1], 80")
    A("s_load_dwordx4 s[24:27], s[0:1], 96")
    A("s_and_b32 s28, s2, 1")
    A("s_bfe_u32 s29, s2, 0x20001")
    A("s_bfe_u32 s30, s2, 0x20003")
    A("s_lshl_b32 s29, s29, 2")
    A("s_add_u32 s29, s29, s30")
    A("s_lshr_b32 s30, s2, 5")
    A("s_lshr_b32 s31, s2, 7")
    A("s_and_b32 s23, s30, 3")
    A("s_lshl_b32 s33, s29, 2")
    A("s_add_u32 s33, s33, s23")
    A("s_lshl_b32 s34, s31, 1")
    A("s_add_u32 s34, s34, s23")
    A("s_and_b32 s34, s34, 3")
    A("s_and_b32 s37, s29, 3")
    A("s_lshl_b32 s37, s37, 1")
    A("s_add_u32 s37, s37, s30")
    A("s_lshl_b32 s37, s37, 1")
    A("s_and_b32 s37, s37, 15")
    A("s_lshl_b32 s38, s29, 18")
    A("s_lshl_b32 s39, s30, 8")
    A(f"v_lshrrev_b32 v{vW_}, 6, v0")
    A(f"v_and_b32 v{vL}, 63, v0")
    A(f"v_readfirstlane_b32 s20, v{vW_}")
    A(f"v_lshrrev_b32 v{vH}, 5, v{vL}")
    A(f"v_and_b32 v{vL31}, 31, v{vL}")
    A(f"v_lshlrev_b32 v{vLane16}, 4, v{vL}")
    A(f"v_lshl_add_u32 v{vLin}, v{vW_}, 12, v{vLane16}")
    A(f"v_lshrrev_b32 v{vT0}, 3, v{vL}")
    A(f"v_lshl_add_u32 v{vT0}, v{vW_}, 5, v{vT0}")
    A(f"v_lshlrev_b32 v{vT0}, 11, v{vT0}")
    A(f"v_lshrrev_b32 v{vT1}, 4, v{vL}")
    A(f"v_and_b32 v5, 7, v{vL}")
    A(f"v_xor_b32 v5, v5, v{vT1}")
    A(f"v_lshl_add_u32 v{vXd}, v5, 4, v{vT0}")
    A(f"v_xor_b32 v{vXd+1}, 64, v{vXd}")
    A(f"v_add_u32 v{vXd+1}, {16384-1024}, v{vXd+1}")
    A(f"v_add_u32 v{vXd+2}, {2*(16384-1024)}, v{vXd}")
    A(f"v_add_u32 v{vXd+3}, {2*(16384-1024)}, v{vXd+1}")
    A(f"v_lshl_add_u32 v{vT0}, v{vW_}, 4, v{vT1}")
    A(f"v_lshlrev_b32 v{vT0}, 11, v{vT0}")
    A(f"v_lshlrev_b32 v{vT1}, 2, v{vT1}")
    A(f"v_and_b32 v5, 15, v{vL}")
    A(f"v_xor_b32 v5, v5, v{vT1}")
    A(f"v_lshl_add_u32 v{vWd}, v5, 4, v{vT0}")
    for t in range(1, 4):
        A(f"v_add_u32 v{vWd+t}, {t*(8192-1024)}, v{vWd}")
    A("s_waitcnt lgkmcnt(0)")
    fstamp(A, 1)
    A("s_cmp_eq_u32 s28, 1")
    A("s_cselect_b64 s[6:7], s[12:13], s[6:7]")
    A("s_cselect_b64 s[8:9], s[14:15], s[8:9]")
    A("s_cselect_b64 s[10:11], s[16:17], s[10:11]")
    A("s_cmp_eq_u32 s31, 1")
    A("s_cselect_b64 s[8:9], s[10:11], s[8:9]")
    A("s_cselect_b64 s[64:65], s[18:19], s[64:65]")
    srd(A, 40, 8, 9, 1024*32*2)
    srd(A, 8, 4, 5, 2048*1024*2)
    srd(A, 12, 6, 7, 1024*1024*2)
    srd(A, 56, 66, 67, 2048)
    A("s_lshl_b32 s36, s20, 12")
    A("s_lshl_b32 s35, s33, 16")
    def dma_P(n):
        slot = (n % 4) * 0x8000
        I = []
        I.append([f"s_add_u32 m0, s36, {slot}", "s_lshl_b32 s48, s34, 9", "s_add_u32 s48, s48, s35",
                  f"buffer_load_dwordx4 v{vPd}, s[8:11], s48 offen lds"])
        for t in range(1, 4):
            I.append(f"buffer_load_dwordx4 v{vPd+t}, s[8:11], s48 offen offset:{1024*t} lds")
        I.append([f"s_add_u32 m0, s36, {slot+0x4000}", "s_lshl_b32 s49, s34, 14",
                  f"buffer_load_dwordx4 v{vLin}, s[40:43], s49 offen lds"])
        for t in range(1, 4):
            I.append(f"buffer_load_dwordx4 v{vLin}, s[40:43], s49 offen offset:{1024*t} lds")
        I.append(["s_add_u32 s34, s34, 1", "s_and_b32 s34, s34, 3"])
        return I
    def dma_G(n):
        slot = (n % 4) * 0x8000
        I = []
        I.append([f"s_add_u32 m0, s36, {slot}", "s_lshl_b32 s48, s37, 7", "s_add_u32 s48, s48, s38",
                  f"buffer_load_dwordx4 v{vXd}, s[8:11], s48 offen lds"])
        for t in range(1, 4):
            I.append(f"buffer_load_dwordx4 v{vXd+t}, s[8:11], s48 offen offset:{1024*t} lds")
        I.append([f"s_add_u32 m0, s36, {slot+0x4000}", "s_lshl_b32 s49, s37, 17", "s_add_u32 s49, s49, s39",
                  f"buffer_load_dwordx4 v{vWd}, s[12:15], s49 offen lds"])
        for t in range(1, 4):
            I.append(f"buffer_load_dwordx4 v{vWd+t}, s[12:15], s49 offen offset:{1024*t} lds")
        I.append(["s_add_u32 s37, s37, 1", "s_and_b32 s37, s37, 15"])
        return I
    def dma_C(c):
        slot = (c % 4) * 0x8000
        I = []
        I.append([f"s_add_u32 m0, s36, {slot}", f"s_mov_b32 s48, {c*0x8000}",
                  f"buffer_load_dwordx4 v{vLin}, s[44:47], s48 offen sc1 lds"])
        for t in range(1, 4):
            I.append(f"buffer_load_dwordx4 v{vLin}, s[44:47], s48 offen offset:{1024*t} sc1 lds")
        I.append([f"s_add_u32 m0, s36, {slot+0x4000}", f"s_mov_b32 s49, {c*0x8000+0x4000}",
                  f"buffer_load_dwordx4 v{vLin}, s[44:47], s49 offen sc1 lds"])
        for t in range(1, 4):
            I.append(f"buffer_load_dwordx4 v{vLin}, s[44:47], s49 offen offset:{1024*t} sc1 lds")
        return I
    def flat(I):
        for x in I:
            if isinstance(x, (list, tuple)):
                for y in x: A(y)
            else: A(x)
    ORDER = ["G", "G", "P", "P", "P", "P"] + ["G"] * 14
    PIDX = {n: k for k, n in enumerate([n for n in range(20) if ORDER[n] == "P"])}
    PLAST = max(PIDX)
    def dma(n):
        if n >= 20: return dma_C(n - 20)
        return dma_P(n) if ORDER[n] == "P" else dma_G(n)
    flat(dma(0))
    fstamp(A, 2)
    A(f"s_mov_b32 m0, {LDS_DUMMY}")
    A("s_bfe_u32 s48, s2, 0x40003")
    A("s_lshl_b32 s48, s48, 12")
    A("s_lshl_b32 s49, s20, 10")
    A("s_add_u32 s48, s48, s49")
    A(f"buffer_load_dwordx4 v{vLane16}, s[40:43], s48 offen lds")
    if "nocpf" not in VAR:
        A("s_getpc_b64 s[72:73]")
        A.label("L_at_pc")
        A("s_lshr_b32 s48, s2, 3")
        A("s_lshl_b32 s48, s48, 2")
        A("s_add_u32 s48, s48, s20")
        A("s_lshl_b32 s48, s48, 8")
        A("s_min_u32 s48, s48, L_code_end-L_at_pc-256")
        A("s_add_u32 s72, s72, s48")
        A("s_addc_u32 s73, s73, 0")
        for q in range(4):
            A(f"s_load_dword s74, s[72:73], {64*q}")
    srd(A, 16, 26, 27, WS_USED)
    srd(A, 52, 64, 65, 1024*1024*2)
    srd(A, 60, 24, 25, 256)
    A("s_lshl_b32 s48, s28, 18")
    A("s_add_u32 s44, s26, s48")
    A("s_addc_u32 s45, s27, 0")
    A("s_mov_b32 s46, 0x40000")
    A("s_mov_b32 s47, 0x00020000")
    A("s_lshr_b32 s22, s20, 1")
    A("s_and_b32 s21, s20, 1")
    A("s_bfe_u32 s68, s2, 0x40003")
    A("s_lshl_b32 s68, s68, 2")
    A("s_add_u32 s68, s68, s20")
    A("s_lshl_b32 s68, s68, 15")
    A("s_lshl_b32 s69, s28, 10")
    A("s_add_u32 s68, s68, s69")
    A("s_or_b32 s70, s28, s31")
    A(f"v_lshl_add_u32 v{vT0}, v{vW_}, 3, v{vH}")
    A(f"v_and_b32 v{vT1}, 15, v{vT0}")
    A(f"v_xor_b32 v{vT1}, v{vT1}, v{vL31}")
    A(f"v_lshlrev_b32 v{vT1}, 4, v{vT1}")
    A(f"v_lshl_add_u32 v{vPd}, v{vT0}, 11, v{vT1}")
    for t in range(1, 4):
        A(f"v_xor_b32 v{vPd+t}, {(2*t) << 4}, v{vPd}")
        A(f"v_add_u32 v{vPd+t}, {t*(4096-1024)}, v{vPd+t}")
    A(f"v_lshl_add_u32 v{vT0}, v{vW_}, 3, v{vH}")
    A(f"v_and_b32 v{vT1}, 15, v{vL31}")
    A(f"v_xor_b32 v{vT0}, v{vT0}, v{vT1}")
    A(f"v_lshlrev_b32 v{vT0}, 4, v{vT0}")
    A(f"v_lshl_add_u32 v{vPr}, v{vL31}, 9, v{vT0}")
    for s in range(1, 4):
        A(f"v_xor_b32 v{vPr+s}, {(2*s) << 4}, v{vPr}")
    A(f"v_bfe_u32 v{vT0}, v{vL}, 2, 2")
    A(f"v_lshl_add_u32 v{vT0}, v{vH}, 3, v{vT0}")
    A(f"v_lshl_add_u32 v{vT0}, v{vW_}, 6, v{vT0}")
    A(f"v_lshlrev_b32 v{vT0}, 6, v{vT0}")
    A(f"v_bfe_u32 v{vT1}, v{vL}, 4, 1")
    A(f"v_lshl_add_u32 v{vT0}, v{vT1}, 5, v{vT0}")
    A(f"v_and_b32 v{vT1}, 3, v{vL}")
    A(f"v_lshl_add_u32 v{vT0}, v{vT1}, 3, v{vT0}")
    A(f"v_add_u32 v{vPw}, 0x4000, v{vT0}")
    A(f"v_bfe_u32 v{vT0}, v{vL}, 1, 3")
    A(f"v_xor_b32 v{vT0}, v{vT0}, v{vH}")
    A(f"v_lshlrev_b32 v{vT0}, 4, v{vT0}")
    A(f"v_lshl_add_u32 v{vT0}, v{vL31}, 7, v{vT0}")
    A(f"s_lshl_b32 s48, s22, 13")
    A(f"v_add_u32 v{vXr}, s48, v{vT0}")
    for s in range(1, 4):
        A(f"v_xor_b32 v{vXr+s}, {(2*s) << 4}, v{vXr}")
    A(f"v_bfe_u32 v{vT0}, v{vL}, 2, 2")
    A(f"v_lshl_add_u32 v{vT1}, v{vH}, 3, v{vT0}")
    A(f"v_lshlrev_b32 v{vT1}, 8, v{vT1}")
    A(f"s_lshl_b32 s48, s21, 1")
    A(f"v_xor_b32 v{vT0}, s48, v{vT0}")
    A(f"v_lshl_add_u32 v{vT1}, v{vT0}, 6, v{vT1}")
    A(f"v_bfe_u32 v{vT0}, v{vL}, 4, 1")
    A(f"v_lshl_add_u32 v{vT1}, v{vT0}, 5, v{vT1}")
    A(f"v_and_b32 v{vT0}, 3, v{vL}")
    A(f"v_lshl_add_u32 v{vT1}, v{vT0}, 3, v{vT1}")
    A(f"v_add_u32 v{vWr}, 0x4000, v{vT1}")
    A(f"v_xor_b32 v{vWr+1}, 64, v{vWr}")
    for i in range(0, 32, 2):
        A(f"v_mov_b64 {vr(PACC+i,2)}, 0")
    for i in range(0, 64, 2):
        A(f"v_mov_b64 {vr(ACC+i,2)}, 0")
    side = []
    side.append(f"v_mov_b32 v{vIDX}, 0xdddddddd")
    side += [f"v_and_b32 v{vT0}, 7, v{vL}", f"v_mov_b32 v{vT1}, 0x3f803f80", f"v_cmp_eq_u32 vcc, 0, v{vT0}", "s_nop 1",
             f"v_cndmask_b32 v{vT2}, 0, v{vT1}, vcc", f"v_cmp_eq_u32 vcc, 4, v{vT0}", "s_nop 1",
             f"v_cndmask_b32 v{vT1}, 0, v{vT1}, vcc",
             f"v_accvgpr_write_b32 a{SEL}, v{vT2}", f"v_accvgpr_write_b32 a{SEL+1}, v{vT2}",
             f"v_accvgpr_write_b32 a{SEL+2}, v{vT1}", f"v_accvgpr_write_b32 a{SEL+3}, v{vT1}"]
    side += [f"v_accvgpr_write_b32 a{L0+i}, 0" for i in range(16)]
    side += [f"v_accvgpr_write_b32 a{VB0+8+i}, 0" for i in range(8)]
    side += [f"v_mov_b64 {vr(O0+i,2)}, 0" for i in range(0, 64, 2)]
    side.append(f"v_mov_b32 v{vKV}, v{vLane16}")
    for x in side: A(x)
    tstamp_init(A, 26, 27, 20, 0)
    tstamp(A)
    fstamp(A, 3)
    flat(dma(1))
    fstamp(A, 4)
    stamp(A, 1)
    def rd_P(n):
        off = (n % 2) * 0x8000
        b = FR + 64*(n % 2)
        R = []
        for s in range(4):
            R.append(f"ds_read_b128 {ar(b+8*s,4)}, v{vPr+s} offset:{off}")
            R.append(f"ds_read_b64_tr_b16 {ar(b+8*s+4,2)}, v{vPw} offset:{off+1024*s}")
            R.append(f"ds_read_b64_tr_b16 {ar(b+8*s+6,2)}, v{vPw} offset:{off+1024*s+256}")
        return R
    def mf_P(n):
        b = FR + 64*(n % 2)
        A("s_cmp_eq_u32 s31, 1")
        A(f"s_cbranch_scc1 L_at_pv{n}")
        for s in range(4):
            A(f"v_mfma_f32_32x32x16_bf16 {vr(PACC,16)}, {ar(b+8*s+4,4)}, {ar(b+8*s,4)}, {vr(PACC,16)}")
        A("s_cmp_lg_u32 s70, 0")
        A(f"s_cbranch_scc1 L_at_pj{n}")
        for s in range(4):
            A(f"v_mfma_f32_32x32x16_bf16 {vr(GACC,16)}, {ar(GF+16*PIDX[n]+4*s,4)}, {ar(b+8*s,4)}, {vr(GACC,16)}")
        A(f"s_branch L_at_pj{n}")
        A.label(f"L_at_pv{n}")
        for s in range(4):
            A(f"v_mfma_f32_32x32x16_bf16 {vr(PACC,16)}, {ar(b+8*s,4)}, {ar(b+8*s+4,4)}, {vr(PACC,16)}")
        A.label(f"L_at_pj{n}")
    def rd_G(n):
        off = (n % 2) * 0x8000
        b = FR + 64*(n % 2)
        R = []
        for s in range(4):
            p = b + 16*s
            R.append(f"ds_read_b128 {ar(p,4)}, v{vXr+s} offset:{off}")
            R.append(f"ds_read_b64_tr_b16 {ar(p+8,2)}, v{vWr} offset:{off+4096*s}")
            R.append(f"ds_read_b64_tr_b16 {ar(p+10,2)}, v{vWr} offset:{off+4096*s+1024}")
            R.append(f"ds_read_b128 {ar(p+4,4)}, v{vXr+s} offset:{off+4096}")
            R.append(f"ds_read_b64_tr_b16 {ar(p+12,2)}, v{vWr+1} offset:{off+4096*s}")
            R.append(f"ds_read_b64_tr_b16 {ar(p+14,2)}, v{vWr+1} offset:{off+4096*s+1024}")
        return R
    def mf_G(n, by_u=False):
        b = FR + 64*(n % 2)
        M = []
        order = [(s, a, t) for s in range(4) for a in range(2) for t in range(2)]
        if by_u: order = [(s, a, t) for a in range(2) for t in range(2) for s in range(4)]
        for (s, a, t) in order:
            p = b + 16*s; u = 2*a + t
            M.append(f"v_mfma_f32_32x32x16_bf16 {vr(ACC+16*u,16)}, {ar(p+8+4*a,4)}, {ar(p+4*t,4)}, {vr(ACC+16*u,16)}")
        return M
    def toggle(regs):
        return [f"v_xor_b32 v{r}, 0x10000, v{r}" for r in regs]
    Pregs = [vPr+s for s in range(4)] + [vPw]
    Gregs = [vXr+s for s in range(4)] + [vWr, vWr+1]
    hi = {"P": 0, "G": 0}
    for n in range(20):
        A.comment(f"---- iteration {n} ({ORDER[n]})")
        A(f"s_waitcnt vmcnt({9 if n in (8, 9, 17) else 8}) lgkmcnt(0)")
        A("s_barrier")
        tstamp(A)
        if n == 6: stamp(A, 2)
        if n == 0: fstamp(A, 5)
        if n == 1: fstamp(A, 6)
        D = dma(n + 2)
        assert hi[ORDER[n]] == (n >> 1) & 1
        R = rd_P(n) if ORDER[n] == "P" else rd_G(n)
        V = []
        T = []
        if n + 1 < 20 and hi[ORDER[n+1]] != ((n + 1) >> 1) & 1:
            T = toggle(Pregs if ORDER[n+1] == "P" else Gregs)
            hi[ORDER[n+1]] ^= 1
        if n == 18:
            A(f"v_cmp_ne_u32 vcc, 4, v{vPoll}")
            A("s_nop 4")
            A("s_cmp_eq_u64 vcc, 0")
            A("s_cbranch_scc1 L_at_flags_ok")
            A("s_mov_b32 s50, 0")
            A.label("L_at_spin")
            A("s_add_u32 s50, s50, 1")
            A("s_cmp_gt_u32 s50, 0x40000")
            A("s_cbranch_scc1 L_at_flags_ok")
            A("s_sleep 8")
            A(f"buffer_load_dword v{vPoll}, v{vT2}, s[60:63], 0 offen sc1")
            A("s_waitcnt vmcnt(0)")
            A(f"v_cmp_ne_u32 vcc, 4, v{vPoll}")
            A("s_nop 4")
            A("s_cmp_eq_u64 vcc, 0")
            A("s_cbranch_scc0 L_at_spin")
            A.label("L_at_flags_ok")
        if n == 0:
            A("s_cmp_lg_u32 s70, 0")
            A("s_cbranch_scc1 L_at_nogf")
            A(f"v_lshlrev_b32 v{vT0}, 4, v{vH}")
            A(f"v_lshl_add_u32 v{vT0}, v{vW_}, 7, v{vT0}")
            A("s_mov_b32 s50, s34")
            for q in range(4):
                A("s_lshl_b32 s51, s50, 9")
                for s in range(4):
                    A(f"buffer_load_dwordx4 {ar(GF+16*q+4*s,4)}, v{vT0}, s[56:59], s51 offen offset:{32*s}")
                A("s_add_u32 s50, s50, 1")
                A("s_and_b32 s50, s50, 3")
            A.label("L_at_nogf")
        if n == 0 or ORDER[n-1] == "P":
            for x in R: A(x)
            flat(D[:4])
            if n > 0: mf_P(n - 1)
            flat(D[4:])
            for x in T: A(x)
            if n - 1 == PLAST:
                A(f"s_mul_i32 s50, s20, 0x1200")
                A(f"s_add_u32 s50, s50, {LDS_SCR}")
                A(f"v_add_u32 v{vRed}, s50, v{vLane16}")
                A(f"v_lshlrev_b32 v{vRed+1}, 2, v{vL}")
                A(f"v_add_u32 v{vRed+2}, s50, v{vRed+1}")
                A("s_nop 7")
                for rg in range(4):
                    A(f"ds_write_b128 v{vRed}, {vr(PACC+4*rg,4)} offset:{1024*rg}")
                A(f"ds_write_b32 v{vRed+2}, v{GACC} offset:4096")
                A(f"v_lshl_add_u32 v{vRed}, v{vW_}, 10, v{vLane16}")
                A(f"v_add_u32 v{vRed}, {LDS_SCR}, v{vRed}")
                A(f"v_add_u32 v{vRed+2}, {LDS_SCR+4096}, v{vRed+1}")
            continue
        if n == 7:
            assert PLAST == 5
            for ww in range(4):
                A(f"ds_read_b128 {vr(Q0+4*ww,4)}, v{vRed} offset:{0x1200*ww}")
            for ww in range(4):
                A(f"ds_read_b32 v{Q0+16+ww}, v{vRed+2} offset:{0x1200*ww}")
            V += ["s_nop 0", "s_nop 0", "s_waitcnt lgkmcnt(6)"]
        post = []
        if n == 7:
            for e in range(0, 4, 2):
                V.append([f"v_add_f32 v{Q0+e}, v{Q0+e}, v{Q0+4+e}", f"v_add_f32 v{Q0+8+e}, v{Q0+8+e}, v{Q0+12+e}",
                          f"v_add_f32 v{Q0+e+1}, v{Q0+e+1}, v{Q0+5+e}", f"v_add_f32 v{Q0+9+e}, v{Q0+9+e}, v{Q0+13+e}"])
            V.append([f"v_add_f32 v{Q0+e}, v{Q0+e}, v{Q0+8+e}" for e in range(4)])
            V.append(["s_mov_b32 s50, 1.0", "s_cmp_eq_u32 s31, 1", f"s_cselect_b32 s50, s50, {KSCALE:#x}", "s_cselect_b64 vcc, -1, 0"])
            V.append([f"v_mul_f32 v{Q0+e}, s50, v{Q0+e}" for e in range(4)])
            V.append([f"v_cvt_pk_bf16_f32 v{Q0+4}, v{Q0}, v{Q0+1}", f"v_cvt_pk_bf16_f32 v{Q0+5}, v{Q0+2}, v{Q0+3}"])
            V.append([f"v_bfe_u32 v{vT0}, v{vL31}, 2, 1", f"v_bfe_u32 v{vT1}, v{vL31}, 3, 1", f"v_and_b32 v{vRed}, 0x13, v{vL31}"])
            V.append([f"v_lshl_add_u32 v{vRed}, v{vT0}, 3, v{vRed}", f"v_lshl_add_u32 v{vRed}, v{vT1}, 2, v{vRed}",
                      f"v_cndmask_b32 v{vRed}, v{vRed}, v{vL31}, vcc"])
            V.append([f"v_lshl_add_u32 v{vRed}, v{vH}, 5, v{vRed}", f"v_lshlrev_b32 v{vRed}, 4, v{vRed}"])
            V.append(["s_lshl_b32 s50, s33, 12", "s_lshl_b32 s51, s31, 11", "s_add_u32 s50, s50, s51", "s_lshl_b32 s51, s22, 10"])
            V.append(["s_add_u32 s50, s50, s51", "s_lshl_b32 s51, s21, 3", "s_add_u32 s50, s50, s51"])
            V.append([f"v_add_f32 v{Q0+16}, v{Q0+16}, v{Q0+17}", f"v_add_f32 v{Q0+18}, v{Q0+18}, v{Q0+19}", f"v_add_f32 v{Q0+16}, v{Q0+16}, v{Q0+18}"])
            V.append([f"v_mul_f32 v{Q0+16}, {LOG2E ^ 0x80000000:#x}, v{Q0+16}", f"v_exp_f32 v{Q0+16}, v{Q0+16}", "s_nop 0",
                      f"v_add_f32 v{Q0+16}, 1.0, v{Q0+16}", f"v_rcp_f32 v{Q0+16}, v{Q0+16}", f"v_lshlrev_b32 v{vRed+1}, 2, v{vL31}"])
            post.append(f"buffer_store_dwordx2 {vr(Q0+4,2)}, v{vRed}, s[44:47], s50 offen sc1")
            post.append("s_or_b32 s51, s70, s20")
            post.append("s_cmp_lg_u32 s51, 0")
            post.append("s_cbranch_scc1 L_at_nogst")
            post.append("s_lshl_b32 s51, s33, 7")
            post.append(f"s_add_u32 s51, s51, {WS_G}")
            post.append(f"buffer_store_dword v{Q0+16}, v{vRed+1}, s[16:19], s51 offen sc1")
            post.append("L_at_nogst:")
        if n == 10:
            post.append("s_cmp_lg_u32 s20, 0")
            post.append("s_cbranch_scc1 L_at_nosig")
            post.append("s_and_b32 s50, s2, 63")
            post.append("s_lshl_b32 s50, s50, 2")
            post.append(f"v_mov_b32 v{vT0}, 1")
            post.append(f"v_mov_b32 v{vT1}, 0")
            post.append("s_mov_b64 exec, 1")
            post.append(f"buffer_atomic_add v{vT0}, v{vT1}, s[60:63], s50 offen sc1")
            post.append("s_mov_b64 exec, -1")
            post.append("L_at_nosig:")
        if n == 16:
            V.append(f"v_lshlrev_b32 v{vT2}, 2, v{vL}")
            post.append(f"buffer_load_dword v{vPoll}, v{vT2}, s[60:63], 0 offen sc1")
        M = mf_G(n - 1)
        weave(A, M, [(R, lambda k: 2), (D, lambda k: 1 if k % 2 == 1 else 0), (V, lambda k: 1), (T, lambda k: 2 if k >= 12 else 0)])
        for x in post: A(x)
    A("s_waitcnt vmcnt(8) lgkmcnt(0)")
    A("s_barrier")
    stamp(A, 3)
    tstamp(A)
    def cvtQ(u):
        return [f"v_cvt_pk_bf16_f32 v{Q0+8*u+j}, v{ACC+16*u+2*j}, v{ACC+16*u+2*j+1}" for j in range(8)]
    def QK(u, c):
        return [f"v_mfma_f32_32x32x16_bf16 {vr(S0+16*u,16)}, {ar(KB0,4)}, {vr(Q0+8*u,4)}, {c}",
                f"v_mfma_f32_32x32x16_bf16 {vr(S0+16*u,16)}, {ar(KB0+4,4)}, {vr(Q0+8*u+4,4)}, {vr(S0+16*u,16)}"]
    def max16(b):
        L = [f"v_max3_f32 v{b}, v{b}, v{b+1}, v{b+2}"]
        for j in range(3, 15, 2):
            L.append(f"v_max3_f32 v{b}, v{b}, v{b+j}, v{b+j+1}")
        L.append(f"v_max_f32 v{b}, v{b}, v{b+15}")
        return L
    def fill_C(u, b):
        L = [f"v_mov_b32 v{b+1}, v{b}", "s_nop 1", f"v_permlane32_swap_b32 v{b}, v{b+1}", "s_nop 1",
             f"v_max_f32 v{b}, v{b}, v{b+1}", f"v_sub_f32 v{C0+16*u}, 0, v{b}", f"v_sub_f32 v{C0+16*u+1}, 0, v{b}"]
        for j in range(2, 16, 2):
            L.append(f"v_mov_b64 {vr(C0+16*u+j,2)}, {vr(C0+16*u,2)}")
        return L
    G = mf_G(19, by_u=True)
    ldc = lambda t: f"buffer_load_dwordx4 v{vLin}, s[44:47], s32 offen offset:{1024*t} sc1 lds"
    misc = [f"ds_read_b128 {ar(KB0,4)}, v{vKV}", f"ds_read_b128 {ar(KB0+4,4)}, v{vKV} offset:1024",
            f"ds_read_b128 {ar(VB0,4)}, v{vKV} offset:2048", f"ds_read_b128 {ar(VB0+4,4)}, v{vKV} offset:3072",
            f"v_lshlrev_b32 v{vT0}, 2, v{vL31}", "s_lshl_b32 s50, s29, 9", "s_lshl_b32 s51, s22, 8", "s_add_u32 s50, s50, s51",
            f"s_add_u32 s50, s50, {WS_G}", f"buffer_load_dword v{vG}, v{vT0}, s[16:19], s50 offen sc1",
            f"buffer_load_dword v{vG+1}, v{vT0}, s[16:19], s50 offen offset:128 sc1",
            "s_add_u32 m0, s36, 0x10000", "s_mov_b32 s32, 0x10000", ldc(0), ldc(1), ldc(2), ldc(3),
            "s_mov_b32 s37, 0x18000", "s_nop 0", "s_nop 0", "s_mov_b32 s39, 0", "s_mov_b32 s71, 0"]
    def emit(L):
        for x in L: A(x)
    def take(L, n):
        r = L[:n]; del L[:n]; return r
    for k in range(0, 7):
        A(G[k]); emit(take(misc, 4 if k < 5 else 1))
    emit(misc)
    c0 = cvtQ(0)
    A(G[7]); emit(take(c0, 5))
    A(G[8]); emit(c0); A("s_waitcnt lgkmcnt(0)")
    A(G[9])
    q = QK(0, "0"); A(q[0]); A(q[1])
    c1 = cvtQ(1)
    A(G[10]); emit(take(c1, 5))
    A(G[11]); emit(c1)
    A(G[12])
    q = QK(1, "0"); A(q[0]); A(q[1])
    m0_ = max16(S0)
    A(G[13]); emit(take(m0_, 5))
    A(G[14]); emit(m0_)
    f0 = fill_C(0, S0)
    A(G[15]); emit(take(f0, 4))
    emit(cvtQ(2))
    emit(take(f0, 3))
    q = QK(2, "0"); A(q[0]); emit(take(f0, 4)); A(q[1]); emit(f0)
    emit(cvtQ(3))
    m1_ = max16(S0+16)
    emit(take(m1_, 2))
    q = QK(3, "0"); A(q[0]); emit(take(m1_, 4)); A(q[1]); emit(m1_)
    f1 = fill_C(1, S0+16)
    emit(take(f1, 3))
    q = QK(0, vr(C0, 16)); A(q[0]); emit(take(f1, 5)); A(q[1]); emit(f1)
    emit(max16(S0+32)); emit(fill_C(2, S0+32))
    emit(max16(S0+48)); emit(fill_C(3, S0+48))
    for i in range(0, 16, 2):
        A(f"v_mov_b64 {vr(S0+48+i,2)}, 0")
    A("s_waitcnt vmcnt(6)")
    A("s_barrier")
    def PV(u0, p0):
        return [
            f"v_smfmac_f32_32x32x32_bf16 {vr(O0+16*u0,16)}, {ar(VB0+8*p0,4)}, {vr(S0+16*u0,8)}, v{vIDX}",
            f"v_smfmac_f32_32x32x32_bf16 {vr(O0+16*u0,16)}, {ar(VB0+8*p0+4,4)}, {vr(S0+16*u0+8,8)}, v{vIDX}",
            f"v_smfmac_f32_16x16x64_bf16 {ar(L0+4*u0,4)}, {ar(SEL,4)}, {vr(S0+16*u0,8)}, v{vIDX}",
            f"v_smfmac_f32_16x16x64_bf16 {ar(L0+4*u0,4)}, {ar(SEL,4)}, {vr(S0+16*u0+8,8)}, v{vIDX}",
        ]
    stamp(A, 4)
    body = []
    for i in range(8):
        for u in range(4):
            u1 = (u + 1) % 4; i1 = i + (1 if u == 3 else 0)
            u0 = (u + 3) % 4; i0 = i - (1 if u == 0 else 0)
            P = PV(u0, i0 % 2)
            M = [
                f"v_mfma_f32_32x32x16_bf16 {vr(S0+16*u1,16)}, {ar(KB0+8*(i1%2),4)}, {vr(Q0+8*u1,4)}, {vr(C0+16*u1,16)}",
                P[0],
                f"v_mfma_f32_32x32x16_bf16 {vr(S0+16*u1,16)}, {ar(KB0+8*(i1%2)+4,4)}, {vr(Q0+8*u1+4,4)}, {vr(S0+16*u1,16)}",
                P[1], P[2], P[3],
            ]
            X = [[] for _ in range(6)]
            tt = (i + 1) % 8
            pn = (i + 1) % 2
            if u == 0:
                X[3].append("s_waitcnt lgkmcnt(0)")
                X[4].append(f"ds_read_b128 {ar(KB0+8*pn,4)}, v{vKV} offset:{4096*tt}")
                X[5].append(f"ds_read_b128 {ar(KB0+8*pn+4,4)}, v{vKV} offset:{4096*tt+1024}")
            if u == 2:
                X[3].append("s_waitcnt lgkmcnt(0)")
                X[4].append(f"ds_read_b128 {ar(VB0+8*pn,4)}, v{vKV} offset:{4096*tt+2048}")
                X[5].append(f"ds_read_b128 {ar(VB0+8*pn+4,4)}, v{vKV} offset:{4096*tt+3072}")
            if i in (2, 4) and u == 1 and "nopf" not in VAR:
                X[2].append(f"s_mov_b32 m0, {LDS_DUMMY}")
                X[4].append(f"buffer_load_dwordx4 v{vLane16}, s[52:55], s68 offen lds")
                X[5].append("s_add_u32 s68, s68, 0x800")
            if i == 7 and u == 0:
                X[0].append("s_add_u32 s71, s71, 0x8000")
                X[1].append("s_and_b32 s71, s71, 0x1ffff")
                X[1].append("s_add_u32 s39, s39, 1")
                X[2].append("s_bitcmp1_b32 0x54, s39")
                X[3].append("@TOP")
            if i == 7 and u == 1:
                X[1].append("s_add_u32 m0, s37, s36")
                X[1].append("s_add_u32 s37, s37, 0x8000")
                X[3].append("s_and_b32 s37, s37, 0x1ffff")
                X[3].append("s_cmp_ge_u32 s39, 5")
                X[4].append(ldc(0)); X[5].append(ldc(1))
            if i == 7 and u == 2:
                X[0].append("s_cselect_b32 s37, 0x30000, s37")
            if i == 7 and u == 3:
                X[3].append("s_cmp_eq_u32 s39, 8")
                X[4].append(ldc(2)); X[5].append(ldc(3)); X[5].append("@EXIT")
            if i == 0 and u == 1:
                X[4].append(ldc(0)); X[5].append(ldc(1))
            if i == 0 and u == 3:
                X[4].append(ldc(2)); X[5].append(ldc(3))
            if i == 1 and u == 1:
                X[1].append("s_add_u32 s32, s32, 0x4000")
            E = [f"v_exp_f32 v{S0+16*u+j}, v{S0+16*u+j}" for j in range(16)]
            ne = [3, 3, 3, 3, 2, 2]
            for k in range(6):
                body.append(M[k])
                body += X[k]
                for _ in range(ne[k]): body.append(E.pop(0))
    top = body.index("@TOP")
    first, second = body[:top], body[top+1:]
    A("s_branch L_at_pre_entry")
    A.raw(".p2align 6")
    A.label("L_at_top_bar")
    A("s_waitcnt vmcnt(2)")
    A("s_barrier")
    A.label("L_at_top")
    tstamp(A)
    A(f"v_add_u32 v{vKV}, s71, v{vLane16}")
    ex = second.index("@EXIT")
    tail = second[ex+1:]
    for x in second[:ex]: A(x)
    A("s_cbranch_scc1 L_at_exit")
    for x in tail: A(x)
    A.label("L_at_pre_entry")
    A(first[0]); A("s_add_u32 m0, m0, 0x4000")
    for x in first[1:5]: A(x)
    A("s_add_u32 s32, s32, 0x4000")
    rest = first[5:]
    for x in rest: A(x)
    A("s_cbranch_scc1 L_at_top_bar")
    A("s_branch L_at_top")
    A.label("L_at_exit")
    for x in tail: A(x)
    stamp(A, 5)
    A("s_nop 0")
    P3 = PV(3, 1)
    def scale_store(u):
        a, t = u >> 1, u & 1
        L = []
        for j in range(0, 16, 2):
            L.append(f"v_pk_mul_f32 {vr(O0+16*u+j,2)}, {vr(O0+16*u+j,2)}, {vr(S0+2*u,2)} op_sel_hi:[1,0]")
        for j in range(8):
            L.append(f"v_cvt_pk_bf16_f32 v{C0+8*u+j}, v{O0+16*u+2*j}, v{O0+16*u+2*j+1}")
        for f in range(2):
            L.append(f"buffer_store_dwordx4 {vr(C0+8*u+4*f,4)}, v{vLane16}, s[16:19], s{48+t} offen offset:{2048*a+1024*f}")
        return L
    addr = ["s_lshl_b32 s48, s29, 2", "s_lshl_b32 s49, s22, 1", "s_add_u32 s48, s48, s49", "s_lshl_b32 s48, s48, 17",
            "s_lshl_b32 s49, s28, 5", "s_lshl_b32 s50, s30, 2", "s_add_u32 s49, s49, s50", "s_lshl_b32 s50, s21, 1",
            "s_add_u32 s49, s49, s50", "s_lshl_b32 s49, s49, 11", "s_add_u32 s48, s48, s49", f"s_add_u32 s48, s48, {WS_OF}",
            "s_add_u32 s49, s48, 0x20000",
            "s_cmp_eq_u32 s28, 0", "s_cselect_b32 s50, 1.0, -1.0", "s_cselect_b32 s51, 0, 1.0"]
    A(P3[2]); emit(take(addr, 4)); A(P3[3]); emit(take(addr, 4)); A(P3[0]); emit(take(addr, 8)); A(P3[1])
    A(f"v_mov_b32 v{vT0}, s51")
    A(f"v_fma_f32 v{vG}, v{vG}, s50, v{vT0}")
    A(f"v_fma_f32 v{vG+1}, v{vG+1}, s50, v{vT0}")
    A("s_mov_b64 s[74:75], -1")
    A.label("L_at_store")
    for u in range(4):
        A(f"v_accvgpr_read_b32 v{S0+2*u}, a{L0+4*u}")
    A(f"v_add_f32 v{vT1}, v{S0}, v{S0+2}")
    A(f"v_add_f32 v{vT0}, v{S0+4}, v{S0+6}")
    A(f"v_add_f32 v{vT0}, v{vT0}, v{vT1}")
    A(f"v_cmp_ngt_f32 vcc, {0x4e800000 if 'forceslow' not in VAR else 0x3f000000:#x}, v{vT0}")
    for u in range(4):
        A(f"v_rcp_f32 v{S0+2*u}, v{S0+2*u}")
    A("s_and_b64 vcc, vcc, s[74:75]")
    if "lx" not in VAR: A("s_cbranch_scc1 L_at_slow")
    for u in range(4):
        A(f"v_mul_f32 v{S0+2*u}, v{S0+2*u}, v{vG+(u&1)}")
    for u in range(4):
        emit(scale_store(u))
    if STAMP:
        A("s_waitcnt vmcnt(0)")
        stamp(A, 6)
        stamp_flush(A, 0, 7, 26, 27, 20)
    A("s_endpgm")
    A.label("L_at_slow")
    A("s_waitcnt vmcnt(0) lgkmcnt(0)")
    for u in range(4):
        A(f"v_mov_b32 v{O0+u}, 0xff7fffff")
    A("s_mov_b32 s39, 0")
    A.label("L_at_slow1")
    A(f"buffer_load_dwordx4 {ar(KB0,4)}, v{vLane16}, s[44:47], s39 offen sc1")
    A(f"buffer_load_dwordx4 {ar(KB0+4,4)}, v{vLane16}, s[44:47], s39 offen offset:1024 sc1")
    A("s_waitcnt vmcnt(0)")
    for u in range(4):
        for x in QK(u, "0"): A(x)
    A("s_nop 15")
    for u in range(4):
        for j in range(0, 16, 2):
            A(f"v_max3_f32 v{O0+u}, v{O0+u}, v{S0+16*u+j}, v{S0+16*u+j+1}")
    A("s_add_u32 s39, s39, 0x1000")
    A("s_cmp_lt_u32 s39, 0x40000")
    A("s_cbranch_scc1 L_at_slow1")
    for u in range(4):
        A(f"v_mov_b32 v{S0+16*u}, v{O0+u}")
        emit(fill_C(u, S0+16*u))
    for i in range(16):
        A(f"v_accvgpr_write_b32 a{L0+i}, 0")
    for i in range(64):
        A(f"v_mov_b32 v{O0+i}, 0")
    A("s_mov_b32 s39, 0")
    A.label("L_at_slow2")
    A(f"buffer_load_dwordx4 {ar(KB0,4)}, v{vLane16}, s[44:47], s39 offen sc1")
    A(f"buffer_load_dwordx4 {ar(KB0+4,4)}, v{vLane16}, s[44:47], s39 offen offset:1024 sc1")
    A(f"buffer_load_dwordx4 {ar(VB0,4)}, v{vLane16}, s[44:47], s39 offen offset:2048 sc1")
    A(f"buffer_load_dwordx4 {ar(VB0+4,4)}, v{vLane16}, s[44:47], s39 offen offset:3072 sc1")
    A("s_waitcnt vmcnt(0)")
    for u in range(4):
        for x in QK(u, vr(C0+16*u, 16)): A(x)
    A("s_nop 15")
    for j in range(64):
        A(f"v_exp_f32 v{S0+j}, v{S0+j}")
    A("s_nop 1")
    for u in range(4):
        for x in PV(u, 0): A(x)
    A("s_nop 15")
    A("s_add_u32 s39, s39, 0x1000")
    A("s_cmp_lt_u32 s39, 0x40000")
    A("s_cbranch_scc1 L_at_slow2")
    A("s_nop 15")
    A("s_mov_b64 s[74:75], 0")
    A("s_branch L_at_store")
    A.label("L_at_end")
    A("s_endpgm")
    return kernel_desc(name, 512, 256, 102)

def gen_out(A):
    name = "out_kernel"
    kernel_header(A, name)
    DEPTH = int(os.environ.get('ODEPTH', '2'))
    NSLOT = DEPTH + 1
    SLOT = 24576
    vL, vH, vL31, vW_ = 1, 2, 3, 4
    vOd, vWd = 8, 9
    vOr, vWr = 12, 13
    vOr0, vWr0 = 14, 15
    vT0, vT1 = 16, 17
    ACC = 32
    FR = 64
    A("s_cmp_ge_u32 s2, 256")
    A("s_cbranch_scc1 L_o_end")
    stamp(A, 0)
    if "noepf" not in VAR:
        A("s_getpc_b64 s[72:73]")
        for k in range(1, 7):
            A(f"s_load_dword s74, s[72:73], {128*k}")
    A("s_load_dwordx2 s[4:5], s[0:1], 32")
    A("s_load_dwordx2 s[6:7], s[0:1], 72")
    A("s_load_dwordx2 s[24:25], s[0:1], 88")
    A("s_load_dwordx2 s[26:27], s[0:1], 104")
    A("s_and_b32 s28, s2, 1")
    A("s_bfe_u32 s29, s2, 0x20001")
    A("s_bfe_u32 s30, s2, 0x20003")
    A("s_lshl_b32 s29, s29, 2")
    A("s_add_u32 s29, s29, s30")
    A("s_lshr_b32 s30, s2, 5")
    A("s_lshl_b32 s28, s28, 3")
    A("s_add_u32 s30, s30, s28")
    A(f"v_lshrrev_b32 v{vW_}, 6, v0")
    A(f"v_and_b32 v{vL}, 63, v0")
    A(f"v_readfirstlane_b32 s20, v{vW_}")
    A(f"v_lshrrev_b32 v{vH}, 5, v{vL}")
    A(f"v_and_b32 v{vL31}, 31, v{vL}")
    A(f"v_lshlrev_b32 v{vOd}, 4, v{vL}")
    A(f"v_lshrrev_b32 v{vT0}, 3, v{vL}")
    A(f"v_lshl_add_u32 v{vT0}, v{vW_}, 4, v{vT0}")
    A(f"v_lshlrev_b32 v{vT0}, 11, v{vT0}")
    A(f"v_bfe_u32 v{vT1}, v{vL}, 4, 1")
    A(f"v_lshlrev_b32 v{vT1}, 2, v{vT1}")
    A(f"v_and_b32 v5, 7, v{vL}")
    A(f"v_xor_b32 v5, v5, v{vT1}")
    A(f"v_lshl_add_u32 v{vWd}, v5, 4, v{vT0}")
    A(f"v_add_u32 v{vWd+1}, {16384-1024}, v{vWd}")
    A("s_lshl_b32 s46, s29, 2")
    A("s_add_u32 s46, s46, s20")
    A("s_lshl_b32 s46, s46, 17")
    A(f"s_add_u32 s46, s46, {WS_OF}")
    A("s_lshl_b32 s31, s30, 7")
    A("s_lshl_b32 s36, s20, 12")
    A("s_lshl_b32 s35, s20, 11")
    A("s_add_u32 s35, s35, 0x4000")
    A("s_mov_b32 s37, 0")
    A("s_mov_b32 s38, 0")
    A("s_and_b32 s44, s2, 1")
    A("s_xor_b32 s44, s44, 1")
    A("s_lshl_b32 s44, s44, 4")
    A("s_lshr_b32 s45, s2, 5")
    A("s_lshl_b32 s45, s45, 1")
    A("s_add_u32 s44, s44, s45")
    A("s_waitcnt lgkmcnt(0)")
    srd(A, 8, 26, 27, WS_USED)
    srd(A, 12, 4, 5, 1024*1024*2)
    srd(A, 16, 24, 25, 2048*1024*2)
    def dma_item():
        I = []
        I.append(["s_lshl_b32 s32, s44, 12", "s_add_u32 m0, s37, s36", "s_add_u32 s32, s32, s46",
                  f"buffer_load_dwordx4 v{vOd}, s[8:11], s32 offen lds"])
        I.append(["s_cmp_ge_u32 s44, 16", "s_cselect_b32 s12, s6, s4", "s_cselect_b32 s13, s7, s5",
                  f"buffer_load_dwordx4 v{vOd}, s[8:11], s32 offen offset:1024 lds"])
        I.append(["s_and_b32 s33, s44, 15", "s_lshl_b32 s33, s33, 17", "s_add_u32 s33, s33, s31",
                  f"buffer_load_dwordx4 v{vOd}, s[8:11], s32 offen offset:2048 lds"])
        I.append(["s_add_u32 s44, s44, 1", "s_and_b32 s44, s44, 31",
                  f"buffer_load_dwordx4 v{vOd}, s[8:11], s32 offen offset:3072 lds"])
        I.append(["s_add_u32 m0, s37, s35", f"s_add_u32 s37, s37, {SLOT}",
                  f"buffer_load_dwordx4 v{vWd}, s[12:15], s33 offen lds"])
        I.append([f"s_cmp_eq_u32 s37, {SLOT*NSLOT}", "s_cselect_b32 s37, 0, s37",
                  f"buffer_load_dwordx4 v{vWd+1}, s[12:15], s33 offen offset:1024 lds"])
        I.append(["s_add_u32 s38, s38, 1", "s_cmp_eq_u32 s38, 32", "s_cselect_b32 s10, 0, s10", "s_cselect_b32 s14, 0, s14"])
        return I
    for it in range(DEPTH):
        for x in dma_item():
            for y in x: A(y)
    A("s_lshr_b32 s22, s20, 1")
    A("s_and_b32 s21, s20, 1")
    A("s_lshl_b32 s40, s22, 13")
    A(f"v_add_u32 v{vOr0}, s40, v{vOd}")
    A(f"v_bfe_u32 v{vT0}, v{vL}, 2, 2")
    A(f"v_lshl_add_u32 v{vT1}, v{vH}, 2, v{vT0}")
    A(f"v_lshlrev_b32 v{vT1}, 7, v{vT1}")
    A(f"v_bfe_u32 v{vT0}, v{vL}, 3, 1")
    A(f"v_xor_b32 v{vT0}, s21, v{vT0}")
    A(f"v_lshl_add_u32 v{vT1}, v{vT0}, 6, v{vT1}")
    A(f"v_bfe_u32 v{vT0}, v{vL}, 4, 1")
    A(f"v_lshl_add_u32 v{vT1}, v{vT0}, 5, v{vT1}")
    A(f"v_and_b32 v{vT0}, 1, v{vL}")
    A(f"v_lshl_add_u32 v{vT1}, v{vT0}, 4, v{vT1}")
    A(f"v_bfe_u32 v{vT0}, v{vL}, 1, 1")
    A(f"v_lshl_add_u32 v{vT1}, v{vT0}, 3, v{vT1}")
    A(f"v_add_u32 v{vWr0}, 0x4000, v{vT1}")
    for i in range(0, 32, 2):
        A(f"v_mov_b64 {vr(ACC+i,2)}, 0")
    for i in range(0, 48, 2):
        A(f"v_mov_b64 {vr(FR+48+i,2)}, 0")
    A("s_mov_b32 s39, 0")
    A("s_mov_b32 s42, 0")
    A(f"v_mov_b32 v{vOr}, v{vOr0}")
    A(f"v_mov_b32 v{vWr}, v{vWr0}")
    def rd_frags(p):
        R = []
        for s in range(4):
            b = FR + 48*p + 12*s
            R += [
                f"ds_read_b64_tr_b16 {vr(b+8,2)}, v{vWr} offset:{2048*s}",
                f"ds_read_b64_tr_b16 {vr(b+10,2)}, v{vWr} offset:{2048*s+1024}",
                f"ds_read_b128 {vr(b,4)}, v{vOr} offset:{1024*s}",
                f"ds_read_b128 {vr(b+4,4)}, v{vOr} offset:{1024*s+4096}",
            ]
        return R
    def mfmas(p):
        M = []
        for s in range(4):
            b = FR + 48*p + 12*s
            M += [f"v_mfma_f32_32x32x16_bf16 {vr(ACC+16*t,16)}, {vr(b+8,4)}, {vr(b+4*t,4)}, {vr(ACC+16*t,16)}" for t in range(2)]
        return M
    stamp(A, 1)
    A.raw(".p2align 6")
    A.label("L_o_loop")
    for p in range(2):
        A(f"s_waitcnt vmcnt({6*(DEPTH-1)}) lgkmcnt(0)")
        A("s_barrier")
        D = dma_item()
        T = [[f"s_add_u32 s42, s42, {SLOT}", f"s_cmp_eq_u32 s42, {SLOT*NSLOT}", "s_cselect_b32 s42, 0, s42",
              f"v_add_u32 v{vOr}, s42, v{vOr0}", f"v_add_u32 v{vWr}, s42, v{vWr0}"]]
        R = rd_frags(p); M = mfmas(1 - p)
        weave(A, M, [(R, lambda k: 3), (D, lambda k: 1), (T, lambda k: 1 if k == 7 else 0)])
    A("s_add_u32 s39, s39, 2")
    A("s_cmp_lt_u32 s39, 32")
    A("s_cbranch_scc1 L_o_loop")
    A("s_waitcnt lgkmcnt(0)")
    stamp(A, 2)
    for m in mfmas(1): A(m)
    A(f"v_lshlrev_b32 v{vT0}, 11, v{vL31}")
    A(f"v_lshl_add_u32 v{vT0}, v{vH}, 4, v{vT0}")
    A("s_lshl_b32 s40, s29, 18")
    A("s_lshl_b32 s41, s22, 17")
    A("s_add_u32 s40, s40, s41")
    A("s_lshl_b32 s41, s30, 7")
    A("s_add_u32 s40, s40, s41")
    A("s_lshl_b32 s41, s21, 6")
    A("s_add_u32 s40, s40, s41")
    A("s_add_u32 s41, s40, 0x10000")
    A("s_nop 7")
    for t in range(2):
        for j in range(8):
            A(f"v_cvt_pk_bf16_f32 v{FR+8*t+j}, v{ACC+16*t+2*j}, v{ACC+16*t+2*j+1}")
        for f in range(2):
            A(f"buffer_store_dwordx4 {vr(FR+8*t+4*f,4)}, v{vT0}, s[16:19], s{40+t} offen offset:{32*f}")
    A("s_waitcnt vmcnt(0)")
    stamp(A, 3)
    stamp_flush(A, 1, 4, 26, 27, 20)
    A.label("L_o_end")
    A("s_endpgm")
    return kernel_desc(name, 160, 160, 102), SLOT*NSLOT

def main(path):
    ref = open("cdna_kernels/" + NAME + ".s.ref").read().split("\n")
    hdr = [l for l in ref if l.startswith(";") and "@launch" not in l and "Override" not in l and "grid=ceil" not in l]
    B = Asm()
    d1 = gen_attn(B)
    d2, olds = gen_out(B)
    A = Asm()
    for l in hdr: A.raw(l)
    A.raw(f"; @launch kernel=attn_kernel grid=(256,1,1) block=(256,1,1) lds={LDS_ATTN}")
    A.raw(f"; @launch kernel=out_kernel grid=(256,1,1) block=(256,1,1) lds={max(olds, 83968)}")
    A.raw('.amdgcn_target "amdgcn-amd-amdhsa--gfx950"')
    A.raw(".text")
    A.lines += B.lines
    A.raw("L_code_end:")
    A.raw('.section .rodata,"a"')
    for d in (d1, d2):
        A.raw(".p2align 6")
        A.raw(d)
    open(path, "w").write(A.text())

if __name__ == "__main__":
    main(sys.argv[1] if len(sys.argv) > 1 else "cdna_kernels/" + NAME + ".s")
```

```python
import sys, math, struct, os
from asmlib import *

NAME = "gated_mix__grouped_kv_mqa__grouped_kv_mqa__prompt"
WS_KV = 0
WS_G = 0x80000
WS_OF = 0x100000
WS_USED = 0x900000
STAMP = os.environ.get("STAMP", "0") == "1"
VAR = os.environ.get("VAR", "")
WS_ST = 0xA00000

FINE = os.environ.get("FINE", "0") == "1"
TS = os.environ.get("TS", "0")
def tstamp(A):
    if TS == "0": return
    A("s_waitcnt lgkmcnt(0)")
    A("s_memtime s[96:97]")
    A("s_memrealtime s[98:99]")
    A("s_waitcnt lgkmcnt(0)")
    A("v_mov_b32 v6, s96")
    A("v_mov_b32 v7, s98")
    A("v_mov_b32 v5, 0")
    A("buffer_store_dwordx2 v[6:7], v5, s[92:95], s100 offen")
    A("s_add_u32 s100, s100, 8")
def tstamp_init(A, wsl, wsh, wave_sgpr, kern):
    if TS == "0": return
    A(f"s_mov_b32 s92, s{wsl}")
    A(f"s_mov_b32 s93, s{wsh}")
    A(f"s_mov_b32 s94, {0xC00000}")
    A("s_mov_b32 s95, 0x00020000")
    A("s_lshl_b32 s100, s2, 2")
    A(f"s_add_u32 s100, s100, s{wave_sgpr}")
    A("s_lshl_b32 s100, s100, 9")
    A(f"s_add_u32 s100, s100, {0xA00000 + kern*0x80000}")
def fstamp(A, k):
    if FINE: _stamp(A, k)
def stamp(A, k):
    if FINE and k not in (0,): return
    _stamp(A, k)
def _stamp(A, k):
    if not STAMP: return
    A("s_waitcnt lgkmcnt(0)")
    A(f"s_memtime s[96:97]")
    A(f"s_memrealtime s[98:99]")
    A("s_waitcnt lgkmcnt(0)")
    A(f"s_mov_b32 s{76+k}, s96")
    A(f"s_mov_b32 s{84+k}, s98")
def stamp_flush(A, kern, n, wsl, wsh, wave_sgpr):
    if not STAMP: return
    A(f"s_mov_b32 s92, s{wsl}")
    A(f"s_mov_b32 s93, s{wsh}")
    A(f"s_mov_b32 s94, {WS_ST + 0x40000}")
    A("s_mov_b32 s95, 0x00020000")
    A("s_lshl_b32 s96, s2, 2")
    A(f"s_add_u32 s96, s96, s{wave_sgpr}")
    A("s_lshl_b32 s96, s96, 6")
    A(f"s_add_u32 s96, s96, {WS_ST + kern*0x10000}")
    A("v_mov_b32 v1, 0")
    for k in range(n):
        A(f"v_mov_b32 v2, s{76+k}")
        A(f"buffer_store_dword v2, v1, s[92:95], s96 offen offset:{4*k}")
        A("s_nop 1")
        A(f"v_mov_b32 v2, s{84+k}")
        A(f"buffer_store_dword v2, v1, s[92:95], s96 offen offset:{32+4*k}")
        A("s_nop 1")

def f32bits(x):
    return struct.unpack("<I", struct.pack("<f", x))[0]
KSCALE = f32bits(math.log2(math.e) / math.sqrt(32.0))
LOG2E = f32bits(math.log2(math.e))

def weave(A, M, streams):
    for k, m in enumerate(M):
        A(m)
        for items, q in streams:
            for _ in range(q(k)):
                if items:
                    x = items.pop(0)
                    if isinstance(x, (list, tuple)):
                        for y in x: A(y)
                    else: A(x)
    for items, q in streams:
        while items:
            x = items.pop(0)
            if isinstance(x, (list, tuple)):
                for y in x: A(y)
            else: A(x)

LDS_SCR = 0x20000
LDS_DUMMY = 0x20000 + 0x4800
LDS_ATTN = LDS_DUMMY + 0x400

def gen_attn(A):
    name = NAME + "_kernel"
    kernel_header(A, name)
    S0, C0, O0, Q0 = 32, 96, 160, 224
    L0, KB0, VB0, SEL, GF, FR = 0, 16, 32, 48, 64, 128
    vL, vH, vL31, vW_ = 1, 2, 3, 4
    vXd, vWd = 8, 12
    vXr, vWr = 16, 20
    vKV, vIDX, vT0, vT1, vG = 22, 23, 24, 25, 26
    vLane16, vLin, vPoll, vT2 = 28, 29, 30, 31
    ACC = S0
    PACC, GACC = Q0, Q0 + 16
    vPd, vPr, vPw = C0, C0 + 4, C0 + 8
    vRed = C0 + 12
    A("s_cmp_ge_u32 s2, 256")
    A("s_cbranch_scc1 L_at_end")
    stamp(A, 0)
    if "epf" in VAR:
        A("s_getpc_b64 s[72:73]")
        for k in range(1, 7):
            A(f"s_load_dword s74, s[72:73], {128*k}")
    A("s_load_dwordx8 s[4:11], s[0:1], 0")
    A("s_load_dwordx2 s[64:65], s[0:1], 32")
    A("s_load_dwordx8 s[12:19], s[0:1], 48")
    A("s_load_dwordx2 s[66:67], s[0:1], 80")
    A("s_load_dwordx4 s[24:27], s[0:1], 96")
    A("s_and_b32 s28, s2, 1")
    A("s_bfe_u32 s29, s2, 0x20001")
    A("s_bfe_u32 s30, s2, 0x20003")
    A("s_lshl_b32 s29, s29, 2")
    A("s_add_u32 s29, s29, s30")
    A("s_lshr_b32 s30, s2, 5")
    A("s_lshr_b32 s31, s2, 7")
    A("s_and_b32 s23, s30, 3")
    A("s_lshl_b32 s33, s29, 2")
    A("s_add_u32 s33, s33, s23")
    A("s_lshl_b32 s34, s31, 1")
    A("s_add_u32 s34, s34, s23")
    A("s_and_b32 s34, s34, 3")
    A("s_and_b32 s37, s29, 3")
    A("s_lshl_b32 s37, s37, 1")
    A("s_add_u32 s37, s37, s30")
    A("s_lshl_b32 s37, s37, 1")
    A("s_and_b32 s37, s37, 15")
    A("s_lshl_b32 s38, s29, 18")
    A("s_lshl_b32 s39, s30, 8")
    A(f"v_lshrrev_b32 v{vW_}, 6, v0")
    A(f"v_and_b32 v{vL}, 63, v0")
    A(f"v_readfirstlane_b32 s20, v{vW_}")
    A(f"v_lshrrev_b32 v{vH}, 5, v{vL}")
    A(f"v_and_b32 v{vL31}, 31, v{vL}")
    A(f"v_lshlrev_b32 v{vLane16}, 4, v{vL}")
    A(f"v_lshl_add_u32 v{vLin}, v{vW_}, 12, v{vLane16}")
    A(f"v_lshrrev_b32 v{vT0}, 3, v{vL}")
    A(f"v_lshl_add_u32 v{vT0}, v{vW_}, 5, v{vT0}")
    A(f"v_lshlrev_b32 v{vT0}, 11, v{vT0}")
    A(f"v_lshrrev_b32 v{vT1}, 4, v{vL}")
    A(f"v_and_b32 v5, 7, v{vL}")
    A(f"v_xor_b32 v5, v5, v{vT1}")
    A(f"v_lshl_add_u32 v{vXd}, v5, 4, v{vT0}")
    A(f"v_xor_b32 v{vXd+1}, 64, v{vXd}")
    A(f"v_add_u32 v{vXd+1}, {16384-1024}, v{vXd+1}")
    A(f"v_add_u32 v{vXd+2}, {2*(16384-1024)}, v{vXd}")
    A(f"v_add_u32 v{vXd+3}, {2*(16384-1024)}, v{vXd+1}")
    A(f"v_lshl_add_u32 v{vT0}, v{vW_}, 4, v{vT1}")
    A(f"v_lshlrev_b32 v{vT0}, 11, v{vT0}")
    A(f"v_lshlrev_b32 v{vT1}, 2, v{vT1}")
    A(f"v_and_b32 v5, 15, v{vL}")
    A(f"v_xor_b32 v5, v5, v{vT1}")
    A(f"v_lshl_add_u32 v{vWd}, v5, 4, v{vT0}")
    for t in range(1, 4):
        A(f"v_add_u32 v{vWd+t}, {t*(8192-1024)}, v{vWd}")
    A("s_waitcnt lgkmcnt(0)")
    fstamp(A, 1)
    A("s_cmp_eq_u32 s28, 1")
    A("s_cselect_b64 s[6:7], s[12:13], s[6:7]")
    A("s_cselect_b64 s[8:9], s[14:15], s[8:9]")
    A("s_cselect_b64 s[10:11], s[16:17], s[10:11]")
    A("s_cmp_eq_u32 s31, 1")
    A("s_cselect_b64 s[8:9], s[10:11], s[8:9]")
    A("s_cselect_b64 s[64:65], s[18:19], s[64:65]")
    srd(A, 40, 8, 9, 1024*32*2)
    srd(A, 8, 4, 5, 2048*1024*2)
    srd(A, 12, 6, 7, 1024*1024*2)
    srd(A, 56, 66, 67, 2048)
    A("s_lshl_b32 s36, s20, 12")
    A("s_lshl_b32 s35, s33, 16")
    def dma_P(n):
        slot = (n % 4) * 0x8000
        I = []
        I.append([f"s_add_u32 m0, s36, {slot}", "s_lshl_b32 s48, s34, 9", "s_add_u32 s48, s48, s35",
                  f"buffer_load_dwordx4 v{vPd}, s[8:11], s48 offen lds"])
        for t in range(1, 4):
            I.append(f"buffer_load_dwordx4 v{vPd+t}, s[8:11], s48 offen offset:{1024*t} lds")
        I.append([f"s_add_u32 m0, s36, {slot+0x4000}", "s_lshl_b32 s49, s34, 14",
                  f"buffer_load_dwordx4 v{vLin}, s[40:43], s49 offen lds"])
        for t in range(1, 4):
            I.append(f"buffer_load_dwordx4 v{vLin}, s[40:43], s49 offen offset:{1024*t} lds")
        I.append(["s_add_u32 s34, s34, 1", "s_and_b32 s34, s34, 3"])
        return I
    def dma_G(n):
        slot = (n % 4) * 0x8000
        I = []
        I.append([f"s_add_u32 m0, s36, {slot}", "s_lshl_b32 s48, s37, 7", "s_add_u32 s48, s48, s38",
                  f"buffer_load_dwordx4 v{vXd}, s[8:11], s48 offen lds"])
        for t in range(1, 4):
            I.append(f"buffer_load_dwordx4 v{vXd+t}, s[8:11], s48 offen offset:{1024*t} lds")
        I.append([f"s_add_u32 m0, s36, {slot+0x4000}", "s_lshl_b32 s49, s37, 17", "s_add_u32 s49, s49, s39",
                  f"buffer_load_dwordx4 v{vWd}, s[12:15], s49 offen lds"])
        for t in range(1, 4):
            I.append(f"buffer_load_dwordx4 v{vWd+t}, s[12:15], s49 offen offset:{1024*t} lds")
        I.append(["s_add_u32 s37, s37, 1", "s_and_b32 s37, s37, 15"])
        return I
    def dma_C(c):
        slot = (c % 4) * 0x8000
        I = []
        I.append([f"s_add_u32 m0, s36, {slot}", f"s_mov_b32 s48, {c*0x8000}",
                  f"buffer_load_dwordx4 v{vLin}, s[44:47], s48 offen sc1 lds"])
        for t in range(1, 4):
            I.append(f"buffer_load_dwordx4 v{vLin}, s[44:47], s48 offen offset:{1024*t} sc1 lds")
        I.append([f"s_add_u32 m0, s36, {slot+0x4000}", f"s_mov_b32 s49, {c*0x8000+0x4000}",
                  f"buffer_load_dwordx4 v{vLin}, s[44:47], s49 offen sc1 lds"])
        for t in range(1, 4):
            I.append(f"buffer_load_dwordx4 v{vLin}, s[44:47], s49 offen offset:{1024*t} sc1 lds")
        return I
    def flat(I):
        for x in I:
            if isinstance(x, (list, tuple)):
                for y in x: A(y)
            else: A(x)
    ORDER = ["G", "G", "P", "P", "P", "P"] + ["G"] * 14
    PIDX = {n: k for k, n in enumerate([n for n in range(20) if ORDER[n] == "P"])}
    PLAST = max(PIDX)
    def dma(n):
        if n >= 20: return dma_C(n - 20)
        return dma_P(n) if ORDER[n] == "P" else dma_G(n)
    flat(dma(0))
    fstamp(A, 2)
    A(f"s_mov_b32 m0, {LDS_DUMMY}")
    A("s_bfe_u32 s48, s2, 0x40003")
    A("s_lshl_b32 s48, s48, 12")
    A("s_lshl_b32 s49, s20, 10")
    A("s_add_u32 s48, s48, s49")
    A(f"buffer_load_dwordx4 v{vLane16}, s[40:43], s48 offen lds")
    if "cpf" in VAR:
        A("s_getpc_b64 s[72:73]")
        A.label("L_at_pc")
        A("s_lshr_b32 s48, s2, 3")
        A("s_lshl_b32 s48, s48, 2")
        A("s_add_u32 s48, s48, s20")
        A("s_lshl_b32 s48, s48, 8")
        A("s_min_u32 s48, s48, L_code_end-L_at_pc-256")
        A("s_add_u32 s72, s72, s48")
        A("s_addc_u32 s73, s73, 0")
        for q in range(4):
            A(f"s_load_dword s74, s[72:73], {64*q}")
    srd(A, 16, 26, 27, WS_USED)
    srd(A, 52, 64, 65, 1024*1024*2)
    srd(A, 60, 24, 25, 256)
    A("s_lshl_b32 s48, s28, 18")
    A("s_add_u32 s44, s26, s48")
    A("s_addc_u32 s45, s27, 0")
    A("s_mov_b32 s46, 0x40000")
    A("s_mov_b32 s47, 0x00020000")
    A("s_lshr_b32 s22, s20, 1")
    A("s_and_b32 s21, s20, 1")
    A("s_bfe_u32 s68, s2, 0x40003")
    A("s_lshl_b32 s68, s68, 2")
    A("s_add_u32 s68, s68, s20")
    A("s_lshl_b32 s68, s68, 15")
    A("s_lshl_b32 s69, s28, 10")
    A("s_add_u32 s68, s68, s69")
    A("s_or_b32 s70, s28, s31")
    A(f"v_lshl_add_u32 v{vT0}, v{vW_}, 3, v{vH}")
    A(f"v_and_b32 v{vT1}, 15, v{vT0}")
    A(f"v_xor_b32 v{vT1}, v{vT1}, v{vL31}")
    A(f"v_lshlrev_b32 v{vT1}, 4, v{vT1}")
    A(f"v_lshl_add_u32 v{vPd}, v{vT0}, 11, v{vT1}")
    for t in range(1, 4):
        A(f"v_xor_b32 v{vPd+t}, {(2*t) << 4}, v{vPd}")
        A(f"v_add_u32 v{vPd+t}, {t*(4096-1024)}, v{vPd+t}")
    A(f"v_lshl_add_u32 v{vT0}, v{vW_}, 3, v{vH}")
    A(f"v_and_b32 v{vT1}, 15, v{vL31}")
    A(f"v_xor_b32 v{vT0}, v{vT0}, v{vT1}")
    A(f"v_lshlrev_b32 v{vT0}, 4, v{vT0}")
    A(f"v_lshl_add_u32 v{vPr}, v{vL31}, 9, v{vT0}")
    for s in range(1, 4):
        A(f"v_xor_b32 v{vPr+s}, {(2*s) << 4}, v{vPr}")
    A(f"v_bfe_u32 v{vT0}, v{vL}, 2, 2")
    A(f"v_lshl_add_u32 v{vT0}, v{vH}, 3, v{vT0}")
    A(f"v_lshl_add_u32 v{vT0}, v{vW_}, 6, v{vT0}")
    A(f"v_lshlrev_b32 v{vT0}, 6, v{vT0}")
    A(f"v_bfe_u32 v{vT1}, v{vL}, 4, 1")
    A(f"v_lshl_add_u32 v{vT0}, v{vT1}, 5, v{vT0}")
    A(f"v_and_b32 v{vT1}, 3, v{vL}")
    A(f"v_lshl_add_u32 v{vT0}, v{vT1}, 3, v{vT0}")
    A(f"v_add_u32 v{vPw}, 0x4000, v{vT0}")
    A(f"v_bfe_u32 v{vT0}, v{vL}, 1, 3")
    A(f"v_xor_b32 v{vT0}, v{vT0}, v{vH}")
    A(f"v_lshlrev_b32 v{vT0}, 4, v{vT0}")
    A(f"v_lshl_add_u32 v{vT0}, v{vL31}, 7, v{vT0}")
    A(f"s_lshl_b32 s48, s22, 13")
    A(f"v_add_u32 v{vXr}, s48, v{vT0}")
    for s in range(1, 4):
        A(f"v_xor_b32 v{vXr+s}, {(2*s) << 4}, v{vXr}")
    A(f"v_bfe_u32 v{vT0}, v{vL}, 2, 2")
    A(f"v_lshl_add_u32 v{vT1}, v{vH}, 3, v{vT0}")
    A(f"v_lshlrev_b32 v{vT1}, 8, v{vT1}")
    A(f"s_lshl_b32 s48, s21, 1")
    A(f"v_xor_b32 v{vT0}, s48, v{vT0}")
    A(f"v_lshl_add_u32 v{vT1}, v{vT0}, 6, v{vT1}")
    A(f"v_bfe_u32 v{vT0}, v{vL}, 4, 1")
    A(f"v_lshl_add_u32 v{vT1}, v{vT0}, 5, v{vT1}")
    A(f"v_and_b32 v{vT0}, 3, v{vL}")
    A(f"v_lshl_add_u32 v{vT1}, v{vT0}, 3, v{vT1}")
    A(f"v_add_u32 v{vWr}, 0x4000, v{vT1}")
    A(f"v_xor_b32 v{vWr+1}, 64, v{vWr}")
    for i in range(0, 32, 2):
        A(f"v_mov_b64 {vr(PACC+i,2)}, 0")
    for i in range(0, 64, 2):
        A(f"v_mov_b64 {vr(ACC+i,2)}, 0")
    side = []
    side.append(f"v_mov_b32 v{vIDX}, 0xdddddddd")
    side += [f"v_and_b32 v{vT0}, 7, v{vL}", f"v_mov_b32 v{vT1}, 0x3f803f80", f"v_cmp_eq_u32 vcc, 0, v{vT0}", "s_nop 1",
             f"v_cndmask_b32 v{vT2}, 0, v{vT1}, vcc", f"v_cmp_eq_u32 vcc, 4, v{vT0}", "s_nop 1",
             f"v_cndmask_b32 v{vT1}, 0, v{vT1}, vcc",
             f"v_accvgpr_write_b32 a{SEL}, v{vT2}", f"v_accvgpr_write_b32 a{SEL+1}, v{vT2}",
             f"v_accvgpr_write_b32 a{SEL+2}, v{vT1}", f"v_accvgpr_write_b32 a{SEL+3}, v{vT1}"]
    side += [f"v_accvgpr_write_b32 a{L0+i}, 0" for i in range(16)]
    side += [f"v_accvgpr_write_b32 a{VB0+8+i}, 0" for i in range(8)]
    side += [f"v_mov_b64 {vr(O0+i,2)}, 0" for i in range(0, 64, 2)]
    side.append(f"v_mov_b32 v{vKV}, v{vLane16}")
    for x in side: A(x)
    tstamp_init(A, 26, 27, 20, 0)
    tstamp(A)
    fstamp(A, 3)
    flat(dma(1))
    fstamp(A, 4)
    stamp(A, 1)
    def rd_P(n):
        off = (n % 2) * 0x8000
        b = FR + 64*(n % 2)
        R = []
        for s in range(4):
            R.append(f"ds_read_b128 {ar(b+8*s,4)}, v{vPr+s} offset:{off}")
            R.append(f"ds_read_b64_tr_b16 {ar(b+8*s+4,2)}, v{vPw} offset:{off+1024*s}")
            R.append(f"ds_read_b64_tr_b16 {ar(b+8*s+6,2)}, v{vPw} offset:{off+1024*s+256}")
        return R
    def mf_P(n):
        b = FR + 64*(n % 2)
        A("s_cmp_eq_u32 s31, 1")
        A(f"s_cbranch_scc1 L_at_pv{n}")
        for s in range(4):
            A(f"v_mfma_f32_32x32x16_bf16 {vr(PACC,16)}, {ar(b+8*s+4,4)}, {ar(b+8*s,4)}, {vr(PACC,16)}")
        A("s_cmp_lg_u32 s70, 0")
        A(f"s_cbranch_scc1 L_at_pj{n}")
        for s in range(4):
            A(f"v_mfma_f32_32x32x16_bf16 {vr(GACC,16)}, {ar(GF+16*PIDX[n]+4*s,4)}, {ar(b+8*s,4)}, {vr(GACC,16)}")
        A(f"s_branch L_at_pj{n}")
        A.label(f"L_at_pv{n}")
        for s in range(4):
            A(f"v_mfma_f32_32x32x16_bf16 {vr(PACC,16)}, {ar(b+8*s,4)}, {ar(b+8*s+4,4)}, {vr(PACC,16)}")
        A.label(f"L_at_pj{n}")
    def rd_G(n):
        off = (n % 2) * 0x8000
        b = FR + 64*(n % 2)
        R = []
        for s in range(4):
            p = b + 16*s
            R.append(f"ds_read_b128 {ar(p,4)}, v{vXr+s} offset:{off}")
            R.append(f"ds_read_b64_tr_b16 {ar(p+8,2)}, v{vWr} offset:{off+4096*s}")
            R.append(f"ds_read_b64_tr_b16 {ar(p+10,2)}, v{vWr} offset:{off+4096*s+1024}")
            R.append(f"ds_read_b128 {ar(p+4,4)}, v{vXr+s} offset:{off+4096}")
            R.append(f"ds_read_b64_tr_b16 {ar(p+12,2)}, v{vWr+1} offset:{off+4096*s}")
            R.append(f"ds_read_b64_tr_b16 {ar(p+14,2)}, v{vWr+1} offset:{off+4096*s+1024}")
        return R
    def mf_G(n, by_u=False):
        b = FR + 64*(n % 2)
        M = []
        order = [(s, a, t) for s in range(4) for a in range(2) for t in range(2)]
        if by_u: order = [(s, a, t) for a in range(2) for t in range(2) for s in range(4)]
        for (s, a, t) in order:
            p = b + 16*s; u = 2*a + t
            M.append(f"v_mfma_f32_32x32x16_bf16 {vr(ACC+16*u,16)}, {ar(p+8+4*a,4)}, {ar(p+4*t,4)}, {vr(ACC+16*u,16)}")
        return M
    def toggle(regs):
        return [f"v_xor_b32 v{r}, 0x10000, v{r}" for r in regs]
    Pregs = [vPr+s for s in range(4)] + [vPw]
    Gregs = [vXr+s for s in range(4)] + [vWr, vWr+1]
    hi = {"P": 0, "G": 0}
    for n in range(20):
        A.comment(f"---- iteration {n} ({ORDER[n]})")
        A(f"s_waitcnt vmcnt({9 if n in (8, 9, 17) else 8}) lgkmcnt(0)")
        A("s_barrier")
        tstamp(A)
        if n == 6: stamp(A, 2)
        if n == 0: fstamp(A, 5)
        if n == 1: fstamp(A, 6)
        D = dma(n + 2)
        assert hi[ORDER[n]] == (n >> 1) & 1
        R = rd_P(n) if ORDER[n] == "P" else rd_G(n)
        V = []
        T = []
        if n + 1 < 20 and hi[ORDER[n+1]] != ((n + 1) >> 1) & 1:
            T = toggle(Pregs if ORDER[n+1] == "P" else Gregs)
            hi[ORDER[n+1]] ^= 1
        if n == 18:
            A(f"v_and_b32 v{vPoll}, 0xff, v{vPoll}")
            A(f"v_cmp_ne_u32 vcc, 4, v{vPoll}")
            A("s_nop 4")
            A("s_cmp_eq_u64 vcc, 0")
            A("s_cbranch_scc1 L_at_flags_ok")
            A("s_mov_b32 s50, 0")
            A.label("L_at_spin")
            A("s_add_u32 s50, s50, 1")
            A("s_cmp_gt_u32 s50, 0x40000")
            A("s_cbranch_scc1 L_at_flags_ok")
            A("s_sleep 8")
            A(f"buffer_load_dword v{vPoll}, v{vT2}, s[60:63], 0 offen sc1")
            A("s_waitcnt vmcnt(0)")
            A(f"v_and_b32 v{vPoll}, 0xff, v{vPoll}")
            A(f"v_cmp_ne_u32 vcc, 4, v{vPoll}")
            A("s_nop 4")
            A("s_cmp_eq_u64 vcc, 0")
            A("s_cbranch_scc0 L_at_spin")
            A.label("L_at_flags_ok")
        if n == 0:
            A("s_cmp_lg_u32 s70, 0")
            A("s_cbranch_scc1 L_at_nogf")
            A(f"v_lshlrev_b32 v{vT0}, 4, v{vH}")
            A(f"v_lshl_add_u32 v{vT0}, v{vW_}, 7, v{vT0}")
            A("s_mov_b32 s50, s34")
            for q in range(4):
                A("s_lshl_b32 s51, s50, 9")
                for s in range(4):
                    A(f"buffer_load_dwordx4 {ar(GF+16*q+4*s,4)}, v{vT0}, s[56:59], s51 offen offset:{32*s}")
                A("s_add_u32 s50, s50, 1")
                A("s_and_b32 s50, s50, 3")
            A.label("L_at_nogf")
        if n == 0 or ORDER[n-1] == "P":
            for x in R: A(x)
            flat(D[:4])
            if n > 0: mf_P(n - 1)
            flat(D[4:])
            for x in T: A(x)
            if n - 1 == PLAST:
                A(f"s_mul_i32 s50, s20, 0x1200")
                A(f"s_add_u32 s50, s50, {LDS_SCR}")
                A(f"v_add_u32 v{vRed}, s50, v{vLane16}")
                A(f"v_lshlrev_b32 v{vRed+1}, 2, v{vL}")
                A(f"v_add_u32 v{vRed+2}, s50, v{vRed+1}")
                A("s_nop 7")
                for rg in range(4):
                    A(f"ds_write_b128 v{vRed}, {vr(PACC+4*rg,4)} offset:{1024*rg}")
                A(f"ds_write_b32 v{vRed+2}, v{GACC} offset:4096")
                A(f"v_lshl_add_u32 v{vRed}, v{vW_}, 10, v{vLane16}")
                A(f"v_add_u32 v{vRed}, {LDS_SCR}, v{vRed}")
                A(f"v_add_u32 v{vRed+2}, {LDS_SCR+4096}, v{vRed+1}")
            continue
        if n == 7:
            assert PLAST == 5
            for ww in range(4):
                A(f"ds_read_b128 {vr(Q0+4*ww,4)}, v{vRed} offset:{0x1200*ww}")
            for ww in range(4):
                A(f"ds_read_b32 v{Q0+16+ww}, v{vRed+2} offset:{0x1200*ww}")
            V += ["s_nop 0", "s_nop 0", "s_waitcnt lgkmcnt(6)"]
        post = []
        if n == 7:
            for e in range(0, 4, 2):
                V.append([f"v_add_f32 v{Q0+e}, v{Q0+e}, v{Q0+4+e}", f"v_add_f32 v{Q0+8+e}, v{Q0+8+e}, v{Q0+12+e}",
                          f"v_add_f32 v{Q0+e+1}, v{Q0+e+1}, v{Q0+5+e}", f"v_add_f32 v{Q0+9+e}, v{Q0+9+e}, v{Q0+13+e}"])
            V.append([f"v_add_f32 v{Q0+e}, v{Q0+e}, v{Q0+8+e}" for e in range(4)])
            V.append(["s_mov_b32 s50, 1.0", "s_cmp_eq_u32 s31, 1", f"s_cselect_b32 s50, s50, {KSCALE:#x}", "s_cselect_b64 vcc, -1, 0"])
            V.append([f"v_mul_f32 v{Q0+e}, s50, v{Q0+e}" for e in range(4)])
            V.append([f"v_cvt_pk_bf16_f32 v{Q0+4}, v{Q0}, v{Q0+1}", f"v_cvt_pk_bf16_f32 v{Q0+5}, v{Q0+2}, v{Q0+3}"])
            V.append([f"v_bfe_u32 v{vT0}, v{vL31}, 2, 1", f"v_bfe_u32 v{vT1}, v{vL31}, 3, 1", f"v_and_b32 v{vRed}, 0x13, v{vL31}"])
            V.append([f"v_lshl_add_u32 v{vRed}, v{vT0}, 3, v{vRed}", f"v_lshl_add_u32 v{vRed}, v{vT1}, 2, v{vRed}",
                      f"v_cndmask_b32 v{vRed}, v{vRed}, v{vL31}, vcc"])
            V.append([f"v_lshl_add_u32 v{vRed}, v{vH}, 5, v{vRed}", f"v_lshlrev_b32 v{vRed}, 4, v{vRed}"])
            V.append(["s_lshl_b32 s50, s33, 12", "s_lshl_b32 s51, s31, 11", "s_add_u32 s50, s50, s51", "s_lshl_b32 s51, s22, 10"])
            V.append(["s_add_u32 s50, s50, s51", "s_lshl_b32 s51, s21, 3", "s_add_u32 s50, s50, s51"])
            V.append([f"v_add_f32 v{Q0+16}, v{Q0+16}, v{Q0+17}", f"v_add_f32 v{Q0+18}, v{Q0+18}, v{Q0+19}", f"v_add_f32 v{Q0+16}, v{Q0+16}, v{Q0+18}"])
            V.append([f"v_mul_f32 v{Q0+16}, {LOG2E ^ 0x80000000:#x}, v{Q0+16}", f"v_exp_f32 v{Q0+16}, v{Q0+16}", "s_nop 0",
                      f"v_add_f32 v{Q0+16}, 1.0, v{Q0+16}", f"v_rcp_f32 v{Q0+16}, v{Q0+16}", f"v_lshlrev_b32 v{vRed+1}, 2, v{vL31}"])
            post.append(f"buffer_store_dwordx2 {vr(Q0+4,2)}, v{vRed}, s[44:47], s50 offen sc1")
            post.append("s_or_b32 s51, s70, s20")
            post.append("s_cmp_lg_u32 s51, 0")
            post.append("s_cbranch_scc1 L_at_nogst")
            post.append("s_lshl_b32 s51, s33, 7")
            post.append(f"s_add_u32 s51, s51, {WS_G}")
            post.append(f"buffer_store_dword v{Q0+16}, v{vRed+1}, s[16:19], s51 offen sc1")
            post.append("L_at_nogst:")
        if n == 10:
            post.append("s_cmp_lg_u32 s20, 0")
            post.append("s_cbranch_scc1 L_at_nosig")
            post.append("s_and_b32 s50, s2, 63")
            post.append("s_lshl_b32 s50, s50, 2")
            post.append(f"v_mov_b32 v{vT0}, 1")
            post.append(f"v_mov_b32 v{vT1}, 0")
            post.append("s_mov_b64 exec, 1")
            post.append(f"buffer_atomic_add v{vT0}, v{vT1}, s[60:63], s50 offen sc1")
            post.append("s_mov_b64 exec, -1")
            post.append("L_at_nosig:")
        if n == 16:
            V.append(f"v_lshlrev_b32 v{vT2}, 2, v{vL}")
            post.append(f"buffer_load_dword v{vPoll}, v{vT2}, s[60:63], 0 offen sc1")
        M = mf_G(n - 1)
        weave(A, M, [(R, lambda k: 2), (D, lambda k: 1 if k % 2 == 1 else 0), (V, lambda k: 1), (T, lambda k: 2 if k >= 12 else 0)])
        for x in post: A(x)
    A("s_waitcnt vmcnt(8) lgkmcnt(0)")
    A("s_barrier")
    stamp(A, 3)
    tstamp(A)
    def cvtQ(u):
        return [f"v_cvt_pk_bf16_f32 v{Q0+8*u+j}, v{ACC+16*u+2*j}, v{ACC+16*u+2*j+1}" for j in range(8)]
    def QK(u, c):
        return [f"v_mfma_f32_32x32x16_bf16 {vr(S0+16*u,16)}, {ar(KB0,4)}, {vr(Q0+8*u,4)}, {c}",
                f"v_mfma_f32_32x32x16_bf16 {vr(S0+16*u,16)}, {ar(KB0+4,4)}, {vr(Q0+8*u+4,4)}, {vr(S0+16*u,16)}"]
    def max16(b):
        L = [f"v_max3_f32 v{b}, v{b}, v{b+1}, v{b+2}"]
        for j in range(3, 15, 2):
            L.append(f"v_max3_f32 v{b}, v{b}, v{b+j}, v{b+j+1}")
        L.append(f"v_max_f32 v{b}, v{b}, v{b+15}")
        return L
    def fill_C(u, b):
        L = [f"v_mov_b32 v{b+1}, v{b}", "s_nop 1", f"v_permlane32_swap_b32 v{b}, v{b+1}", "s_nop 1",
             f"v_max_f32 v{b}, v{b}, v{b+1}", f"v_sub_f32 v{C0+16*u}, 0, v{b}", f"v_sub_f32 v{C0+16*u+1}, 0, v{b}"]
        for j in range(2, 16, 2):
            L.append(f"v_mov_b64 {vr(C0+16*u+j,2)}, {vr(C0+16*u,2)}")
        return L
    G = mf_G(19, by_u=True)
    ldc = lambda t: f"buffer_load_dwordx4 v{vLin}, s[44:47], s32 offen offset:{1024*t} sc1 lds"
    misc = [f"ds_read_b128 {ar(KB0,4)}, v{vKV}", f"ds_read_b128 {ar(KB0+4,4)}, v{vKV} offset:1024",
            f"ds_read_b128 {ar(VB0,4)}, v{vKV} offset:2048", f"ds_read_b128 {ar(VB0+4,4)}, v{vKV} offset:3072",
            f"v_lshlrev_b32 v{vT0}, 2, v{vL31}", "s_lshl_b32 s50, s29, 9", "s_lshl_b32 s51, s22, 8", "s_add_u32 s50, s50, s51",
            f"s_add_u32 s50, s50, {WS_G}", f"buffer_load_dword v{vG}, v{vT0}, s[16:19], s50 offen sc1",
            f"buffer_load_dword v{vG+1}, v{vT0}, s[16:19], s50 offen offset:128 sc1",
            "s_add_u32 m0, s36, 0x10000", "s_mov_b32 s32, 0x10000", ldc(0), ldc(1), ldc(2), ldc(3),
            "s_mov_b32 s37, 0x18000", "s_nop 0", "s_nop 0", "s_mov_b32 s39, 0", "s_mov_b32 s71, 0"]
    def emit(L):
        for x in L: A(x)
    def take(L, n):
        r = L[:n]; del L[:n]; return r
    for k in range(0, 7):
        A(G[k]); emit(take(misc, 4 if k < 5 else 1))
    emit(misc)
    c0 = cvtQ(0)
    A(G[7]); emit(take(c0, 5))
    A(G[8]); emit(c0); A("s_waitcnt lgkmcnt(0)")
    A(G[9])
    q = QK(0, "0"); A(q[0]); A(q[1])
    c1 = cvtQ(1)
    A(G[10]); emit(take(c1, 5))
    A(G[11]); emit(c1)
    A(G[12])
    q = QK(1, "0"); A(q[0]); A(q[1])
    m0_ = max16(S0)
    A(G[13]); emit(take(m0_, 5))
    A(G[14]); emit(m0_)
    f0 = fill_C(0, S0)
    A(G[15]); emit(take(f0, 4))
    emit(cvtQ(2))
    emit(take(f0, 3))
    q = QK(2, "0"); A(q[0]); emit(take(f0, 4)); A(q[1]); emit(f0)
    emit(cvtQ(3))
    m1_ = max16(S0+16)
    emit(take(m1_, 2))
    q = QK(3, "0"); A(q[0]); emit(take(m1_, 4)); A(q[1]); emit(m1_)
    f1 = fill_C(1, S0+16)
    emit(take(f1, 3))
    q = QK(0, vr(C0, 16)); A(q[0]); emit(take(f1, 5)); A(q[1]); emit(f1)
    emit(max16(S0+32)); emit(fill_C(2, S0+32))
    emit(max16(S0+48)); emit(fill_C(3, S0+48))
    for i in range(0, 16, 2):
        A(f"v_mov_b64 {vr(S0+48+i,2)}, 0")
    A("s_waitcnt vmcnt(6)")
    A("s_barrier")
    def PV(u0, p0):
        return [
            f"v_smfmac_f32_32x32x32_bf16 {vr(O0+16*u0,16)}, {ar(VB0+8*p0,4)}, {vr(S0+16*u0,8)}, v{vIDX}",
            f"v_smfmac_f32_32x32x32_bf16 {vr(O0+16*u0,16)}, {ar(VB0+8*p0+4,4)}, {vr(S0+16*u0+8,8)}, v{vIDX}",
            f"v_smfmac_f32_16x16x64_bf16 {ar(L0+4*u0,4)}, {ar(SEL,4)}, {vr(S0+16*u0,8)}, v{vIDX}",
            f"v_smfmac_f32_16x16x64_bf16 {ar(L0+4*u0,4)}, {ar(SEL,4)}, {vr(S0+16*u0+8,8)}, v{vIDX}",
        ]
    stamp(A, 4)
    body = []
    for i in range(8):
        for u in range(4):
            u1 = (u + 1) % 4; i1 = i + (1 if u == 3 else 0)
            u0 = (u + 3) % 4; i0 = i - (1 if u == 0 else 0)
            P = PV(u0, i0 % 2)
            M = [
                f"v_mfma_f32_32x32x16_bf16 {vr(S0+16*u1,16)}, {ar(KB0+8*(i1%2),4)}, {vr(Q0+8*u1,4)}, {vr(C0+16*u1,16)}",
                P[0],
                f"v_mfma_f32_32x32x16_bf16 {vr(S0+16*u1,16)}, {ar(KB0+8*(i1%2)+4,4)}, {vr(Q0+8*u1+4,4)}, {vr(S0+16*u1,16)}",
                P[1], P[2], P[3],
            ]
            X = [[] for _ in range(6)]
            tt = (i + 1) % 8
            pn = (i + 1) % 2
            if u == 0:
                X[3].append("s_waitcnt lgkmcnt(0)")
                X[4].append(f"ds_read_b128 {ar(KB0+8*pn,4)}, v{vKV} offset:{4096*tt}")
                X[5].append(f"ds_read_b128 {ar(KB0+8*pn+4,4)}, v{vKV} offset:{4096*tt+1024}")
            if u == 2:
                X[3].append("s_waitcnt lgkmcnt(0)")
                X[4].append(f"ds_read_b128 {ar(VB0+8*pn,4)}, v{vKV} offset:{4096*tt+2048}")
                X[5].append(f"ds_read_b128 {ar(VB0+8*pn+4,4)}, v{vKV} offset:{4096*tt+3072}")
            if i in (2, 4) and u == 1 and "nopf" not in VAR:
                X[2].append(f"s_mov_b32 m0, {LDS_DUMMY}")
                X[4].append(f"buffer_load_dwordx4 v{vLane16}, s[52:55], s68 offen lds")
                X[5].append("s_add_u32 s68, s68, 0x800")
            if i == 7 and u == 0:
                X[0].append("s_add_u32 s71, s71, 0x8000")
                X[1].append("s_and_b32 s71, s71, 0x1ffff")
                X[1].append("s_add_u32 s39, s39, 1")
                X[2].append("s_bitcmp1_b32 0x54, s39")
                X[3].append("@TOP")
            if i == 7 and u == 1:
                X[1].append("s_add_u32 m0, s37, s36")
                X[1].append("s_add_u32 s37, s37, 0x8000")
                X[3].append("s_and_b32 s37, s37, 0x1ffff")
                X[3].append("s_cmp_ge_u32 s39, 5")
                X[4].append(ldc(0)); X[5].append(ldc(1))
            if i == 7 and u == 2:
                X[0].append("s_cselect_b32 s37, 0x30000, s37")
            if i == 7 and u == 3:
                X[3].append("s_cmp_eq_u32 s39, 8")
                X[4].append(ldc(2)); X[5].append(ldc(3)); X[5].append("@EXIT")
            if i == 0 and u == 1:
                X[4].append(ldc(0)); X[5].append(ldc(1))
            if i == 0 and u == 3:
                X[4].append(ldc(2)); X[5].append(ldc(3))
            if i == 1 and u == 1:
                X[1].append("s_add_u32 s32, s32, 0x4000")
            E = [f"v_exp_f32 v{S0+16*u+j}, v{S0+16*u+j}" for j in range(16)]
            ne = [3, 3, 3, 3, 2, 2]
            for k in range(6):
                body.append(M[k])
                body += X[k]
                for _ in range(ne[k]): body.append(E.pop(0))
    top = body.index("@TOP")
    first, second = body[:top], body[top+1:]
    A("s_branch L_at_pre_entry")
    A.raw(".p2align 6")
    A.label("L_at_top_bar")
    A("s_waitcnt vmcnt(2)")
    A("s_barrier")
    A.label("L_at_top")
    tstamp(A)
    A(f"v_add_u32 v{vKV}, s71, v{vLane16}")
    ex = second.index("@EXIT")
    tail = second[ex+1:]
    for x in second[:ex]: A(x)
    A("s_cbranch_scc1 L_at_exit")
    for x in tail: A(x)
    A.label("L_at_pre_entry")
    A(first[0]); A("s_add_u32 m0, m0, 0x4000")
    for x in first[1:5]: A(x)
    A("s_add_u32 s32, s32, 0x4000")
    rest = first[5:]
    for x in rest: A(x)
    A("s_cbranch_scc1 L_at_top_bar")
    A("s_branch L_at_top")
    A.label("L_at_exit")
    for x in tail: A(x)
    stamp(A, 5)
    A("s_nop 0")
    P3 = PV(3, 1)
    def scale_store(u):
        a, t = u >> 1, u & 1
        L = []
        for j in range(0, 16, 2):
            L.append(f"v_pk_mul_f32 {vr(O0+16*u+j,2)}, {vr(O0+16*u+j,2)}, {vr(S0+2*u,2)} op_sel_hi:[1,0]")
        for j in range(8):
            L.append(f"v_cvt_pk_bf16_f32 v{C0+8*u+j}, v{O0+16*u+2*j}, v{O0+16*u+2*j+1}")
        for f in range(2):
            L.append(f"buffer_store_dwordx4 {vr(C0+8*u+4*f,4)}, v{vLane16}, s[16:19], s{48+t} offen offset:{2048*a+1024*f} sc1")
        return L
    addr = ["s_lshl_b32 s48, s29, 2", "s_lshl_b32 s49, s22, 1", "s_add_u32 s48, s48, s49", "s_lshl_b32 s48, s48, 17",
            "s_lshl_b32 s49, s28, 5", "s_lshl_b32 s50, s30, 2", "s_add_u32 s49, s49, s50", "s_lshl_b32 s50, s21, 1",
            "s_add_u32 s49, s49, s50", "s_lshl_b32 s49, s49, 11", "s_add_u32 s48, s48, s49", f"s_add_u32 s48, s48, {WS_OF}",
            "s_add_u32 s49, s48, 0x20000",
            "s_cmp_eq_u32 s28, 0", "s_cselect_b32 s50, 1.0, -1.0", "s_cselect_b32 s51, 0, 1.0"]
    A(P3[2]); emit(take(addr, 4)); A(P3[3]); emit(take(addr, 4)); A(P3[0]); emit(take(addr, 8)); A(P3[1])
    A(f"v_mov_b32 v{vT0}, s51")
    A(f"v_fma_f32 v{vG}, v{vG}, s50, v{vT0}")
    A(f"v_fma_f32 v{vG+1}, v{vG+1}, s50, v{vT0}")
    A("s_mov_b64 s[74:75], -1")
    A.label("L_at_store")
    for u in range(4):
        A(f"v_accvgpr_read_b32 v{S0+2*u}, a{L0+4*u}")
    A(f"v_add_f32 v{vT1}, v{S0}, v{S0+2}")
    A(f"v_add_f32 v{vT0}, v{S0+4}, v{S0+6}")
    A(f"v_add_f32 v{vT0}, v{vT0}, v{vT1}")
    A(f"v_cmp_ngt_f32 vcc, {0x4e800000 if 'forceslow' not in VAR else 0x3f000000:#x}, v{vT0}")
    for u in range(4):
        A(f"v_rcp_f32 v{S0+2*u}, v{S0+2*u}")
    A("s_and_b64 vcc, vcc, s[74:75]")
    if "lx" not in VAR: A("s_cbranch_scc1 L_at_slow")
    for u in range(4):
        A(f"v_mul_f32 v{S0+2*u}, v{S0+2*u}, v{vG+(u&1)}")
    for u in range(4):
        emit(scale_store(u))
    gen_out(A)
    A.label("L_at_slow")
    A("s_waitcnt vmcnt(0) lgkmcnt(0)")
    for u in range(4):
        A(f"v_mov_b32 v{O0+u}, 0xff7fffff")
    A("s_mov_b32 s39, 0")
    A.label("L_at_slow1")
    A(f"buffer_load_dwordx4 {ar(KB0,4)}, v{vLane16}, s[44:47], s39 offen sc1")
    A(f"buffer_load_dwordx4 {ar(KB0+4,4)}, v{vLane16}, s[44:47], s39 offen offset:1024 sc1")
    A("s_waitcnt vmcnt(0)")
    for u in range(4):
        for x in QK(u, "0"): A(x)
    A("s_nop 15")
    for u in range(4):
        for j in range(0, 16, 2):
            A(f"v_max3_f32 v{O0+u}, v{O0+u}, v{S0+16*u+j}, v{S0+16*u+j+1}")
    A("s_add_u32 s39, s39, 0x1000")
    A("s_cmp_lt_u32 s39, 0x40000")
    A("s_cbranch_scc1 L_at_slow1")
    for u in range(4):
        A(f"v_mov_b32 v{S0+16*u}, v{O0+u}")
        emit(fill_C(u, S0+16*u))
    for i in range(16):
        A(f"v_accvgpr_write_b32 a{L0+i}, 0")
    for i in range(64):
        A(f"v_mov_b32 v{O0+i}, 0")
    A("s_mov_b32 s39, 0")
    A.label("L_at_slow2")
    A(f"buffer_load_dwordx4 {ar(KB0,4)}, v{vLane16}, s[44:47], s39 offen sc1")
    A(f"buffer_load_dwordx4 {ar(KB0+4,4)}, v{vLane16}, s[44:47], s39 offen offset:1024 sc1")
    A(f"buffer_load_dwordx4 {ar(VB0,4)}, v{vLane16}, s[44:47], s39 offen offset:2048 sc1")
    A(f"buffer_load_dwordx4 {ar(VB0+4,4)}, v{vLane16}, s[44:47], s39 offen offset:3072 sc1")
    A("s_waitcnt vmcnt(0)")
    for u in range(4):
        for x in QK(u, vr(C0+16*u, 16)): A(x)
    A("s_nop 15")
    for j in range(64):
        A(f"v_exp_f32 v{S0+j}, v{S0+j}")
    A("s_nop 1")
    for u in range(4):
        for x in PV(u, 0): A(x)
    A("s_nop 15")
    A("s_add_u32 s39, s39, 0x1000")
    A("s_cmp_lt_u32 s39, 0x40000")
    A("s_cbranch_scc1 L_at_slow2")
    A("s_nop 15")
    A("s_mov_b64 s[74:75], 0")
    A("s_branch L_at_store")
    A.label("L_at_end")
    A("s_endpgm")
    return kernel_desc(name, 512, 256, 102)

def gen_out(A):
    NW = 12
    OB = NW * 8192
    vL, vH, vL31, vW_ = 1, 2, 3, 4
    vOd, vWd = 28, 9
    vOr, vWr = 12, 13
    vOr0, vWr0 = 14, 15
    vT0, vT1, vPl = 16, 17, 18
    ACC = 32
    FR = 128
    A("s_load_dwordx2 s[4:5], s[0:1], 32")
    A("s_load_dwordx2 s[6:7], s[0:1], 72")
    A("s_load_dwordx2 s[24:25], s[0:1], 88")
    A("s_lshl_b32 s33, s28, 3")
    A("s_add_u32 s30, s30, s33")
    A(f"v_lshrrev_b32 v{vT0}, 3, v{vL}")
    A(f"v_lshl_add_u32 v{vT0}, v{vW_}, 4, v{vT0}")
    A(f"v_lshlrev_b32 v{vT0}, 11, v{vT0}")
    A(f"v_bfe_u32 v{vT1}, v{vL}, 4, 1")
    A(f"v_lshlrev_b32 v{vT1}, 2, v{vT1}")
    A(f"v_and_b32 v5, 7, v{vL}")
    A(f"v_xor_b32 v5, v5, v{vT1}")
    A(f"v_lshl_add_u32 v{vWd}, v5, 4, v{vT0}")
    A(f"v_add_u32 v{vWd+1}, {16384-1024}, v{vWd}")
    A("s_lshl_b32 s46, s29, 2")
    A("s_add_u32 s46, s46, s20")
    A("s_lshl_b32 s46, s46, 17")
    A(f"s_add_u32 s46, s46, {WS_OF}")
    A("s_lshl_b32 s31, s30, 7")
    A(f"s_add_u32 s36, s36, {OB}")
    A("s_lshl_b32 s35, s20, 11")
    A("s_lshr_b32 s45, s2, 5")
    A("s_lshl_b32 s45, s45, 1")
    A("s_lshl_b32 s47, s28, 4")
    A("s_mov_b32 s37, 0")
    A("s_mov_b32 s38, 0")
    A("s_mov_b32 s40, 0")
    A("s_mov_b32 s41, 0")
    A("s_lshl_b32 s48, s22, 13")
    A(f"s_add_u32 s48, s48, {OB}")
    A(f"v_add_u32 v{vOr0}, s48, v{vOd}")
    A(f"v_bfe_u32 v{vT0}, v{vL}, 2, 2")
    A(f"v_lshl_add_u32 v{vT1}, v{vH}, 2, v{vT0}")
    A(f"v_lshlrev_b32 v{vT1}, 7, v{vT1}")
    A(f"v_bfe_u32 v{vT0}, v{vL}, 3, 1")
    A(f"v_xor_b32 v{vT0}, s21, v{vT0}")
    A(f"v_lshl_add_u32 v{vT1}, v{vT0}, 6, v{vT1}")
    A(f"v_bfe_u32 v{vT0}, v{vL}, 4, 1")
    A(f"v_lshl_add_u32 v{vT1}, v{vT0}, 5, v{vT1}")
    A(f"v_and_b32 v{vT0}, 1, v{vL}")
    A(f"v_lshl_add_u32 v{vT1}, v{vT0}, 4, v{vT1}")
    A(f"v_bfe_u32 v{vT0}, v{vL}, 1, 1")
    A(f"v_lshl_add_u32 v{vWr0}, v{vT0}, 3, v{vT1}")
    for i in range(0, 32, 2):
        A(f"v_mov_b64 {vr(ACC+i,2)}, 0")
    for i in range(0, 48, 2):
        A(f"v_mov_b64 {vr(FR+48+i,2)}, 0")
    A(f"v_mov_b32 v{vOr}, v{vOr0}")
    A(f"v_mov_b32 v{vWr}, v{vWr0}")
    A("s_mov_b32 s39, 0")
    A("s_mov_b32 s42, 0")
    A("s_mov_b32 s43, 0")
    A(f"v_and_b32 v{vT0}, 1, v{vL}")
    A(f"v_lshlrev_b32 v{vT0}, 2, v{vT0}")
    A("s_lshl_b32 s49, s29, 3")
    A("s_waitcnt vmcnt(0) lgkmcnt(0)")
    A("s_barrier")
    stamp(A, 6)
    srd(A, 8, 26, 27, WS_USED)
    srd(A, 12, 4, 5, 1024*1024*2)
    srd(A, 16, 24, 25, 2048*1024*2)
    A("s_cmp_lg_u32 s20, 0")
    A("s_cbranch_scc1 L_o_nosig")
    A("s_lshl_b32 s50, s28, 2")
    A("s_add_u32 s50, s50, s49")
    A(f"v_mov_b32 v{vT1}, 0x100")
    A(f"v_mov_b32 v{vPl}, 0")
    A("s_mov_b64 exec, 1")
    A(f"buffer_atomic_add v{vT1}, v{vPl}, s[60:63], s50 offen sc1")
    A("s_mov_b64 exec, -1")
    A.label("L_o_nosig")
    def dma_O():
        return [
            ["s_add_u32 s32, s38, s45", "s_and_b32 s32, s32, 15", "s_and_b32 s33, s38, 16", "s_xor_b32 s33, s33, s47"],
            ["s_or_b32 s32, s32, s33", "s_lshl_b32 s32, s32, 12", "s_add_u32 m0, s37, s36", "s_add_u32 s32, s32, s46",
             f"buffer_load_dwordx4 v{vOd}, s[8:11], s32 offen sc1 lds"],
            ["s_add_u32 s37, s37, 0x4000", "s_cmp_eq_u32 s37, 0xc000", "s_cselect_b32 s37, 0, s37",
             f"buffer_load_dwordx4 v{vOd}, s[8:11], s32 offen offset:1024 sc1 lds"],
            [f"buffer_load_dwordx4 v{vOd}, s[8:11], s32 offen offset:2048 sc1 lds"],
            [f"buffer_load_dwordx4 v{vOd}, s[8:11], s32 offen offset:3072 sc1 lds",
             "s_add_u32 s38, s38, 1", "s_cmp_eq_u32 s38, 32", "s_cselect_b32 s10, 0, s10"],
        ]
    def dma_W():
        return [
            ["s_and_b32 s33, s41, 16", "s_cmp_lg_u32 s33, s47", "s_cselect_b32 s12, s6, s4", "s_cselect_b32 s13, s7, s5",
             "s_add_u32 s33, s41, s45", "s_and_b32 s33, s33, 15"],
            ["s_lshl_b32 s33, s33, 17", "s_add_u32 m0, s40, s35", "s_add_u32 s33, s33, s31",
             f"buffer_load_dwordx4 v{vWd}, s[12:15], s33 offen lds"],
            ["s_add_u32 s40, s40, 0x2000", f"s_cmp_eq_u32 s40, {OB}", "s_cselect_b32 s40, 0, s40",
             f"buffer_load_dwordx4 v{vWd+1}, s[12:15], s33 offen offset:1024 lds",
             "s_add_u32 s41, s41, 1", "s_cmp_eq_u32 s41, 32", "s_cselect_b32 s14, 0, s14"],
        ]
    A.label("L_o_wpre")
    for x in dma_W():
        for y in x: A(y)
    A(f"s_cmp_lt_u32 s41, {NW-1}")
    A("s_cbranch_scc1 L_o_wpre")
    A("s_mov_b32 s50, 0")
    A.label("L_o_spin")
    A(f"buffer_load_dword v{vPl}, v{vT0}, s[60:63], s49 offen sc1")
    A("s_waitcnt vmcnt(0)")
    A(f"v_cmp_gt_u32 vcc, 0x800, v{vPl}")
    A("s_add_u32 s50, s50, 1")
    A("s_cmp_gt_u32 s50, 0x40000")
    A("s_cbranch_scc1 L_o_go")
    A("s_nop 2")
    A("s_cmp_eq_u64 vcc, 0")
    A("s_cbranch_scc1 L_o_go")
    A("s_sleep 4")
    A("s_branch L_o_spin")
    A.label("L_o_go")
    for it in range(2):
        for x in dma_O():
            for y in x: A(y)
    def rd_frags(p):
        R = []
        for s in range(4):
            b = FR + 48*p + 12*s
            R += [
                f"ds_read_b64_tr_b16 {vr(b+8,2)}, v{vWr} offset:{2048*s}",
                f"ds_read_b64_tr_b16 {vr(b+10,2)}, v{vWr} offset:{2048*s+1024}",
                f"ds_read_b128 {vr(b,4)}, v{vOr} offset:{1024*s}",
                f"ds_read_b128 {vr(b+4,4)}, v{vOr} offset:{1024*s+4096}",
            ]
        return R
    def mfmas(p):
        M = []
        for s in range(4):
            b = FR + 48*p + 12*s
            M += [f"v_mfma_f32_32x32x16_bf16 {vr(ACC+16*t,16)}, {vr(b+8,4)}, {vr(b+4*t,4)}, {vr(ACC+16*t,16)}" for t in range(2)]
        return M
    stamp(A, 7)
    A("s_waitcnt vmcnt(4)")
    A.raw(".p2align 6")
    A.label("L_o_loop")
    for p in range(2):
        A(f"s_waitcnt vmcnt(6) lgkmcnt(0)")
        A("s_barrier")
        D = dma_O() + dma_W()
        T = [["s_add_u32 s42, s42, 0x4000", "s_cmp_eq_u32 s42, 0xc000", "s_cselect_b32 s42, 0, s42",
              "s_add_u32 s43, s43, 0x2000", f"s_cmp_eq_u32 s43, {OB}", "s_cselect_b32 s43, 0, s43",
              f"v_add_u32 v{vOr}, s42, v{vOr0}", f"v_add_u32 v{vWr}, s43, v{vWr0}"]]
        R = rd_frags(p); M = mfmas(1 - p)
        weave(A, M, [(R, lambda k: 3), (D, lambda k: 1), (T, lambda k: 1 if k == 7 else 0)])
    A("s_add_u32 s39, s39, 2")
    A("s_cmp_lt_u32 s39, 32")
    A("s_cbranch_scc1 L_o_loop")
    A("s_waitcnt lgkmcnt(0)")
    for m in mfmas(1): A(m)
    A(f"v_lshlrev_b32 v{vT0}, 11, v{vL31}")
    A(f"v_lshl_add_u32 v{vT0}, v{vH}, 4, v{vT0}")
    A("s_lshl_b32 s40, s29, 18")
    A("s_lshl_b32 s41, s22, 17")
    A("s_add_u32 s40, s40, s41")
    A("s_add_u32 s40, s40, s31")
    A("s_lshl_b32 s41, s21, 6")
    A("s_add_u32 s40, s40, s41")
    A("s_add_u32 s41, s40, 0x10000")
    A("s_nop 7")
    for t in range(2):
        for j in range(8):
            A(f"v_cvt_pk_bf16_f32 v{FR+8*t+j}, v{ACC+16*t+2*j}, v{ACC+16*t+2*j+1}")
        for f in range(2):
            A(f"buffer_store_dwordx4 {vr(FR+8*t+4*f,4)}, v{vT0}, s[16:19], s{40+t} offen offset:{32*f}")
    if STAMP:
        A("s_waitcnt vmcnt(0)")
        _stamp(A, 1)
        stamp_flush(A, 0, 8, 26, 27, 20)
    A("s_endpgm")

def main(path):
    ref = open("cdna_kernels/" + NAME + ".s.ref").read().split("\n")
    hdr = [l for l in ref if l.startswith(";") and "@launch" not in l and "Override" not in l and "grid=ceil" not in l]
    B = Asm()
    d1 = gen_attn(B)
    A = Asm()
    for l in hdr: A.raw(l)
    A.raw(f"; @launch grid=(256,1,1) block=(256,1,1) lds={LDS_ATTN}")
    A.raw('.amdgcn_target "amdgcn-amd-amdhsa--gfx950"')
    A.raw(".text")
    A.lines += B.lines
    A.raw("L_code_end:")
    A.raw('.section .rodata,"a"')
    for d in (d1,):
        A.raw(".p2align 6")
        A.raw(d)
    open(path, "w").write(A.text())

if __name__ == "__main__":
    main(sys.argv[1] if len(sys.argv) > 1 else "cdna_kernels/" + NAME + ".s")
```

```python
import sys, math, struct, os
from asmlib import *

NAME = "gated_mix__grouped_kv_mqa__grouped_kv_mqa__prompt"
WS_KV = 0
WS_G = 0x80000
WS_FL = 0x90000
WS_OF = 0x100000
WS_USED = 0x900000
STAMP = os.environ.get("STAMP", "0") == "1"
VAR = os.environ.get("VAR", "")
WS_ST = 0xA00000

FINE = os.environ.get("FINE", "0") == "1"
TS = os.environ.get("TS", "0")
def tstamp(A, ph="1"):
    if TS != ph: return
    A("s_waitcnt lgkmcnt(0)")
    A("s_memtime s[96:97]")
    A("s_memrealtime s[98:99]")
    A("s_waitcnt lgkmcnt(0)")
    A("v_mov_b32 v6, s96")
    A("v_mov_b32 v7, s98")
    A("v_mov_b32 v5, 0")
    A("buffer_store_dwordx2 v[6:7], v5, s[92:95], s100 offen")
    A("s_add_u32 s100, s100, 8")
def tstamp_init(A, wsl, wsh, wave_sgpr, kern):
    if TS == "0": return
    A(f"s_mov_b32 s92, s{wsl}")
    A(f"s_mov_b32 s93, s{wsh}")
    A(f"s_mov_b32 s94, {0xC00000}")
    A("s_mov_b32 s95, 0x00020000")
    A("s_lshl_b32 s100, s2, 2")
    A(f"s_add_u32 s100, s100, s{wave_sgpr}")
    A("s_lshl_b32 s100, s100, 9")
    A(f"s_add_u32 s100, s100, {0xA00000 + kern*0x80000}")
def fstamp(A, k):
    if FINE: _stamp(A, k)
def stamp(A, k):
    if FINE and k not in (0,): return
    _stamp(A, k)
def _stamp(A, k):
    if not STAMP: return
    A("s_waitcnt lgkmcnt(0)")
    A(f"s_memtime s[96:97]")
    A(f"s_memrealtime s[98:99]")
    A("s_waitcnt lgkmcnt(0)")
    A(f"s_mov_b32 s{76+k}, s96")
    A(f"s_mov_b32 s{84+k}, s98")
def stamp_flush(A, kern, n, wsl, wsh, wave_sgpr):
    if not STAMP: return
    A(f"s_mov_b32 s92, s{wsl}")
    A(f"s_mov_b32 s93, s{wsh}")
    A(f"s_mov_b32 s94, {WS_ST + 0x40000}")
    A("s_mov_b32 s95, 0x00020000")
    A("s_lshl_b32 s96, s2, 2")
    A(f"s_add_u32 s96, s96, s{wave_sgpr}")
    A("s_lshl_b32 s96, s96, 6")
    A(f"s_add_u32 s96, s96, {WS_ST + kern*0x10000}")
    A("v_mov_b32 v1, 0")
    for k in range(n):
        A(f"v_mov_b32 v2, s{76+k}")
        A(f"buffer_store_dword v2, v1, s[92:95], s96 offen offset:{4*k}")
        A("s_nop 1")
        A(f"v_mov_b32 v2, s{84+k}")
        A(f"buffer_store_dword v2, v1, s[92:95], s96 offen offset:{32+4*k}")
        A("s_nop 1")

def f32bits(x):
    return struct.unpack("<I", struct.pack("<f", x))[0]
KSCALE = f32bits(math.log2(math.e) / math.sqrt(32.0))
LOG2E = f32bits(math.log2(math.e))

def weave(A, M, streams):
    for k, m in enumerate(M):
        A(m)
        for items, q in streams:
            for _ in range(q(k)):
                if items:
                    x = items.pop(0)
                    if isinstance(x, (list, tuple)):
                        for y in x: A(y)
                    else: A(x)
    for items, q in streams:
        while items:
            x = items.pop(0)
            if isinstance(x, (list, tuple)):
                for y in x: A(y)
            else: A(x)

LDS_SCR = 0x20000
LDS_DUMMY = 0x27C00
LDS_ATTN = 163840

def gen_attn(A):
    name = NAME + "_kernel"
    kernel_header(A, name)
    S0, C0, O0, Q0 = 32, 96, 160, 224
    L0, KB0, VB0, SEL, GF, FR = 0, 16, 32, 48, 64, 128
    vL, vH, vL31, vW_ = 1, 2, 3, 4
    vXd, vWd = 8, 12
    vXr, vWr = 16, 20
    vKV, vIDX, vT0, vT1, vG = 22, 23, 24, 25, 26
    vLane16, vLin, vPoll, vT2 = 28, 29, 30, 31
    ACC = S0
    PACC, GACC = Q0, Q0 + 16
    vPd, vPr, vPw = C0, C0 + 4, C0 + 8
    vRed = C0 + 12
    A("s_cmp_ge_u32 s2, 256")
    A("s_cbranch_scc1 L_at_end")
    stamp(A, 0)
    if "epf" in VAR:
        A("s_getpc_b64 s[72:73]")
        for k in range(1, 7):
            A(f"s_load_dword s74, s[72:73], {128*k}")
    A("s_load_dwordx8 s[4:11], s[0:1], 0")
    A("s_load_dwordx2 s[64:65], s[0:1], 32")
    A("s_load_dwordx8 s[12:19], s[0:1], 48")
    A("s_load_dwordx2 s[66:67], s[0:1], 80")
    A("s_load_dwordx4 s[24:27], s[0:1], 96")
    A("s_and_b32 s28, s2, 1")
    A("s_bfe_u32 s29, s2, 0x20001")
    A("s_bfe_u32 s30, s2, 0x20003")
    A("s_lshl_b32 s29, s29, 2")
    A("s_add_u32 s29, s29, s30")
    A("s_lshr_b32 s30, s2, 5")
    A("s_lshr_b32 s31, s2, 7")
    A("s_and_b32 s23, s30, 3")
    A("s_lshl_b32 s33, s29, 2")
    A("s_add_u32 s33, s33, s23")
    A("s_lshl_b32 s34, s31, 1")
    A("s_add_u32 s34, s34, s23")
    A("s_and_b32 s34, s34, 3")
    A("s_and_b32 s37, s29, 3")
    A("s_lshl_b32 s37, s37, 1")
    A("s_add_u32 s37, s37, s30")
    A("s_lshl_b32 s37, s37, 1")
    A("s_and_b32 s37, s37, 15")
    A("s_lshl_b32 s38, s29, 18")
    A("s_lshl_b32 s39, s30, 8")
    A(f"v_lshrrev_b32 v{vW_}, 6, v0")
    A(f"v_and_b32 v{vL}, 63, v0")
    A(f"v_readfirstlane_b32 s20, v{vW_}")
    A(f"v_lshrrev_b32 v{vH}, 5, v{vL}")
    A(f"v_and_b32 v{vL31}, 31, v{vL}")
    A(f"v_lshlrev_b32 v{vLane16}, 4, v{vL}")
    A(f"v_lshl_add_u32 v{vLin}, v{vW_}, 12, v{vLane16}")
    A(f"v_lshrrev_b32 v{vT0}, 3, v{vL}")
    A(f"v_lshl_add_u32 v{vT0}, v{vW_}, 5, v{vT0}")
    A(f"v_lshlrev_b32 v{vT0}, 11, v{vT0}")
    A(f"v_lshrrev_b32 v{vT1}, 4, v{vL}")
    A(f"v_and_b32 v5, 7, v{vL}")
    A(f"v_xor_b32 v5, v5, v{vT1}")
    A(f"v_lshl_add_u32 v{vXd}, v5, 4, v{vT0}")
    A(f"v_xor_b32 v{vXd+1}, 64, v{vXd}")
    A(f"v_add_u32 v{vXd+1}, {16384-1024}, v{vXd+1}")
    A(f"v_add_u32 v{vXd+2}, {2*(16384-1024)}, v{vXd}")
    A(f"v_add_u32 v{vXd+3}, {2*(16384-1024)}, v{vXd+1}")
    A(f"v_lshl_add_u32 v{vT0}, v{vW_}, 4, v{vT1}")
    A(f"v_lshlrev_b32 v{vT0}, 11, v{vT0}")
    A(f"v_lshlrev_b32 v{vT1}, 2, v{vT1}")
    A(f"v_and_b32 v5, 15, v{vL}")
    A(f"v_xor_b32 v5, v5, v{vT1}")
    A(f"v_lshl_add_u32 v{vWd}, v5, 4, v{vT0}")
    for t in range(1, 4):
        A(f"v_add_u32 v{vWd+t}, {t*(8192-1024)}, v{vWd}")
    A("s_waitcnt lgkmcnt(0)")
    fstamp(A, 1)
    A("s_cmp_eq_u32 s28, 1")
    A("s_cselect_b64 s[6:7], s[12:13], s[6:7]")
    A("s_cselect_b64 s[8:9], s[14:15], s[8:9]")
    A("s_cselect_b64 s[10:11], s[16:17], s[10:11]")
    A("s_cselect_b64 s[72:73], s[18:19], s[64:65]")
    A("s_cselect_b64 s[74:75], s[64:65], s[18:19]")
    A("s_cmp_eq_u32 s31, 1")
    A("s_cselect_b64 s[8:9], s[10:11], s[8:9]")
    A("s_cselect_b64 s[64:65], s[18:19], s[64:65]")
    srd(A, 40, 8, 9, 1024*32*2)
    srd(A, 8, 4, 5, 2048*1024*2)
    srd(A, 12, 6, 7, 1024*1024*2)
    srd(A, 56, 66, 67, 2048)
    A("s_lshl_b32 s36, s20, 12")
    A("s_lshl_b32 s35, s33, 16")
    def dma_P(n):
        slot = (n % 4) * 0x8000
        I = []
        I.append([f"s_add_u32 m0, s36, {slot}", "s_lshl_b32 s48, s34, 9", "s_add_u32 s48, s48, s35",
                  f"buffer_load_dwordx4 v{vPd}, s[8:11], s48 offen lds"])
        for t in range(1, 4):
            I.append(f"buffer_load_dwordx4 v{vPd+t}, s[8:11], s48 offen offset:{1024*t} lds")
        I.append([f"s_add_u32 m0, s36, {slot+0x4000}", "s_lshl_b32 s49, s34, 14",
                  f"buffer_load_dwordx4 v{vLin}, s[40:43], s49 offen lds"])
        for t in range(1, 4):
            I.append(f"buffer_load_dwordx4 v{vLin}, s[40:43], s49 offen offset:{1024*t} lds")
        I.append(["s_add_u32 s34, s34, 1", "s_and_b32 s34, s34, 3"])
        return I
    def dma_G(n):
        slot = (n % 4) * 0x8000
        I = []
        I.append([f"s_add_u32 m0, s36, {slot}", "s_lshl_b32 s48, s37, 7", "s_add_u32 s48, s48, s38",
                  f"buffer_load_dwordx4 v{vXd}, s[8:11], s48 offen lds"])
        for t in range(1, 4):
            I.append(f"buffer_load_dwordx4 v{vXd+t}, s[8:11], s48 offen offset:{1024*t} lds")
        I.append([f"s_add_u32 m0, s36, {slot+0x4000}", "s_lshl_b32 s49, s37, 17", "s_add_u32 s49, s49, s39",
                  f"buffer_load_dwordx4 v{vWd}, s[12:15], s49 offen lds"])
        for t in range(1, 4):
            I.append(f"buffer_load_dwordx4 v{vWd+t}, s[12:15], s49 offen offset:{1024*t} lds")
        I.append(["s_add_u32 s37, s37, 1", "s_and_b32 s37, s37, 15"])
        return I
    def dma_C(c):
        slot = (c % 4) * 0x8000
        I = []
        I.append([f"s_add_u32 m0, s36, {slot}", f"s_mov_b32 s48, {c*0x8000}",
                  f"buffer_load_dwordx4 v{vLin}, s[44:47], s48 offen sc1 lds"])
        for t in range(1, 4):
            I.append(f"buffer_load_dwordx4 v{vLin}, s[44:47], s48 offen offset:{1024*t} sc1 lds")
        I.append([f"s_add_u32 m0, s36, {slot+0x4000}", f"s_mov_b32 s49, {c*0x8000+0x4000}",
                  f"buffer_load_dwordx4 v{vLin}, s[44:47], s49 offen sc1 lds"])
        for t in range(1, 4):
            I.append(f"buffer_load_dwordx4 v{vLin}, s[44:47], s49 offen offset:{1024*t} sc1 lds")
        return I
    def flat(I):
        for x in I:
            if isinstance(x, (list, tuple)):
                for y in x: A(y)
            else: A(x)
    ORDER = ["G", "G", "P", "P", "P", "P"] + ["G"] * 14
    PIDX = {n: k for k, n in enumerate([n for n in range(20) if ORDER[n] == "P"])}
    PLAST = max(PIDX)
    def dma(n):
        if n >= 20: return dma_C(n - 20)
        return dma_P(n) if ORDER[n] == "P" else dma_G(n)
    flat(dma(0))
    fstamp(A, 2)
    A(f"s_mov_b32 m0, {LDS_DUMMY}")
    A("s_bfe_u32 s48, s2, 0x40003")
    A("s_lshl_b32 s48, s48, 12")
    A("s_lshl_b32 s49, s20, 10")
    A("s_add_u32 s48, s48, s49")
    A(f"buffer_load_dwordx4 v{vLane16}, s[40:43], s48 offen lds")
    if "cpf" in VAR:
        A("s_getpc_b64 s[72:73]")
        A.label("L_at_pc")
        A("s_lshr_b32 s48, s2, 3")
        A("s_lshl_b32 s48, s48, 2")
        A("s_add_u32 s48, s48, s20")
        A("s_lshl_b32 s48, s48, 8")
        A("s_min_u32 s48, s48, L_code_end-L_at_pc-256")
        A("s_add_u32 s72, s72, s48")
        A("s_addc_u32 s73, s73, 0")
        for q in range(4):
            A(f"s_load_dword s74, s[72:73], {64*q}")
    srd(A, 16, 26, 27, WS_USED)
    srd(A, 52, 64, 65, 1024*1024*2)
    srd(A, 60, 24, 25, 256)
    A("s_lshl_b32 s48, s28, 18")
    A("s_add_u32 s44, s26, s48")
    A("s_addc_u32 s45, s27, 0")
    A("s_mov_b32 s46, 0x40000")
    A("s_mov_b32 s47, 0x00020000")
    A("s_lshr_b32 s22, s20, 1")
    A("s_and_b32 s21, s20, 1")
    A("s_bfe_u32 s68, s2, 0x40003")
    A("s_lshl_b32 s68, s68, 2")
    A("s_add_u32 s68, s68, s20")
    A("s_lshl_b32 s68, s68, 15")
    A("s_lshl_b32 s69, s28, 10")
    A("s_add_u32 s68, s68, s69")
    A("s_or_b32 s70, s28, s31")
    A(f"v_lshl_add_u32 v{vT0}, v{vW_}, 3, v{vH}")
    A(f"v_and_b32 v{vT1}, 15, v{vT0}")
    A(f"v_xor_b32 v{vT1}, v{vT1}, v{vL31}")
    A(f"v_lshlrev_b32 v{vT1}, 4, v{vT1}")
    A(f"v_lshl_add_u32 v{vPd}, v{vT0}, 11, v{vT1}")
    for t in range(1, 4):
        A(f"v_xor_b32 v{vPd+t}, {(2*t) << 4}, v{vPd}")
        A(f"v_add_u32 v{vPd+t}, {t*(4096-1024)}, v{vPd+t}")
    A(f"v_lshl_add_u32 v{vT0}, v{vW_}, 3, v{vH}")
    A(f"v_and_b32 v{vT1}, 15, v{vL31}")
    A(f"v_xor_b32 v{vT0}, v{vT0}, v{vT1}")
    A(f"v_lshlrev_b32 v{vT0}, 4, v{vT0}")
    A(f"v_lshl_add_u32 v{vPr}, v{vL31}, 9, v{vT0}")
    for s in range(1, 4):
        A(f"v_xor_b32 v{vPr+s}, {(2*s) << 4}, v{vPr}")
    A(f"v_bfe_u32 v{vT0}, v{vL}, 2, 2")
    A(f"v_lshl_add_u32 v{vT0}, v{vH}, 3, v{vT0}")
    A(f"v_lshl_add_u32 v{vT0}, v{vW_}, 6, v{vT0}")
    A(f"v_lshlrev_b32 v{vT0}, 6, v{vT0}")
    A(f"v_bfe_u32 v{vT1}, v{vL}, 4, 1")
    A(f"v_lshl_add_u32 v{vT0}, v{vT1}, 5, v{vT0}")
    A(f"v_and_b32 v{vT1}, 3, v{vL}")
    A(f"v_lshl_add_u32 v{vT0}, v{vT1}, 3, v{vT0}")
    A(f"v_add_u32 v{vPw}, 0x4000, v{vT0}")
    A(f"v_bfe_u32 v{vT0}, v{vL}, 1, 3")
    A(f"v_xor_b32 v{vT0}, v{vT0}, v{vH}")
    A(f"v_lshlrev_b32 v{vT0}, 4, v{vT0}")
    A(f"v_lshl_add_u32 v{vT0}, v{vL31}, 7, v{vT0}")
    A(f"s_lshl_b32 s48, s22, 13")
    A(f"v_add_u32 v{vXr}, s48, v{vT0}")
    for s in range(1, 4):
        A(f"v_xor_b32 v{vXr+s}, {(2*s) << 4}, v{vXr}")
    A(f"v_bfe_u32 v{vT0}, v{vL}, 2, 2")
    A(f"v_lshl_add_u32 v{vT1}, v{vH}, 3, v{vT0}")
    A(f"v_lshlrev_b32 v{vT1}, 8, v{vT1}")
    A(f"s_lshl_b32 s48, s21, 1")
    A(f"v_xor_b32 v{vT0}, s48, v{vT0}")
    A(f"v_lshl_add_u32 v{vT1}, v{vT0}, 6, v{vT1}")
    A(f"v_bfe_u32 v{vT0}, v{vL}, 4, 1")
    A(f"v_lshl_add_u32 v{vT1}, v{vT0}, 5, v{vT1}")
    A(f"v_and_b32 v{vT0}, 3, v{vL}")
    A(f"v_lshl_add_u32 v{vT1}, v{vT0}, 3, v{vT1}")
    A(f"v_add_u32 v{vWr}, 0x4000, v{vT1}")
    A(f"v_xor_b32 v{vWr+1}, 64, v{vWr}")
    for i in range(0, 32, 2):
        A(f"v_mov_b64 {vr(PACC+i,2)}, 0")
    for i in range(0, 64, 2):
        A(f"v_mov_b64 {vr(ACC+i,2)}, 0")
    side = []
    side.append(f"v_mov_b32 v{vIDX}, 0xdddddddd")
    side += [f"v_and_b32 v{vT0}, 7, v{vL}", f"v_mov_b32 v{vT1}, 0x3f803f80", f"v_cmp_eq_u32 vcc, 0, v{vT0}", "s_nop 1",
             f"v_cndmask_b32 v{vT2}, 0, v{vT1}, vcc", f"v_cmp_eq_u32 vcc, 4, v{vT0}", "s_nop 1",
             f"v_cndmask_b32 v{vT1}, 0, v{vT1}, vcc",
             f"v_accvgpr_write_b32 a{SEL}, v{vT2}", f"v_accvgpr_write_b32 a{SEL+1}, v{vT2}",
             f"v_accvgpr_write_b32 a{SEL+2}, v{vT1}", f"v_accvgpr_write_b32 a{SEL+3}, v{vT1}"]
    side += [f"v_accvgpr_write_b32 a{L0+i}, 0" for i in range(16)]
    side += [f"v_accvgpr_write_b32 a{VB0+8+i}, 0" for i in range(8)]
    side += [f"v_mov_b64 {vr(O0+i,2)}, 0" for i in range(0, 64, 2)]
    side.append(f"v_mov_b32 v{vKV}, v{vLane16}")
    for x in side: A(x)
    tstamp_init(A, 26, 27, 20, 0)
    tstamp(A)
    fstamp(A, 3)
    flat(dma(1))
    fstamp(A, 4)
    stamp(A, 1)
    def rd_P(n):
        off = (n % 2) * 0x8000
        b = FR + 64*(n % 2)
        R = []
        for s in range(4):
            R.append(f"ds_read_b128 {ar(b+8*s,4)}, v{vPr+s} offset:{off}")
            R.append(f"ds_read_b64_tr_b16 {ar(b+8*s+4,2)}, v{vPw} offset:{off+1024*s}")
            R.append(f"ds_read_b64_tr_b16 {ar(b+8*s+6,2)}, v{vPw} offset:{off+1024*s+256}")
        return R
    def mf_P(n):
        b = FR + 64*(n % 2)
        A("s_cmp_eq_u32 s31, 1")
        A(f"s_cbranch_scc1 L_at_pv{n}")
        for s in range(4):
            A(f"v_mfma_f32_32x32x16_bf16 {vr(PACC,16)}, {ar(b+8*s+4,4)}, {ar(b+8*s,4)}, {vr(PACC,16)}")
        A("s_cmp_lg_u32 s70, 0")
        A(f"s_cbranch_scc1 L_at_pj{n}")
        for s in range(4):
            A(f"v_mfma_f32_32x32x16_bf16 {vr(GACC,16)}, {ar(GF+16*PIDX[n]+4*s,4)}, {ar(b+8*s,4)}, {vr(GACC,16)}")
        A(f"s_branch L_at_pj{n}")
        A.label(f"L_at_pv{n}")
        for s in range(4):
            A(f"v_mfma_f32_32x32x16_bf16 {vr(PACC,16)}, {ar(b+8*s,4)}, {ar(b+8*s+4,4)}, {vr(PACC,16)}")
        A.label(f"L_at_pj{n}")
    def rd_G(n):
        off = (n % 2) * 0x8000
        b = FR + 64*(n % 2)
        R = []
        for s in range(4):
            p = b + 16*s
            R.append(f"ds_read_b128 {ar(p,4)}, v{vXr+s} offset:{off}")
            R.append(f"ds_read_b64_tr_b16 {ar(p+8,2)}, v{vWr} offset:{off+4096*s}")
            R.append(f"ds_read_b64_tr_b16 {ar(p+10,2)}, v{vWr} offset:{off+4096*s+1024}")
            R.append(f"ds_read_b128 {ar(p+4,4)}, v{vXr+s} offset:{off+4096}")
            R.append(f"ds_read_b64_tr_b16 {ar(p+12,2)}, v{vWr+1} offset:{off+4096*s}")
            R.append(f"ds_read_b64_tr_b16 {ar(p+14,2)}, v{vWr+1} offset:{off+4096*s+1024}")
        return R
    def mf_G(n, by_u=False):
        b = FR + 64*(n % 2)
        M = []
        order = [(s, a, t) for s in range(4) for a in range(2) for t in range(2)]
        if by_u: order = [(s, a, t) for a in range(2) for t in range(2) for s in range(4)]
        for (s, a, t) in order:
            p = b + 16*s; u = 2*a + t
            M.append(f"v_mfma_f32_32x32x16_bf16 {vr(ACC+16*u,16)}, {ar(p+8+4*a,4)}, {ar(p+4*t,4)}, {vr(ACC+16*u,16)}")
        return M
    def toggle(regs):
        return [f"v_xor_b32 v{r}, 0x10000, v{r}" for r in regs]
    Pregs = [vPr+s for s in range(4)] + [vPw]
    Gregs = [vXr+s for s in range(4)] + [vWr, vWr+1]
    hi = {"P": 0, "G": 0}
    for n in range(20):
        A.comment(f"---- iteration {n} ({ORDER[n]})")
        A(f"s_waitcnt vmcnt({9 if n in (8, 9, 17) else 8}) lgkmcnt(0)")
        A("s_barrier")
        tstamp(A)
        if n == 6: stamp(A, 2)
        if n == 0: fstamp(A, 5)
        if n == 1: fstamp(A, 6)
        D = dma(n + 2)
        assert hi[ORDER[n]] == (n >> 1) & 1
        R = rd_P(n) if ORDER[n] == "P" else rd_G(n)
        V = []
        T = []
        if n + 1 < 20 and hi[ORDER[n+1]] != ((n + 1) >> 1) & 1:
            T = toggle(Pregs if ORDER[n+1] == "P" else Gregs)
            hi[ORDER[n+1]] ^= 1
        if n == 18:
            A(f"v_cmp_gt_u32 vcc, 4, v{vPoll}")
            A("s_nop 4")
            A("s_cmp_eq_u64 vcc, 0")
            A("s_cbranch_scc1 L_at_flags_ok")
            A("s_mov_b32 s50, 0")
            A.label("L_at_spin")
            A("s_add_u32 s50, s50, 1")
            A("s_cmp_gt_u32 s50, 0x40000")
            A("s_cbranch_scc1 L_at_flags_ok")
            A("s_sleep 8")
            A(f"buffer_load_dword v{vPoll}, v{vT2}, s[60:63], 0 offen sc1")
            A("s_waitcnt vmcnt(0)")
            A(f"v_cmp_gt_u32 vcc, 4, v{vPoll}")
            A("s_nop 4")
            A("s_cmp_eq_u64 vcc, 0")
            A("s_cbranch_scc0 L_at_spin")
            A.label("L_at_flags_ok")
        if n == 0:
            A("s_cmp_lg_u32 s70, 0")
            A("s_cbranch_scc1 L_at_nogf")
            A(f"v_lshlrev_b32 v{vT0}, 4, v{vH}")
            A(f"v_lshl_add_u32 v{vT0}, v{vW_}, 7, v{vT0}")
            A("s_mov_b32 s50, s34")
            for q in range(4):
                A("s_lshl_b32 s51, s50, 9")
                for s in range(4):
                    A(f"buffer_load_dwordx4 {ar(GF+16*q+4*s,4)}, v{vT0}, s[56:59], s51 offen offset:{32*s}")
                A("s_add_u32 s50, s50, 1")
                A("s_and_b32 s50, s50, 3")
            A.label("L_at_nogf")
        if n == 0 or ORDER[n-1] == "P":
            for x in R: A(x)
            flat(D[:4])
            if n > 0: mf_P(n - 1)
            flat(D[4:])
            for x in T: A(x)
            if n - 1 == PLAST:
                A(f"s_mul_i32 s50, s20, 0x1200")
                A(f"s_add_u32 s50, s50, {LDS_SCR}")
                A(f"v_add_u32 v{vRed}, s50, v{vLane16}")
                A(f"v_lshlrev_b32 v{vRed+1}, 2, v{vL}")
                A(f"v_add_u32 v{vRed+2}, s50, v{vRed+1}")
                A("s_nop 7")
                for rg in range(4):
                    A(f"ds_write_b128 v{vRed}, {vr(PACC+4*rg,4)} offset:{1024*rg}")
                A(f"ds_write_b32 v{vRed+2}, v{GACC} offset:4096")
                A(f"v_lshl_add_u32 v{vRed}, v{vW_}, 10, v{vLane16}")
                A(f"v_add_u32 v{vRed}, {LDS_SCR}, v{vRed}")
                A(f"v_add_u32 v{vRed+2}, {LDS_SCR+4096}, v{vRed+1}")
            continue
        if n == 7:
            assert PLAST == 5
            for ww in range(4):
                A(f"ds_read_b128 {vr(Q0+4*ww,4)}, v{vRed} offset:{0x1200*ww}")
            for ww in range(4):
                A(f"ds_read_b32 v{Q0+16+ww}, v{vRed+2} offset:{0x1200*ww}")
            V += ["s_nop 0", "s_nop 0", "s_waitcnt lgkmcnt(6)"]
        post = []
        if n == 7:
            for e in range(0, 4, 2):
                V.append([f"v_add_f32 v{Q0+e}, v{Q0+e}, v{Q0+4+e}", f"v_add_f32 v{Q0+8+e}, v{Q0+8+e}, v{Q0+12+e}",
                          f"v_add_f32 v{Q0+e+1}, v{Q0+e+1}, v{Q0+5+e}", f"v_add_f32 v{Q0+9+e}, v{Q0+9+e}, v{Q0+13+e}"])
            V.append([f"v_add_f32 v{Q0+e}, v{Q0+e}, v{Q0+8+e}" for e in range(4)])
            V.append(["s_mov_b32 s50, 1.0", "s_cmp_eq_u32 s31, 1", f"s_cselect_b32 s50, s50, {KSCALE:#x}", "s_cselect_b64 vcc, -1, 0"])
            V.append([f"v_mul_f32 v{Q0+e}, s50, v{Q0+e}" for e in range(4)])
            V.append([f"v_cvt_pk_bf16_f32 v{Q0+4}, v{Q0}, v{Q0+1}", f"v_cvt_pk_bf16_f32 v{Q0+5}, v{Q0+2}, v{Q0+3}"])
            V.append([f"v_bfe_u32 v{vT0}, v{vL31}, 2, 1", f"v_bfe_u32 v{vT1}, v{vL31}, 3, 1", f"v_and_b32 v{vRed}, 0x13, v{vL31}"])
            V.append([f"v_lshl_add_u32 v{vRed}, v{vT0}, 3, v{vRed}", f"v_lshl_add_u32 v{vRed}, v{vT1}, 2, v{vRed}",
                      f"v_cndmask_b32 v{vRed}, v{vRed}, v{vL31}, vcc"])
            V.append([f"v_lshl_add_u32 v{vRed}, v{vH}, 5, v{vRed}", f"v_lshlrev_b32 v{vRed}, 4, v{vRed}"])
            V.append(["s_lshl_b32 s50, s33, 12", "s_lshl_b32 s51, s31, 11", "s_add_u32 s50, s50, s51", "s_lshl_b32 s51, s22, 10"])
            V.append(["s_add_u32 s50, s50, s51", "s_lshl_b32 s51, s21, 3", "s_add_u32 s50, s50, s51"])
            V.append([f"v_add_f32 v{Q0+16}, v{Q0+16}, v{Q0+17}", f"v_add_f32 v{Q0+18}, v{Q0+18}, v{Q0+19}", f"v_add_f32 v{Q0+16}, v{Q0+16}, v{Q0+18}"])
            V.append([f"v_mul_f32 v{Q0+16}, {LOG2E ^ 0x80000000:#x}, v{Q0+16}", f"v_exp_f32 v{Q0+16}, v{Q0+16}", "s_nop 0",
                      f"v_add_f32 v{Q0+16}, 1.0, v{Q0+16}", f"v_rcp_f32 v{Q0+16}, v{Q0+16}", f"v_lshlrev_b32 v{vRed+1}, 2, v{vL31}"])
            post.append(f"buffer_store_dwordx2 {vr(Q0+4,2)}, v{vRed}, s[44:47], s50 offen sc1")
            post.append("s_cmp_lg_u32 s20, 0")
            post.append("s_cbranch_scc1 L_at_nogst")
            post.append("s_lshl_b32 s69, s29, 7")
            post.append("s_lshl_b32 s51, s28, 5")
            post.append("s_add_u32 s69, s69, s51")
            post.append("s_lshl_b32 s51, s30, 2")
            post.append("s_add_u32 s69, s69, s51")
            post.append(f"s_add_u32 s69, s69, {WS_FL}")
            post.append(f"v_mov_b32 v{vT0}, 0")
            post.append("s_mov_b64 exec, 1")
            post.append(f"buffer_atomic_swap v{vT0}, v{vT0}, s[16:19], s69 offen sc1")
            post.append("s_mov_b64 exec, -1")
            post.append("s_or_b32 s51, s70, s20")
            post.append("s_cmp_lg_u32 s51, 0")
            post.append("s_cbranch_scc1 L_at_nogst")
            post.append("s_lshl_b32 s51, s33, 7")
            post.append(f"s_add_u32 s51, s51, {WS_G}")
            post.append(f"buffer_store_dword v{Q0+16}, v{vRed+1}, s[16:19], s51 offen sc1")
            post.append("L_at_nogst:")
        if n == 10:
            post.append("s_cmp_lg_u32 s20, 0")
            post.append("s_cbranch_scc1 L_at_nosig")
            post.append("s_and_b32 s50, s2, 63")
            post.append("s_lshl_b32 s50, s50, 2")
            post.append(f"v_mov_b32 v{vT0}, 1")
            post.append(f"v_mov_b32 v{vT1}, 0")
            post.append("s_mov_b64 exec, 1")
            post.append(f"buffer_atomic_add v{vT0}, v{vT1}, s[60:63], s50 offen sc1")
            post.append("s_mov_b64 exec, -1")
            post.append("L_at_nosig:")
        if n == 16:
            V.append(f"v_lshlrev_b32 v{vT2}, 2, v{vL}")
            post.append(f"buffer_load_dword v{vPoll}, v{vT2}, s[60:63], 0 offen sc1")
        if n == 18:
            V += [f"v_lshrrev_b32 v{vT0}, 3, v{vL}", f"v_lshl_add_u32 v{vT0}, v{vW_}, 5, v{vT0}", f"v_lshlrev_b32 v{vT0}, 11, v{vT0}",
                  f"v_bfe_u32 v{vT1}, v{vL}, 4, 1", f"v_lshlrev_b32 v{vT1}, 2, v{vT1}", f"v_and_b32 v5, 7, v{vL}",
                  f"v_xor_b32 v5, v5, v{vT1}", f"v_lshl_add_u32 v{vWd}, v5, 4, v{vT0}",
                  ["s_lshl_b32 s31, s28, 3", "s_add_u32 s31, s31, s30", "s_lshl_b32 s31, s31, 7"],
                  f"v_add_u32 v{vWd}, s31, v{vWd}"]
            V += [f"v_add_u32 v{vWd+t}, {t*(16384-1024)}, v{vWd}" for t in range(1, 4)]
        if n == 19:
            V += [f"v_mov_b32 v{vXd+t}, v{vLin}" for t in range(4)]
        M = mf_G(n - 1)
        weave(A, M, [(R, lambda k: 2), (D, lambda k: 1 if k % 2 == 1 else 0), (V, lambda k: 1), (T, lambda k: 2 if k >= 12 else 0)])
        for x in post: A(x)
    A("s_waitcnt vmcnt(8) lgkmcnt(0)")
    A("s_barrier")
    stamp(A, 3)
    tstamp(A)
    def cvtQ(u):
        return [f"v_cvt_pk_bf16_f32 v{Q0+8*u+j}, v{ACC+16*u+2*j}, v{ACC+16*u+2*j+1}" for j in range(8)]
    def QK(u, c):
        return [f"v_mfma_f32_32x32x16_bf16 {vr(S0+16*u,16)}, {ar(KB0,4)}, {vr(Q0+8*u,4)}, {c}",
                f"v_mfma_f32_32x32x16_bf16 {vr(S0+16*u,16)}, {ar(KB0+4,4)}, {vr(Q0+8*u+4,4)}, {vr(S0+16*u,16)}"]
    def max16(b):
        L = [f"v_max3_f32 v{b}, v{b}, v{b+1}, v{b+2}"]
        for j in range(3, 15, 2):
            L.append(f"v_max3_f32 v{b}, v{b}, v{b+j}, v{b+j+1}")
        L.append(f"v_max_f32 v{b}, v{b}, v{b+15}")
        return L
    def fill_C(u, b):
        L = [f"v_mov_b32 v{b+1}, v{b}", "s_nop 1", f"v_permlane32_swap_b32 v{b}, v{b+1}", "s_nop 1",
             f"v_max_f32 v{b}, v{b}, v{b+1}", f"v_sub_f32 v{C0+16*u}, 0, v{b}", f"v_sub_f32 v{C0+16*u+1}, 0, v{b}"]
        for j in range(2, 16, 2):
            L.append(f"v_mov_b64 {vr(C0+16*u+j,2)}, {vr(C0+16*u,2)}")
        return L
    G = mf_G(19, by_u=True)
    ldc = lambda t: f"buffer_load_dwordx4 v{vXd+t}, s[44:47], s32 offen offset:{1024*t} sc1 lds"
    ldw = lambda t: f"buffer_load_dwordx4 v{vWd+t}, s[12:15], s34 offen offset:{1024*t} lds"
    misc = [f"ds_read_b128 {ar(KB0,4)}, v{vKV}", f"ds_read_b128 {ar(KB0+4,4)}, v{vKV} offset:1024",
            f"ds_read_b128 {ar(VB0,4)}, v{vKV} offset:2048", f"ds_read_b128 {ar(VB0+4,4)}, v{vKV} offset:3072",
            f"v_lshlrev_b32 v{vT0}, 2, v{vL31}", "s_lshl_b32 s50, s29, 9", "s_lshl_b32 s51, s22, 8", "s_add_u32 s50, s50, s51",
            f"s_add_u32 s50, s50, {WS_G}", f"buffer_load_dword v{vG}, v{vT0}, s[16:19], s50 offen sc1",
            f"buffer_load_dword v{vG+1}, v{vT0}, s[16:19], s50 offen offset:128 sc1",
            "s_add_u32 m0, s36, 0x10000", "s_mov_b32 s32, 0x10000", ldc(0), ldc(1), ldc(2), ldc(3),
            "s_mov_b32 s37, 0x18000", "s_mov_b32 s39, 0", "s_mov_b32 s71, 0", "s_mov_b32 s33, 0x4000", "s_mov_b32 s38, -1"]
    def emit(L):
        for x in L: A(x)
    def take(L, n):
        r = L[:n]; del L[:n]; return r
    for k in range(0, 7):
        A(G[k]); emit(take(misc, 4 if k < 5 else 1))
    emit(misc)
    c0 = cvtQ(0)
    A(G[7]); emit(take(c0, 5))
    A(G[8]); emit(c0); A("s_waitcnt lgkmcnt(0)")
    A(G[9])
    q = QK(0, "0"); A(q[0]); A(q[1])
    c1 = cvtQ(1)
    A(G[10]); emit(take(c1, 5))
    A(G[11]); emit(c1)
    A(G[12])
    q = QK(1, "0"); A(q[0]); A(q[1])
    m0_ = max16(S0)
    A(G[13]); emit(take(m0_, 5))
    A(G[14]); emit(m0_)
    f0 = fill_C(0, S0)
    A(G[15]); emit(take(f0, 4))
    emit(cvtQ(2))
    emit(take(f0, 3))
    q = QK(2, "0"); A(q[0]); emit(take(f0, 4)); A(q[1]); emit(f0)
    emit(cvtQ(3))
    m1_ = max16(S0+16)
    emit(take(m1_, 2))
    q = QK(3, "0"); A(q[0]); emit(take(m1_, 4)); A(q[1]); emit(m1_)
    f1 = fill_C(1, S0+16)
    emit(take(f1, 3))
    q = QK(0, vr(C0, 16)); A(q[0]); emit(take(f1, 5)); A(q[1]); emit(f1)
    emit(max16(S0+32)); emit(fill_C(2, S0+32))
    emit(max16(S0+48)); emit(fill_C(3, S0+48))
    for i in range(0, 16, 2):
        A(f"v_mov_b64 {vr(S0+48+i,2)}, 0")
    A("s_waitcnt vmcnt(6)")
    A("s_barrier")
    def PV(u0, p0):
        return [
            f"v_smfmac_f32_32x32x32_bf16 {vr(O0+16*u0,16)}, {ar(VB0+8*p0,4)}, {vr(S0+16*u0,8)}, v{vIDX}",
            f"v_smfmac_f32_32x32x32_bf16 {vr(O0+16*u0,16)}, {ar(VB0+8*p0+4,4)}, {vr(S0+16*u0+8,8)}, v{vIDX}",
            f"v_smfmac_f32_16x16x64_bf16 {ar(L0+4*u0,4)}, {ar(SEL,4)}, {vr(S0+16*u0,8)}, v{vIDX}",
            f"v_smfmac_f32_16x16x64_bf16 {ar(L0+4*u0,4)}, {ar(SEL,4)}, {vr(S0+16*u0+8,8)}, v{vIDX}",
        ]
    stamp(A, 4)
    body = []
    for i in range(8):
        for u in range(4):
            u1 = (u + 1) % 4; i1 = i + (1 if u == 3 else 0)
            u0 = (u + 3) % 4; i0 = i - (1 if u == 0 else 0)
            P = PV(u0, i0 % 2)
            M = [
                f"v_mfma_f32_32x32x16_bf16 {vr(S0+16*u1,16)}, {ar(KB0+8*(i1%2),4)}, {vr(Q0+8*u1,4)}, {vr(C0+16*u1,16)}",
                P[0],
                f"v_mfma_f32_32x32x16_bf16 {vr(S0+16*u1,16)}, {ar(KB0+8*(i1%2)+4,4)}, {vr(Q0+8*u1+4,4)}, {vr(S0+16*u1,16)}",
                P[1], P[2], P[3],
            ]
            X = [[] for _ in range(6)]
            tt = (i + 1) % 8
            pn = (i + 1) % 2
            if u == 0:
                X[3].append("s_waitcnt lgkmcnt(0)")
                X[4].append(f"ds_read_b128 {ar(KB0+8*pn,4)}, v{vKV} offset:{4096*tt}")
                X[5].append(f"ds_read_b128 {ar(KB0+8*pn+4,4)}, v{vKV} offset:{4096*tt+1024}")
            if u == 2:
                X[3].append("s_waitcnt lgkmcnt(0)")
                X[4].append(f"ds_read_b128 {ar(VB0+8*pn,4)}, v{vKV} offset:{4096*tt+2048}")
                X[5].append(f"ds_read_b128 {ar(VB0+8*pn+4,4)}, v{vKV} offset:{4096*tt+3072}")
            if i in (2, 4) and u == 1 and "nopf" not in VAR:
                X[2].append(f"s_mov_b32 m0, {LDS_DUMMY}")
                X[4].append(f"buffer_load_dwordx4 v{vLane16}, s[52:55], s68 offen lds")
                X[5].append("s_add_u32 s68, s68, 0x800")
            if i == 7 and u == 0:
                X[0].append("s_add_u32 s71, s71, 0x8000")
                X[1].append("s_and_b32 s71, s71, 0x1ffff")
                X[1].append("s_add_u32 s39, s39, 1")
                X[2].append("s_bitcmp1_b32 0x54, s39")
                X[3].append("@TOP")
            if i == 7 and u == 1:
                X[1].append("s_add_u32 m0, s37, s36")
                X[1].append("s_add_u32 s37, s37, 0x8000")
                X[3].append("s_and_b32 s37, s37, 0x1ffff")
                X[3].append("s_cmp_ge_u32 s39, 7")
                X[4].append(ldc(0)); X[5].append(ldc(1))
            if i == 7 and u == 2:
                X[0].append("s_cselect_b32 s37, 0x20000, s37")
            if i == 7 and u == 3:
                X[3].append("s_cmp_eq_u32 s39, 8")
                X[4].append(ldc(2)); X[5].append(ldc(3)); X[5].append("@EXIT")
            if i == 0 and u == 1:
                X[4].append(ldc(0)); X[5].append(ldc(1))
            if i == 0 and u == 3:
                X[4].append(ldc(2)); X[5].append(ldc(3))
            if i == 1 and u == 1:
                X[1].append("s_add_u32 s32, s32, s33")
                X[1].append("s_and_b32 s32, s32, s38")
            E = [f"v_exp_f32 v{S0+16*u+j}, v{S0+16*u+j}" for j in range(16)]
            ne = [3, 3, 3, 3, 2, 2]
            for k in range(6):
                body.append(M[k])
                body += X[k]
                for _ in range(ne[k]): body.append(E.pop(0))
    top = body.index("@TOP")
    first, second = body[:top], body[top+1:]
    A("s_branch L_at_pre_entry")
    A.raw(".p2align 6")
    A.label("L_at_top_bar")
    A("s_cmp_lg_u32 s39, 6")
    A("s_cbranch_scc1 L_at_top_bar2")
    for t in range(4):
        A(f"v_mov_b32 v{vXd+t}, v{vWd+t}")
    A("s_mov_b32 s44, s72")
    A("s_mov_b32 s45, s73")
    A("s_mov_b32 s46, 0x200000")
    A("s_lshl_b32 s32, s30, 18")
    A("s_mov_b32 s33, 0x40000")
    A("s_mov_b32 s38, 0x1fffff")
    A.label("L_at_top_bar2")
    A("s_waitcnt vmcnt(2)")
    A("s_barrier")
    A.label("L_at_top")
    tstamp(A)
    A(f"v_add_u32 v{vKV}, s71, v{vLane16}")
    ex = second.index("@EXIT")
    tail = second[ex+1:]
    for x in second[:ex]: A(x)
    A("s_cbranch_scc1 L_at_exit")
    for x in tail: A(x)
    A.label("L_at_pre_entry")
    A(first[0]); A("s_add_u32 m0, m0, 0x4000")
    for x in first[1:5]: A(x)
    A("s_add_u32 s32, s32, s33")
    A("s_and_b32 s32, s32, s38")
    rest = first[5:]
    for x in rest: A(x)
    A("s_cbranch_scc1 L_at_top_bar")
    A("s_branch L_at_top")
    A.label("L_at_exit")
    for x in tail: A(x)
    stamp(A, 5)
    A("s_waitcnt vmcnt(6) lgkmcnt(0)")
    A("s_barrier")
    tstamp(A, "2")
    P3 = PV(3, 1)
    def scale_store(u):
        a, t = u >> 1, u & 1
        L = []
        for j in range(0, 16, 2):
            L.append(f"v_pk_mul_f32 {vr(O0+16*u+j,2)}, {vr(O0+16*u+j,2)}, {vr(S0+2*u,2)} op_sel_hi:[1,0]")
        for j in range(8):
            L.append(f"v_cvt_pk_bf16_f32 v{C0+8*u+j}, v{O0+16*u+2*j}, v{O0+16*u+2*j+1}")
        for f in range(2):
            L.append(f"buffer_store_dwordx4 {vr(C0+8*u+4*f,4)}, v{vLane16}, s[16:19], s{48+t} offen offset:{2048*a+1024*f} sc1")
        return L
    addr = ["s_lshl_b32 s48, s29, 2", "s_lshl_b32 s49, s22, 1", "s_add_u32 s48, s48, s49", "s_lshl_b32 s48, s48, 17",
            "s_lshl_b32 s49, s28, 5", "s_lshl_b32 s50, s30, 2", "s_add_u32 s49, s49, s50", "s_lshl_b32 s50, s21, 1",
            "s_add_u32 s49, s49, s50", "s_lshl_b32 s49, s49, 11", "s_add_u32 s48, s48, s49", f"s_add_u32 s48, s48, {WS_OF}",
            "s_add_u32 s49, s48, 0x20000",
            "s_cmp_eq_u32 s28, 0", "s_cselect_b32 s50, 1.0, -1.0", "s_cselect_b32 s51, 0, 1.0"]
    A(P3[2]); emit(take(addr, 4)); A(P3[3]); emit(take(addr, 4)); A(P3[0]); emit(take(addr, 8)); A(P3[1])
    A(f"v_mov_b32 v{vT0}, s51")
    A(f"v_fma_f32 v{vG}, v{vG}, s50, v{vT0}")
    A(f"v_fma_f32 v{vG+1}, v{vG+1}, s50, v{vT0}")
    A("s_mov_b64 s[66:67], -1")
    A.label("L_at_store")
    for u in range(4):
        A(f"v_accvgpr_read_b32 v{S0+2*u}, a{L0+4*u}")
    A(f"v_add_f32 v{vT1}, v{S0}, v{S0+2}")
    A(f"v_add_f32 v{vT0}, v{S0+4}, v{S0+6}")
    A(f"v_add_f32 v{vT0}, v{vT0}, v{vT1}")
    A(f"v_cmp_ngt_f32 vcc, {0x4e800000 if 'forceslow' not in VAR else 0x3f000000:#x}, v{vT0}")
    for u in range(4):
        A(f"v_rcp_f32 v{S0+2*u}, v{S0+2*u}")
    A("s_and_b64 vcc, vcc, s[66:67]")
    if "lx" not in VAR: A("s_cbranch_scc1 L_at_slow")
    for u in range(4):
        A(f"v_mul_f32 v{S0+2*u}, v{S0+2*u}, v{vG+(u&1)}")
    for u in range(4):
        emit(scale_store(u))
    gen_out(A)
    A.label("L_at_slow")
    A("s_waitcnt vmcnt(0) lgkmcnt(0)")
    A("s_lshl_b32 s39, s28, 18")
    A("s_add_u32 s44, s26, s39")
    A("s_addc_u32 s45, s27, 0")
    A("s_mov_b32 s46, 0x40000")
    for u in range(4):
        A(f"v_mov_b32 v{O0+u}, 0xff7fffff")
    A("s_mov_b32 s39, 0")
    A.label("L_at_slow1")
    A(f"buffer_load_dwordx4 {ar(KB0,4)}, v{vLane16}, s[44:47], s39 offen sc1")
    A(f"buffer_load_dwordx4 {ar(KB0+4,4)}, v{vLane16}, s[44:47], s39 offen offset:1024 sc1")
    A("s_waitcnt vmcnt(0)")
    for u in range(4):
        for x in QK(u, "0"): A(x)
    A("s_nop 15")
    for u in range(4):
        for j in range(0, 16, 2):
            A(f"v_max3_f32 v{O0+u}, v{O0+u}, v{S0+16*u+j}, v{S0+16*u+j+1}")
    A("s_add_u32 s39, s39, 0x1000")
    A("s_cmp_lt_u32 s39, 0x40000")
    A("s_cbranch_scc1 L_at_slow1")
    for u in range(4):
        A(f"v_mov_b32 v{S0+16*u}, v{O0+u}")
        emit(fill_C(u, S0+16*u))
    for i in range(16):
        A(f"v_accvgpr_write_b32 a{L0+i}, 0")
    for i in range(64):
        A(f"v_mov_b32 v{O0+i}, 0")
    A("s_mov_b32 s39, 0")
    A.label("L_at_slow2")
    A(f"buffer_load_dwordx4 {ar(KB0,4)}, v{vLane16}, s[44:47], s39 offen sc1")
    A(f"buffer_load_dwordx4 {ar(KB0+4,4)}, v{vLane16}, s[44:47], s39 offen offset:1024 sc1")
    A(f"buffer_load_dwordx4 {ar(VB0,4)}, v{vLane16}, s[44:47], s39 offen offset:2048 sc1")
    A(f"buffer_load_dwordx4 {ar(VB0+4,4)}, v{vLane16}, s[44:47], s39 offen offset:3072 sc1")
    A("s_waitcnt vmcnt(0)")
    for u in range(4):
        for x in QK(u, vr(C0+16*u, 16)): A(x)
    A("s_nop 15")
    for j in range(64):
        A(f"v_exp_f32 v{S0+j}, v{S0+j}")
    A("s_nop 1")
    for u in range(4):
        for x in PV(u, 0): A(x)
    A("s_nop 15")
    A("s_add_u32 s39, s39, 0x1000")
    A("s_cmp_lt_u32 s39, 0x40000")
    A("s_cbranch_scc1 L_at_slow2")
    A("s_nop 15")
    A("s_mov_b64 s[66:67], 0")
    A("s_branch L_at_store")
    A.label("L_at_end")
    A("s_endpgm")
    return kernel_desc(name, 512, 256, 102)

def gen_out(A):
    LD = 8
    vL, vH, vL31, vW_ = 1, 2, 3, 4
    vOd, vWd = 28, 12
    vWr, vWr0 = 8, 10
    vT0, vT1, vPl = 16, 17, 18
    ACC = 32
    WF = 128
    OFr = 192
    def wreg(st, s, c, n=4, o=0):
        i = 8*s + 4*c + o
        if st < 2: return vr(WF + 32*st + i, n)
        if st < 10: return ar(32*(st - 2) + i, n)
        return vr(64 + 32*(st - 10) + i, n)
    def stash(st):
        R = []
        for s in range(4):
            for c in range(2):
                wo = (st % 8)*0x2000 + 2048*s
                R += [f"ds_read_b64_tr_b16 {wreg(st,s,c,2,0)}, v{vWr+c} offset:{wo}",
                      f"ds_read_b64_tr_b16 {wreg(st,s,c,2,2)}, v{vWr+c} offset:{wo+1024}"]
        return R
    A("s_load_dwordx2 s[24:25], s[0:1], 88")
    A("s_lshl_b32 s45, s30, 1")
    A("s_lshl_b32 s33, s28, 3")
    A("s_add_u32 s30, s30, s33")
    A("s_lshl_b32 s55, s45, 17")
    A("s_add_u32 s34, s55, 0x180000")
    A("s_and_b32 s34, s34, 0x1fffff")
    A("s_mov_b32 s12, s72")
    A("s_mov_b32 s13, s73")
    A("s_add_u32 s35, s36, 0x10000")
    def dma_W():
        ldw = lambda t: f"buffer_load_dwordx4 v{vWd+t}, s[12:15], s34 offen offset:{1024*t} lds"
        return [["s_mov_b32 m0, s35", "s_add_u32 s35, s35, 0x4000", ldw(0)], [ldw(1)], [ldw(2)],
                [ldw(3), "s_add_u32 s34, s34, 0x40000", "s_and_b32 s34, s34, 0x1fffff"]]
    def fl(I):
        for x in I:
            for y in x: A(y)
    def mix(R, D, k):
        while R or D:
            for _ in range(k):
                if R: A(R.pop(0))
            if D:
                for y in D.pop(0): A(y)
    A(f"v_bfe_u32 v{vT0}, v{vL}, 2, 2")
    A(f"v_lshl_add_u32 v{vT1}, v{vH}, 2, v{vT0}")
    A(f"v_lshlrev_b32 v{vT1}, 7, v{vT1}")
    A(f"v_bfe_u32 v{vT0}, v{vL}, 3, 1")
    A(f"v_lshl_add_u32 v{vT1}, v{vT0}, 6, v{vT1}")
    A(f"v_bfe_u32 v{vT0}, v{vL}, 4, 1")
    A(f"v_lshl_add_u32 v{vT1}, v{vT0}, 5, v{vT1}")
    A(f"v_and_b32 v{vT0}, 1, v{vL}")
    A(f"v_lshl_add_u32 v{vT1}, v{vT0}, 4, v{vT1}")
    A(f"v_bfe_u32 v{vT0}, v{vL}, 1, 1")
    A(f"v_lshl_add_u32 v{vWr0}, v{vT0}, 3, v{vT1}")
    A(f"v_xor_b32 v{vWr0+1}, 64, v{vWr0}")
    A(f"v_mov_b32 v{vWr}, v{vWr0}")
    A(f"v_mov_b32 v{vWr+1}, v{vWr0+1}")
    A("s_waitcnt lgkmcnt(0)")
    R = []
    for st in range(8): R += stash(st)
    mix(R, dma_W() + dma_W(), 16)
    srd(A, 56, 24, 25, 2048*1024*2)
    A("s_lshl_b32 s46, s29, 2")
    A("s_add_u32 s46, s46, s20")
    A("s_lshl_b32 s46, s46, 17")
    A(f"s_add_u32 s46, s46, {WS_OF}")
    A("s_lshl_b32 s47, s28, 16")
    A("s_add_u32 s48, s46, s47")
    A("s_add_u32 s8, s26, s48")
    A("s_addc_u32 s9, s27, 0")
    A("s_mov_b32 s10, 0x10000")
    A("s_mov_b32 s11, 0x00020000")
    A("s_xor_b32 s47, s47, 0x10000")
    A("s_add_u32 s48, s46, s47")
    A("s_add_u32 s40, s26, s48")
    A("s_addc_u32 s41, s27, 0")
    A("s_lshl_b32 s32, s45, 12")
    A(f"v_add_u32 v{vT0}, s30, v{vL}")
    A(f"v_and_b32 v{vT0}, 7, v{vT0}")
    A(f"v_xor_b32 v{vT1}, s33, v{vL}")
    A(f"v_and_b32 v{vT1}, 8, v{vT1}")
    A(f"v_or_b32 v{vT0}, v{vT0}, v{vT1}")
    A(f"v_lshlrev_b32 v{vT0}, 2, v{vT0}")
    A("s_lshl_b32 s49, s29, 7")
    A(f"s_add_u32 s49, s49, {WS_FL}")
    A("s_cmp_eq_u32 s20, 0")
    A("s_cselect_b32 s53, 0, -1")
    for i in range(0, 32, 2):
        A(f"v_mov_b64 {vr(ACC+i,2)}, 0")
    A("s_add_u32 s34, s55, 0x140000")
    A("s_and_b32 s34, s34, 0x1fffff")
    A("s_add_u32 s35, s36, 0x24000")
    A(f"v_add_u32 v{vWr}, 0x20000, v{vWr0}")
    A(f"v_add_u32 v{vWr+1}, 0x20000, v{vWr0+1}")
    A("s_waitcnt vmcnt(0) lgkmcnt(0)")
    A("s_barrier")
    tstamp(A, "2")
    stamp(A, 6)
    A("s_cmp_lg_u32 s20, 0")
    A("s_cbranch_scc1 L_o_nosig")
    A(f"v_mov_b32 v{vT1}, 1")
    A(f"v_mov_b32 v{vPl}, 0")
    A("s_mov_b64 exec, 1")
    A(f"buffer_atomic_swap v{vT1}, v{vPl}, s[16:19], s69 offen sc1")
    A("s_mov_b64 exec, -1")
    A.label("L_o_nosig")
    def ld_O(j):
        I = [f"buffer_load_dwordx4 {vr(OFr+4*(j%16),4)}, v{vOd}, s[8:11], s32 offen offset:{1024*(j%4)} sc1"]
        if j % 4 == 3: I += ["s_add_u32 s32, s32, 0x1000", "s_and_b32 s32, s32, 0xffff"]
        return I
    fl(dma_W())
    for j in range(8):
        for y in ld_O(j): A(y)
    A("s_mov_b32 s12, s74")
    A("s_mov_b32 s13, s75")
    A("s_mov_b32 s34, s55")
    A("s_add_u32 s35, s36, 0x18000")
    mix(stash(8) + stash(9), dma_W() + dma_W(), 4)
    A("s_mov_b32 s35, s36")
    A("s_waitcnt vmcnt(16)")
    A("s_barrier")
    mix(stash(10) + stash(11), dma_W() + dma_W(), 4)
    def mf(st, s, c, j):
        w = wreg(st, s, c) if st < 12 else vr(WF + 32*(st % 2) + 8*s + 4*c, 4)
        return f"v_mfma_f32_32x32x16_bf16 {vr(ACC+16*c,16)}, {w}, {vr(OFr+4*(j%16),4)}, {vr(ACC+16*c,16)}"
    A("s_waitcnt vmcnt(16)")
    D = dma_W() + dma_W()
    for j in range(8):
        A(mf(j // 4, j % 4, 0, j)); A(mf(j // 4, j % 4, 1, j))
        for y in D.pop(0): A(y)
    A("s_add_u32 s35, s36, 0x20000")
    A("s_waitcnt lgkmcnt(0)")
    A("s_barrier")
    fl(dma_W()); fl(dma_W())
    A("s_mov_b32 s54, 0xff")
    A("s_and_b32 s50, s53, s54")
    A("s_cmp_lg_u32 s50, s54")
    A("s_cbranch_scc1 L_o_poll0")
    A.label("L_o_ready0")
    A("s_barrier")
    stamp(A, 7)
    tstamp(A, "2")
    for j in range(8, 16):
        for y in ld_O(j): A(y)
    def rd_W(st):
        R = []
        for s in range(4):
            for c in range(2):
                b = WF + 32*(st % 2) + 8*s + 4*c
                wo = st*0x2000 + 2048*s
                R += [f"ds_read_b64_tr_b16 {vr(b,2)}, v{vWr+c} offset:{wo}",
                      f"ds_read_b64_tr_b16 {vr(b+2,2)}, v{vWr+c} offset:{wo+1024}"]
        return R
    def stage(st, stw, rd, extra=None):
        for s in range(4):
            j = 4*st + s
            A(f"s_waitcnt vmcnt(7) lgkmcnt(12)" if stw >= 12 else "s_waitcnt vmcnt(7)")
            for c in range(2):
                A(mf(stw, s, c, j))
                for _ in range(2):
                    if rd: A(rd.pop(0))
                if c == 0:
                    for y in ld_O(j + LD): A(y)
                elif extra:
                    for y in extra.pop(0): A(y)
    A(f"v_add_u32 v{vWr}, 0x10000, v{vWr0}")
    A(f"v_add_u32 v{vWr+1}, 0x10000, v{vWr0+1}")
    A("s_mov_b32 s37, 0x10000")
    A("s_mov_b32 s39, 3")
    for st in range(2, 12):
        stage(st % 4, st, rd_W(0) if st == 11 else None)
    A("s_mov_b32 s54, 0xffff")
    A("s_and_b32 s50, s53, s54")
    A("s_cmp_lg_u32 s50, s54")
    A("s_cbranch_scc1 L_o_poll1")
    A.label("L_o_ready1")
    A("s_barrier")
    A.raw(".p2align 6")
    A.label("L_o_loop")
    tstamp(A, "2")
    stage(0, 12, rd_W(1), [["s_add_u32 s37, s37, 0x8000", "s_and_b32 s37, s37, 0x1ffff"], ["s_cmp_eq_u32 s39, 6", "s_cselect_b32 s37, 0x20000, s37"]])
    stage(1, 13, rd_W(2))
    A("s_mov_b32 s8, s40")
    A("s_mov_b32 s9, s41")
    A("s_cmp_eq_u32 s39, 7")
    A("s_cbranch_scc1 L_o_tail")
    stage(2, 14, rd_W(3), [["s_add_u32 s39, s39, 1"]])
    A(f"v_add_u32 v{vWr}, s37, v{vWr0}")
    A(f"v_add_u32 v{vWr+1}, s37, v{vWr0+1}")
    stage(3, 15, rd_W(0))
    A("s_branch L_o_loop")
    A.label("L_o_tail")
    R3 = rd_W(3)
    for j in range(8, 16):
        st, sq = j // 4, j % 4
        A(f"s_waitcnt vmcnt({15 - j}) lgkmcnt({12 if j < 12 else 4*(15-j)})")
        for c in range(2):
            A(mf(12 + st, sq, c, j))
            for _ in range(2):
                if R3: A(R3.pop(0))
    A(f"v_lshlrev_b32 v{vT0}, 11, v{vL31}")
    A(f"v_lshl_add_u32 v{vT0}, v{vH}, 4, v{vT0}")
    A("s_lshl_b32 s40, s29, 18")
    A("s_lshl_b32 s41, s20, 16")
    A("s_add_u32 s40, s40, s41")
    A("s_add_u32 s40, s40, s31")
    A("s_nop 7")
    for c in range(2):
        for j in range(8):
            A(f"v_cvt_pk_bf16_f32 v{64+8*c+j}, v{ACC+16*c+2*j}, v{ACC+16*c+2*j+1}")
        for f in range(2):
            A(f"buffer_store_dwordx4 {vr(64+8*c+4*f,4)}, v{vT0}, s[56:59], s40 offen offset:{64*c+32*f}")
    if TS == "2":
        tstamp(A, "2")
        A("s_waitcnt vmcnt(0)")
        tstamp(A, "2")
    if STAMP:
        A("s_waitcnt vmcnt(0)")
        _stamp(A, 1)
        stamp_flush(A, 0, 8, 26, 27, 20)
    A("s_endpgm")
    for k in (1, 0):
        tgt = f"L_o_ready{k}"
        A.label(f"L_o_poll{k}")
        A("s_mov_b32 s48, 0")
        A.label(f"L_o_spin{k}")
        A(f"buffer_load_dword v{vPl}, v{vT0}, s[16:19], s49 offen sc1")
        A("s_waitcnt vmcnt(0)")
        A(f"v_cmp_eq_u32 vcc, 1, v{vPl}")
        A("s_add_u32 s48, s48, 1")
        A("s_cmp_gt_u32 s48, 0x40000")
        A(f"s_cbranch_scc1 {tgt}")
        A("s_nop 2")
        A("s_mov_b32 s53, vcc_lo")
        A("s_and_b32 s50, s53, s54")
        A("s_cmp_eq_u32 s50, s54")
        A(f"s_cbranch_scc1 {tgt}")
        A(f"s_sleep {int(os.environ.get('SLEEP', '2'))}")
        A(f"s_branch L_o_spin{k}")

def main(path):
    ref = open("cdna_kernels/" + NAME + ".s.ref").read().split("\n")
    hdr = [l for l in ref if l.startswith(";") and "@launch" not in l and "Override" not in l and "grid=ceil" not in l]
    B = Asm()
    d1 = gen_attn(B)
    A = Asm()
    for l in hdr: A.raw(l)
    A.raw(f"; @launch grid=(256,1,1) block=(256,1,1) lds={LDS_ATTN}")
    A.raw('.amdgcn_target "amdgcn-amd-amdhsa--gfx950"')
    A.raw(".text")
    A.lines += B.lines
    A.raw("L_code_end:")
    A.raw('.section .rodata,"a"')
    for d in (d1,):
        A.raw(".p2align 6")
        A.raw(d)
    open(path, "w").write(A.text())

if __name__ == "__main__":
    main(sys.argv[1] if len(sys.argv) > 1 else "cdna_kernels/" + NAME + ".s")
```

```python
import sys, math, struct, os
from asmlib import *

NAME = "gated_mix__grouped_kv_mqa__grouped_kv_mqa__prompt"
WS_KV = 0
WS_G = 0x80000
WS_FL = 0x90000
WS_OF = 0x100000
WS_USED = 0x900000
STAMP = os.environ.get("STAMP", "0") == "1"
VAR = os.environ.get("VAR", "")
WS_ST = 0xA00000

FINE = os.environ.get("FINE", "0") == "1"
TS = os.environ.get("TS", "0")
def tstamp(A, ph="1"):
    if TS != ph: return
    A("s_waitcnt lgkmcnt(0)")
    A("s_memtime s[96:97]")
    A("s_memrealtime s[98:99]")
    A("s_waitcnt lgkmcnt(0)")
    A("v_mov_b32 v6, s96")
    A("v_mov_b32 v7, s98")
    A("v_mov_b32 v5, 0")
    A("buffer_store_dwordx2 v[6:7], v5, s[92:95], s100 offen")
    A("s_add_u32 s100, s100, 8")
def tstamp_init(A, wsl, wsh, wave_sgpr, kern):
    if TS == "0": return
    A(f"s_mov_b32 s92, s{wsl}")
    A(f"s_mov_b32 s93, s{wsh}")
    A(f"s_mov_b32 s94, {0xC00000}")
    A("s_mov_b32 s95, 0x00020000")
    A("s_lshl_b32 s100, s2, 2")
    A(f"s_add_u32 s100, s100, s{wave_sgpr}")
    A("s_lshl_b32 s100, s100, 9")
    A(f"s_add_u32 s100, s100, {0xA00000 + kern*0x80000}")
def fstamp(A, k):
    if FINE: _stamp(A, k)
def stamp(A, k):
    if FINE and k not in (0,): return
    _stamp(A, k)
def _stamp(A, k):
    if not STAMP: return
    A("s_waitcnt lgkmcnt(0)")
    A(f"s_memtime s[96:97]")
    A(f"s_memrealtime s[98:99]")
    A("s_waitcnt lgkmcnt(0)")
    A(f"s_mov_b32 s{76+k}, s96")
    A(f"s_mov_b32 s{84+k}, s98")
def stamp_flush(A, kern, n, wsl, wsh, wave_sgpr):
    if not STAMP: return
    A(f"s_mov_b32 s92, s{wsl}")
    A(f"s_mov_b32 s93, s{wsh}")
    A(f"s_mov_b32 s94, {WS_ST + 0x40000}")
    A("s_mov_b32 s95, 0x00020000")
    A("s_lshl_b32 s96, s2, 2")
    A(f"s_add_u32 s96, s96, s{wave_sgpr}")
    A("s_lshl_b32 s96, s96, 6")
    A(f"s_add_u32 s96, s96, {WS_ST + kern*0x10000}")
    A("v_mov_b32 v1, 0")
    for k in range(n):
        A(f"v_mov_b32 v2, s{76+k}")
        A(f"buffer_store_dword v2, v1, s[92:95], s96 offen offset:{4*k}")
        A("s_nop 1")
        A(f"v_mov_b32 v2, s{84+k}")
        A(f"buffer_store_dword v2, v1, s[92:95], s96 offen offset:{32+4*k}")
        A("s_nop 1")

def f32bits(x):
    return struct.unpack("<I", struct.pack("<f", x))[0]
KSCALE = f32bits(math.log2(math.e) / math.sqrt(32.0))
LOG2E = f32bits(math.log2(math.e))

def weave(A, M, streams):
    for k, m in enumerate(M):
        A(m)
        for items, q in streams:
            for _ in range(q(k)):
                if items:
                    x = items.pop(0)
                    if isinstance(x, (list, tuple)):
                        for y in x: A(y)
                    else: A(x)
    for items, q in streams:
        while items:
            x = items.pop(0)
            if isinstance(x, (list, tuple)):
                for y in x: A(y)
            else: A(x)

LDS_SCR = 0x20000
LDS_DUMMY = 0x27C00
LDS_ATTN = 163840

def gen_attn(A):
    name = NAME + "_kernel"
    kernel_header(A, name)
    S0, C0, O0, Q0 = 32, 96, 160, 224
    L0, KB0, VB0, SEL, GF, FR = 0, 16, 32, 48, 64, 128
    vL, vH, vL31, vW_ = 1, 2, 3, 4
    vXd, vWd = 8, 12
    vXr, vWr = 16, 20
    vKV, vIDX, vT0, vT1, vG = 22, 23, 24, 25, 26
    vLane16, vLin, vPoll, vT2 = 28, 29, 30, 31
    ACC = S0
    PACC, GACC = Q0, Q0 + 16
    vPd, vPr, vPw = C0, C0 + 4, C0 + 8
    vRed = C0 + 12
    A("s_cmp_ge_u32 s2, 256")
    A("s_cbranch_scc1 L_at_end")
    stamp(A, 0)
    if "epf" in VAR:
        A("s_getpc_b64 s[72:73]")
        for k in range(1, 7):
            A(f"s_load_dword s74, s[72:73], {128*k}")
    A("s_load_dwordx8 s[4:11], s[0:1], 0")
    A("s_load_dwordx2 s[64:65], s[0:1], 32")
    A("s_load_dwordx8 s[12:19], s[0:1], 48")
    A("s_load_dwordx2 s[66:67], s[0:1], 80")
    A("s_load_dwordx4 s[24:27], s[0:1], 96")
    A("s_and_b32 s28, s2, 1")
    A("s_bfe_u32 s29, s2, 0x20001")
    A("s_bfe_u32 s30, s2, 0x20003")
    A("s_lshl_b32 s29, s29, 2")
    A("s_add_u32 s29, s29, s30")
    A("s_lshr_b32 s30, s2, 5")
    A("s_lshr_b32 s31, s2, 7")
    A("s_and_b32 s23, s30, 3")
    A("s_lshl_b32 s33, s29, 2")
    A("s_add_u32 s33, s33, s23")
    A("s_lshl_b32 s34, s31, 1")
    A("s_add_u32 s34, s34, s23")
    A("s_and_b32 s34, s34, 3")
    A("s_and_b32 s37, s29, 3")
    A("s_lshl_b32 s37, s37, 1")
    A("s_add_u32 s37, s37, s30")
    A("s_lshl_b32 s37, s37, 1")
    A("s_and_b32 s37, s37, 15")
    A("s_lshl_b32 s38, s29, 18")
    A("s_lshl_b32 s39, s30, 8")
    A(f"v_lshrrev_b32 v{vW_}, 6, v0")
    A(f"v_and_b32 v{vL}, 63, v0")
    A(f"v_readfirstlane_b32 s20, v{vW_}")
    A(f"v_lshrrev_b32 v{vH}, 5, v{vL}")
    A(f"v_and_b32 v{vL31}, 31, v{vL}")
    A(f"v_lshlrev_b32 v{vLane16}, 4, v{vL}")
    A(f"v_lshl_add_u32 v{vLin}, v{vW_}, 12, v{vLane16}")
    A(f"v_lshrrev_b32 v{vT0}, 3, v{vL}")
    A(f"v_lshl_add_u32 v{vT0}, v{vW_}, 5, v{vT0}")
    A(f"v_lshlrev_b32 v{vT0}, 11, v{vT0}")
    A(f"v_lshrrev_b32 v{vT1}, 4, v{vL}")
    A(f"v_and_b32 v5, 7, v{vL}")
    A(f"v_xor_b32 v5, v5, v{vT1}")
    A(f"v_lshl_add_u32 v{vXd}, v5, 4, v{vT0}")
    A(f"v_xor_b32 v{vXd+1}, 64, v{vXd}")
    A(f"v_add_u32 v{vXd+1}, {16384-1024}, v{vXd+1}")
    A(f"v_add_u32 v{vXd+2}, {2*(16384-1024)}, v{vXd}")
    A(f"v_add_u32 v{vXd+3}, {2*(16384-1024)}, v{vXd+1}")
    A(f"v_lshl_add_u32 v{vT0}, v{vW_}, 4, v{vT1}")
    A(f"v_lshlrev_b32 v{vT0}, 11, v{vT0}")
    A(f"v_lshlrev_b32 v{vT1}, 2, v{vT1}")
    A(f"v_and_b32 v5, 15, v{vL}")
    A(f"v_xor_b32 v5, v5, v{vT1}")
    A(f"v_lshl_add_u32 v{vWd}, v5, 4, v{vT0}")
    for t in range(1, 4):
        A(f"v_add_u32 v{vWd+t}, {t*(8192-1024)}, v{vWd}")
    A("s_waitcnt lgkmcnt(0)")
    fstamp(A, 1)
    A("s_cmp_eq_u32 s28, 1")
    A("s_cselect_b64 s[6:7], s[12:13], s[6:7]")
    A("s_cselect_b64 s[8:9], s[14:15], s[8:9]")
    A("s_cselect_b64 s[10:11], s[16:17], s[10:11]")
    A("s_cselect_b64 s[72:73], s[18:19], s[64:65]")
    A("s_cselect_b64 s[74:75], s[64:65], s[18:19]")
    A("s_cmp_eq_u32 s31, 1")
    A("s_cselect_b64 s[8:9], s[10:11], s[8:9]")
    A("s_cselect_b64 s[64:65], s[18:19], s[64:65]")
    srd(A, 40, 8, 9, 1024*32*2)
    srd(A, 8, 4, 5, 2048*1024*2)
    srd(A, 12, 6, 7, 1024*1024*2)
    srd(A, 56, 66, 67, 2048)
    A("s_lshl_b32 s36, s20, 12")
    A("s_lshl_b32 s35, s33, 16")
    def dma_P(n):
        slot = (n % 4) * 0x8000
        I = []
        I.append([f"s_add_u32 m0, s36, {slot}", "s_lshl_b32 s48, s34, 9", "s_add_u32 s48, s48, s35",
                  f"buffer_load_dwordx4 v{vPd}, s[8:11], s48 offen lds"])
        for t in range(1, 4):
            I.append(f"buffer_load_dwordx4 v{vPd+t}, s[8:11], s48 offen offset:{1024*t} lds")
        I.append([f"s_add_u32 m0, s36, {slot+0x4000}", "s_lshl_b32 s49, s34, 14",
                  f"buffer_load_dwordx4 v{vLin}, s[40:43], s49 offen lds"])
        for t in range(1, 4):
            I.append(f"buffer_load_dwordx4 v{vLin}, s[40:43], s49 offen offset:{1024*t} lds")
        I.append(["s_add_u32 s34, s34, 1", "s_and_b32 s34, s34, 3"])
        return I
    def dma_G(n):
        slot = (n % 4) * 0x8000
        I = []
        I.append([f"s_add_u32 m0, s36, {slot}", "s_lshl_b32 s48, s37, 7", "s_add_u32 s48, s48, s38",
                  f"buffer_load_dwordx4 v{vXd}, s[8:11], s48 offen lds"])
        for t in range(1, 4):
            I.append(f"buffer_load_dwordx4 v{vXd+t}, s[8:11], s48 offen offset:{1024*t} lds")
        I.append([f"s_add_u32 m0, s36, {slot+0x4000}", "s_lshl_b32 s49, s37, 17", "s_add_u32 s49, s49, s39",
                  f"buffer_load_dwordx4 v{vWd}, s[12:15], s49 offen lds"])
        for t in range(1, 4):
            I.append(f"buffer_load_dwordx4 v{vWd+t}, s[12:15], s49 offen offset:{1024*t} lds")
        I.append(["s_add_u32 s37, s37, 1", "s_and_b32 s37, s37, 15"])
        return I
    def dma_C(c):
        slot = (c % 4) * 0x8000
        I = []
        I.append([f"s_add_u32 m0, s36, {slot}", f"s_mov_b32 s48, {c*0x8000}",
                  f"buffer_load_dwordx4 v{vLin}, s[44:47], s48 offen sc1 lds"])
        for t in range(1, 4):
            I.append(f"buffer_load_dwordx4 v{vLin}, s[44:47], s48 offen offset:{1024*t} sc1 lds")
        I.append([f"s_add_u32 m0, s36, {slot+0x4000}", f"s_mov_b32 s49, {c*0x8000+0x4000}",
                  f"buffer_load_dwordx4 v{vLin}, s[44:47], s49 offen sc1 lds"])
        for t in range(1, 4):
            I.append(f"buffer_load_dwordx4 v{vLin}, s[44:47], s49 offen offset:{1024*t} sc1 lds")
        return I
    def flat(I):
        for x in I:
            if isinstance(x, (list, tuple)):
                for y in x: A(y)
            else: A(x)
    ORDER = ["G", "G", "P", "P", "P", "P"] + ["G"] * 14
    PIDX = {n: k for k, n in enumerate([n for n in range(20) if ORDER[n] == "P"])}
    PLAST = max(PIDX)
    def dma(n):
        if n >= 20: return dma_C(n - 20)
        return dma_P(n) if ORDER[n] == "P" else dma_G(n)
    flat(dma(0))
    fstamp(A, 2)
    A(f"s_mov_b32 m0, {LDS_DUMMY}")
    A("s_bfe_u32 s48, s2, 0x40003")
    A("s_lshl_b32 s48, s48, 12")
    A("s_lshl_b32 s49, s20, 10")
    A("s_add_u32 s48, s48, s49")
    A(f"buffer_load_dwordx4 v{vLane16}, s[40:43], s48 offen lds")
    if "cpf" in VAR:
        A("s_getpc_b64 s[72:73]")
        A.label("L_at_pc")
        A("s_lshr_b32 s48, s2, 3")
        A("s_lshl_b32 s48, s48, 2")
        A("s_add_u32 s48, s48, s20")
        A("s_lshl_b32 s48, s48, 8")
        A("s_min_u32 s48, s48, L_code_end-L_at_pc-256")
        A("s_add_u32 s72, s72, s48")
        A("s_addc_u32 s73, s73, 0")
        for q in range(4):
            A(f"s_load_dword s74, s[72:73], {64*q}")
    srd(A, 16, 26, 27, WS_USED)
    srd(A, 52, 64, 65, 1024*1024*2)
    srd(A, 60, 24, 25, 256)
    A("s_lshl_b32 s48, s28, 18")
    A("s_add_u32 s44, s26, s48")
    A("s_addc_u32 s45, s27, 0")
    A("s_mov_b32 s46, 0x40000")
    A("s_mov_b32 s47, 0x00020000")
    A("s_lshr_b32 s22, s20, 1")
    A("s_and_b32 s21, s20, 1")
    A("s_bfe_u32 s68, s2, 0x40003")
    A("s_lshl_b32 s68, s68, 2")
    A("s_add_u32 s68, s68, s20")
    A("s_lshl_b32 s68, s68, 15")
    A("s_lshl_b32 s69, s28, 10")
    A("s_add_u32 s68, s68, s69")
    A("s_or_b32 s70, s28, s31")
    A(f"v_lshl_add_u32 v{vT0}, v{vW_}, 3, v{vH}")
    A(f"v_and_b32 v{vT1}, 15, v{vT0}")
    A(f"v_xor_b32 v{vT1}, v{vT1}, v{vL31}")
    A(f"v_lshlrev_b32 v{vT1}, 4, v{vT1}")
    A(f"v_lshl_add_u32 v{vPd}, v{vT0}, 11, v{vT1}")
    for t in range(1, 4):
        A(f"v_xor_b32 v{vPd+t}, {(2*t) << 4}, v{vPd}")
        A(f"v_add_u32 v{vPd+t}, {t*(4096-1024)}, v{vPd+t}")
    A(f"v_lshl_add_u32 v{vT0}, v{vW_}, 3, v{vH}")
    A(f"v_and_b32 v{vT1}, 15, v{vL31}")
    A(f"v_xor_b32 v{vT0}, v{vT0}, v{vT1}")
    A(f"v_lshlrev_b32 v{vT0}, 4, v{vT0}")
    A(f"v_lshl_add_u32 v{vPr}, v{vL31}, 9, v{vT0}")
    for s in range(1, 4):
        A(f"v_xor_b32 v{vPr+s}, {(2*s) << 4}, v{vPr}")
    A(f"v_bfe_u32 v{vT0}, v{vL}, 2, 2")
    A(f"v_lshl_add_u32 v{vT0}, v{vH}, 3, v{vT0}")
    A(f"v_lshl_add_u32 v{vT0}, v{vW_}, 6, v{vT0}")
    A(f"v_lshlrev_b32 v{vT0}, 6, v{vT0}")
    A(f"v_bfe_u32 v{vT1}, v{vL}, 4, 1")
    A(f"v_lshl_add_u32 v{vT0}, v{vT1}, 5, v{vT0}")
    A(f"v_and_b32 v{vT1}, 3, v{vL}")
    A(f"v_lshl_add_u32 v{vT0}, v{vT1}, 3, v{vT0}")
    A(f"v_add_u32 v{vPw}, 0x4000, v{vT0}")
    A(f"v_bfe_u32 v{vT0}, v{vL}, 1, 3")
    A(f"v_xor_b32 v{vT0}, v{vT0}, v{vH}")
    A(f"v_lshlrev_b32 v{vT0}, 4, v{vT0}")
    A(f"v_lshl_add_u32 v{vT0}, v{vL31}, 7, v{vT0}")
    A(f"s_lshl_b32 s48, s22, 13")
    A(f"v_add_u32 v{vXr}, s48, v{vT0}")
    for s in range(1, 4):
        A(f"v_xor_b32 v{vXr+s}, {(2*s) << 4}, v{vXr}")
    A(f"v_bfe_u32 v{vT0}, v{vL}, 2, 2")
    A(f"v_lshl_add_u32 v{vT1}, v{vH}, 3, v{vT0}")
    A(f"v_lshlrev_b32 v{vT1}, 8, v{vT1}")
    A(f"s_lshl_b32 s48, s21, 1")
    A(f"v_xor_b32 v{vT0}, s48, v{vT0}")
    A(f"v_lshl_add_u32 v{vT1}, v{vT0}, 6, v{vT1}")
    A(f"v_bfe_u32 v{vT0}, v{vL}, 4, 1")
    A(f"v_lshl_add_u32 v{vT1}, v{vT0}, 5, v{vT1}")
    A(f"v_and_b32 v{vT0}, 3, v{vL}")
    A(f"v_lshl_add_u32 v{vT1}, v{vT0}, 3, v{vT1}")
    A(f"v_add_u32 v{vWr}, 0x4000, v{vT1}")
    A(f"v_xor_b32 v{vWr+1}, 64, v{vWr}")
    for i in range(0, 32, 2):
        A(f"v_mov_b64 {vr(PACC+i,2)}, 0")
    for i in range(0, 64, 2):
        A(f"v_mov_b64 {vr(ACC+i,2)}, 0")
    side = []
    side.append(f"v_mov_b32 v{vIDX}, 0xdddddddd")
    side += [f"v_and_b32 v{vT0}, {15 if 'sel2' in VAR else 7}, v{vL}", f"v_mov_b32 v{vT1}, 0x3f803f80", f"v_cmp_eq_u32 vcc, 0, v{vT0}", "s_nop 1",
             f"v_cndmask_b32 v{vT2}, 0, v{vT1}, vcc", f"v_cmp_eq_u32 vcc, 4, v{vT0}", "s_nop 1",
             f"v_cndmask_b32 v{vT1}, 0, v{vT1}, vcc",
             f"v_accvgpr_write_b32 a{SEL}, v{vT2}", f"v_accvgpr_write_b32 a{SEL+1}, v{vT2}",
             f"v_accvgpr_write_b32 a{SEL+2}, v{vT1}", f"v_accvgpr_write_b32 a{SEL+3}, v{vT1}"]
    side += [f"v_accvgpr_write_b32 a{L0+i}, 0" for i in range(16)]
    side += [f"v_accvgpr_write_b32 a{VB0+8+i}, 0" for i in range(8)]
    side += [f"v_mov_b64 {vr(O0+i,2)}, 0" for i in range(0, 64, 2)]
    side.append(f"v_mov_b32 v{vKV}, v{vLane16}")
    for x in side: A(x)
    tstamp_init(A, 26, 27, 20, 0)
    tstamp(A)
    fstamp(A, 3)
    flat(dma(1))
    fstamp(A, 4)
    stamp(A, 1)
    def rd_P(n):
        off = (n % 2) * 0x8000
        b = FR + 64*(n % 2)
        R = []
        for s in range(4):
            R.append(f"ds_read_b128 {ar(b+8*s,4)}, v{vPr+s} offset:{off}")
            R.append(f"ds_read_b64_tr_b16 {ar(b+8*s+4,2)}, v{vPw} offset:{off+1024*s}")
            R.append(f"ds_read_b64_tr_b16 {ar(b+8*s+6,2)}, v{vPw} offset:{off+1024*s+256}")
        return R
    def mf_P(n):
        b = FR + 64*(n % 2)
        A("s_cmp_eq_u32 s31, 1")
        A(f"s_cbranch_scc1 L_at_pv{n}")
        for s in range(4):
            A(f"v_mfma_f32_32x32x16_bf16 {vr(PACC,16)}, {ar(b+8*s+4,4)}, {ar(b+8*s,4)}, {vr(PACC,16)}")
        A("s_cmp_lg_u32 s70, 0")
        A(f"s_cbranch_scc1 L_at_pj{n}")
        for s in range(4):
            A(f"v_mfma_f32_32x32x16_bf16 {vr(GACC,16)}, {ar(GF+16*PIDX[n]+4*s,4)}, {ar(b+8*s,4)}, {vr(GACC,16)}")
        A(f"s_branch L_at_pj{n}")
        A.label(f"L_at_pv{n}")
        for s in range(4):
            A(f"v_mfma_f32_32x32x16_bf16 {vr(PACC,16)}, {ar(b+8*s,4)}, {ar(b+8*s+4,4)}, {vr(PACC,16)}")
        A.label(f"L_at_pj{n}")
    def rd_G(n):
        off = (n % 2) * 0x8000
        b = FR + 64*(n % 2)
        R = []
        for s in range(4):
            p = b + 16*s
            R.append(f"ds_read_b128 {ar(p,4)}, v{vXr+s} offset:{off}")
            R.append(f"ds_read_b64_tr_b16 {ar(p+8,2)}, v{vWr} offset:{off+4096*s}")
            R.append(f"ds_read_b64_tr_b16 {ar(p+10,2)}, v{vWr} offset:{off+4096*s+1024}")
            R.append(f"ds_read_b128 {ar(p+4,4)}, v{vXr+s} offset:{off+4096}")
            R.append(f"ds_read_b64_tr_b16 {ar(p+12,2)}, v{vWr+1} offset:{off+4096*s}")
            R.append(f"ds_read_b64_tr_b16 {ar(p+14,2)}, v{vWr+1} offset:{off+4096*s+1024}")
        return R
    def mf_G(n, by_u=False):
        b = FR + 64*(n % 2)
        M = []
        order = [(s, a, t) for s in range(4) for a in range(2) for t in range(2)]
        if by_u: order = [(s, a, t) for a in range(2) for t in range(2) for s in range(4)]
        for (s, a, t) in order:
            p = b + 16*s; u = 2*a + t
            M.append(f"v_mfma_f32_32x32x16_bf16 {vr(ACC+16*u,16)}, {ar(p+8+4*a,4)}, {ar(p+4*t,4)}, {vr(ACC+16*u,16)}")
        return M
    def toggle(regs):
        return [f"v_xor_b32 v{r}, 0x10000, v{r}" for r in regs]
    Pregs = [vPr+s for s in range(4)] + [vPw]
    Gregs = [vXr+s for s in range(4)] + [vWr, vWr+1]
    hi = {"P": 0, "G": 0}
    for n in range(20):
        A.comment(f"---- iteration {n} ({ORDER[n]})")
        A(f"s_waitcnt vmcnt({9 if n in (8, 9, 17) else 8}) lgkmcnt(0)")
        A("s_barrier")
        tstamp(A)
        if n == 6: stamp(A, 2)
        if n == 0: fstamp(A, 5)
        if n == 1: fstamp(A, 6)
        D = dma(n + 2)
        assert hi[ORDER[n]] == (n >> 1) & 1
        R = rd_P(n) if ORDER[n] == "P" else rd_G(n)
        V = []
        T = []
        if n + 1 < 20 and hi[ORDER[n+1]] != ((n + 1) >> 1) & 1:
            T = toggle(Pregs if ORDER[n+1] == "P" else Gregs)
            hi[ORDER[n+1]] ^= 1
        if n == 18:
            A(f"v_cmp_gt_u32 vcc, 4, v{vPoll}")
            A("s_nop 4")
            A("s_cmp_eq_u64 vcc, 0")
            A("s_cbranch_scc1 L_at_flags_ok")
            A("s_mov_b32 s50, 0")
            A.label("L_at_spin")
            A("s_add_u32 s50, s50, 1")
            A("s_cmp_gt_u32 s50, 0x40000")
            A("s_cbranch_scc1 L_at_flags_ok")
            A("s_sleep 8")
            A(f"buffer_load_dword v{vPoll}, v{vT2}, s[60:63], 0 offen sc1")
            A("s_waitcnt vmcnt(0)")
            A(f"v_cmp_gt_u32 vcc, 4, v{vPoll}")
            A("s_nop 4")
            A("s_cmp_eq_u64 vcc, 0")
            A("s_cbranch_scc0 L_at_spin")
            A.label("L_at_flags_ok")
        if n == 0:
            A("s_cmp_lg_u32 s70, 0")
            A("s_cbranch_scc1 L_at_nogf")
            A(f"v_lshlrev_b32 v{vT0}, 4, v{vH}")
            A(f"v_lshl_add_u32 v{vT0}, v{vW_}, 7, v{vT0}")
            A("s_mov_b32 s50, s34")
            for q in range(4):
                A("s_lshl_b32 s51, s50, 9")
                for s in range(4):
                    A(f"buffer_load_dwordx4 {ar(GF+16*q+4*s,4)}, v{vT0}, s[56:59], s51 offen offset:{32*s}")
                A("s_add_u32 s50, s50, 1")
                A("s_and_b32 s50, s50, 3")
            A.label("L_at_nogf")
        if n == 0 or ORDER[n-1] == "P":
            for x in R: A(x)
            flat(D[:4])
            if n > 0: mf_P(n - 1)
            flat(D[4:])
            for x in T: A(x)
            if n - 1 == PLAST:
                A(f"s_mul_i32 s50, s20, 0x1200")
                A(f"s_add_u32 s50, s50, {LDS_SCR}")
                A(f"v_add_u32 v{vRed}, s50, v{vLane16}")
                A(f"v_lshlrev_b32 v{vRed+1}, 2, v{vL}")
                A(f"v_add_u32 v{vRed+2}, s50, v{vRed+1}")
                A("s_nop 7")
                for rg in range(4):
                    A(f"ds_write_b128 v{vRed}, {vr(PACC+4*rg,4)} offset:{1024*rg}")
                A(f"ds_write_b32 v{vRed+2}, v{GACC} offset:4096")
                A(f"v_lshl_add_u32 v{vRed}, v{vW_}, 10, v{vLane16}")
                A(f"v_add_u32 v{vRed}, {LDS_SCR}, v{vRed}")
                A(f"v_add_u32 v{vRed+2}, {LDS_SCR+4096}, v{vRed+1}")
            continue
        if n == 7:
            assert PLAST == 5
            for ww in range(4):
                A(f"ds_read_b128 {vr(Q0+4*ww,4)}, v{vRed} offset:{0x1200*ww}")
            for ww in range(4):
                A(f"ds_read_b32 v{Q0+16+ww}, v{vRed+2} offset:{0x1200*ww}")
            V += ["s_nop 0", "s_nop 0", "s_waitcnt lgkmcnt(6)"]
        post = []
        if n == 7:
            for e in range(0, 4, 2):
                V.append([f"v_add_f32 v{Q0+e}, v{Q0+e}, v{Q0+4+e}", f"v_add_f32 v{Q0+8+e}, v{Q0+8+e}, v{Q0+12+e}",
                          f"v_add_f32 v{Q0+e+1}, v{Q0+e+1}, v{Q0+5+e}", f"v_add_f32 v{Q0+9+e}, v{Q0+9+e}, v{Q0+13+e}"])
            V.append([f"v_add_f32 v{Q0+e}, v{Q0+e}, v{Q0+8+e}" for e in range(4)])
            V.append(["s_mov_b32 s50, 1.0", "s_cmp_eq_u32 s31, 1", f"s_cselect_b32 s50, s50, {KSCALE:#x}", "s_cselect_b64 vcc, -1, 0"])
            V.append([f"v_mul_f32 v{Q0+e}, s50, v{Q0+e}" for e in range(4)])
            V.append([f"v_cvt_pk_bf16_f32 v{Q0+4}, v{Q0}, v{Q0+1}", f"v_cvt_pk_bf16_f32 v{Q0+5}, v{Q0+2}, v{Q0+3}"])
            V.append([f"v_bfe_u32 v{vT0}, v{vL31}, 2, 1", f"v_bfe_u32 v{vT1}, v{vL31}, 3, 1", f"v_and_b32 v{vRed}, 0x13, v{vL31}"])
            V.append([f"v_lshl_add_u32 v{vRed}, v{vT0}, 3, v{vRed}", f"v_lshl_add_u32 v{vRed}, v{vT1}, 2, v{vRed}",
                      f"v_cndmask_b32 v{vRed}, v{vRed}, v{vL31}, vcc"])
            V.append([f"v_lshl_add_u32 v{vRed}, v{vH}, 5, v{vRed}", f"v_lshlrev_b32 v{vRed}, 4, v{vRed}"])
            V.append(["s_lshl_b32 s50, s33, 12", "s_lshl_b32 s51, s31, 11", "s_add_u32 s50, s50, s51", "s_lshl_b32 s51, s22, 10"])
            V.append(["s_add_u32 s50, s50, s51", "s_lshl_b32 s51, s21, 3", "s_add_u32 s50, s50, s51"])
            V.append([f"v_add_f32 v{Q0+16}, v{Q0+16}, v{Q0+17}", f"v_add_f32 v{Q0+18}, v{Q0+18}, v{Q0+19}", f"v_add_f32 v{Q0+16}, v{Q0+16}, v{Q0+18}"])
            V.append([f"v_mul_f32 v{Q0+16}, {LOG2E ^ 0x80000000:#x}, v{Q0+16}", f"v_exp_f32 v{Q0+16}, v{Q0+16}", "s_nop 0",
                      f"v_add_f32 v{Q0+16}, 1.0, v{Q0+16}", f"v_rcp_f32 v{Q0+16}, v{Q0+16}", f"v_lshlrev_b32 v{vRed+1}, 2, v{vL31}"])
            post.append(f"buffer_store_dwordx2 {vr(Q0+4,2)}, v{vRed}, s[44:47], s50 offen sc1")
            post.append("s_cmp_lg_u32 s20, 0")
            post.append("s_cbranch_scc1 L_at_nogst")
            post.append("s_lshl_b32 s69, s29, 7")
            post.append("s_lshl_b32 s51, s28, 5")
            post.append("s_add_u32 s69, s69, s51")
            post.append("s_lshl_b32 s51, s30, 2")
            post.append("s_add_u32 s69, s69, s51")
            post.append(f"s_add_u32 s69, s69, {WS_FL}")
            post.append(f"v_mov_b32 v{vT0}, 0")
            post.append("s_mov_b64 exec, 1")
            post.append(f"buffer_atomic_swap v{vT0}, v{vT0}, s[16:19], s69 offen sc1")
            post.append("s_mov_b64 exec, -1")
            post.append("s_or_b32 s51, s70, s20")
            post.append("s_cmp_lg_u32 s51, 0")
            post.append("s_cbranch_scc1 L_at_nogst")
            post.append("s_lshl_b32 s51, s33, 7")
            post.append(f"s_add_u32 s51, s51, {WS_G}")
            post.append(f"buffer_store_dword v{Q0+16}, v{vRed+1}, s[16:19], s51 offen sc1")
            post.append("L_at_nogst:")
        if n == 10:
            post.append("s_cmp_lg_u32 s20, 0")
            post.append("s_cbranch_scc1 L_at_nosig")
            post.append("s_and_b32 s50, s2, 63")
            post.append("s_lshl_b32 s50, s50, 2")
            post.append(f"v_mov_b32 v{vT0}, 1")
            post.append(f"v_mov_b32 v{vT1}, 0")
            post.append("s_mov_b64 exec, 1")
            post.append(f"buffer_atomic_add v{vT0}, v{vT1}, s[60:63], s50 offen sc1")
            post.append("s_mov_b64 exec, -1")
            post.append("L_at_nosig:")
        if n == 16:
            V.append(f"v_lshlrev_b32 v{vT2}, 2, v{vL}")
            post.append(f"buffer_load_dword v{vPoll}, v{vT2}, s[60:63], 0 offen sc1")
        if n == 18:
            V += [f"v_lshrrev_b32 v{vT0}, 3, v{vL}", f"v_lshl_add_u32 v{vT0}, v{vW_}, 5, v{vT0}", f"v_lshlrev_b32 v{vT0}, 11, v{vT0}",
                  f"v_bfe_u32 v{vT1}, v{vL}, 4, 1", f"v_lshlrev_b32 v{vT1}, 2, v{vT1}", f"v_and_b32 v5, 7, v{vL}",
                  f"v_xor_b32 v5, v5, v{vT1}", f"v_lshl_add_u32 v{vWd}, v5, 4, v{vT0}",
                  ["s_lshl_b32 s31, s28, 3", "s_add_u32 s31, s31, s30", "s_lshl_b32 s31, s31, 7"],
                  f"v_add_u32 v{vWd}, s31, v{vWd}"]
            V += [f"v_add_u32 v{vWd+t}, {t*(16384-1024)}, v{vWd}" for t in range(1, 4)]
        if n == 19:
            V += [f"v_mov_b32 v{vXd+t}, v{vLin}" for t in range(4)]
        M = mf_G(n - 1)
        weave(A, M, [(R, lambda k: 2), (D, lambda k: 1 if k % 2 == 1 else 0), (V, lambda k: 1), (T, lambda k: 2 if k >= 12 else 0)])
        for x in post: A(x)
    A("s_waitcnt vmcnt(8) lgkmcnt(0)")
    A("s_barrier")
    stamp(A, 3)
    tstamp(A)
    def cvtQ(u):
        return [f"v_cvt_pk_bf16_f32 v{Q0+8*u+j}, v{ACC+16*u+2*j}, v{ACC+16*u+2*j+1}" for j in range(8)]
    def QK(u, c):
        return [f"v_mfma_f32_32x32x16_bf16 {vr(S0+16*u,16)}, {ar(KB0,4)}, {vr(Q0+8*u,4)}, {c}",
                f"v_mfma_f32_32x32x16_bf16 {vr(S0+16*u,16)}, {ar(KB0+4,4)}, {vr(Q0+8*u+4,4)}, {vr(S0+16*u,16)}"]
    def max16(b):
        L = [f"v_max3_f32 v{b}, v{b}, v{b+1}, v{b+2}"]
        for j in range(3, 15, 2):
            L.append(f"v_max3_f32 v{b}, v{b}, v{b+j}, v{b+j+1}")
        L.append(f"v_max_f32 v{b}, v{b}, v{b+15}")
        return L
    def fill_C(u, b):
        L = [f"v_mov_b32 v{b+1}, v{b}", "s_nop 1", f"v_permlane32_swap_b32 v{b}, v{b+1}", "s_nop 1",
             f"v_max_f32 v{b}, v{b}, v{b+1}", f"v_sub_f32 v{C0+16*u}, 0, v{b}", f"v_sub_f32 v{C0+16*u+1}, 0, v{b}"]
        for j in range(2, 16, 2):
            L.append(f"v_mov_b64 {vr(C0+16*u+j,2)}, {vr(C0+16*u,2)}")
        return L
    G = mf_G(19, by_u=True)
    ldc = lambda t: f"buffer_load_dwordx4 v{vXd+t}, s[44:47], s32 offen offset:{1024*t} sc1 lds"
    ldw = lambda t: f"buffer_load_dwordx4 v{vWd+t}, s[12:15], s34 offen offset:{1024*t} lds"
    misc = [f"ds_read_b128 {ar(KB0,4)}, v{vKV}", f"ds_read_b128 {ar(KB0+4,4)}, v{vKV} offset:1024",
            f"ds_read_b128 {ar(VB0,4)}, v{vKV} offset:2048", f"ds_read_b128 {ar(VB0+4,4)}, v{vKV} offset:3072",
            f"v_lshlrev_b32 v{vT0}, 2, v{vL31}", "s_lshl_b32 s50, s29, 9", "s_lshl_b32 s51, s22, 8", "s_add_u32 s50, s50, s51",
            f"s_add_u32 s50, s50, {WS_G}", f"buffer_load_dword v{vG}, v{vT0}, s[16:19], s50 offen sc1",
            f"buffer_load_dword v{vG+1}, v{vT0}, s[16:19], s50 offen offset:128 sc1",
            "s_add_u32 m0, s36, 0x10000", "s_mov_b32 s32, 0x10000", ldc(0), ldc(1), ldc(2), ldc(3),
            "s_mov_b32 s37, 0x18000", "s_mov_b32 s39, 0", "s_mov_b32 s71, 0", "s_mov_b32 s33, 0x4000", "s_mov_b32 s38, -1"]
    def emit(L):
        for x in L: A(x)
    def take(L, n):
        r = L[:n]; del L[:n]; return r
    for k in range(0, 7):
        A(G[k]); emit(take(misc, 4 if k < 5 else 1))
    emit(misc)
    c0 = cvtQ(0)
    A(G[7]); emit(take(c0, 5))
    A(G[8]); emit(c0); A("s_waitcnt lgkmcnt(0)")
    A(G[9])
    q = QK(0, "0"); A(q[0]); A(q[1])
    c1 = cvtQ(1)
    A(G[10]); emit(take(c1, 5))
    A(G[11]); emit(c1)
    A(G[12])
    q = QK(1, "0"); A(q[0]); A(q[1])
    m0_ = max16(S0)
    A(G[13]); emit(take(m0_, 5))
    A(G[14]); emit(m0_)
    f0 = fill_C(0, S0)
    A(G[15]); emit(take(f0, 4))
    emit(cvtQ(2))
    emit(take(f0, 3))
    q = QK(2, "0"); A(q[0]); emit(take(f0, 4)); A(q[1]); emit(f0)
    emit(cvtQ(3))
    m1_ = max16(S0+16)
    emit(take(m1_, 2))
    q = QK(3, "0"); A(q[0]); emit(take(m1_, 4)); A(q[1]); emit(m1_)
    f1 = fill_C(1, S0+16)
    emit(take(f1, 3))
    q = QK(0, vr(C0, 16) if 'czero' not in VAR else "0"); A(q[0]); emit(take(f1, 5)); A(q[1]); emit(f1)
    emit(max16(S0+32)); emit(fill_C(2, S0+32))
    emit(max16(S0+48)); emit(fill_C(3, S0+48))
    for i in range(0, 16, 2):
        A(f"v_mov_b64 {vr(S0+48+i,2)}, 0")
    A("s_waitcnt vmcnt(6)")
    A("s_barrier")
    def PV(u0, p0):
        return [
            f"v_smfmac_f32_32x32x32_bf16 {vr(O0+16*u0,16)}, {ar(VB0+8*p0,4)}, {vr(S0+16*u0,8)}, v{vIDX}",
            f"v_smfmac_f32_32x32x32_bf16 {vr(O0+16*u0,16)}, {ar(VB0+8*p0+4,4)}, {vr(S0+16*u0+8,8)}, v{vIDX}",
            f"v_smfmac_f32_16x16x64_bf16 {ar(L0+4*u0,4)}, {ar(SEL,4)}, {vr(S0+16*u0,8)}, v{vIDX}",
            f"v_smfmac_f32_16x16x64_bf16 {ar(L0+4*u0,4)}, {ar(SEL,4)}, {vr(S0+16*u0+8,8)}, v{vIDX}",
        ]
    stamp(A, 4)
    body = []
    for i in range(8):
        for u in range(4):
            u1 = (u + 1) % 4; i1 = i + (1 if u == 3 else 0)
            u0 = (u + 3) % 4; i0 = i - (1 if u == 0 else 0)
            P = PV(u0, i0 % 2)
            M = [
                f"v_mfma_f32_32x32x16_bf16 {vr(S0+16*u1,16)}, {ar(KB0+8*(i1%2),4)}, {vr(Q0+8*u1,4)}, {vr(C0+16*u1,16) if 'czero' not in VAR else 0}",
                P[0],
                f"v_mfma_f32_32x32x16_bf16 {vr(S0+16*u1,16)}, {ar(KB0+8*(i1%2)+4,4)}, {vr(Q0+8*u1+4,4)}, {vr(S0+16*u1,16)}",
                P[1], P[2], P[3],
            ]
            X = [[] for _ in range(6)]
            tt = (i + 1) % 8
            pn = (i + 1) % 2
            if u == 0:
                X[3].append("s_waitcnt lgkmcnt(0)")
                X[4].append(f"ds_read_b128 {ar(KB0+8*pn,4)}, v{vKV} offset:{4096*tt}")
                X[5].append(f"ds_read_b128 {ar(KB0+8*pn+4,4)}, v{vKV} offset:{4096*tt+1024}")
            if u == 2:
                X[3].append("s_waitcnt lgkmcnt(0)")
                X[4].append(f"ds_read_b128 {ar(VB0+8*pn,4)}, v{vKV} offset:{4096*tt+2048}")
                X[5].append(f"ds_read_b128 {ar(VB0+8*pn+4,4)}, v{vKV} offset:{4096*tt+3072}")
            if i in (2, 4) and u == 1 and "nopf" not in VAR:
                X[2].append(f"s_mov_b32 m0, {LDS_DUMMY}")
                X[4].append(f"buffer_load_dwordx4 v{vLane16}, s[52:55], s68 offen lds")
                X[5].append("s_add_u32 s68, s68, 0x800")
            if i == 7 and u == 0:
                X[0].append("s_add_u32 s71, s71, 0x8000")
                X[1].append("s_and_b32 s71, s71, 0x1ffff")
                X[1].append("s_add_u32 s39, s39, 1")
                X[2].append("s_bitcmp1_b32 0x54, s39")
                X[3].append("@TOP")
            if i == 7 and u == 1:
                X[1].append("s_add_u32 m0, s37, s36")
                X[1].append("s_add_u32 s37, s37, 0x8000")
                X[3].append("s_and_b32 s37, s37, 0x1ffff")
                X[3].append("s_cmp_ge_u32 s39, 7")
                X[4].append(ldc(0)); X[5].append(ldc(1))
            if i == 7 and u == 2:
                X[0].append("s_cselect_b32 s37, 0x20000, s37")
            if i == 7 and u == 3:
                X[3].append("s_cmp_eq_u32 s39, 8")
                X[4].append(ldc(2)); X[5].append(ldc(3)); X[5].append("@EXIT")
            if i == 0 and u == 1:
                X[4].append(ldc(0)); X[5].append(ldc(1))
            if i == 0 and u == 3:
                X[4].append(ldc(2)); X[5].append(ldc(3))
            if i == 1 and u == 1:
                X[1].append("s_add_u32 s32, s32, s33")
                X[1].append("s_and_b32 s32, s32, s38")
            E = [f"v_exp_f32 v{S0+16*u+j}, v{S0+16*u+j}" for j in range(16)]
            ne = [3, 3, 3, 3, 2, 2]
            for k in range(6):
                body.append(M[k])
                body += X[k]
                for _ in range(ne[k]): body.append(E.pop(0))
    top = body.index("@TOP")
    first, second = body[:top], body[top+1:]
    A("s_branch L_at_pre_entry")
    A.raw(".p2align 6")
    A.label("L_at_top_bar")
    A("s_cmp_lg_u32 s39, 6")
    A("s_cbranch_scc1 L_at_top_bar2")
    for t in range(4):
        A(f"v_mov_b32 v{vXd+t}, v{vWd+t}")
    A("s_mov_b32 s44, s72")
    A("s_mov_b32 s45, s73")
    A("s_mov_b32 s46, 0x200000")
    A("s_lshl_b32 s32, s30, 18")
    A("s_mov_b32 s33, 0x40000")
    A("s_mov_b32 s38, 0x1fffff")
    A.label("L_at_top_bar2")
    A("s_waitcnt vmcnt(2)")
    A("s_barrier")
    A.label("L_at_top")
    tstamp(A)
    A(f"v_add_u32 v{vKV}, s71, v{vLane16}")
    ex = second.index("@EXIT")
    tail = second[ex+1:]
    for x in second[:ex]: A(x)
    A("s_cbranch_scc1 L_at_exit")
    for x in tail: A(x)
    A.label("L_at_pre_entry")
    A(first[0]); A("s_add_u32 m0, m0, 0x4000")
    for x in first[1:5]: A(x)
    A("s_add_u32 s32, s32, s33")
    A("s_and_b32 s32, s32, s38")
    rest = first[5:]
    for x in rest: A(x)
    A("s_cbranch_scc1 L_at_top_bar")
    A("s_branch L_at_top")
    A.label("L_at_exit")
    for x in tail: A(x)
    stamp(A, 5)
    A("s_waitcnt vmcnt(6) lgkmcnt(0)")
    A("s_barrier")
    tstamp(A, "2")
    P3 = PV(3, 1)
    def scale_store(u):
        a, t = u >> 1, u & 1
        L = []
        for j in range(0, 16, 2):
            L.append(f"v_pk_mul_f32 {vr(O0+16*u+j,2)}, {vr(O0+16*u+j,2)}, {vr(S0+2*u,2)} op_sel_hi:[1,0]")
        for j in range(8):
            L.append(f"v_cvt_pk_bf16_f32 v{C0+8*u+j}, v{O0+16*u+2*j}, v{O0+16*u+2*j+1}")
        for f in range(2):
            L.append(f"buffer_store_dwordx4 {vr(C0+8*u+4*f,4)}, v{vLane16}, s[16:19], s{48+t} offen offset:{2048*a+1024*f} sc1")
        return L
    addr = ["s_lshl_b32 s48, s29, 2", "s_lshl_b32 s49, s22, 1", "s_add_u32 s48, s48, s49", "s_lshl_b32 s48, s48, 17",
            "s_lshl_b32 s49, s28, 5", "s_lshl_b32 s50, s30, 2", "s_add_u32 s49, s49, s50", "s_lshl_b32 s50, s21, 1",
            "s_add_u32 s49, s49, s50", "s_lshl_b32 s49, s49, 11", "s_add_u32 s48, s48, s49", f"s_add_u32 s48, s48, {WS_OF}",
            "s_add_u32 s49, s48, 0x20000",
            "s_cmp_eq_u32 s28, 0", "s_cselect_b32 s50, 1.0, -1.0", "s_cselect_b32 s51, 0, 1.0"]
    A(P3[2]); emit(take(addr, 4)); A(P3[3]); emit(take(addr, 4)); A(P3[0]); emit(take(addr, 8)); A(P3[1])
    A(f"v_mov_b32 v{vT0}, s51")
    A(f"v_fma_f32 v{vG}, v{vG}, s50, v{vT0}")
    A(f"v_fma_f32 v{vG+1}, v{vG+1}, s50, v{vT0}")
    A("s_mov_b64 s[66:67], -1")
    A.label("L_at_store")
    for u in range(4):
        A(f"v_accvgpr_read_b32 v{S0+2*u}, a{L0+4*u}")
    if 'sel2' in VAR:
        for u in range(4):
            A(f"v_mov_b32 v{S0+2*u+1}, v{S0+2*u}")
        A("s_nop 1")
        for u in range(4):
            A(f"v_permlane32_swap_b32 v{S0+2*u}, v{S0+2*u+1}")
        A("s_nop 1")
    A(f"v_add_f32 v{vT1}, v{S0}, v{S0+2}")
    A(f"v_add_f32 v{vT0}, v{S0+4}, v{S0+6}")
    A(f"v_add_f32 v{vT0}, v{vT0}, v{vT1}")
    A(f"v_cmp_ngt_f32 vcc, {0x4e800000 if 'forceslow' not in VAR else 0x3f000000:#x}, v{vT0}")
    for u in range(4):
        A(f"v_rcp_f32 v{S0+2*u}, v{S0+2*u}")
    A("s_and_b64 vcc, vcc, s[66:67]")
    if "lx" not in VAR: A("s_cbranch_scc1 L_at_slow")
    for u in range(4):
        A(f"v_mul_f32 v{S0+2*u}, v{S0+2*u}, v{vG+(u&1)}")
    for u in range(4):
        emit(scale_store(u))
    gen_out(A)
    A.label("L_at_slow")
    A("s_waitcnt vmcnt(0) lgkmcnt(0)")
    A("s_lshl_b32 s39, s28, 18")
    A("s_add_u32 s44, s26, s39")
    A("s_addc_u32 s45, s27, 0")
    A("s_mov_b32 s46, 0x40000")
    for u in range(4):
        A(f"v_mov_b32 v{O0+u}, 0xff7fffff")
    A("s_mov_b32 s39, 0")
    A.label("L_at_slow1")
    A(f"buffer_load_dwordx4 {ar(KB0,4)}, v{vLane16}, s[44:47], s39 offen sc1")
    A(f"buffer_load_dwordx4 {ar(KB0+4,4)}, v{vLane16}, s[44:47], s39 offen offset:1024 sc1")
    A("s_waitcnt vmcnt(0)")
    for u in range(4):
        for x in QK(u, "0"): A(x)
    A("s_nop 15")
    for u in range(4):
        for j in range(0, 16, 2):
            A(f"v_max3_f32 v{O0+u}, v{O0+u}, v{S0+16*u+j}, v{S0+16*u+j+1}")
    A("s_add_u32 s39, s39, 0x1000")
    A("s_cmp_lt_u32 s39, 0x40000")
    A("s_cbranch_scc1 L_at_slow1")
    for u in range(4):
        A(f"v_mov_b32 v{S0+16*u}, v{O0+u}")
        emit(fill_C(u, S0+16*u))
    for i in range(16):
        A(f"v_accvgpr_write_b32 a{L0+i}, 0")
    for i in range(64):
        A(f"v_mov_b32 v{O0+i}, 0")
    A("s_mov_b32 s39, 0")
    A.label("L_at_slow2")
    A(f"buffer_load_dwordx4 {ar(KB0,4)}, v{vLane16}, s[44:47], s39 offen sc1")
    A(f"buffer_load_dwordx4 {ar(KB0+4,4)}, v{vLane16}, s[44:47], s39 offen offset:1024 sc1")
    A(f"buffer_load_dwordx4 {ar(VB0,4)}, v{vLane16}, s[44:47], s39 offen offset:2048 sc1")
    A(f"buffer_load_dwordx4 {ar(VB0+4,4)}, v{vLane16}, s[44:47], s39 offen offset:3072 sc1")
    A("s_waitcnt vmcnt(0)")
    for u in range(4):
        for x in QK(u, vr(C0+16*u, 16)): A(x)
    A("s_nop 15")
    for j in range(64):
        A(f"v_exp_f32 v{S0+j}, v{S0+j}")
    A("s_nop 1")
    for u in range(4):
        for x in PV(u, 0): A(x)
    A("s_nop 15")
    A("s_add_u32 s39, s39, 0x1000")
    A("s_cmp_lt_u32 s39, 0x40000")
    A("s_cbranch_scc1 L_at_slow2")
    A("s_nop 15")
    A("s_mov_b64 s[66:67], 0")
    A("s_branch L_at_store")
    A.label("L_at_end")
    A("s_endpgm")
    return kernel_desc(name, 512, 256, 102)

def gen_out(A):
    LD = 8
    vL, vH, vL31, vW_ = 1, 2, 3, 4
    vOd, vWd = 28, 12
    vWr, vWr0 = 8, 10
    vT0, vT1, vPl = 16, 17, 18
    ACC = 32
    WF = 128
    OFr = 192
    def wreg(st, s, c, n=4, o=0):
        i = 8*s + 4*c + o
        if st < 2: return vr(WF + 32*st + i, n)
        if st < 10: return ar(32*(st - 2) + i, n)
        return vr(64 + 32*(st - 10) + i, n)
    def stash(st):
        R = []
        for s in range(4):
            for c in range(2):
                wo = (st % 8)*0x2000 + 2048*s
                R += [f"ds_read_b64_tr_b16 {wreg(st,s,c,2,0)}, v{vWr+c} offset:{wo}",
                      f"ds_read_b64_tr_b16 {wreg(st,s,c,2,2)}, v{vWr+c} offset:{wo+1024}"]
        return R
    A("s_load_dwordx2 s[24:25], s[0:1], 88")
    A("s_lshl_b32 s45, s30, 1")
    A("s_lshl_b32 s33, s28, 3")
    A("s_add_u32 s30, s30, s33")
    A("s_lshl_b32 s55, s45, 17")
    A("s_add_u32 s34, s55, 0x180000")
    A("s_and_b32 s34, s34, 0x1fffff")
    A("s_mov_b32 s12, s72")
    A("s_mov_b32 s13, s73")
    A("s_add_u32 s35, s36, 0x10000")
    def dma_W():
        ldw = lambda t: f"buffer_load_dwordx4 v{vWd+t}, s[12:15], s34 offen offset:{1024*t} lds"
        return [["s_mov_b32 m0, s35", "s_add_u32 s35, s35, 0x4000", ldw(0)], [ldw(1)], [ldw(2)],
                [ldw(3), "s_add_u32 s34, s34, 0x40000", "s_and_b32 s34, s34, 0x1fffff"]]
    def fl(I):
        for x in I:
            for y in x: A(y)
    def mix(R, D, k):
        while R or D:
            for _ in range(k):
                if R: A(R.pop(0))
            if D:
                for y in D.pop(0): A(y)
    A(f"v_bfe_u32 v{vT0}, v{vL}, 2, 2")
    A(f"v_lshl_add_u32 v{vT1}, v{vH}, 2, v{vT0}")
    A(f"v_lshlrev_b32 v{vT1}, 7, v{vT1}")
    A(f"v_bfe_u32 v{vT0}, v{vL}, 3, 1")
    A(f"v_lshl_add_u32 v{vT1}, v{vT0}, 6, v{vT1}")
    A(f"v_bfe_u32 v{vT0}, v{vL}, 4, 1")
    A(f"v_lshl_add_u32 v{vT1}, v{vT0}, 5, v{vT1}")
    A(f"v_and_b32 v{vT0}, 1, v{vL}")
    A(f"v_lshl_add_u32 v{vT1}, v{vT0}, 4, v{vT1}")
    A(f"v_bfe_u32 v{vT0}, v{vL}, 1, 1")
    A(f"v_lshl_add_u32 v{vWr0}, v{vT0}, 3, v{vT1}")
    A(f"v_xor_b32 v{vWr0+1}, 64, v{vWr0}")
    A(f"v_mov_b32 v{vWr}, v{vWr0}")
    A(f"v_mov_b32 v{vWr+1}, v{vWr0+1}")
    A("s_waitcnt lgkmcnt(0)")
    R = []
    for st in range(8): R += stash(st)
    mix(R, dma_W() + dma_W(), 16)
    srd(A, 56, 24, 25, 2048*1024*2)
    A("s_lshl_b32 s46, s29, 2")
    A("s_add_u32 s46, s46, s20")
    A("s_lshl_b32 s46, s46, 17")
    A(f"s_add_u32 s46, s46, {WS_OF}")
    A("s_lshl_b32 s47, s28, 16")
    A("s_add_u32 s48, s46, s47")
    A("s_add_u32 s8, s26, s48")
    A("s_addc_u32 s9, s27, 0")
    A("s_mov_b32 s10, 0x10000")
    A("s_mov_b32 s11, 0x00020000")
    A("s_xor_b32 s47, s47, 0x10000")
    A("s_add_u32 s48, s46, s47")
    A("s_add_u32 s40, s26, s48")
    A("s_addc_u32 s41, s27, 0")
    A("s_lshl_b32 s32, s45, 12")
    A(f"v_add_u32 v{vT0}, s30, v{vL}")
    A(f"v_and_b32 v{vT0}, 7, v{vT0}")
    A(f"v_xor_b32 v{vT1}, s33, v{vL}")
    A(f"v_and_b32 v{vT1}, 8, v{vT1}")
    A(f"v_or_b32 v{vT0}, v{vT0}, v{vT1}")
    A(f"v_lshlrev_b32 v{vT0}, 2, v{vT0}")
    A("s_lshl_b32 s49, s29, 7")
    A(f"s_add_u32 s49, s49, {WS_FL}")
    A("s_cmp_eq_u32 s20, 0")
    A("s_cselect_b32 s53, 0, -1")
    for i in range(0, 32, 2):
        A(f"v_mov_b64 {vr(ACC+i,2)}, 0")
    A("s_add_u32 s34, s55, 0x140000")
    A("s_and_b32 s34, s34, 0x1fffff")
    A("s_add_u32 s35, s36, 0x24000")
    A(f"v_add_u32 v{vWr}, 0x20000, v{vWr0}")
    A(f"v_add_u32 v{vWr+1}, 0x20000, v{vWr0+1}")
    A("s_waitcnt vmcnt(0) lgkmcnt(0)")
    A("s_barrier")
    tstamp(A, "2")
    stamp(A, 6)
    A("s_cmp_lg_u32 s20, 0")
    A("s_cbranch_scc1 L_o_nosig")
    A(f"v_mov_b32 v{vT1}, 1")
    A(f"v_mov_b32 v{vPl}, 0")
    A("s_mov_b64 exec, 1")
    A(f"buffer_atomic_swap v{vT1}, v{vPl}, s[16:19], s69 offen sc1")
    A("s_mov_b64 exec, -1")
    A.label("L_o_nosig")
    def ld_O(j):
        I = [f"buffer_load_dwordx4 {vr(OFr+4*(j%16),4)}, v{vOd}, s[8:11], s32 offen offset:{1024*(j%4)} sc1"]
        if j % 4 == 3: I += ["s_add_u32 s32, s32, 0x1000", "s_and_b32 s32, s32, 0xffff"]
        return I
    fl(dma_W())
    for j in range(8):
        for y in ld_O(j): A(y)
    A("s_mov_b32 s12, s74")
    A("s_mov_b32 s13, s75")
    A("s_mov_b32 s34, s55")
    A("s_add_u32 s35, s36, 0x18000")
    mix(stash(8) + stash(9), dma_W() + dma_W(), 4)
    A("s_mov_b32 s35, s36")
    A("s_waitcnt vmcnt(16)")
    A("s_barrier")
    mix(stash(10) + stash(11), dma_W() + dma_W(), 4)
    def mf(st, s, c, j):
        w = wreg(st, s, c) if st < 12 else vr(WF + 32*(st % 2) + 8*s + 4*c, 4)
        return f"v_mfma_f32_32x32x16_bf16 {vr(ACC+16*c,16)}, {w}, {vr(OFr+4*(j%16),4)}, {vr(ACC+16*c,16)}"
    A("s_waitcnt vmcnt(16)")
    D = dma_W() + dma_W()
    for j in range(8):
        A(mf(j // 4, j % 4, 0, j)); A(mf(j // 4, j % 4, 1, j))
        for y in D.pop(0): A(y)
    A("s_add_u32 s35, s36, 0x20000")
    A("s_waitcnt lgkmcnt(0)")
    A("s_barrier")
    fl(dma_W()); fl(dma_W())
    A("s_mov_b32 s54, 0xff")
    A("s_and_b32 s50, s53, s54")
    A("s_cmp_lg_u32 s50, s54")
    A("s_cbranch_scc1 L_o_poll0")
    A.label("L_o_ready0")
    A("s_barrier")
    stamp(A, 7)
    tstamp(A, "2")
    for j in range(8, 16):
        for y in ld_O(j): A(y)
    def rd_W(st):
        R = []
        for s in range(4):
            for c in range(2):
                b = WF + 32*(st % 2) + 8*s + 4*c
                wo = st*0x2000 + 2048*s
                R += [f"ds_read_b64_tr_b16 {vr(b,2)}, v{vWr+c} offset:{wo}",
                      f"ds_read_b64_tr_b16 {vr(b+2,2)}, v{vWr+c} offset:{wo+1024}"]
        return R
    def stage(st, stw, rd, extra=None):
        for s in range(4):
            j = 4*st + s
            A(f"s_waitcnt vmcnt(7) lgkmcnt(12)" if stw >= 12 else "s_waitcnt vmcnt(7)")
            for c in range(2):
                A(mf(stw, s, c, j))
                for _ in range(2):
                    if rd: A(rd.pop(0))
                if c == 0:
                    for y in ld_O(j + LD): A(y)
                elif extra:
                    for y in extra.pop(0): A(y)
    A(f"v_add_u32 v{vWr}, 0x10000, v{vWr0}")
    A(f"v_add_u32 v{vWr+1}, 0x10000, v{vWr0+1}")
    A("s_mov_b32 s37, 0x10000")
    A("s_mov_b32 s39, 3")
    for st in range(2, 12):
        stage(st % 4, st, rd_W(0) if st == 11 else None)
    A("s_mov_b32 s54, 0xffff")
    A("s_and_b32 s50, s53, s54")
    A("s_cmp_lg_u32 s50, s54")
    A("s_cbranch_scc1 L_o_poll1")
    A.label("L_o_ready1")
    A("s_barrier")
    A.raw(".p2align 6")
    A.label("L_o_loop")
    tstamp(A, "2")
    stage(0, 12, rd_W(1), [["s_add_u32 s37, s37, 0x8000", "s_and_b32 s37, s37, 0x1ffff"], ["s_cmp_eq_u32 s39, 6", "s_cselect_b32 s37, 0x20000, s37"]])
    stage(1, 13, rd_W(2))
    A("s_mov_b32 s8, s40")
    A("s_mov_b32 s9, s41")
    A("s_cmp_eq_u32 s39, 7")
    A("s_cbranch_scc1 L_o_tail")
    stage(2, 14, rd_W(3), [["s_add_u32 s39, s39, 1"]])
    A(f"v_add_u32 v{vWr}, s37, v{vWr0}")
    A(f"v_add_u32 v{vWr+1}, s37, v{vWr0+1}")
    stage(3, 15, rd_W(0))
    A("s_branch L_o_loop")
    A.label("L_o_tail")
    R3 = rd_W(3)
    for j in range(8, 16):
        st, sq = j // 4, j % 4
        A(f"s_waitcnt vmcnt({15 - j}) lgkmcnt({12 if j < 12 else 4*(15-j)})")
        for c in range(2):
            A(mf(12 + st, sq, c, j))
            for _ in range(2):
                if R3: A(R3.pop(0))
    A(f"v_lshlrev_b32 v{vT0}, 11, v{vL31}")
    A(f"v_lshl_add_u32 v{vT0}, v{vH}, 4, v{vT0}")
    A("s_lshl_b32 s40, s29, 18")
    A("s_lshl_b32 s41, s20, 16")
    A("s_add_u32 s40, s40, s41")
    A("s_add_u32 s40, s40, s31")
    A("s_nop 7")
    for c in range(2):
        for j in range(8):
            A(f"v_cvt_pk_bf16_f32 v{64+8*c+j}, v{ACC+16*c+2*j}, v{ACC+16*c+2*j+1}")
        for f in range(2):
            A(f"buffer_store_dwordx4 {vr(64+8*c+4*f,4)}, v{vT0}, s[56:59], s40 offen offset:{64*c+32*f} {os.environ.get('OST','')}")
    if TS == "2":
        tstamp(A, "2")
        A("s_waitcnt vmcnt(0)")
        tstamp(A, "2")
    if STAMP:
        A("s_waitcnt vmcnt(0)")
        _stamp(A, 1)
        stamp_flush(A, 0, 8, 26, 27, 20)
    A("s_endpgm")
    for k in (1, 0):
        tgt = f"L_o_ready{k}"
        A.label(f"L_o_poll{k}")
        A("s_mov_b32 s48, 0")
        A.label(f"L_o_spin{k}")
        A(f"buffer_load_dword v{vPl}, v{vT0}, s[16:19], s49 offen sc1")
        A("s_waitcnt vmcnt(0)")
        A(f"v_cmp_eq_u32 vcc, 1, v{vPl}")
        A("s_add_u32 s48, s48, 1")
        A("s_cmp_gt_u32 s48, 0x40000")
        A(f"s_cbranch_scc1 {tgt}")
        A("s_nop 2")
        A("s_mov_b32 s53, vcc_lo")
        A("s_and_b32 s50, s53, s54")
        A("s_cmp_eq_u32 s50, s54")
        A(f"s_cbranch_scc1 {tgt}")
        A(f"s_sleep {int(os.environ.get('SLEEP', '2'))}")
        A(f"s_branch L_o_spin{k}")

def main(path):
    ref = open("cdna_kernels/" + NAME + ".s.ref").read().split("\n")
    hdr = [l for l in ref if l.startswith(";") and "@launch" not in l and "Override" not in l and "grid=ceil" not in l]
    B = Asm()
    d1 = gen_attn(B)
    A = Asm()
    for l in hdr: A.raw(l)
    A.raw(f"; @launch grid=(256,1,1) block=(256,1,1) lds={LDS_ATTN}")
    A.raw('.amdgcn_target "amdgcn-amd-amdhsa--gfx950"')
    A.raw(".text")
    A.lines += B.lines
    A.raw("L_code_end:")
    A.raw('.section .rodata,"a"')
    for d in (d1,):
        A.raw(".p2align 6")
        A.raw(d)
    open(path, "w").write(A.text())

if __name__ == "__main__":
    main(sys.argv[1] if len(sys.argv) > 1 else "cdna_kernels/" + NAME + ".s")
```

```python
import sys, math, struct, os
from asmlib import *

NAME = "gated_mix__grouped_kv_mqa__grouped_kv_mqa__prompt"
WS_KV = 0
WS_G = 0x80000
WS_FL = 0x90000
WS_OF = 0x100000
WS_USED = 0x900000
STAMP = os.environ.get("STAMP", "0") == "1"
VAR = os.environ.get("VAR", "")
XNT = "nt" if "xnt" in VAR else ""
WNT = "nt" if "wnt" in VAR else ""
WS_ST = 0xA00000

FINE = os.environ.get("FINE", "0") == "1"
TS = os.environ.get("TS", "0")
def tstamp(A, ph="1"):
    if TS != ph: return
    A("s_waitcnt lgkmcnt(0)")
    A("s_memtime s[96:97]")
    A("s_memrealtime s[98:99]")
    A("s_waitcnt lgkmcnt(0)")
    A("v_mov_b32 v6, s96")
    A("v_mov_b32 v7, s98")
    A("v_mov_b32 v5, 0")
    A("buffer_store_dwordx2 v[6:7], v5, s[92:95], s100 offen")
    A("s_add_u32 s100, s100, 8")
def tstamp_init(A, wsl, wsh, wave_sgpr, kern):
    if TS == "0": return
    A(f"s_mov_b32 s92, s{wsl}")
    A(f"s_mov_b32 s93, s{wsh}")
    A(f"s_mov_b32 s94, {0xC00000}")
    A("s_mov_b32 s95, 0x00020000")
    A("s_lshl_b32 s100, s2, 2")
    A(f"s_add_u32 s100, s100, s{wave_sgpr}")
    A("s_lshl_b32 s100, s100, 9")
    A(f"s_add_u32 s100, s100, {0xA00000 + kern*0x80000}")
def fstamp(A, k):
    if FINE: _stamp(A, k)
def stamp(A, k):
    if FINE and k not in (0,): return
    _stamp(A, k)
def _stamp(A, k):
    if not STAMP: return
    A("s_waitcnt lgkmcnt(0)")
    A(f"s_memtime s[96:97]")
    A(f"s_memrealtime s[98:99]")
    A("s_waitcnt lgkmcnt(0)")
    A(f"s_mov_b32 s{76+k}, s96")
    A(f"s_mov_b32 s{84+k}, s98")
def stamp_flush(A, kern, n, wsl, wsh, wave_sgpr):
    if not STAMP: return
    A(f"s_mov_b32 s92, s{wsl}")
    A(f"s_mov_b32 s93, s{wsh}")
    A(f"s_mov_b32 s94, {WS_ST + 0x40000}")
    A("s_mov_b32 s95, 0x00020000")
    A("s_lshl_b32 s96, s2, 2")
    A(f"s_add_u32 s96, s96, s{wave_sgpr}")
    A("s_lshl_b32 s96, s96, 6")
    A(f"s_add_u32 s96, s96, {WS_ST + kern*0x10000}")
    A("v_mov_b32 v1, 0")
    for k in range(n):
        A(f"v_mov_b32 v2, s{76+k}")
        A(f"buffer_store_dword v2, v1, s[92:95], s96 offen offset:{4*k}")
        A("s_nop 1")
        A(f"v_mov_b32 v2, s{84+k}")
        A(f"buffer_store_dword v2, v1, s[92:95], s96 offen offset:{32+4*k}")
        A("s_nop 1")

def f32bits(x):
    return struct.unpack("<I", struct.pack("<f", x))[0]
KSCALE = f32bits(math.log2(math.e) / math.sqrt(32.0))
LOG2E = f32bits(math.log2(math.e))

def weave(A, M, streams):
    for k, m in enumerate(M):
        A(m)
        for items, q in streams:
            for _ in range(q(k)):
                if items:
                    x = items.pop(0)
                    if isinstance(x, (list, tuple)):
                        for y in x: A(y)
                    else: A(x)
    for items, q in streams:
        while items:
            x = items.pop(0)
            if isinstance(x, (list, tuple)):
                for y in x: A(y)
            else: A(x)

LDS_SCR = 0x20000
LDS_DUMMY = 0x27C00
LDS_ATTN = 163840

def gen_attn(A):
    name = NAME + "_kernel"
    kernel_header(A, name)
    S0, C0, O0, Q0 = 32, 96, 160, 224
    L0, KB0, VB0, SEL, GF, FR = 0, 16, 32, 48, 64, 128
    vL, vH, vL31, vW_ = 1, 2, 3, 4
    vXd, vWd = 8, 12
    vXr, vWr = 16, 20
    vKV, vIDX, vT0, vT1, vG = 22, 23, 24, 25, 26
    vLane16, vLin, vPoll, vT2 = 28, 29, 30, 31
    ACC = S0
    PACC, GACC = Q0, Q0 + 16
    vPd, vPr, vPw = C0, C0 + 4, C0 + 8
    vRed = C0 + 12
    A("s_cmp_ge_u32 s2, 256")
    A("s_cbranch_scc1 L_at_end")
    stamp(A, 0)
    if "epf" in VAR:
        A("s_getpc_b64 s[72:73]")
        for k in range(1, 7):
            A(f"s_load_dword s74, s[72:73], {128*k}")
    A("s_load_dwordx8 s[4:11], s[0:1], 0")
    A("s_load_dwordx2 s[64:65], s[0:1], 32")
    A("s_load_dwordx8 s[12:19], s[0:1], 48")
    A("s_load_dwordx2 s[66:67], s[0:1], 80")
    A("s_load_dwordx4 s[24:27], s[0:1], 96")
    A("s_and_b32 s28, s2, 1")
    A("s_bfe_u32 s29, s2, 0x20001")
    A("s_bfe_u32 s30, s2, 0x20003")
    A("s_lshl_b32 s29, s29, 2")
    A("s_add_u32 s29, s29, s30")
    A("s_lshr_b32 s30, s2, 5")
    A("s_lshr_b32 s31, s2, 7")
    A("s_and_b32 s23, s30, 3")
    A("s_lshl_b32 s33, s29, 2")
    A("s_add_u32 s33, s33, s23")
    A("s_lshl_b32 s34, s31, 1")
    A("s_add_u32 s34, s34, s23")
    A("s_and_b32 s34, s34, 3")
    A("s_and_b32 s37, s29, 3")
    A("s_lshl_b32 s37, s37, 1")
    A("s_add_u32 s37, s37, s30")
    A("s_lshl_b32 s37, s37, 1")
    A("s_and_b32 s37, s37, 15")
    A("s_lshl_b32 s38, s29, 18")
    A("s_lshl_b32 s39, s30, 8")
    A(f"v_lshrrev_b32 v{vW_}, 6, v0")
    A(f"v_and_b32 v{vL}, 63, v0")
    A(f"v_readfirstlane_b32 s20, v{vW_}")
    A(f"v_lshrrev_b32 v{vH}, 5, v{vL}")
    A(f"v_and_b32 v{vL31}, 31, v{vL}")
    A(f"v_lshlrev_b32 v{vLane16}, 4, v{vL}")
    A(f"v_lshl_add_u32 v{vLin}, v{vW_}, 12, v{vLane16}")
    A(f"v_lshrrev_b32 v{vT0}, 3, v{vL}")
    A(f"v_lshl_add_u32 v{vT0}, v{vW_}, 5, v{vT0}")
    A(f"v_lshlrev_b32 v{vT0}, 11, v{vT0}")
    A(f"v_lshrrev_b32 v{vT1}, 4, v{vL}")
    A(f"v_and_b32 v5, 7, v{vL}")
    A(f"v_xor_b32 v5, v5, v{vT1}")
    A(f"v_lshl_add_u32 v{vXd}, v5, 4, v{vT0}")
    A(f"v_xor_b32 v{vXd+1}, 64, v{vXd}")
    A(f"v_add_u32 v{vXd+1}, {16384-1024}, v{vXd+1}")
    A(f"v_add_u32 v{vXd+2}, {2*(16384-1024)}, v{vXd}")
    A(f"v_add_u32 v{vXd+3}, {2*(16384-1024)}, v{vXd+1}")
    A(f"v_lshl_add_u32 v{vT0}, v{vW_}, 4, v{vT1}")
    A(f"v_lshlrev_b32 v{vT0}, 11, v{vT0}")
    A(f"v_lshlrev_b32 v{vT1}, 2, v{vT1}")
    A(f"v_and_b32 v5, 15, v{vL}")
    A(f"v_xor_b32 v5, v5, v{vT1}")
    A(f"v_lshl_add_u32 v{vWd}, v5, 4, v{vT0}")
    for t in range(1, 4):
        A(f"v_add_u32 v{vWd+t}, {t*(8192-1024)}, v{vWd}")
    A("s_waitcnt lgkmcnt(0)")
    fstamp(A, 1)
    if os.environ.get("WSOFF"):
        A(f"s_add_u32 s26, s26, {int(os.environ['WSOFF'], 0)}")
        A("s_addc_u32 s27, s27, 0")
    A("s_cmp_eq_u32 s28, 1")
    A("s_cselect_b64 s[6:7], s[12:13], s[6:7]")
    A("s_cselect_b64 s[8:9], s[14:15], s[8:9]")
    A("s_cselect_b64 s[10:11], s[16:17], s[10:11]")
    A("s_cselect_b64 s[72:73], s[18:19], s[64:65]")
    A("s_cselect_b64 s[74:75], s[64:65], s[18:19]")
    A("s_cmp_eq_u32 s31, 1")
    A("s_cselect_b64 s[8:9], s[10:11], s[8:9]")
    A("s_cselect_b64 s[64:65], s[18:19], s[64:65]")
    srd(A, 40, 8, 9, 1024*32*2)
    srd(A, 8, 4, 5, 2048*1024*2)
    srd(A, 12, 6, 7, 1024*1024*2)
    srd(A, 56, 66, 67, 2048)
    A("s_lshl_b32 s36, s20, 12")
    A("s_lshl_b32 s35, s33, 16")
    def dma_P(n):
        slot = (n % 4) * 0x8000
        I = []
        I.append([f"s_add_u32 m0, s36, {slot}", "s_lshl_b32 s48, s34, 9", "s_add_u32 s48, s48, s35",
                  f"buffer_load_dwordx4 v{vPd}, s[8:11], s48 offen lds"])
        for t in range(1, 4):
            I.append(f"buffer_load_dwordx4 v{vPd+t}, s[8:11], s48 offen offset:{1024*t} lds")
        I.append([f"s_add_u32 m0, s36, {slot+0x4000}", "s_lshl_b32 s49, s34, 14",
                  f"buffer_load_dwordx4 v{vLin}, s[40:43], s49 offen lds"])
        for t in range(1, 4):
            I.append(f"buffer_load_dwordx4 v{vLin}, s[40:43], s49 offen offset:{1024*t} lds")
        I.append(["s_add_u32 s34, s34, 1", "s_and_b32 s34, s34, 3"])
        return I
    def dma_G(n):
        slot = (n % 4) * 0x8000
        I = []
        I.append([f"s_add_u32 m0, s36, {slot}", "s_lshl_b32 s48, s37, 7", "s_add_u32 s48, s48, s38",
                  f"buffer_load_dwordx4 v{vXd}, s[8:11], s48 offen {XNT} lds"])
        for t in range(1, 4):
            I.append(f"buffer_load_dwordx4 v{vXd+t}, s[8:11], s48 offen offset:{1024*t} {XNT} lds")
        I.append([f"s_add_u32 m0, s36, {slot+0x4000}", "s_lshl_b32 s49, s37, 17", "s_add_u32 s49, s49, s39",
                  f"buffer_load_dwordx4 v{vWd}, s[12:15], s49 offen {WNT} lds"])
        for t in range(1, 4):
            I.append(f"buffer_load_dwordx4 v{vWd+t}, s[12:15], s49 offen offset:{1024*t} {WNT} lds")
        I.append(["s_add_u32 s37, s37, 1", "s_and_b32 s37, s37, 15"])
        return I
    def dma_C(c):
        slot = (c % 4) * 0x8000
        I = []
        I.append([f"s_add_u32 m0, s36, {slot}", f"s_mov_b32 s48, {c*0x8000}",
                  f"buffer_load_dwordx4 v{vLin}, s[44:47], s48 offen sc1 lds"])
        for t in range(1, 4):
            I.append(f"buffer_load_dwordx4 v{vLin}, s[44:47], s48 offen offset:{1024*t} sc1 lds")
        I.append([f"s_add_u32 m0, s36, {slot+0x4000}", f"s_mov_b32 s49, {c*0x8000+0x4000}",
                  f"buffer_load_dwordx4 v{vLin}, s[44:47], s49 offen sc1 lds"])
        for t in range(1, 4):
            I.append(f"buffer_load_dwordx4 v{vLin}, s[44:47], s49 offen offset:{1024*t} sc1 lds")
        return I
    def flat(I):
        for x in I:
            if isinstance(x, (list, tuple)):
                for y in x: A(y)
            else: A(x)
    ORDER = ["G", "G", "P", "P", "P", "P"] + ["G"] * 14
    PIDX = {n: k for k, n in enumerate([n for n in range(20) if ORDER[n] == "P"])}
    PLAST = max(PIDX)
    def dma(n):
        if n >= 20: return dma_C(n - 20)
        return dma_P(n) if ORDER[n] == "P" else dma_G(n)
    flat(dma(0))
    fstamp(A, 2)
    A(f"s_mov_b32 m0, {LDS_DUMMY}")
    A("s_bfe_u32 s48, s2, 0x40003")
    A("s_lshl_b32 s48, s48, 12")
    A("s_lshl_b32 s49, s20, 10")
    A("s_add_u32 s48, s48, s49")
    A(f"buffer_load_dwordx4 v{vLane16}, s[40:43], s48 offen lds")
    if "cpf" in VAR:
        A("s_getpc_b64 s[72:73]")
        A.label("L_at_pc")
        A("s_lshr_b32 s48, s2, 3")
        A("s_lshl_b32 s48, s48, 2")
        A("s_add_u32 s48, s48, s20")
        A("s_lshl_b32 s48, s48, 8")
        A("s_min_u32 s48, s48, L_code_end-L_at_pc-256")
        A("s_add_u32 s72, s72, s48")
        A("s_addc_u32 s73, s73, 0")
        for q in range(4):
            A(f"s_load_dword s74, s[72:73], {64*q}")
    srd(A, 16, 26, 27, WS_USED)
    srd(A, 52, 64, 65, 1024*1024*2)
    srd(A, 60, 24, 25, 256)
    A("s_lshl_b32 s48, s28, 18")
    A("s_add_u32 s44, s26, s48")
    A("s_addc_u32 s45, s27, 0")
    A("s_mov_b32 s46, 0x40000")
    A("s_mov_b32 s47, 0x00020000")
    A("s_lshr_b32 s22, s20, 1")
    A("s_and_b32 s21, s20, 1")
    A("s_bfe_u32 s68, s2, 0x40003")
    A("s_lshl_b32 s68, s68, 2")
    A("s_add_u32 s68, s68, s20")
    A("s_lshl_b32 s68, s68, 15")
    A("s_lshl_b32 s69, s28, 10")
    A("s_add_u32 s68, s68, s69")
    A("s_or_b32 s70, s28, s31")
    A(f"v_lshl_add_u32 v{vT0}, v{vW_}, 3, v{vH}")
    A(f"v_and_b32 v{vT1}, 15, v{vT0}")
    A(f"v_xor_b32 v{vT1}, v{vT1}, v{vL31}")
    A(f"v_lshlrev_b32 v{vT1}, 4, v{vT1}")
    A(f"v_lshl_add_u32 v{vPd}, v{vT0}, 11, v{vT1}")
    for t in range(1, 4):
        A(f"v_xor_b32 v{vPd+t}, {(2*t) << 4}, v{vPd}")
        A(f"v_add_u32 v{vPd+t}, {t*(4096-1024)}, v{vPd+t}")
    A(f"v_lshl_add_u32 v{vT0}, v{vW_}, 3, v{vH}")
    A(f"v_and_b32 v{vT1}, 15, v{vL31}")
    A(f"v_xor_b32 v{vT0}, v{vT0}, v{vT1}")
    A(f"v_lshlrev_b32 v{vT0}, 4, v{vT0}")
    A(f"v_lshl_add_u32 v{vPr}, v{vL31}, 9, v{vT0}")
    for s in range(1, 4):
        A(f"v_xor_b32 v{vPr+s}, {(2*s) << 4}, v{vPr}")
    A(f"v_bfe_u32 v{vT0}, v{vL}, 2, 2")
    A(f"v_lshl_add_u32 v{vT0}, v{vH}, 3, v{vT0}")
    A(f"v_lshl_add_u32 v{vT0}, v{vW_}, 6, v{vT0}")
    A(f"v_lshlrev_b32 v{vT0}, 6, v{vT0}")
    A(f"v_bfe_u32 v{vT1}, v{vL}, 4, 1")
    A(f"v_lshl_add_u32 v{vT0}, v{vT1}, 5, v{vT0}")
    A(f"v_and_b32 v{vT1}, 3, v{vL}")
    A(f"v_lshl_add_u32 v{vT0}, v{vT1}, 3, v{vT0}")
    A(f"v_add_u32 v{vPw}, 0x4000, v{vT0}")
    A(f"v_bfe_u32 v{vT0}, v{vL}, 1, 3")
    A(f"v_xor_b32 v{vT0}, v{vT0}, v{vH}")
    A(f"v_lshlrev_b32 v{vT0}, 4, v{vT0}")
    A(f"v_lshl_add_u32 v{vT0}, v{vL31}, 7, v{vT0}")
    A(f"s_lshl_b32 s48, s22, 13")
    A(f"v_add_u32 v{vXr}, s48, v{vT0}")
    for s in range(1, 4):
        A(f"v_xor_b32 v{vXr+s}, {(2*s) << 4}, v{vXr}")
    A(f"v_bfe_u32 v{vT0}, v{vL}, 2, 2")
    A(f"v_lshl_add_u32 v{vT1}, v{vH}, 3, v{vT0}")
    A(f"v_lshlrev_b32 v{vT1}, 8, v{vT1}")
    A(f"s_lshl_b32 s48, s21, 1")
    A(f"v_xor_b32 v{vT0}, s48, v{vT0}")
    A(f"v_lshl_add_u32 v{vT1}, v{vT0}, 6, v{vT1}")
    A(f"v_bfe_u32 v{vT0}, v{vL}, 4, 1")
    A(f"v_lshl_add_u32 v{vT1}, v{vT0}, 5, v{vT1}")
    A(f"v_and_b32 v{vT0}, 3, v{vL}")
    A(f"v_lshl_add_u32 v{vT1}, v{vT0}, 3, v{vT1}")
    A(f"v_add_u32 v{vWr}, 0x4000, v{vT1}")
    A(f"v_xor_b32 v{vWr+1}, 64, v{vWr}")
    for i in range(0, 32, 2):
        A(f"v_mov_b64 {vr(PACC+i,2)}, 0")
    for i in range(0, 64, 2):
        A(f"v_mov_b64 {vr(ACC+i,2)}, 0")
    side = []
    side.append(f"v_mov_b32 v{vIDX}, 0xdddddddd")
    side += [f"v_and_b32 v{vT0}, 15, v{vL}", f"v_mov_b32 v{vT1}, 0x3f803f80", f"v_cmp_eq_u32 vcc, 0, v{vT0}", "s_nop 1",
             f"v_cndmask_b32 v{vT2}, 0, v{vT1}, vcc", f"v_cmp_eq_u32 vcc, 4, v{vT0}", "s_nop 1",
             f"v_cndmask_b32 v{vT1}, 0, v{vT1}, vcc",
             f"v_accvgpr_write_b32 a{SEL}, v{vT2}", f"v_accvgpr_write_b32 a{SEL+1}, v{vT2}",
             f"v_accvgpr_write_b32 a{SEL+2}, v{vT1}", f"v_accvgpr_write_b32 a{SEL+3}, v{vT1}"]
    side += [f"v_accvgpr_write_b32 a{L0+i}, 0" for i in range(16)]
    side += [f"v_accvgpr_write_b32 a{VB0+8+i}, 0" for i in range(8)]
    side += [f"v_mov_b64 {vr(O0+i,2)}, 0" for i in range(0, 64, 2)]
    side.append(f"v_mov_b32 v{vKV}, v{vLane16}")
    for x in side: A(x)
    tstamp_init(A, 26, 27, 20, 0)
    tstamp(A)
    fstamp(A, 3)
    flat(dma(1))
    fstamp(A, 4)
    stamp(A, 1)
    def rd_P(n):
        off = (n % 2) * 0x8000
        b = FR + 64*(n % 2)
        R = []
        for s in range(4):
            R.append(f"ds_read_b128 {ar(b+8*s,4)}, v{vPr+s} offset:{off}")
            R.append(f"ds_read_b64_tr_b16 {ar(b+8*s+4,2)}, v{vPw} offset:{off+1024*s}")
            R.append(f"ds_read_b64_tr_b16 {ar(b+8*s+6,2)}, v{vPw} offset:{off+1024*s+256}")
        return R
    def mf_P(n):
        b = FR + 64*(n % 2)
        A("s_cmp_eq_u32 s31, 1")
        A(f"s_cbranch_scc1 L_at_pv{n}")
        for s in range(4):
            A(f"v_mfma_f32_32x32x16_bf16 {vr(PACC,16)}, {ar(b+8*s+4,4)}, {ar(b+8*s,4)}, {vr(PACC,16)}")
        A("s_cmp_lg_u32 s70, 0")
        A(f"s_cbranch_scc1 L_at_pj{n}")
        for s in range(4):
            A(f"v_mfma_f32_32x32x16_bf16 {vr(GACC,16)}, {ar(GF+16*PIDX[n]+4*s,4)}, {ar(b+8*s,4)}, {vr(GACC,16)}")
        A(f"s_branch L_at_pj{n}")
        A.label(f"L_at_pv{n}")
        for s in range(4):
            A(f"v_mfma_f32_32x32x16_bf16 {vr(PACC,16)}, {ar(b+8*s,4)}, {ar(b+8*s+4,4)}, {vr(PACC,16)}")
        A.label(f"L_at_pj{n}")
    def rd_G(n):
        off = (n % 2) * 0x8000
        b = FR + 64*(n % 2)
        R = []
        for s in range(4):
            p = b + 16*s
            R.append(f"ds_read_b128 {ar(p,4)}, v{vXr+s} offset:{off}")
            R.append(f"ds_read_b64_tr_b16 {ar(p+8,2)}, v{vWr} offset:{off+4096*s}")
            R.append(f"ds_read_b64_tr_b16 {ar(p+10,2)}, v{vWr} offset:{off+4096*s+1024}")
            R.append(f"ds_read_b128 {ar(p+4,4)}, v{vXr+s} offset:{off+4096}")
            R.append(f"ds_read_b64_tr_b16 {ar(p+12,2)}, v{vWr+1} offset:{off+4096*s}")
            R.append(f"ds_read_b64_tr_b16 {ar(p+14,2)}, v{vWr+1} offset:{off+4096*s+1024}")
        return R
    def mf_G(n, by_u=False):
        b = FR + 64*(n % 2)
        M = []
        order = [(s, a, t) for s in range(4) for a in range(2) for t in range(2)]
        if by_u: order = [(s, a, t) for a in range(2) for t in range(2) for s in range(4)]
        for (s, a, t) in order:
            p = b + 16*s; u = 2*a + t
            M.append(f"v_mfma_f32_32x32x16_bf16 {vr(ACC+16*u,16)}, {ar(p+8+4*a,4)}, {ar(p+4*t,4)}, {vr(ACC+16*u,16)}")
        return M
    def toggle(regs):
        return [f"v_xor_b32 v{r}, 0x10000, v{r}" for r in regs]
    Pregs = [vPr+s for s in range(4)] + [vPw]
    Gregs = [vXr+s for s in range(4)] + [vWr, vWr+1]
    hi = {"P": 0, "G": 0}
    for n in range(20):
        A.comment(f"---- iteration {n} ({ORDER[n]})")
        A(f"s_waitcnt vmcnt({9 if n in (8, 9, 17) else 8}) lgkmcnt(0)")
        A("s_barrier")
        tstamp(A)
        if n == 6: stamp(A, 2)
        if n == 0: fstamp(A, 5)
        if n == 1: fstamp(A, 6)
        D = dma(n + 2)
        assert hi[ORDER[n]] == (n >> 1) & 1
        R = rd_P(n) if ORDER[n] == "P" else rd_G(n)
        V = []
        T = []
        if n + 1 < 20 and hi[ORDER[n+1]] != ((n + 1) >> 1) & 1:
            T = toggle(Pregs if ORDER[n+1] == "P" else Gregs)
            hi[ORDER[n+1]] ^= 1
        if n == 18:
            A(f"v_cmp_gt_u32 vcc, 4, v{vPoll}")
            A("s_nop 4")
            A("s_cmp_eq_u64 vcc, 0")
            A("s_cbranch_scc1 L_at_flags_ok")
            A("s_mov_b32 s50, 0")
            A.label("L_at_spin")
            A("s_add_u32 s50, s50, 1")
            A("s_cmp_gt_u32 s50, 0x40000")
            A("s_cbranch_scc1 L_at_flags_ok")
            A("s_sleep 8")
            A(f"buffer_load_dword v{vPoll}, v{vT2}, s[60:63], 0 offen sc1")
            A("s_waitcnt vmcnt(0)")
            A(f"v_cmp_gt_u32 vcc, 4, v{vPoll}")
            A("s_nop 4")
            A("s_cmp_eq_u64 vcc, 0")
            A("s_cbranch_scc0 L_at_spin")
            A.label("L_at_flags_ok")
        if n == 0:
            A("s_cmp_lg_u32 s70, 0")
            A("s_cbranch_scc1 L_at_nogf")
            A(f"v_lshlrev_b32 v{vT0}, 4, v{vH}")
            A(f"v_lshl_add_u32 v{vT0}, v{vW_}, 7, v{vT0}")
            A("s_mov_b32 s50, s34")
            for q in range(4):
                A("s_lshl_b32 s51, s50, 9")
                for s in range(4):
                    A(f"buffer_load_dwordx4 {ar(GF+16*q+4*s,4)}, v{vT0}, s[56:59], s51 offen offset:{32*s}")
                A("s_add_u32 s50, s50, 1")
                A("s_and_b32 s50, s50, 3")
            A.label("L_at_nogf")
        if n == 0 or ORDER[n-1] == "P":
            for x in R: A(x)
            flat(D[:4])
            if n > 0: mf_P(n - 1)
            flat(D[4:])
            for x in T: A(x)
            if n - 1 == PLAST:
                A(f"s_mul_i32 s50, s20, 0x1200")
                A(f"s_add_u32 s50, s50, {LDS_SCR}")
                A(f"v_add_u32 v{vRed}, s50, v{vLane16}")
                A(f"v_lshlrev_b32 v{vRed+1}, 2, v{vL}")
                A(f"v_add_u32 v{vRed+2}, s50, v{vRed+1}")
                A("s_nop 7")
                for rg in range(4):
                    A(f"ds_write_b128 v{vRed}, {vr(PACC+4*rg,4)} offset:{1024*rg}")
                A(f"ds_write_b32 v{vRed+2}, v{GACC} offset:4096")
                A(f"v_lshl_add_u32 v{vRed}, v{vW_}, 10, v{vLane16}")
                A(f"v_add_u32 v{vRed}, {LDS_SCR}, v{vRed}")
                A(f"v_add_u32 v{vRed+2}, {LDS_SCR+4096}, v{vRed+1}")
            continue
        if n == 7:
            assert PLAST == 5
            for ww in range(4):
                A(f"ds_read_b128 {vr(Q0+4*ww,4)}, v{vRed} offset:{0x1200*ww}")
            for ww in range(4):
                A(f"ds_read_b32 v{Q0+16+ww}, v{vRed+2} offset:{0x1200*ww}")
            V += ["s_nop 0", "s_nop 0", "s_waitcnt lgkmcnt(6)"]
        post = []
        if n == 7:
            for e in range(0, 4, 2):
                V.append([f"v_add_f32 v{Q0+e}, v{Q0+e}, v{Q0+4+e}", f"v_add_f32 v{Q0+8+e}, v{Q0+8+e}, v{Q0+12+e}",
                          f"v_add_f32 v{Q0+e+1}, v{Q0+e+1}, v{Q0+5+e}", f"v_add_f32 v{Q0+9+e}, v{Q0+9+e}, v{Q0+13+e}"])
            V.append([f"v_add_f32 v{Q0+e}, v{Q0+e}, v{Q0+8+e}" for e in range(4)])
            V.append(["s_mov_b32 s50, 1.0", "s_cmp_eq_u32 s31, 1", f"s_cselect_b32 s50, s50, {KSCALE:#x}", "s_cselect_b64 vcc, -1, 0"])
            V.append([f"v_mul_f32 v{Q0+e}, s50, v{Q0+e}" for e in range(4)])
            V.append([f"v_cvt_pk_bf16_f32 v{Q0+4}, v{Q0}, v{Q0+1}", f"v_cvt_pk_bf16_f32 v{Q0+5}, v{Q0+2}, v{Q0+3}"])
            V.append([f"v_bfe_u32 v{vT0}, v{vL31}, 2, 1", f"v_bfe_u32 v{vT1}, v{vL31}, 3, 1", f"v_and_b32 v{vRed}, 0x13, v{vL31}"])
            V.append([f"v_lshl_add_u32 v{vRed}, v{vT0}, 3, v{vRed}", f"v_lshl_add_u32 v{vRed}, v{vT1}, 2, v{vRed}",
                      f"v_cndmask_b32 v{vRed}, v{vRed}, v{vL31}, vcc"])
            V.append([f"v_lshl_add_u32 v{vRed}, v{vH}, 5, v{vRed}", f"v_lshlrev_b32 v{vRed}, 4, v{vRed}"])
            V.append(["s_lshl_b32 s50, s33, 12", "s_lshl_b32 s51, s31, 11", "s_add_u32 s50, s50, s51", "s_lshl_b32 s51, s22, 10"])
            V.append(["s_add_u32 s50, s50, s51", "s_lshl_b32 s51, s21, 3", "s_add_u32 s50, s50, s51"])
            V.append([f"v_add_f32 v{Q0+16}, v{Q0+16}, v{Q0+17}", f"v_add_f32 v{Q0+18}, v{Q0+18}, v{Q0+19}", f"v_add_f32 v{Q0+16}, v{Q0+16}, v{Q0+18}"])
            V.append([f"v_mul_f32 v{Q0+16}, {LOG2E ^ 0x80000000:#x}, v{Q0+16}", f"v_exp_f32 v{Q0+16}, v{Q0+16}", "s_nop 0",
                      f"v_add_f32 v{Q0+16}, 1.0, v{Q0+16}", f"v_rcp_f32 v{Q0+16}, v{Q0+16}", f"v_lshlrev_b32 v{vRed+1}, 2, v{vL31}"])
            post.append(f"buffer_store_dwordx2 {vr(Q0+4,2)}, v{vRed}, s[44:47], s50 offen sc1")
            post.append("s_cmp_lg_u32 s20, 0")
            post.append("s_cbranch_scc1 L_at_nogst")
            post.append("s_lshl_b32 s69, s29, 7")
            post.append("s_lshl_b32 s51, s28, 5")
            post.append("s_add_u32 s69, s69, s51")
            post.append("s_lshl_b32 s51, s30, 2")
            post.append("s_add_u32 s69, s69, s51")
            post.append(f"s_add_u32 s69, s69, {WS_FL}")
            post.append(f"v_mov_b32 v{vT0}, 0")
            post.append("s_mov_b64 exec, 1")
            post.append(f"buffer_atomic_swap v{vT0}, v{vT0}, s[16:19], s69 offen sc1")
            post.append("s_mov_b64 exec, -1")
            post.append("s_or_b32 s51, s70, s20")
            post.append("s_cmp_lg_u32 s51, 0")
            post.append("s_cbranch_scc1 L_at_nogst")
            post.append("s_lshl_b32 s51, s33, 7")
            post.append(f"s_add_u32 s51, s51, {WS_G}")
            post.append(f"buffer_store_dword v{Q0+16}, v{vRed+1}, s[16:19], s51 offen sc1")
            post.append("L_at_nogst:")
        if n == 10:
            post.append("s_cmp_lg_u32 s20, 0")
            post.append("s_cbranch_scc1 L_at_nosig")
            post.append("s_and_b32 s50, s2, 63")
            post.append("s_lshl_b32 s50, s50, 2")
            post.append(f"v_mov_b32 v{vT0}, 1")
            post.append(f"v_mov_b32 v{vT1}, 0")
            post.append("s_mov_b64 exec, 1")
            post.append(f"buffer_atomic_add v{vT0}, v{vT1}, s[60:63], s50 offen sc1")
            post.append("s_mov_b64 exec, -1")
            post.append("L_at_nosig:")
        if n == 16:
            V.append(f"v_lshlrev_b32 v{vT2}, 2, v{vL}")
            post.append(f"buffer_load_dword v{vPoll}, v{vT2}, s[60:63], 0 offen sc1")
        if n == 18:
            V += [f"v_lshrrev_b32 v{vT0}, 3, v{vL}", f"v_lshl_add_u32 v{vT0}, v{vW_}, 5, v{vT0}", f"v_lshlrev_b32 v{vT0}, 11, v{vT0}",
                  f"v_bfe_u32 v{vT1}, v{vL}, 4, 1", f"v_lshlrev_b32 v{vT1}, 2, v{vT1}", f"v_and_b32 v5, 7, v{vL}",
                  f"v_xor_b32 v5, v5, v{vT1}", f"v_lshl_add_u32 v{vWd}, v5, 4, v{vT0}",
                  ["s_lshl_b32 s31, s28, 3", "s_add_u32 s31, s31, s30", "s_lshl_b32 s31, s31, 7"],
                  f"v_add_u32 v{vWd}, s31, v{vWd}"]
            V += [f"v_add_u32 v{vWd+t}, {t*(16384-1024)}, v{vWd}" for t in range(1, 4)]
        if n == 19:
            V += [f"v_mov_b32 v{vXd+t}, v{vLin}" for t in range(4)]
        M = mf_G(n - 1)
        weave(A, M, [(R, lambda k: 2), (D, lambda k: 1 if k % 2 == 1 else 0), (V, lambda k: 1), (T, lambda k: 2 if k >= 12 else 0)])
        for x in post: A(x)
    A("s_waitcnt vmcnt(8) lgkmcnt(0)")
    A("s_barrier")
    stamp(A, 3)
    tstamp(A)
    def cvtQ(u):
        return [f"v_cvt_pk_bf16_f32 v{Q0+8*u+j}, v{ACC+16*u+2*j}, v{ACC+16*u+2*j+1}" for j in range(8)]
    def QK(u, c):
        return [f"v_mfma_f32_32x32x16_bf16 {vr(S0+16*u,16)}, {ar(KB0,4)}, {vr(Q0+8*u,4)}, {c}",
                f"v_mfma_f32_32x32x16_bf16 {vr(S0+16*u,16)}, {ar(KB0+4,4)}, {vr(Q0+8*u+4,4)}, {vr(S0+16*u,16)}"]
    def max16(b):
        L = [f"v_max3_f32 v{b}, v{b}, v{b+1}, v{b+2}"]
        for j in range(3, 15, 2):
            L.append(f"v_max3_f32 v{b}, v{b}, v{b+j}, v{b+j+1}")
        L.append(f"v_max_f32 v{b}, v{b}, v{b+15}")
        return L
    def fill_C(u, b):
        L = [f"v_mov_b32 v{b+1}, v{b}", "s_nop 1", f"v_permlane32_swap_b32 v{b}, v{b+1}", "s_nop 1",
             f"v_max_f32 v{b}, v{b}, v{b+1}", f"v_sub_f32 v{C0+16*u}, 0, v{b}", f"v_sub_f32 v{C0+16*u+1}, 0, v{b}"]
        for j in range(2, 16, 2):
            L.append(f"v_mov_b64 {vr(C0+16*u+j,2)}, {vr(C0+16*u,2)}")
        return L
    G = mf_G(19, by_u=True)
    ldc = lambda t: f"buffer_load_dwordx4 v{vXd+t}, s[44:47], s32 offen offset:{1024*t} sc1 lds"
    ldw = lambda t: f"buffer_load_dwordx4 v{vWd+t}, s[12:15], s34 offen offset:{1024*t} lds"
    misc = [f"ds_read_b128 {ar(KB0,4)}, v{vKV}", f"ds_read_b128 {ar(KB0+4,4)}, v{vKV} offset:1024",
            f"ds_read_b128 {ar(VB0,4)}, v{vKV} offset:2048", f"ds_read_b128 {ar(VB0+4,4)}, v{vKV} offset:3072",
            f"v_lshlrev_b32 v{vT0}, 2, v{vL31}", "s_lshl_b32 s50, s29, 9", "s_lshl_b32 s51, s22, 8", "s_add_u32 s50, s50, s51",
            f"s_add_u32 s50, s50, {WS_G}", f"buffer_load_dword v{vG}, v{vT0}, s[16:19], s50 offen sc1",
            f"buffer_load_dword v{vG+1}, v{vT0}, s[16:19], s50 offen offset:128 sc1",
            "s_add_u32 m0, s36, 0x10000", "s_mov_b32 s32, 0x10000", ldc(0), ldc(1), ldc(2), ldc(3),
            "s_mov_b32 s37, 0x18000", "s_mov_b32 s39, 0", "s_mov_b32 s71, 0", "s_mov_b32 s33, 0x4000", "s_mov_b32 s38, -1"]
    def emit(L):
        for x in L: A(x)
    def take(L, n):
        r = L[:n]; del L[:n]; return r
    for k in range(0, 7):
        A(G[k]); emit(take(misc, 4 if k < 5 else 1))
    emit(misc)
    c0 = cvtQ(0)
    A(G[7]); emit(take(c0, 5))
    A(G[8]); emit(c0); A("s_waitcnt lgkmcnt(0)")
    A(G[9])
    q = QK(0, "0"); A(q[0]); A(q[1])
    c1 = cvtQ(1)
    A(G[10]); emit(take(c1, 5))
    A(G[11]); emit(c1)
    A(G[12])
    q = QK(1, "0"); A(q[0]); A(q[1])
    m0_ = max16(S0)
    A(G[13]); emit(take(m0_, 5))
    A(G[14]); emit(m0_)
    f0 = fill_C(0, S0)
    A(G[15]); emit(take(f0, 4))
    emit(cvtQ(2))
    emit(take(f0, 3))
    q = QK(2, "0"); A(q[0]); emit(take(f0, 4)); A(q[1]); emit(f0)
    emit(cvtQ(3))
    m1_ = max16(S0+16)
    emit(take(m1_, 2))
    q = QK(3, "0"); A(q[0]); emit(take(m1_, 4)); A(q[1]); emit(m1_)
    f1 = fill_C(1, S0+16)
    emit(take(f1, 3))
    q = QK(0, vr(C0, 16) if 'czero' not in VAR else "0"); A(q[0]); emit(take(f1, 5)); A(q[1]); emit(f1)
    emit(max16(S0+32)); emit(fill_C(2, S0+32))
    emit(max16(S0+48)); emit(fill_C(3, S0+48))
    for i in range(0, 16, 2):
        A(f"v_mov_b64 {vr(S0+48+i,2)}, 0")
    A("s_waitcnt vmcnt(6)")
    A("s_barrier")
    def PV(u0, p0):
        return [
            f"v_smfmac_f32_32x32x32_bf16 {vr(O0+16*u0,16)}, {ar(VB0+8*p0,4)}, {vr(S0+16*u0,8)}, v{vIDX}",
            f"v_smfmac_f32_32x32x32_bf16 {vr(O0+16*u0,16)}, {ar(VB0+8*p0+4,4)}, {vr(S0+16*u0+8,8)}, v{vIDX}",
            f"v_smfmac_f32_16x16x64_bf16 {ar(L0+4*u0,4)}, {ar(SEL,4)}, {vr(S0+16*u0,8)}, v{vIDX}",
            f"v_smfmac_f32_16x16x64_bf16 {ar(L0+4*u0,4)}, {ar(SEL,4)}, {vr(S0+16*u0+8,8)}, v{vIDX}",
        ]
    stamp(A, 4)
    body = []
    for i in range(8):
        for u in range(4):
            u1 = (u + 1) % 4; i1 = i + (1 if u == 3 else 0)
            u0 = (u + 3) % 4; i0 = i - (1 if u == 0 else 0)
            P = PV(u0, i0 % 2)
            M = [
                f"v_mfma_f32_32x32x16_bf16 {vr(S0+16*u1,16)}, {ar(KB0+8*(i1%2),4)}, {vr(Q0+8*u1,4)}, {vr(C0+16*u1,16) if 'czero' not in VAR else 0}",
                P[0],
                f"v_mfma_f32_32x32x16_bf16 {vr(S0+16*u1,16)}, {ar(KB0+8*(i1%2)+4,4)}, {vr(Q0+8*u1+4,4)}, {vr(S0+16*u1,16)}",
                P[1], P[2], P[3],
            ]
            X = [[] for _ in range(6)]
            tt = (i + 1) % 8
            pn = (i + 1) % 2
            if u == 0:
                X[3].append("s_waitcnt lgkmcnt(0)")
                X[4].append(f"ds_read_b128 {ar(KB0+8*pn,4)}, v{vKV} offset:{4096*tt}")
                X[5].append(f"ds_read_b128 {ar(KB0+8*pn+4,4)}, v{vKV} offset:{4096*tt+1024}")
            if u == 2:
                X[3].append("s_waitcnt lgkmcnt(0)")
                X[4].append(f"ds_read_b128 {ar(VB0+8*pn,4)}, v{vKV} offset:{4096*tt+2048}")
                X[5].append(f"ds_read_b128 {ar(VB0+8*pn+4,4)}, v{vKV} offset:{4096*tt+3072}")
            if i in (2, 4) and u == 1 and "nopf" not in VAR:
                X[2].append(f"s_mov_b32 m0, {LDS_DUMMY}")
                X[4].append(f"buffer_load_dwordx4 v{vLane16}, s[52:55], s68 offen lds")
                X[5].append("s_add_u32 s68, s68, 0x800")
            if i == 7 and u == 0:
                X[0].append("s_add_u32 s71, s71, 0x8000")
                X[1].append("s_and_b32 s71, s71, 0x1ffff")
                X[1].append("s_add_u32 s39, s39, 1")
                X[2].append("s_bitcmp1_b32 0x54, s39")
                X[3].append("@TOP")
            if i == 7 and u == 1:
                X[1].append("s_add_u32 m0, s37, s36")
                X[1].append("s_add_u32 s37, s37, 0x8000")
                X[3].append("s_and_b32 s37, s37, 0x1ffff")
                X[3].append("s_cmp_ge_u32 s39, 7")
                X[4].append(ldc(0)); X[5].append(ldc(1))
            if i == 7 and u == 2:
                X[0].append("s_cselect_b32 s37, 0x20000, s37")
            if i == 7 and u == 3:
                X[3].append("s_cmp_eq_u32 s39, 8")
                X[4].append(ldc(2)); X[5].append(ldc(3)); X[5].append("@EXIT")
            if i == 0 and u == 1:
                X[4].append(ldc(0)); X[5].append(ldc(1))
            if i == 0 and u == 3:
                X[4].append(ldc(2)); X[5].append(ldc(3))
            if i == 1 and u == 1:
                X[1].append("s_add_u32 s32, s32, s33")
                X[1].append("s_and_b32 s32, s32, s38")
            E = [f"v_exp_f32 v{S0+16*u+j}, v{S0+16*u+j}" for j in range(16)]
            ne = [3, 3, 3, 3, 2, 2]
            for k in range(6):
                body.append(M[k])
                body += X[k]
                for _ in range(ne[k]): body.append(E.pop(0))
    top = body.index("@TOP")
    first, second = body[:top], body[top+1:]
    A("s_branch L_at_pre_entry")
    A.raw(".p2align 6")
    A.label("L_at_top_bar")
    A("s_cmp_lg_u32 s39, 6")
    A("s_cbranch_scc1 L_at_top_bar2")
    for t in range(4):
        A(f"v_mov_b32 v{vXd+t}, v{vWd+t}")
    A("s_mov_b32 s44, s72")
    A("s_mov_b32 s45, s73")
    A("s_mov_b32 s46, 0x200000")
    A("s_lshl_b32 s32, s30, 18")
    A("s_mov_b32 s33, 0x40000")
    A("s_mov_b32 s38, 0x1fffff")
    A.label("L_at_top_bar2")
    A("s_waitcnt vmcnt(2)")
    A("s_barrier")
    A.label("L_at_top")
    tstamp(A)
    A(f"v_add_u32 v{vKV}, s71, v{vLane16}")
    ex = second.index("@EXIT")
    tail = second[ex+1:]
    for x in second[:ex]: A(x)
    A("s_cbranch_scc1 L_at_exit")
    for x in tail: A(x)
    A.label("L_at_pre_entry")
    A(first[0]); A("s_add_u32 m0, m0, 0x4000")
    for x in first[1:5]: A(x)
    A("s_add_u32 s32, s32, s33")
    A("s_and_b32 s32, s32, s38")
    rest = first[5:]
    for x in rest: A(x)
    A("s_cbranch_scc1 L_at_top_bar")
    A("s_branch L_at_top")
    A.label("L_at_exit")
    for x in tail: A(x)
    stamp(A, 5)
    A("s_waitcnt vmcnt(6) lgkmcnt(0)")
    A("s_barrier")
    tstamp(A, "2")
    P3 = PV(3, 1)
    def scale_store(u):
        a, t = u >> 1, u & 1
        L = []
        for j in range(0, 16, 2):
            L.append(f"v_pk_mul_f32 {vr(O0+16*u+j,2)}, {vr(O0+16*u+j,2)}, {vr(S0+2*u,2)} op_sel_hi:[1,0]")
        for j in range(8):
            L.append(f"v_cvt_pk_bf16_f32 v{C0+8*u+j}, v{O0+16*u+2*j}, v{O0+16*u+2*j+1}")
        for f in range(2):
            L.append(f"buffer_store_dwordx4 {vr(C0+8*u+4*f,4)}, v{vLane16}, s[16:19], s{48+t} offen offset:{2048*a+1024*f} sc1 {'nt' if 'ont' in VAR else ''}")
        return L
    addr = ["s_lshl_b32 s48, s29, 2", "s_lshl_b32 s49, s22, 1", "s_add_u32 s48, s48, s49", "s_lshl_b32 s48, s48, 17",
            "s_lshl_b32 s49, s28, 5", "s_lshl_b32 s50, s30, 2", "s_add_u32 s49, s49, s50", "s_lshl_b32 s50, s21, 1",
            "s_add_u32 s49, s49, s50", "s_lshl_b32 s49, s49, 11", "s_add_u32 s48, s48, s49", f"s_add_u32 s48, s48, {WS_OF}",
            "s_add_u32 s49, s48, 0x20000",
            "s_cmp_eq_u32 s28, 0", "s_cselect_b32 s50, 1.0, -1.0", "s_cselect_b32 s51, 0, 1.0"]
    A(P3[2]); emit(take(addr, 4)); A(P3[3]); emit(take(addr, 4)); A(P3[0]); emit(take(addr, 8)); A(P3[1])
    A(f"v_mov_b32 v{vT0}, s51")
    A(f"v_fma_f32 v{vG}, v{vG}, s50, v{vT0}")
    A(f"v_fma_f32 v{vG+1}, v{vG+1}, s50, v{vT0}")
    A("s_mov_b64 s[66:67], -1")
    A.label("L_at_store")
    for u in range(4):
        A(f"v_accvgpr_read_b32 v{S0+2*u}, a{L0+4*u}")
    if True:
        for u in range(4):
            A(f"v_mov_b32 v{S0+2*u+1}, v{S0+2*u}")
        A("s_nop 1")
        for u in range(4):
            A(f"v_permlane32_swap_b32 v{S0+2*u}, v{S0+2*u+1}")
        A("s_nop 1")
    A(f"v_add_f32 v{vT1}, v{S0}, v{S0+2}")
    A(f"v_add_f32 v{vT0}, v{S0+4}, v{S0+6}")
    A(f"v_add_f32 v{vT0}, v{vT0}, v{vT1}")
    A(f"v_cmp_ngt_f32 vcc, {0x4e800000 if 'forceslow' not in VAR else 0x3f000000:#x}, v{vT0}")
    for u in range(4):
        A(f"v_rcp_f32 v{S0+2*u}, v{S0+2*u}")
    A("s_and_b64 vcc, vcc, s[66:67]")
    if "lx" not in VAR: A("s_cbranch_scc1 L_at_slow")
    for u in range(4):
        A(f"v_mul_f32 v{S0+2*u}, v{S0+2*u}, v{vG+(u&1)}")
    for u in range(4):
        emit(scale_store(u))
    gen_out(A)
    A.label("L_at_slow")
    A("s_waitcnt vmcnt(0) lgkmcnt(0)")
    A("s_lshl_b32 s39, s28, 18")
    A("s_add_u32 s44, s26, s39")
    A("s_addc_u32 s45, s27, 0")
    A("s_mov_b32 s46, 0x40000")
    for u in range(4):
        A(f"v_mov_b32 v{O0+u}, 0xff7fffff")
    A("s_mov_b32 s39, 0")
    A.label("L_at_slow1")
    A(f"buffer_load_dwordx4 {ar(KB0,4)}, v{vLane16}, s[44:47], s39 offen sc1")
    A(f"buffer_load_dwordx4 {ar(KB0+4,4)}, v{vLane16}, s[44:47], s39 offen offset:1024 sc1")
    A("s_waitcnt vmcnt(0)")
    for u in range(4):
        for x in QK(u, "0"): A(x)
    A("s_nop 15")
    for u in range(4):
        for j in range(0, 16, 2):
            A(f"v_max3_f32 v{O0+u}, v{O0+u}, v{S0+16*u+j}, v{S0+16*u+j+1}")
    A("s_add_u32 s39, s39, 0x1000")
    A("s_cmp_lt_u32 s39, 0x40000")
    A("s_cbranch_scc1 L_at_slow1")
    for u in range(4):
        A(f"v_mov_b32 v{S0+16*u}, v{O0+u}")
        emit(fill_C(u, S0+16*u))
    for i in range(16):
        A(f"v_accvgpr_write_b32 a{L0+i}, 0")
    for i in range(64):
        A(f"v_mov_b32 v{O0+i}, 0")
    A("s_mov_b32 s39, 0")
    A.label("L_at_slow2")
    A(f"buffer_load_dwordx4 {ar(KB0,4)}, v{vLane16}, s[44:47], s39 offen sc1")
    A(f"buffer_load_dwordx4 {ar(KB0+4,4)}, v{vLane16}, s[44:47], s39 offen offset:1024 sc1")
    A(f"buffer_load_dwordx4 {ar(VB0,4)}, v{vLane16}, s[44:47], s39 offen offset:2048 sc1")
    A(f"buffer_load_dwordx4 {ar(VB0+4,4)}, v{vLane16}, s[44:47], s39 offen offset:3072 sc1")
    A("s_waitcnt vmcnt(0)")
    for u in range(4):
        for x in QK(u, vr(C0+16*u, 16)): A(x)
    A("s_nop 15")
    for j in range(64):
        A(f"v_exp_f32 v{S0+j}, v{S0+j}")
    A("s_nop 1")
    for u in range(4):
        for x in PV(u, 0): A(x)
    A("s_nop 15")
    A("s_add_u32 s39, s39, 0x1000")
    A("s_cmp_lt_u32 s39, 0x40000")
    A("s_cbranch_scc1 L_at_slow2")
    A("s_nop 15")
    A("s_mov_b64 s[66:67], 0")
    A("s_branch L_at_store")
    A.label("L_at_end")
    A("s_endpgm")
    return kernel_desc(name, 512, 256, 102)

def gen_out(A):
    LD = 8
    vL, vH, vL31, vW_ = 1, 2, 3, 4
    vOd, vWd = 28, 12
    vWr, vWr0 = 8, 10
    vT0, vT1, vPl = 16, 17, 18
    ACC = 32
    WF = 128
    OFr = 192
    def wreg(st, s, c, n=4, o=0):
        i = 8*s + 4*c + o
        if st < 2: return vr(WF + 32*st + i, n)
        if st < 10: return ar(32*(st - 2) + i, n)
        return vr(64 + 32*(st - 10) + i, n)
    def stash(st):
        R = []
        for s in range(4):
            for c in range(2):
                wo = (st % 8)*0x2000 + 2048*s
                R += [f"ds_read_b64_tr_b16 {wreg(st,s,c,2,0)}, v{vWr+c} offset:{wo}",
                      f"ds_read_b64_tr_b16 {wreg(st,s,c,2,2)}, v{vWr+c} offset:{wo+1024}"]
        return R
    A("s_load_dwordx2 s[24:25], s[0:1], 88")
    A("s_lshl_b32 s45, s30, 1")
    A("s_lshl_b32 s33, s28, 3")
    A("s_add_u32 s30, s30, s33")
    A("s_lshl_b32 s55, s45, 17")
    A("s_add_u32 s34, s55, 0x180000")
    A("s_and_b32 s34, s34, 0x1fffff")
    A("s_mov_b32 s12, s72")
    A("s_mov_b32 s13, s73")
    A("s_add_u32 s35, s36, 0x10000")
    def dma_W():
        ldw = lambda t: f"buffer_load_dwordx4 v{vWd+t}, s[12:15], s34 offen offset:{1024*t} lds"
        return [["s_mov_b32 m0, s35", "s_add_u32 s35, s35, 0x4000", ldw(0)], [ldw(1)], [ldw(2)],
                [ldw(3), "s_add_u32 s34, s34, 0x40000", "s_and_b32 s34, s34, 0x1fffff"]]
    def fl(I):
        for x in I:
            for y in x: A(y)
    def mix(R, D, k):
        while R or D:
            for _ in range(k):
                if R: A(R.pop(0))
            if D:
                for y in D.pop(0): A(y)
    A(f"v_bfe_u32 v{vT0}, v{vL}, 2, 2")
    A(f"v_lshl_add_u32 v{vT1}, v{vH}, 2, v{vT0}")
    A(f"v_lshlrev_b32 v{vT1}, 7, v{vT1}")
    A(f"v_bfe_u32 v{vT0}, v{vL}, 3, 1")
    A(f"v_lshl_add_u32 v{vT1}, v{vT0}, 6, v{vT1}")
    A(f"v_bfe_u32 v{vT0}, v{vL}, 4, 1")
    A(f"v_lshl_add_u32 v{vT1}, v{vT0}, 5, v{vT1}")
    A(f"v_and_b32 v{vT0}, 1, v{vL}")
    A(f"v_lshl_add_u32 v{vT1}, v{vT0}, 4, v{vT1}")
    A(f"v_bfe_u32 v{vT0}, v{vL}, 1, 1")
    A(f"v_lshl_add_u32 v{vWr0}, v{vT0}, 3, v{vT1}")
    A(f"v_xor_b32 v{vWr0+1}, 64, v{vWr0}")
    A(f"v_mov_b32 v{vWr}, v{vWr0}")
    A(f"v_mov_b32 v{vWr+1}, v{vWr0+1}")
    A("s_waitcnt lgkmcnt(0)")
    R = []
    for st in range(8): R += stash(st)
    mix(R, dma_W() + dma_W(), 16)
    srd(A, 56, 24, 25, 2048*1024*2)
    A("s_lshl_b32 s46, s29, 2")
    A("s_add_u32 s46, s46, s20")
    A("s_lshl_b32 s46, s46, 17")
    A(f"s_add_u32 s46, s46, {WS_OF}")
    A("s_lshl_b32 s47, s28, 16")
    A("s_add_u32 s48, s46, s47")
    A("s_add_u32 s8, s26, s48")
    A("s_addc_u32 s9, s27, 0")
    A("s_mov_b32 s10, 0x10000")
    A("s_mov_b32 s11, 0x00020000")
    A("s_xor_b32 s47, s47, 0x10000")
    A("s_add_u32 s48, s46, s47")
    A("s_add_u32 s40, s26, s48")
    A("s_addc_u32 s41, s27, 0")
    A("s_lshl_b32 s32, s45, 12")
    A(f"v_add_u32 v{vT0}, s30, v{vL}")
    A(f"v_and_b32 v{vT0}, 7, v{vT0}")
    A(f"v_xor_b32 v{vT1}, s33, v{vL}")
    A(f"v_and_b32 v{vT1}, 8, v{vT1}")
    A(f"v_or_b32 v{vT0}, v{vT0}, v{vT1}")
    A(f"v_lshlrev_b32 v{vT0}, 2, v{vT0}")
    A("s_lshl_b32 s49, s29, 7")
    A(f"s_add_u32 s49, s49, {WS_FL}")
    A("s_cmp_eq_u32 s20, 0")
    A("s_cselect_b32 s53, 0, -1")
    for i in range(0, 32, 2):
        A(f"v_mov_b64 {vr(ACC+i,2)}, 0")
    A("s_add_u32 s34, s55, 0x140000")
    A("s_and_b32 s34, s34, 0x1fffff")
    A("s_add_u32 s35, s36, 0x24000")
    A(f"v_add_u32 v{vWr}, 0x20000, v{vWr0}")
    A(f"v_add_u32 v{vWr+1}, 0x20000, v{vWr0+1}")
    A("s_waitcnt vmcnt(0) lgkmcnt(0)")
    A("s_barrier")
    tstamp(A, "2")
    stamp(A, 6)
    A("s_cmp_lg_u32 s20, 0")
    A("s_cbranch_scc1 L_o_nosig")
    A(f"v_mov_b32 v{vT1}, 1")
    A(f"v_mov_b32 v{vPl}, 0")
    A("s_mov_b64 exec, 1")
    A(f"buffer_atomic_swap v{vT1}, v{vPl}, s[16:19], s69 offen sc1")
    A("s_mov_b64 exec, -1")
    A.label("L_o_nosig")
    def ld_O(j):
        I = [f"buffer_load_dwordx4 {vr(OFr+4*(j%16),4)}, v{vOd}, s[8:11], s32 offen offset:{1024*(j%4)} sc1"]
        if j % 4 == 3: I += ["s_add_u32 s32, s32, 0x1000", "s_and_b32 s32, s32, 0xffff"]
        return I
    fl(dma_W())
    for j in range(8):
        for y in ld_O(j): A(y)
    A("s_mov_b32 s12, s74")
    A("s_mov_b32 s13, s75")
    A("s_mov_b32 s34, s55")
    A("s_add_u32 s35, s36, 0x18000")
    mix(stash(8) + stash(9), dma_W() + dma_W(), 4)
    A("s_mov_b32 s35, s36")
    A("s_waitcnt vmcnt(16)")
    A("s_barrier")
    mix(stash(10) + stash(11), dma_W() + dma_W(), 4)
    def mf(st, s, c, j):
        w = wreg(st, s, c) if st < 12 else vr(WF + 32*(st % 2) + 8*s + 4*c, 4)
        return f"v_mfma_f32_32x32x16_bf16 {vr(ACC+16*c,16)}, {w}, {vr(OFr+4*(j%16),4)}, {vr(ACC+16*c,16)}"
    A("s_waitcnt vmcnt(16)")
    D = dma_W() + dma_W()
    for j in range(8):
        A(mf(j // 4, j % 4, 0, j)); A(mf(j // 4, j % 4, 1, j))
        for y in D.pop(0): A(y)
    A("s_add_u32 s35, s36, 0x20000")
    A("s_waitcnt lgkmcnt(0)")
    A("s_barrier")
    fl(dma_W()); fl(dma_W())
    A("s_mov_b32 s54, 0xff")
    A("s_and_b32 s50, s53, s54")
    A("s_cmp_lg_u32 s50, s54")
    A("s_cbranch_scc1 L_o_poll0")
    A.label("L_o_ready0")
    A("s_barrier")
    stamp(A, 7)
    tstamp(A, "2")
    for j in range(8, 16):
        for y in ld_O(j): A(y)
    def rd_W(st):
        R = []
        for s in range(4):
            for c in range(2):
                b = WF + 32*(st % 2) + 8*s + 4*c
                wo = st*0x2000 + 2048*s
                R += [f"ds_read_b64_tr_b16 {vr(b,2)}, v{vWr+c} offset:{wo}",
                      f"ds_read_b64_tr_b16 {vr(b+2,2)}, v{vWr+c} offset:{wo+1024}"]
        return R
    def stage(st, stw, rd, extra=None):
        for s in range(4):
            j = 4*st + s
            A(f"s_waitcnt vmcnt(7) lgkmcnt(12)" if stw >= 12 else "s_waitcnt vmcnt(7)")
            for c in range(2):
                A(mf(stw, s, c, j))
                for _ in range(2):
                    if rd: A(rd.pop(0))
                if c == 0:
                    for y in ld_O(j + LD): A(y)
                elif extra:
                    for y in extra.pop(0): A(y)
    A(f"v_add_u32 v{vWr}, 0x10000, v{vWr0}")
    A(f"v_add_u32 v{vWr+1}, 0x10000, v{vWr0+1}")
    A("s_mov_b32 s37, 0x10000")
    A("s_mov_b32 s39, 3")
    if "fulline" in VAR:
        A(f"v_and_b32 v24, 7, v{vL31}")
        A(f"v_xor_b32 v24, v24, v{vH}")
        A(f"v_lshlrev_b32 v24, 4, v24")
        A(f"v_lshl_add_u32 v24, v{vL31}, 7, v24")
        A("s_add_u32 s50, s36, 0x10000")
        A(f"v_add_u32 v20, s50, v24")
        for k in range(1, 4):
            A(f"v_xor_b32 v{20+k}, {32*k}, v20")
        A(f"v_add_u32 v24, s50, v{vOd}")
        A(f"v_lshrrev_b32 v25, 3, v{vL}")
        A(f"v_and_b32 v26, 7, v{vL}")
        A(f"v_xor_b32 v26, v26, v25")
        A(f"v_lshlrev_b32 v26, 4, v26")
        A(f"v_lshl_add_u32 v25, v25, 11, v26")
    for st in range(2, 12):
        stage(st % 4, st, rd_W(0) if st == 11 else None)
    A("s_mov_b32 s54, 0xffff")
    A("s_and_b32 s50, s53, s54")
    A("s_cmp_lg_u32 s50, s54")
    A("s_cbranch_scc1 L_o_poll1")
    A.label("L_o_ready1")
    A("s_barrier")
    A.raw(".p2align 6")
    A.label("L_o_loop")
    tstamp(A, "2")
    stage(0, 12, rd_W(1), [["s_add_u32 s37, s37, 0x8000", "s_and_b32 s37, s37, 0x1ffff"], ["s_cmp_eq_u32 s39, 6", "s_cselect_b32 s37, 0x20000, s37"]])
    stage(1, 13, rd_W(2))
    A("s_mov_b32 s8, s40")
    A("s_mov_b32 s9, s41")
    A("s_cmp_eq_u32 s39, 7")
    A("s_cbranch_scc1 L_o_tail")
    stage(2, 14, rd_W(3), [["s_add_u32 s39, s39, 1"]])
    A(f"v_add_u32 v{vWr}, s37, v{vWr0}")
    A(f"v_add_u32 v{vWr+1}, s37, v{vWr0+1}")
    stage(3, 15, rd_W(0))
    A("s_branch L_o_loop")
    A.label("L_o_tail")
    if "fulline" in VAR: A("s_barrier")
    R3 = rd_W(3)
    for j in range(8, 16):
        st, sq = j // 4, j % 4
        A(f"s_waitcnt vmcnt({15 - j}) lgkmcnt({12 if j < 12 else 4*(15-j)})")
        for c in range(2):
            A(mf(12 + st, sq, c, j))
            for _ in range(2):
                if R3: A(R3.pop(0))
    A("s_lshl_b32 s40, s29, 18")
    A("s_lshl_b32 s41, s20, 16")
    A("s_add_u32 s40, s40, s41")
    A("s_add_u32 s40, s40, s31")
    OST = os.environ.get('OST', 'nt')
    if "fulline" not in VAR:
        A(f"v_lshlrev_b32 v{vT0}, 11, v{vL31}")
        A(f"v_lshl_add_u32 v{vT0}, v{vH}, 4, v{vT0}")
        A("s_nop 7")
        for c in range(2):
            for j in range(8):
                A(f"v_cvt_pk_bf16_f32 v{64+8*c+j}, v{ACC+16*c+2*j}, v{ACC+16*c+2*j+1}")
            for f in range(2):
                A(f"buffer_store_dwordx4 {vr(64+8*c+4*f,4)}, v{vT0}, s[56:59], s40 offen offset:{64*c+32*f} {OST}")
    else:
        A("s_nop 7")
        for c in range(2):
            for j in range(8):
                A(f"v_cvt_pk_bf16_f32 v{64+8*c+j}, v{ACC+16*c+2*j}, v{ACC+16*c+2*j+1}")
            for f in range(2):
                A(f"ds_write_b128 v{20+2*c+f}, {vr(64+8*c+4*f,4)}")
        A("s_waitcnt lgkmcnt(0)")
        for i in range(4):
            A(f"ds_read_b128 {vr(80+4*i,4)}, v24 offset:{1024*i}")
        for i in range(4):
            A(f"s_waitcnt lgkmcnt({3-i})")
            A(f"buffer_store_dwordx4 {vr(80+4*i,4)}, v25, s[56:59], s40 offen {OST}")
            A("s_add_u32 s40, s40, 0x4000")
    if TS == "2":
        tstamp(A, "2")
        A("s_waitcnt vmcnt(0)")
        tstamp(A, "2")
    if STAMP:
        A("s_waitcnt vmcnt(0)")
        _stamp(A, 1)
        stamp_flush(A, 0, 8, 26, 27, 20)
    A("s_endpgm")
    for k in (1, 0):
        tgt = f"L_o_ready{k}"
        A.label(f"L_o_poll{k}")
        A("s_mov_b32 s48, 0")
        A.label(f"L_o_spin{k}")
        A(f"buffer_load_dword v{vPl}, v{vT0}, s[16:19], s49 offen sc1")
        A("s_waitcnt vmcnt(0)")
        A(f"v_cmp_eq_u32 vcc, 1, v{vPl}")
        A("s_add_u32 s48, s48, 1")
        A("s_cmp_gt_u32 s48, 0x40000")
        A(f"s_cbranch_scc1 {tgt}")
        A("s_nop 2")
        A("s_mov_b32 s53, vcc_lo")
        A("s_and_b32 s50, s53, s54")
        A("s_cmp_eq_u32 s50, s54")
        A(f"s_cbranch_scc1 {tgt}")
        A(f"s_sleep {int(os.environ.get('SLEEP', '2'))}")
        A(f"s_branch L_o_spin{k}")

def main(path):
    ref = open("cdna_kernels/" + NAME + ".s.ref").read().split("\n")
    hdr = [l for l in ref if l.startswith(";") and "@launch" not in l and "Override" not in l and "grid=ceil" not in l]
    B = Asm()
    d1 = gen_attn(B)
    A = Asm()
    for l in hdr: A.raw(l)
    A.raw(f"; @launch grid=(256,1,1) block=(256,1,1) lds={LDS_ATTN}")
    A.raw('.amdgcn_target "amdgcn-amd-amdhsa--gfx950"')
    A.raw(".text")
    A.lines += B.lines
    A.raw("L_code_end:")
    A.raw('.section .rodata,"a"')
    for d in (d1,):
        A.raw(".p2align 6")
        A.raw(d)
    open(path, "w").write(A.text())

if __name__ == "__main__":
    main(sys.argv[1] if len(sys.argv) > 1 else "cdna_kernels/" + NAME + ".s")
```

```python
import sys, math, struct, os
from asmlib import *

NAME = "gated_mix__grouped_kv_mqa__grouped_kv_mqa__prompt"
WS_KV = 0
WS_G = 0x80000
WS_FL = 0x90000
WS_OF = 0x100000
WS_USED = 0x900000
STAMP = os.environ.get("STAMP", "0") == "1"
VAR = os.environ.get("VAR", "")
XNT = "nt" if "xnt" in VAR else ""
WNT = "nt" if "wnt" in VAR else ""
WS_ST = 0xA00000

FINE = os.environ.get("FINE", "0") == "1"
TS = os.environ.get("TS", "0")
def tstamp(A, ph="1"):
    if TS != ph: return
    A("s_waitcnt lgkmcnt(0)")
    A("s_memtime s[96:97]")
    A("s_memrealtime s[98:99]")
    A("s_waitcnt lgkmcnt(0)")
    A("v_mov_b32 v6, s96")
    A("v_mov_b32 v7, s98")
    A("v_mov_b32 v5, 0")
    A("buffer_store_dwordx2 v[6:7], v5, s[92:95], s100 offen")
    A("s_add_u32 s100, s100, 8")
def tstamp_init(A, wsl, wsh, wave_sgpr, kern):
    if TS == "0": return
    A(f"s_mov_b32 s92, s{wsl}")
    A(f"s_mov_b32 s93, s{wsh}")
    A(f"s_mov_b32 s94, {0xC00000}")
    A("s_mov_b32 s95, 0x00020000")
    A("s_lshl_b32 s100, s2, 2")
    A(f"s_add_u32 s100, s100, s{wave_sgpr}")
    A("s_lshl_b32 s100, s100, 9")
    A(f"s_add_u32 s100, s100, {0xA00000 + kern*0x80000}")
def fstamp(A, k):
    if FINE: _stamp(A, k)
def stamp(A, k):
    if FINE and k not in (0,): return
    _stamp(A, k)
def _stamp(A, k):
    if not STAMP: return
    A("s_waitcnt lgkmcnt(0)")
    A(f"s_memtime s[96:97]")
    A(f"s_memrealtime s[98:99]")
    A("s_waitcnt lgkmcnt(0)")
    A(f"s_mov_b32 s{76+k}, s96")
    A(f"s_mov_b32 s{84+k}, s98")
def stamp_flush(A, kern, n, wsl, wsh, wave_sgpr):
    if not STAMP: return
    A(f"s_mov_b32 s92, s{wsl}")
    A(f"s_mov_b32 s93, s{wsh}")
    A(f"s_mov_b32 s94, {WS_ST + 0x40000}")
    A("s_mov_b32 s95, 0x00020000")
    A("s_lshl_b32 s96, s2, 2")
    A(f"s_add_u32 s96, s96, s{wave_sgpr}")
    A("s_lshl_b32 s96, s96, 6")
    A(f"s_add_u32 s96, s96, {WS_ST + kern*0x10000}")
    A("v_mov_b32 v1, 0")
    for k in range(n):
        A(f"v_mov_b32 v2, s{76+k}")
        A(f"buffer_store_dword v2, v1, s[92:95], s96 offen offset:{4*k}")
        A("s_nop 1")
        A(f"v_mov_b32 v2, s{84+k}")
        A(f"buffer_store_dword v2, v1, s[92:95], s96 offen offset:{32+4*k}")
        A("s_nop 1")

def f32bits(x):
    return struct.unpack("<I", struct.pack("<f", x))[0]
KSCALE = f32bits(math.log2(math.e) / math.sqrt(32.0))
LOG2E = f32bits(math.log2(math.e))

def weave(A, M, streams):
    for k, m in enumerate(M):
        A(m)
        for items, q in streams:
            for _ in range(q(k)):
                if items:
                    x = items.pop(0)
                    if isinstance(x, (list, tuple)):
                        for y in x: A(y)
                    else: A(x)
    for items, q in streams:
        while items:
            x = items.pop(0)
            if isinstance(x, (list, tuple)):
                for y in x: A(y)
            else: A(x)

LDS_SCR = 0x20000
LDS_DUMMY = 0x27C00
LDS_ATTN = 163840

def gen_attn(A):
    name = NAME + "_kernel"
    kernel_header(A, name)
    S0, C0, O0, Q0 = 32, 96, 160, 224
    L0, KB0, VB0, SEL, GF, FR = 0, 16, 32, 48, 64, 128
    vL, vH, vL31, vW_ = 1, 2, 3, 4
    vXd, vWd = 8, 12
    vXr, vWr = 16, 20
    vKV, vIDX, vT0, vT1, vG = 22, 23, 24, 25, 26
    vLane16, vLin, vPoll, vT2 = 28, 29, 30, 31
    ACC = S0
    PACC, GACC = Q0, Q0 + 16
    vPd, vPr, vPw = C0, C0 + 4, C0 + 8
    vRed = C0 + 12
    A("s_cmp_ge_u32 s2, 256")
    A("s_cbranch_scc1 L_at_end")
    stamp(A, 0)
    if "epf" in VAR:
        A("s_getpc_b64 s[72:73]")
        for k in range(1, 7):
            A(f"s_load_dword s74, s[72:73], {128*k}")
    A("s_load_dwordx8 s[4:11], s[0:1], 0")
    A("s_load_dwordx2 s[64:65], s[0:1], 32")
    A("s_load_dwordx8 s[12:19], s[0:1], 48")
    A("s_load_dwordx2 s[66:67], s[0:1], 80")
    A("s_load_dwordx4 s[24:27], s[0:1], 96")
    A("s_and_b32 s28, s2, 1")
    A("s_bfe_u32 s29, s2, 0x20001")
    A("s_bfe_u32 s30, s2, 0x20003")
    A("s_lshl_b32 s29, s29, 2")
    A("s_add_u32 s29, s29, s30")
    A("s_lshr_b32 s30, s2, 5")
    A("s_lshr_b32 s31, s2, 7")
    A("s_and_b32 s23, s30, 3")
    A("s_lshl_b32 s33, s29, 2")
    A("s_add_u32 s33, s33, s23")
    A("s_lshl_b32 s34, s31, 1")
    A("s_add_u32 s34, s34, s23")
    A("s_and_b32 s34, s34, 3")
    A("s_and_b32 s37, s29, 3")
    A("s_lshl_b32 s37, s37, 1")
    A("s_add_u32 s37, s37, s30")
    A("s_lshl_b32 s37, s37, 1")
    A("s_and_b32 s37, s37, 15")
    A("s_lshl_b32 s38, s29, 18")
    A("s_lshl_b32 s39, s30, 8")
    A(f"v_lshrrev_b32 v{vW_}, 6, v0")
    A(f"v_and_b32 v{vL}, 63, v0")
    A(f"v_readfirstlane_b32 s20, v{vW_}")
    A(f"v_lshrrev_b32 v{vH}, 5, v{vL}")
    A(f"v_and_b32 v{vL31}, 31, v{vL}")
    A(f"v_lshlrev_b32 v{vLane16}, 4, v{vL}")
    A(f"v_lshl_add_u32 v{vLin}, v{vW_}, 12, v{vLane16}")
    A(f"v_lshrrev_b32 v{vT0}, 3, v{vL}")
    A(f"v_lshl_add_u32 v{vT0}, v{vW_}, 5, v{vT0}")
    A(f"v_lshlrev_b32 v{vT0}, 11, v{vT0}")
    A(f"v_lshrrev_b32 v{vT1}, 4, v{vL}")
    A(f"v_and_b32 v5, 7, v{vL}")
    A(f"v_xor_b32 v5, v5, v{vT1}")
    A(f"v_lshl_add_u32 v{vXd}, v5, 4, v{vT0}")
    A(f"v_xor_b32 v{vXd+1}, 64, v{vXd}")
    A(f"v_add_u32 v{vXd+1}, {16384-1024}, v{vXd+1}")
    A(f"v_add_u32 v{vXd+2}, {2*(16384-1024)}, v{vXd}")
    A(f"v_add_u32 v{vXd+3}, {2*(16384-1024)}, v{vXd+1}")
    A(f"v_lshl_add_u32 v{vT0}, v{vW_}, 4, v{vT1}")
    A(f"v_lshlrev_b32 v{vT0}, 11, v{vT0}")
    A(f"v_lshlrev_b32 v{vT1}, 2, v{vT1}")
    A(f"v_and_b32 v5, 15, v{vL}")
    A(f"v_xor_b32 v5, v5, v{vT1}")
    A(f"v_lshl_add_u32 v{vWd}, v5, 4, v{vT0}")
    for t in range(1, 4):
        A(f"v_add_u32 v{vWd+t}, {t*(8192-1024)}, v{vWd}")
    A("s_waitcnt lgkmcnt(0)")
    fstamp(A, 1)
    if os.environ.get("WSOFF"):
        A(f"s_add_u32 s26, s26, {int(os.environ['WSOFF'], 0)}")
        A("s_addc_u32 s27, s27, 0")
    A("s_cmp_eq_u32 s28, 1")
    A("s_cselect_b64 s[6:7], s[12:13], s[6:7]")
    A("s_cselect_b64 s[8:9], s[14:15], s[8:9]")
    A("s_cselect_b64 s[10:11], s[16:17], s[10:11]")
    A("s_cselect_b64 s[72:73], s[18:19], s[64:65]")
    A("s_cselect_b64 s[74:75], s[64:65], s[18:19]")
    A("s_cmp_eq_u32 s31, 1")
    A("s_cselect_b64 s[8:9], s[10:11], s[8:9]")
    A("s_cselect_b64 s[64:65], s[18:19], s[64:65]")
    srd(A, 40, 8, 9, 1024*32*2)
    srd(A, 8, 4, 5, 2048*1024*2)
    srd(A, 12, 6, 7, 1024*1024*2)
    srd(A, 56, 66, 67, 2048)
    A("s_lshl_b32 s36, s20, 12")
    A("s_lshl_b32 s35, s33, 16")
    def dma_P(n):
        slot = (n % 4) * 0x8000
        I = []
        I.append([f"s_add_u32 m0, s36, {slot}", "s_lshl_b32 s48, s34, 9", "s_add_u32 s48, s48, s35",
                  f"buffer_load_dwordx4 v{vPd}, s[8:11], s48 offen lds"])
        for t in range(1, 4):
            I.append(f"buffer_load_dwordx4 v{vPd+t}, s[8:11], s48 offen offset:{1024*t} lds")
        I.append([f"s_add_u32 m0, s36, {slot+0x4000}", "s_lshl_b32 s49, s34, 14",
                  f"buffer_load_dwordx4 v{vLin}, s[40:43], s49 offen lds"])
        for t in range(1, 4):
            I.append(f"buffer_load_dwordx4 v{vLin}, s[40:43], s49 offen offset:{1024*t} lds")
        I.append(["s_add_u32 s34, s34, 1", "s_and_b32 s34, s34, 3"])
        return I
    def dma_G(n):
        slot = (n % 4) * 0x8000
        I = []
        I.append([f"s_add_u32 m0, s36, {slot}", "s_lshl_b32 s48, s37, 7", "s_add_u32 s48, s48, s38",
                  f"buffer_load_dwordx4 v{vXd}, s[8:11], s48 offen {XNT} lds"])
        for t in range(1, 4):
            I.append(f"buffer_load_dwordx4 v{vXd+t}, s[8:11], s48 offen offset:{1024*t} {XNT} lds")
        I.append([f"s_add_u32 m0, s36, {slot+0x4000}", "s_lshl_b32 s49, s37, 17", "s_add_u32 s49, s49, s39",
                  f"buffer_load_dwordx4 v{vWd}, s[12:15], s49 offen {WNT} lds"])
        for t in range(1, 4):
            I.append(f"buffer_load_dwordx4 v{vWd+t}, s[12:15], s49 offen offset:{1024*t} {WNT} lds")
        I.append(["s_add_u32 s37, s37, 1", "s_and_b32 s37, s37, 15"])
        return I
    def dma_C(c):
        slot = (c % 4) * 0x8000
        I = []
        I.append([f"s_add_u32 m0, s36, {slot}", f"s_mov_b32 s48, {c*0x8000}",
                  f"buffer_load_dwordx4 v{vLin}, s[44:47], s48 offen sc1 lds"])
        for t in range(1, 4):
            I.append(f"buffer_load_dwordx4 v{vLin}, s[44:47], s48 offen offset:{1024*t} sc1 lds")
        I.append([f"s_add_u32 m0, s36, {slot+0x4000}", f"s_mov_b32 s49, {c*0x8000+0x4000}",
                  f"buffer_load_dwordx4 v{vLin}, s[44:47], s49 offen sc1 lds"])
        for t in range(1, 4):
            I.append(f"buffer_load_dwordx4 v{vLin}, s[44:47], s49 offen offset:{1024*t} sc1 lds")
        return I
    def flat(I):
        for x in I:
            if isinstance(x, (list, tuple)):
                for y in x: A(y)
            else: A(x)
    ORDER = ["G", "G", "P", "P", "P", "P"] + ["G"] * 14
    PIDX = {n: k for k, n in enumerate([n for n in range(20) if ORDER[n] == "P"])}
    PLAST = max(PIDX)
    def dma(n):
        if n >= 20: return dma_C(n - 20)
        return dma_P(n) if ORDER[n] == "P" else dma_G(n)
    flat(dma(0))
    fstamp(A, 2)
    A(f"s_mov_b32 m0, {LDS_DUMMY}")
    A("s_bfe_u32 s48, s2, 0x40003")
    A("s_lshl_b32 s48, s48, 12")
    A("s_lshl_b32 s49, s20, 10")
    A("s_add_u32 s48, s48, s49")
    A(f"buffer_load_dwordx4 v{vLane16}, s[40:43], s48 offen lds")
    if "cpf" in VAR:
        A("s_getpc_b64 s[72:73]")
        A.label("L_at_pc")
        A("s_lshr_b32 s48, s2, 3")
        A("s_lshl_b32 s48, s48, 2")
        A("s_add_u32 s48, s48, s20")
        A("s_lshl_b32 s48, s48, 8")
        A("s_min_u32 s48, s48, L_code_end-L_at_pc-256")
        A("s_add_u32 s72, s72, s48")
        A("s_addc_u32 s73, s73, 0")
        for q in range(4):
            A(f"s_load_dword s74, s[72:73], {64*q}")
    srd(A, 16, 26, 27, WS_USED)
    srd(A, 52, 64, 65, 1024*1024*2)
    srd(A, 60, 24, 25, 256)
    A("s_load_dwordx2 s[64:65], s[0:1], 88")
    A("s_lshl_b32 s48, s28, 18")
    A("s_add_u32 s44, s26, s48")
    A("s_addc_u32 s45, s27, 0")
    A("s_mov_b32 s46, 0x40000")
    A("s_mov_b32 s47, 0x00020000")
    A("s_lshr_b32 s22, s20, 1")
    A("s_and_b32 s21, s20, 1")
    A("s_bfe_u32 s68, s2, 0x40003")
    A("s_lshl_b32 s68, s68, 2")
    A("s_add_u32 s68, s68, s20")
    A("s_lshl_b32 s68, s68, 15")
    A("s_lshl_b32 s69, s28, 10")
    A("s_add_u32 s68, s68, s69")
    A("s_or_b32 s70, s28, s31")
    A(f"v_lshl_add_u32 v{vT0}, v{vW_}, 3, v{vH}")
    A(f"v_and_b32 v{vT1}, 15, v{vT0}")
    A(f"v_xor_b32 v{vT1}, v{vT1}, v{vL31}")
    A(f"v_lshlrev_b32 v{vT1}, 4, v{vT1}")
    A(f"v_lshl_add_u32 v{vPd}, v{vT0}, 11, v{vT1}")
    for t in range(1, 4):
        A(f"v_xor_b32 v{vPd+t}, {(2*t) << 4}, v{vPd}")
        A(f"v_add_u32 v{vPd+t}, {t*(4096-1024)}, v{vPd+t}")
    A(f"v_lshl_add_u32 v{vT0}, v{vW_}, 3, v{vH}")
    A(f"v_and_b32 v{vT1}, 15, v{vL31}")
    A(f"v_xor_b32 v{vT0}, v{vT0}, v{vT1}")
    A(f"v_lshlrev_b32 v{vT0}, 4, v{vT0}")
    A(f"v_lshl_add_u32 v{vPr}, v{vL31}, 9, v{vT0}")
    for s in range(1, 4):
        A(f"v_xor_b32 v{vPr+s}, {(2*s) << 4}, v{vPr}")
    A(f"v_bfe_u32 v{vT0}, v{vL}, 2, 2")
    A(f"v_lshl_add_u32 v{vT0}, v{vH}, 3, v{vT0}")
    A(f"v_lshl_add_u32 v{vT0}, v{vW_}, 6, v{vT0}")
    A(f"v_lshlrev_b32 v{vT0}, 6, v{vT0}")
    A(f"v_bfe_u32 v{vT1}, v{vL}, 4, 1")
    A(f"v_lshl_add_u32 v{vT0}, v{vT1}, 5, v{vT0}")
    A(f"v_and_b32 v{vT1}, 3, v{vL}")
    A(f"v_lshl_add_u32 v{vT0}, v{vT1}, 3, v{vT0}")
    A(f"v_add_u32 v{vPw}, 0x4000, v{vT0}")
    A(f"v_bfe_u32 v{vT0}, v{vL}, 1, 3")
    A(f"v_xor_b32 v{vT0}, v{vT0}, v{vH}")
    A(f"v_lshlrev_b32 v{vT0}, 4, v{vT0}")
    A(f"v_lshl_add_u32 v{vT0}, v{vL31}, 7, v{vT0}")
    A(f"s_lshl_b32 s48, s22, 13")
    A(f"v_add_u32 v{vXr}, s48, v{vT0}")
    for s in range(1, 4):
        A(f"v_xor_b32 v{vXr+s}, {(2*s) << 4}, v{vXr}")
    A(f"v_bfe_u32 v{vT0}, v{vL}, 2, 2")
    A(f"v_lshl_add_u32 v{vT1}, v{vH}, 3, v{vT0}")
    A(f"v_lshlrev_b32 v{vT1}, 8, v{vT1}")
    A(f"s_lshl_b32 s48, s21, 1")
    A(f"v_xor_b32 v{vT0}, s48, v{vT0}")
    A(f"v_lshl_add_u32 v{vT1}, v{vT0}, 6, v{vT1}")
    A(f"v_bfe_u32 v{vT0}, v{vL}, 4, 1")
    A(f"v_lshl_add_u32 v{vT1}, v{vT0}, 5, v{vT1}")
    A(f"v_and_b32 v{vT0}, 3, v{vL}")
    A(f"v_lshl_add_u32 v{vT1}, v{vT0}, 3, v{vT1}")
    A(f"v_add_u32 v{vWr}, 0x4000, v{vT1}")
    A(f"v_xor_b32 v{vWr+1}, 64, v{vWr}")
    for i in range(0, 32, 2):
        A(f"v_mov_b64 {vr(PACC+i,2)}, 0")
    for i in range(0, 64, 2):
        A(f"v_mov_b64 {vr(ACC+i,2)}, 0")
    side = []
    side.append(f"v_mov_b32 v{vIDX}, 0xdddddddd")
    side += [f"v_and_b32 v{vT0}, 15, v{vL}", f"v_mov_b32 v{vT1}, 0x3f803f80", f"v_cmp_eq_u32 vcc, 0, v{vT0}", "s_nop 1",
             f"v_cndmask_b32 v{vT2}, 0, v{vT1}, vcc", f"v_cmp_eq_u32 vcc, 4, v{vT0}", "s_nop 1",
             f"v_cndmask_b32 v{vT1}, 0, v{vT1}, vcc",
             f"v_accvgpr_write_b32 a{SEL}, v{vT2}", f"v_accvgpr_write_b32 a{SEL+1}, v{vT2}",
             f"v_accvgpr_write_b32 a{SEL+2}, v{vT1}", f"v_accvgpr_write_b32 a{SEL+3}, v{vT1}"]
    side += [f"v_accvgpr_write_b32 a{L0+i}, 0" for i in range(16)]
    side += [f"v_accvgpr_write_b32 a{VB0+8+i}, 0" for i in range(8)]
    side += [f"v_mov_b64 {vr(O0+i,2)}, 0" for i in range(0, 64, 2)]
    side.append(f"v_mov_b32 v{vKV}, v{vLane16}")
    for x in side: A(x)
    tstamp_init(A, 26, 27, 20, 0)
    tstamp(A)
    fstamp(A, 3)
    flat(dma(1))
    fstamp(A, 4)
    stamp(A, 1)
    def rd_P(n):
        off = (n % 2) * 0x8000
        b = FR + 64*(n % 2)
        R = []
        for s in range(4):
            R.append(f"ds_read_b128 {ar(b+8*s,4)}, v{vPr+s} offset:{off}")
            R.append(f"ds_read_b64_tr_b16 {ar(b+8*s+4,2)}, v{vPw} offset:{off+1024*s}")
            R.append(f"ds_read_b64_tr_b16 {ar(b+8*s+6,2)}, v{vPw} offset:{off+1024*s+256}")
        return R
    def mf_P(n):
        b = FR + 64*(n % 2)
        A("s_cmp_eq_u32 s31, 1")
        A(f"s_cbranch_scc1 L_at_pv{n}")
        for s in range(4):
            A(f"v_mfma_f32_32x32x16_bf16 {vr(PACC,16)}, {ar(b+8*s+4,4)}, {ar(b+8*s,4)}, {vr(PACC,16)}")
        A("s_cmp_lg_u32 s70, 0")
        A(f"s_cbranch_scc1 L_at_pj{n}")
        for s in range(4):
            A(f"v_mfma_f32_32x32x16_bf16 {vr(GACC,16)}, {ar(GF+16*PIDX[n]+4*s,4)}, {ar(b+8*s,4)}, {vr(GACC,16)}")
        A(f"s_branch L_at_pj{n}")
        A.label(f"L_at_pv{n}")
        for s in range(4):
            A(f"v_mfma_f32_32x32x16_bf16 {vr(PACC,16)}, {ar(b+8*s,4)}, {ar(b+8*s+4,4)}, {vr(PACC,16)}")
        A.label(f"L_at_pj{n}")
    def rd_G(n):
        off = (n % 2) * 0x8000
        b = FR + 64*(n % 2)
        R = []
        for s in range(4):
            p = b + 16*s
            R.append(f"ds_read_b128 {ar(p,4)}, v{vXr+s} offset:{off}")
            R.append(f"ds_read_b64_tr_b16 {ar(p+8,2)}, v{vWr} offset:{off+4096*s}")
            R.append(f"ds_read_b64_tr_b16 {ar(p+10,2)}, v{vWr} offset:{off+4096*s+1024}")
            R.append(f"ds_read_b128 {ar(p+4,4)}, v{vXr+s} offset:{off+4096}")
            R.append(f"ds_read_b64_tr_b16 {ar(p+12,2)}, v{vWr+1} offset:{off+4096*s}")
            R.append(f"ds_read_b64_tr_b16 {ar(p+14,2)}, v{vWr+1} offset:{off+4096*s+1024}")
        return R
    def mf_G(n, by_u=False):
        b = FR + 64*(n % 2)
        M = []
        order = [(s, a, t) for s in range(4) for a in range(2) for t in range(2)]
        if by_u: order = [(s, a, t) for a in range(2) for t in range(2) for s in range(4)]
        for (s, a, t) in order:
            p = b + 16*s; u = 2*a + t
            M.append(f"v_mfma_f32_32x32x16_bf16 {vr(ACC+16*u,16)}, {ar(p+8+4*a,4)}, {ar(p+4*t,4)}, {vr(ACC+16*u,16)}")
        return M
    def toggle(regs):
        return [f"v_xor_b32 v{r}, 0x10000, v{r}" for r in regs]
    Pregs = [vPr+s for s in range(4)] + [vPw]
    Gregs = [vXr+s for s in range(4)] + [vWr, vWr+1]
    hi = {"P": 0, "G": 0}
    for n in range(20):
        A.comment(f"---- iteration {n} ({ORDER[n]})")
        A(f"s_waitcnt vmcnt({9 if n in (8, 9, 17) else 8}) lgkmcnt(0)")
        A("s_barrier")
        tstamp(A)
        if n == 6: stamp(A, 2)
        if n == 0: fstamp(A, 5)
        if n == 1: fstamp(A, 6)
        D = dma(n + 2)
        assert hi[ORDER[n]] == (n >> 1) & 1
        R = rd_P(n) if ORDER[n] == "P" else rd_G(n)
        V = []
        T = []
        if n + 1 < 20 and hi[ORDER[n+1]] != ((n + 1) >> 1) & 1:
            T = toggle(Pregs if ORDER[n+1] == "P" else Gregs)
            hi[ORDER[n+1]] ^= 1
        if n == 18:
            A(f"v_cmp_gt_u32 vcc, 4, v{vPoll}")
            A("s_nop 4")
            A("s_cmp_eq_u64 vcc, 0")
            A("s_cbranch_scc1 L_at_flags_ok")
            A("s_mov_b32 s50, 0")
            A.label("L_at_spin")
            A("s_add_u32 s50, s50, 1")
            A("s_cmp_gt_u32 s50, 0x40000")
            A("s_cbranch_scc1 L_at_flags_ok")
            A("s_sleep 8")
            A(f"buffer_load_dword v{vPoll}, v{vT2}, s[60:63], 0 offen sc1")
            A("s_waitcnt vmcnt(0)")
            A(f"v_cmp_gt_u32 vcc, 4, v{vPoll}")
            A("s_nop 4")
            A("s_cmp_eq_u64 vcc, 0")
            A("s_cbranch_scc0 L_at_spin")
            A.label("L_at_flags_ok")
        if n == 0:
            A("s_cmp_lg_u32 s70, 0")
            A("s_cbranch_scc1 L_at_nogf")
            A(f"v_lshlrev_b32 v{vT0}, 4, v{vH}")
            A(f"v_lshl_add_u32 v{vT0}, v{vW_}, 7, v{vT0}")
            A("s_mov_b32 s50, s34")
            for q in range(4):
                A("s_lshl_b32 s51, s50, 9")
                for s in range(4):
                    A(f"buffer_load_dwordx4 {ar(GF+16*q+4*s,4)}, v{vT0}, s[56:59], s51 offen offset:{32*s}")
                A("s_add_u32 s50, s50, 1")
                A("s_and_b32 s50, s50, 3")
            A.label("L_at_nogf")
        if n == 0 or ORDER[n-1] == "P":
            for x in R: A(x)
            flat(D[:4])
            if n > 0: mf_P(n - 1)
            flat(D[4:])
            for x in T: A(x)
            if n - 1 == PLAST:
                A(f"s_mul_i32 s50, s20, 0x1200")
                A(f"s_add_u32 s50, s50, {LDS_SCR}")
                A(f"v_add_u32 v{vRed}, s50, v{vLane16}")
                A(f"v_lshlrev_b32 v{vRed+1}, 2, v{vL}")
                A(f"v_add_u32 v{vRed+2}, s50, v{vRed+1}")
                A("s_nop 7")
                for rg in range(4):
                    A(f"ds_write_b128 v{vRed}, {vr(PACC+4*rg,4)} offset:{1024*rg}")
                A(f"ds_write_b32 v{vRed+2}, v{GACC} offset:4096")
                A(f"v_lshl_add_u32 v{vRed}, v{vW_}, 10, v{vLane16}")
                A(f"v_add_u32 v{vRed}, {LDS_SCR}, v{vRed}")
                A(f"v_add_u32 v{vRed+2}, {LDS_SCR+4096}, v{vRed+1}")
            continue
        if n == 7:
            assert PLAST == 5
            for ww in range(4):
                A(f"ds_read_b128 {vr(Q0+4*ww,4)}, v{vRed} offset:{0x1200*ww}")
            for ww in range(4):
                A(f"ds_read_b32 v{Q0+16+ww}, v{vRed+2} offset:{0x1200*ww}")
            V += ["s_nop 0", "s_nop 0", "s_waitcnt lgkmcnt(6)"]
        post = []
        if n == 7:
            for e in range(0, 4, 2):
                V.append([f"v_add_f32 v{Q0+e}, v{Q0+e}, v{Q0+4+e}", f"v_add_f32 v{Q0+8+e}, v{Q0+8+e}, v{Q0+12+e}",
                          f"v_add_f32 v{Q0+e+1}, v{Q0+e+1}, v{Q0+5+e}", f"v_add_f32 v{Q0+9+e}, v{Q0+9+e}, v{Q0+13+e}"])
            V.append([f"v_add_f32 v{Q0+e}, v{Q0+e}, v{Q0+8+e}" for e in range(4)])
            V.append(["s_mov_b32 s50, 1.0", "s_cmp_eq_u32 s31, 1", f"s_cselect_b32 s50, s50, {KSCALE:#x}", "s_cselect_b64 vcc, -1, 0"])
            V.append([f"v_mul_f32 v{Q0+e}, s50, v{Q0+e}" for e in range(4)])
            V.append([f"v_cvt_pk_bf16_f32 v{Q0+4}, v{Q0}, v{Q0+1}", f"v_cvt_pk_bf16_f32 v{Q0+5}, v{Q0+2}, v{Q0+3}"])
            V.append([f"v_bfe_u32 v{vT0}, v{vL31}, 2, 1", f"v_bfe_u32 v{vT1}, v{vL31}, 3, 1", f"v_and_b32 v{vRed}, 0x13, v{vL31}"])
            V.append([f"v_lshl_add_u32 v{vRed}, v{vT0}, 3, v{vRed}", f"v_lshl_add_u32 v{vRed}, v{vT1}, 2, v{vRed}",
                      f"v_cndmask_b32 v{vRed}, v{vRed}, v{vL31}, vcc"])
            V.append([f"v_lshl_add_u32 v{vRed}, v{vH}, 5, v{vRed}", f"v_lshlrev_b32 v{vRed}, 4, v{vRed}"])
            V.append(["s_lshl_b32 s50, s33, 12", "s_lshl_b32 s51, s31, 11", "s_add_u32 s50, s50, s51", "s_lshl_b32 s51, s22, 10"])
            V.append(["s_add_u32 s50, s50, s51", "s_lshl_b32 s51, s21, 3", "s_add_u32 s50, s50, s51"])
            V.append([f"v_add_f32 v{Q0+16}, v{Q0+16}, v{Q0+17}", f"v_add_f32 v{Q0+18}, v{Q0+18}, v{Q0+19}", f"v_add_f32 v{Q0+16}, v{Q0+16}, v{Q0+18}"])
            V.append([f"v_mul_f32 v{Q0+16}, {LOG2E ^ 0x80000000:#x}, v{Q0+16}", f"v_exp_f32 v{Q0+16}, v{Q0+16}", "s_nop 0",
                      f"v_add_f32 v{Q0+16}, 1.0, v{Q0+16}", f"v_rcp_f32 v{Q0+16}, v{Q0+16}", f"v_lshlrev_b32 v{vRed+1}, 2, v{vL31}"])
            post.append(f"buffer_store_dwordx2 {vr(Q0+4,2)}, v{vRed}, s[44:47], s50 offen sc1")
            post.append("s_cmp_lg_u32 s20, 0")
            post.append("s_cbranch_scc1 L_at_nogst")
            post.append("s_lshl_b32 s69, s29, 7")
            post.append("s_lshl_b32 s51, s28, 5")
            post.append("s_add_u32 s69, s69, s51")
            post.append("s_lshl_b32 s51, s30, 2")
            post.append("s_add_u32 s69, s69, s51")
            post.append(f"s_add_u32 s69, s69, {WS_FL}")
            post.append(f"v_mov_b32 v{vT0}, 0")
            post.append("s_mov_b64 exec, 1")
            post.append(f"buffer_atomic_swap v{vT0}, v{vT0}, s[16:19], s69 offen sc1")
            post.append("s_mov_b64 exec, -1")
            post.append("s_or_b32 s51, s70, s20")
            post.append("s_cmp_lg_u32 s51, 0")
            post.append("s_cbranch_scc1 L_at_nogst")
            post.append("s_lshl_b32 s51, s33, 7")
            post.append(f"s_add_u32 s51, s51, {WS_G}")
            post.append(f"buffer_store_dword v{Q0+16}, v{vRed+1}, s[16:19], s51 offen sc1")
            post.append("L_at_nogst:")
        if n == 10:
            post.append("s_cmp_lg_u32 s20, 0")
            post.append("s_cbranch_scc1 L_at_nosig")
            post.append("s_and_b32 s50, s2, 63")
            post.append("s_lshl_b32 s50, s50, 2")
            post.append(f"v_mov_b32 v{vT0}, 1")
            post.append(f"v_mov_b32 v{vT1}, 0")
            post.append("s_mov_b64 exec, 1")
            post.append(f"buffer_atomic_add v{vT0}, v{vT1}, s[60:63], s50 offen sc1")
            post.append("s_mov_b64 exec, -1")
            post.append("L_at_nosig:")
        if n == 16:
            V.append(f"v_lshlrev_b32 v{vT2}, 2, v{vL}")
            post.append(f"buffer_load_dword v{vPoll}, v{vT2}, s[60:63], 0 offen sc1")
        if n == 18:
            V += [f"v_lshrrev_b32 v{vT0}, 3, v{vL}", f"v_lshl_add_u32 v{vT0}, v{vW_}, 5, v{vT0}", f"v_lshlrev_b32 v{vT0}, 11, v{vT0}",
                  f"v_bfe_u32 v{vT1}, v{vL}, 4, 1", f"v_lshlrev_b32 v{vT1}, 2, v{vT1}", f"v_and_b32 v5, 7, v{vL}",
                  f"v_xor_b32 v5, v5, v{vT1}", f"v_lshl_add_u32 v{vWd}, v5, 4, v{vT0}",
                  ["s_lshl_b32 s31, s28, 3", "s_add_u32 s31, s31, s30", "s_lshl_b32 s31, s31, 7"],
                  f"v_add_u32 v{vWd}, s31, v{vWd}"]
            V += [f"v_add_u32 v{vWd+t}, {t*(16384-1024)}, v{vWd}" for t in range(1, 4)]
        if n == 19:
            V += [f"v_mov_b32 v{vXd+t}, v{vLin}" for t in range(4)]
            V += [["s_lshl_b32 s40, s29, 2", "s_lshl_b32 s41, s22, 1", "s_add_u32 s40, s40, s41"],
                  ["s_lshl_b32 s40, s40, 17", "s_lshl_b32 s41, s28, 5", "s_lshl_b32 s50, s30, 2"],
                  ["s_add_u32 s41, s41, s50", "s_lshl_b32 s50, s21, 1", "s_add_u32 s41, s41, s50"],
                  ["s_lshl_b32 s41, s41, 11", "s_add_u32 s40, s40, s41", f"s_add_u32 s40, s40, {WS_OF}"],
                  ["s_add_u32 s41, s40, 0x20000", "s_mov_b32 s42, s40"],
                  ["s_mov_b32 s56, s64", "s_mov_b32 s57, s65", f"s_mov_b32 s58, {2048*1024*2}"],
                  ["s_lshl_b32 s43, s29, 18", "s_lshl_b32 s50, s20, 16", "s_add_u32 s43, s43, s50"],
                  ["s_add_u32 s43, s43, s31", "v_mov_b32 v5, 0"]]
        M = mf_G(n - 1)
        weave(A, M, [(R, lambda k: 2), (D, lambda k: 1 if k % 2 == 1 else 0), (V, lambda k: 1), (T, lambda k: 2 if k >= 12 else 0)])
        for x in post: A(x)
    A("s_waitcnt vmcnt(8) lgkmcnt(0)")
    A("s_barrier")
    stamp(A, 3)
    tstamp(A)
    def cvtQ(u):
        return [f"v_cvt_pk_bf16_f32 v{Q0+8*u+j}, v{ACC+16*u+2*j}, v{ACC+16*u+2*j+1}" for j in range(8)]
    def QK(u, c):
        return [f"v_mfma_f32_32x32x16_bf16 {vr(S0+16*u,16)}, {ar(KB0,4)}, {vr(Q0+8*u,4)}, {c}",
                f"v_mfma_f32_32x32x16_bf16 {vr(S0+16*u,16)}, {ar(KB0+4,4)}, {vr(Q0+8*u+4,4)}, {vr(S0+16*u,16)}"]
    def max16(b):
        L = [f"v_max3_f32 v{b}, v{b}, v{b+1}, v{b+2}"]
        for j in range(3, 15, 2):
            L.append(f"v_max3_f32 v{b}, v{b}, v{b+j}, v{b+j+1}")
        L.append(f"v_max_f32 v{b}, v{b}, v{b+15}")
        return L
    def fill_C(u, b):
        L = [f"v_mov_b32 v{b+1}, v{b}", "s_nop 1", f"v_permlane32_swap_b32 v{b}, v{b+1}", "s_nop 1",
             f"v_max_f32 v{b}, v{b}, v{b+1}", f"v_sub_f32 v{C0+16*u}, 0, v{b}", f"v_sub_f32 v{C0+16*u+1}, 0, v{b}"]
        for j in range(2, 16, 2):
            L.append(f"v_mov_b64 {vr(C0+16*u+j,2)}, {vr(C0+16*u,2)}")
        return L
    G = mf_G(19, by_u=True)
    ldc = lambda t: f"buffer_load_dwordx4 v{vXd+t}, s[44:47], s32 offen offset:{1024*t} sc1 lds"
    ldw = lambda t: f"buffer_load_dwordx4 v{vWd+t}, s[12:15], s34 offen offset:{1024*t} lds"
    misc = [f"ds_read_b128 {ar(KB0,4)}, v{vKV}", f"ds_read_b128 {ar(KB0+4,4)}, v{vKV} offset:1024",
            f"ds_read_b128 {ar(VB0,4)}, v{vKV} offset:2048", f"ds_read_b128 {ar(VB0+4,4)}, v{vKV} offset:3072",
            f"v_lshlrev_b32 v{vT0}, 2, v{vL31}", "s_lshl_b32 s50, s29, 9", "s_lshl_b32 s51, s22, 8", "s_add_u32 s50, s50, s51",
            f"s_add_u32 s50, s50, {WS_G}", f"buffer_load_dword v{vG}, v{vT0}, s[16:19], s50 offen sc1",
            f"buffer_load_dword v{vG+1}, v{vT0}, s[16:19], s50 offen offset:128 sc1",
            f"s_mov_b32 m0, {LDS_DUMMY}", "s_nop 0", f"buffer_load_dword v5, s[56:59], s43 offen lds",
            "s_add_u32 m0, s36, 0x10000", "s_mov_b32 s32, 0x10000", ldc(0), ldc(1), ldc(2), ldc(3),
            "s_mov_b32 s37, 0x18000", "s_mov_b32 s39, 0", "s_mov_b32 s71, 0", "s_mov_b32 s33, 0x4000", "s_mov_b32 s38, -1"]
    def emit(L):
        for x in L: A(x)
    def take(L, n):
        r = L[:n]; del L[:n]; return r
    for k in range(0, 7):
        A(G[k]); emit(take(misc, 4 if k < 5 else 3))
    emit(misc)
    c0 = cvtQ(0)
    A(G[7]); emit(take(c0, 5))
    A(G[8]); emit(c0); A("s_waitcnt lgkmcnt(0)")
    A(G[9])
    q = QK(0, "0"); A(q[0]); A(q[1])
    c1 = cvtQ(1)
    A(G[10]); emit(take(c1, 5))
    A(G[11]); emit(c1)
    A(G[12])
    q = QK(1, "0"); A(q[0]); A(q[1])
    m0_ = max16(S0)
    A(G[13]); emit(take(m0_, 5))
    A(G[14]); emit(m0_)
    f0 = fill_C(0, S0)
    A(G[15]); emit(take(f0, 4))
    emit(cvtQ(2))
    emit(take(f0, 3))
    q = QK(2, "0"); A(q[0]); emit(take(f0, 4)); A(q[1]); emit(f0)
    emit(cvtQ(3))
    m1_ = max16(S0+16)
    emit(take(m1_, 2))
    q = QK(3, "0"); A(q[0]); emit(take(m1_, 4)); A(q[1]); emit(m1_)
    f1 = fill_C(1, S0+16)
    emit(take(f1, 3))
    q = QK(0, vr(C0, 16) if 'czero' not in VAR else "0"); A(q[0]); emit(take(f1, 5)); A(q[1]); emit(f1)
    emit(max16(S0+32)); emit(fill_C(2, S0+32))
    emit(max16(S0+48)); emit(fill_C(3, S0+48))
    for i in range(0, 16, 2):
        A(f"v_mov_b64 {vr(S0+48+i,2)}, 0")
    A("s_waitcnt vmcnt(7)")
    A("s_barrier")
    def PV(u0, p0):
        return [
            f"v_smfmac_f32_32x32x32_bf16 {vr(O0+16*u0,16)}, {ar(VB0+8*p0,4)}, {vr(S0+16*u0,8)}, v{vIDX}",
            f"v_smfmac_f32_32x32x32_bf16 {vr(O0+16*u0,16)}, {ar(VB0+8*p0+4,4)}, {vr(S0+16*u0+8,8)}, v{vIDX}",
            f"v_smfmac_f32_16x16x64_bf16 {ar(L0+4*u0,4)}, {ar(SEL,4)}, {vr(S0+16*u0,8)}, v{vIDX}",
            f"v_smfmac_f32_16x16x64_bf16 {ar(L0+4*u0,4)}, {ar(SEL,4)}, {vr(S0+16*u0+8,8)}, v{vIDX}",
        ]
    stamp(A, 4)
    body = []
    for i in range(8):
        for u in range(4):
            u1 = (u + 1) % 4; i1 = i + (1 if u == 3 else 0)
            u0 = (u + 3) % 4; i0 = i - (1 if u == 0 else 0)
            P = PV(u0, i0 % 2)
            M = [
                f"v_mfma_f32_32x32x16_bf16 {vr(S0+16*u1,16)}, {ar(KB0+8*(i1%2),4)}, {vr(Q0+8*u1,4)}, {vr(C0+16*u1,16) if 'czero' not in VAR else 0}",
                P[0],
                f"v_mfma_f32_32x32x16_bf16 {vr(S0+16*u1,16)}, {ar(KB0+8*(i1%2)+4,4)}, {vr(Q0+8*u1+4,4)}, {vr(S0+16*u1,16)}",
                P[1], P[2], P[3],
            ]
            X = [[] for _ in range(6)]
            tt = (i + 1) % 8
            pn = (i + 1) % 2
            if u == 0:
                X[3].append("s_waitcnt lgkmcnt(0)")
                X[4].append(f"ds_read_b128 {ar(KB0+8*pn,4)}, v{vKV} offset:{4096*tt}")
                X[5].append(f"ds_read_b128 {ar(KB0+8*pn+4,4)}, v{vKV} offset:{4096*tt+1024}")
            if u == 2:
                X[3].append("s_waitcnt lgkmcnt(0)")
                X[4].append(f"ds_read_b128 {ar(VB0+8*pn,4)}, v{vKV} offset:{4096*tt+2048}")
                X[5].append(f"ds_read_b128 {ar(VB0+8*pn+4,4)}, v{vKV} offset:{4096*tt+3072}")
            if i in (2, 4) and u == 1 and "nopf" not in VAR:
                X[2].append(f"s_mov_b32 m0, {LDS_DUMMY}")
                X[4].append(f"buffer_load_dwordx4 v{vLane16}, s[52:55], s68 offen lds")
                X[5].append("s_add_u32 s68, s68, 0x800")
            if i == 3 and u == 1 and "notouch" not in VAR:
                X[4].append(f"buffer_load_dwordx4 v{vLane16}, s[16:19], s42 offen lds")
                X[5].append("s_add_u32 s42, s42, 0x400")
            if i == 3 and u == 3 and "notouch" not in VAR:
                X[1].append("s_cmp_eq_u32 s39, 3")
                X[1].append("s_cselect_b32 s42, s41, s42")
            if i == 7 and u == 0:
                X[0].append("s_add_u32 s71, s71, 0x8000")
                X[1].append("s_and_b32 s71, s71, 0x1ffff")
                X[1].append("s_add_u32 s39, s39, 1")
                X[2].append("s_bitcmp1_b32 0x54, s39")
                X[3].append("@TOP")
            if i == 7 and u == 1:
                X[1].append("s_add_u32 m0, s37, s36")
                X[1].append("s_add_u32 s37, s37, 0x8000")
                X[3].append("s_and_b32 s37, s37, 0x1ffff")
                X[3].append("s_cmp_ge_u32 s39, 7")
                X[4].append(ldc(0)); X[5].append(ldc(1))
            if i == 7 and u == 2:
                X[0].append("s_cselect_b32 s37, 0x20000, s37")
            if i == 7 and u == 3:
                X[3].append("s_cmp_eq_u32 s39, 8")
                X[4].append(ldc(2)); X[5].append(ldc(3)); X[5].append("@EXIT")
            if i == 0 and u == 1:
                X[4].append(ldc(0)); X[5].append(ldc(1))
            if i == 0 and u == 3:
                X[4].append(ldc(2)); X[5].append(ldc(3))
            if i == 1 and u == 1:
                X[1].append("s_add_u32 s32, s32, s33")
                X[1].append("s_and_b32 s32, s32, s38")
            E = [f"v_exp_f32 v{S0+16*u+j}, v{S0+16*u+j}" for j in range(16)]
            ne = [3, 3, 3, 3, 2, 2]
            for k in range(6):
                body.append(M[k])
                body += X[k]
                for _ in range(ne[k]): body.append(E.pop(0))
    top = body.index("@TOP")
    first, second = body[:top], body[top+1:]
    A("s_branch L_at_pre_entry")
    A.raw(".p2align 6")
    A.label("L_at_top_bar")
    A("s_cmp_lg_u32 s39, 6")
    A("s_cbranch_scc1 L_at_top_bar2")
    for t in range(4):
        A(f"v_mov_b32 v{vXd+t}, v{vWd+t}")
    A("s_mov_b32 s44, s72")
    A("s_mov_b32 s45, s73")
    A("s_mov_b32 s46, 0x200000")
    A("s_lshl_b32 s32, s30, 18")
    A("s_mov_b32 s33, 0x40000")
    A("s_mov_b32 s38, 0x1fffff")
    A.label("L_at_top_bar2")
    A(f"s_waitcnt vmcnt({2 if 'notouch' in VAR else 3})")
    A("s_barrier")
    A.label("L_at_top")
    tstamp(A)
    A(f"v_add_u32 v{vKV}, s71, v{vLane16}")
    ex = second.index("@EXIT")
    tail = second[ex+1:]
    for x in second[:ex]: A(x)
    A("s_cbranch_scc1 L_at_exit")
    for x in tail: A(x)
    A.label("L_at_pre_entry")
    A(first[0]); A("s_add_u32 m0, m0, 0x4000")
    for x in first[1:5]: A(x)
    A("s_add_u32 s32, s32, s33")
    A("s_and_b32 s32, s32, s38")
    rest = first[5:]
    for x in rest: A(x)
    A("s_cbranch_scc1 L_at_top_bar")
    A("s_branch L_at_top")
    A.label("L_at_exit")
    for x in tail: A(x)
    stamp(A, 5)
    A(f"s_waitcnt vmcnt({6 if 'notouch' in VAR else 7}) lgkmcnt(0)")
    A("s_barrier")
    tstamp(A, "2")
    P3 = PV(3, 1)
    def scale_store(u):
        a, t = u >> 1, u & 1
        L = []
        for j in range(0, 16, 2):
            L.append(f"v_pk_mul_f32 {vr(O0+16*u+j,2)}, {vr(O0+16*u+j,2)}, {vr(S0+2*u,2)} op_sel_hi:[1,0]")
        for j in range(8):
            L.append(f"v_cvt_pk_bf16_f32 v{C0+8*u+j}, v{O0+16*u+2*j}, v{O0+16*u+2*j+1}")
        for f in range(2):
            L.append(f"buffer_store_dwordx4 {vr(C0+8*u+4*f,4)}, v{vLane16}, s[16:19], s{40+t} offen offset:{2048*a+1024*f} sc1 {'nt' if 'ont' in VAR else ''}")
        return L
    addr = ["s_cmp_eq_u32 s28, 0", "s_cselect_b32 s50, 1.0, -1.0", "s_cselect_b32 s51, 0, 1.0"]
    A(P3[2]); emit(addr); A(P3[3]); A(P3[0]); A(P3[1])
    A("s_nop 3")
    A(f"v_mov_b32 v{vT0}, s51")
    A(f"v_fma_f32 v{vG}, v{vG}, s50, v{vT0}")
    A(f"v_fma_f32 v{vG+1}, v{vG+1}, s50, v{vT0}")
    A("s_mov_b64 s[66:67], -1")
    A.label("L_at_store")
    for u in range(4):
        A(f"v_accvgpr_read_b32 v{S0+2*u}, a{L0+4*u}")
    if True:
        for u in range(4):
            A(f"v_mov_b32 v{S0+2*u+1}, v{S0+2*u}")
        A("s_nop 1")
        for u in range(4):
            A(f"v_permlane32_swap_b32 v{S0+2*u}, v{S0+2*u+1}")
        A("s_nop 1")
    A(f"v_add_f32 v{vT1}, v{S0}, v{S0+2}")
    A(f"v_add_f32 v{vT0}, v{S0+4}, v{S0+6}")
    A(f"v_add_f32 v{vT0}, v{vT0}, v{vT1}")
    A(f"v_cmp_ngt_f32 vcc, {0x4e800000 if 'forceslow' not in VAR else 0x3f000000:#x}, v{vT0}")
    for u in range(4):
        A(f"v_rcp_f32 v{S0+2*u}, v{S0+2*u}")
    A("s_and_b64 vcc, vcc, s[66:67]")
    if "lx" not in VAR: A("s_cbranch_scc1 L_at_slow")
    for u in range(4):
        A(f"v_mul_f32 v{S0+2*u}, v{S0+2*u}, v{vG+(u&1)}")
    for u in range(4):
        emit(scale_store(u))
    gen_out(A)
    A.label("L_at_slow")
    A("s_waitcnt vmcnt(0) lgkmcnt(0)")
    A("s_lshl_b32 s39, s28, 18")
    A("s_add_u32 s44, s26, s39")
    A("s_addc_u32 s45, s27, 0")
    A("s_mov_b32 s46, 0x40000")
    for u in range(4):
        A(f"v_mov_b32 v{O0+u}, 0xff7fffff")
    A("s_mov_b32 s39, 0")
    A.label("L_at_slow1")
    A(f"buffer_load_dwordx4 {ar(KB0,4)}, v{vLane16}, s[44:47], s39 offen sc1")
    A(f"buffer_load_dwordx4 {ar(KB0+4,4)}, v{vLane16}, s[44:47], s39 offen offset:1024 sc1")
    A("s_waitcnt vmcnt(0)")
    for u in range(4):
        for x in QK(u, "0"): A(x)
    A("s_nop 15")
    for u in range(4):
        for j in range(0, 16, 2):
            A(f"v_max3_f32 v{O0+u}, v{O0+u}, v{S0+16*u+j}, v{S0+16*u+j+1}")
    A("s_add_u32 s39, s39, 0x1000")
    A("s_cmp_lt_u32 s39, 0x40000")
    A("s_cbranch_scc1 L_at_slow1")
    for u in range(4):
        A(f"v_mov_b32 v{S0+16*u}, v{O0+u}")
        emit(fill_C(u, S0+16*u))
    for i in range(16):
        A(f"v_accvgpr_write_b32 a{L0+i}, 0")
    for i in range(64):
        A(f"v_mov_b32 v{O0+i}, 0")
    A("s_mov_b32 s39, 0")
    A.label("L_at_slow2")
    A(f"buffer_load_dwordx4 {ar(KB0,4)}, v{vLane16}, s[44:47], s39 offen sc1")
    A(f"buffer_load_dwordx4 {ar(KB0+4,4)}, v{vLane16}, s[44:47], s39 offen offset:1024 sc1")
    A(f"buffer_load_dwordx4 {ar(VB0,4)}, v{vLane16}, s[44:47], s39 offen offset:2048 sc1")
    A(f"buffer_load_dwordx4 {ar(VB0+4,4)}, v{vLane16}, s[44:47], s39 offen offset:3072 sc1")
    A("s_waitcnt vmcnt(0)")
    for u in range(4):
        for x in QK(u, vr(C0+16*u, 16)): A(x)
    A("s_nop 15")
    for j in range(64):
        A(f"v_exp_f32 v{S0+j}, v{S0+j}")
    A("s_nop 1")
    for u in range(4):
        for x in PV(u, 0): A(x)
    A("s_nop 15")
    A("s_add_u32 s39, s39, 0x1000")
    A("s_cmp_lt_u32 s39, 0x40000")
    A("s_cbranch_scc1 L_at_slow2")
    A("s_nop 15")
    A("s_mov_b64 s[66:67], 0")
    A("s_branch L_at_store")
    A.label("L_at_end")
    A("s_endpgm")
    return kernel_desc(name, 512, 256, 102)

def gen_out(A):
    LD = 8
    vL, vH, vL31, vW_ = 1, 2, 3, 4
    vOd, vWd = 28, 12
    vWr, vWr0 = 8, 10
    vT0, vT1, vPl = 16, 17, 18
    ACC = 32
    WF = 128
    OFr = 192
    def wreg(st, s, c, n=4, o=0):
        i = 8*s + 4*c + o
        if st < 2: return vr(WF + 32*st + i, n)
        if st < 10: return ar(32*(st - 2) + i, n)
        return vr(64 + 32*(st - 10) + i, n)
    def stash(st):
        R = []
        for s in range(4):
            for c in range(2):
                wo = (st % 8)*0x2000 + 2048*s
                R += [f"ds_read_b64_tr_b16 {wreg(st,s,c,2,0)}, v{vWr+c} offset:{wo}",
                      f"ds_read_b64_tr_b16 {wreg(st,s,c,2,2)}, v{vWr+c} offset:{wo+1024}"]
        return R
    A("s_lshl_b32 s45, s30, 1")
    A("s_lshl_b32 s33, s28, 3")
    A("s_add_u32 s30, s30, s33")
    A("s_lshl_b32 s55, s45, 17")
    A("s_add_u32 s34, s55, 0x180000")
    A("s_and_b32 s34, s34, 0x1fffff")
    A("s_mov_b32 s12, s72")
    A("s_mov_b32 s13, s73")
    A("s_add_u32 s35, s36, 0x10000")
    def dma_W():
        ldw = lambda t: f"buffer_load_dwordx4 v{vWd+t}, s[12:15], s34 offen offset:{1024*t} lds"
        return [["s_mov_b32 m0, s35", "s_add_u32 s35, s35, 0x4000", ldw(0)], [ldw(1)], [ldw(2)],
                [ldw(3), "s_add_u32 s34, s34, 0x40000", "s_and_b32 s34, s34, 0x1fffff"]]
    def fl(I):
        for x in I:
            for y in x: A(y)
    def mix(R, D, k):
        while R or D:
            for _ in range(k):
                if R: A(R.pop(0))
            if D:
                for y in D.pop(0): A(y)
    A(f"v_bfe_u32 v{vT0}, v{vL}, 2, 2")
    A(f"v_lshl_add_u32 v{vT1}, v{vH}, 2, v{vT0}")
    A(f"v_lshlrev_b32 v{vT1}, 7, v{vT1}")
    A(f"v_bfe_u32 v{vT0}, v{vL}, 3, 1")
    A(f"v_lshl_add_u32 v{vT1}, v{vT0}, 6, v{vT1}")
    A(f"v_bfe_u32 v{vT0}, v{vL}, 4, 1")
    A(f"v_lshl_add_u32 v{vT1}, v{vT0}, 5, v{vT1}")
    A(f"v_and_b32 v{vT0}, 1, v{vL}")
    A(f"v_lshl_add_u32 v{vT1}, v{vT0}, 4, v{vT1}")
    A(f"v_bfe_u32 v{vT0}, v{vL}, 1, 1")
    A(f"v_lshl_add_u32 v{vWr0}, v{vT0}, 3, v{vT1}")
    A(f"v_xor_b32 v{vWr0+1}, 64, v{vWr0}")
    A(f"v_mov_b32 v{vWr}, v{vWr0}")
    A(f"v_mov_b32 v{vWr+1}, v{vWr0+1}")
    A("s_waitcnt lgkmcnt(0)")
    R = []
    for st in range(8): R += stash(st)
    mix(R, dma_W() + dma_W(), 16)
    A("s_lshl_b32 s46, s29, 2")
    A("s_add_u32 s46, s46, s20")
    A("s_lshl_b32 s46, s46, 17")
    A(f"s_add_u32 s46, s46, {WS_OF}")
    A("s_lshl_b32 s47, s28, 16")
    A("s_add_u32 s48, s46, s47")
    A("s_add_u32 s8, s26, s48")
    A("s_addc_u32 s9, s27, 0")
    A("s_mov_b32 s10, 0x10000")
    A("s_mov_b32 s11, 0x00020000")
    A("s_xor_b32 s47, s47, 0x10000")
    A("s_add_u32 s48, s46, s47")
    A("s_add_u32 s40, s26, s48")
    A("s_addc_u32 s41, s27, 0")
    A("s_lshl_b32 s32, s45, 12")
    A(f"v_add_u32 v{vT0}, s30, v{vL}")
    A(f"v_and_b32 v{vT0}, 7, v{vT0}")
    A(f"v_xor_b32 v{vT1}, s33, v{vL}")
    A(f"v_and_b32 v{vT1}, 8, v{vT1}")
    A(f"v_or_b32 v{vT0}, v{vT0}, v{vT1}")
    A(f"v_lshlrev_b32 v{vT0}, 2, v{vT0}")
    A("s_lshl_b32 s49, s29, 7")
    A(f"s_add_u32 s49, s49, {WS_FL}")
    A("s_cmp_eq_u32 s20, 0")
    A("s_cselect_b32 s53, 0, -1")
    for i in range(0, 32, 2):
        A(f"v_mov_b64 {vr(ACC+i,2)}, 0")
    A("s_add_u32 s34, s55, 0x140000")
    A("s_and_b32 s34, s34, 0x1fffff")
    A("s_add_u32 s35, s36, 0x24000")
    A(f"v_add_u32 v{vWr}, 0x20000, v{vWr0}")
    A(f"v_add_u32 v{vWr+1}, 0x20000, v{vWr0+1}")
    A("s_waitcnt vmcnt(0) lgkmcnt(0)")
    A("s_barrier")
    tstamp(A, "2")
    stamp(A, 6)
    A("s_cmp_lg_u32 s20, 0")
    A("s_cbranch_scc1 L_o_nosig")
    A(f"v_mov_b32 v{vT1}, 1")
    A(f"v_mov_b32 v{vPl}, 0")
    A("s_mov_b64 exec, 1")
    A(f"buffer_atomic_swap v{vT1}, v{vPl}, s[16:19], s69 offen sc1")
    A("s_mov_b64 exec, -1")
    A.label("L_o_nosig")
    def ld_O(j):
        I = [f"buffer_load_dwordx4 {vr(OFr+4*(j%16),4)}, v{vOd}, s[8:11], s32 offen offset:{1024*(j%4)} sc1"]
        if j % 4 == 3: I += ["s_add_u32 s32, s32, 0x1000", "s_and_b32 s32, s32, 0xffff"]
        return I
    fl(dma_W())
    for j in range(8):
        for y in ld_O(j): A(y)
    A("s_mov_b32 s12, s74")
    A("s_mov_b32 s13, s75")
    A("s_mov_b32 s34, s55")
    A("s_add_u32 s35, s36, 0x18000")
    mix(stash(8) + stash(9), dma_W() + dma_W(), 4)
    A("s_mov_b32 s35, s36")
    A("s_waitcnt vmcnt(16)")
    A("s_barrier")
    mix(stash(10) + stash(11), dma_W() + dma_W(), 4)
    def mf(st, s, c, j):
        w = wreg(st, s, c) if st < 12 else vr(WF + 32*(st % 2) + 8*s + 4*c, 4)
        return f"v_mfma_f32_32x32x16_bf16 {vr(ACC+16*c,16)}, {w}, {vr(OFr+4*(j%16),4)}, {vr(ACC+16*c,16)}"
    A("s_waitcnt vmcnt(16)")
    D = dma_W() + dma_W()
    for j in range(8):
        A(mf(j // 4, j % 4, 0, j)); A(mf(j // 4, j % 4, 1, j))
        for y in D.pop(0): A(y)
    A("s_add_u32 s35, s36, 0x20000")
    A("s_waitcnt lgkmcnt(0)")
    A("s_barrier")
    fl(dma_W()); fl(dma_W())
    A("s_mov_b32 s54, 0xff")
    A("s_and_b32 s50, s53, s54")
    A("s_cmp_lg_u32 s50, s54")
    A("s_cbranch_scc1 L_o_poll0")
    A.label("L_o_ready0")
    A("s_barrier")
    stamp(A, 7)
    tstamp(A, "2")
    for j in range(8, 16):
        for y in ld_O(j): A(y)
    def rd_W(st):
        R = []
        for s in range(4):
            for c in range(2):
                b = WF + 32*(st % 2) + 8*s + 4*c
                wo = st*0x2000 + 2048*s
                R += [f"ds_read_b64_tr_b16 {vr(b,2)}, v{vWr+c} offset:{wo}",
                      f"ds_read_b64_tr_b16 {vr(b+2,2)}, v{vWr+c} offset:{wo+1024}"]
        return R
    def stage(st, stw, rd, extra=None):
        for s in range(4):
            j = 4*st + s
            A(f"s_waitcnt vmcnt(7) lgkmcnt(12)" if stw >= 12 else "s_waitcnt vmcnt(7)")
            for c in range(2):
                A(mf(stw, s, c, j))
                for _ in range(2):
                    if rd: A(rd.pop(0))
                if c == 0:
                    for y in ld_O(j + LD): A(y)
                elif extra:
                    for y in extra.pop(0): A(y)
    A(f"v_add_u32 v{vWr}, 0x10000, v{vWr0}")
    A(f"v_add_u32 v{vWr+1}, 0x10000, v{vWr0+1}")
    A("s_mov_b32 s37, 0x10000")
    A("s_mov_b32 s39, 3")
    if "fulline" in VAR:
        A(f"v_and_b32 v24, 7, v{vL31}")
        A(f"v_xor_b32 v24, v24, v{vH}")
        A(f"v_lshlrev_b32 v24, 4, v24")
        A(f"v_lshl_add_u32 v24, v{vL31}, 7, v24")
        A("s_add_u32 s50, s36, 0x10000")
        A(f"v_add_u32 v20, s50, v24")
        for k in range(1, 4):
            A(f"v_xor_b32 v{20+k}, {32*k}, v20")
        A(f"v_add_u32 v24, s50, v{vOd}")
        A(f"v_lshrrev_b32 v25, 3, v{vL}")
        A(f"v_and_b32 v26, 7, v{vL}")
        A(f"v_xor_b32 v26, v26, v25")
        A(f"v_lshlrev_b32 v26, 4, v26")
        A(f"v_lshl_add_u32 v25, v25, 11, v26")
    for st in range(2, 12):
        stage(st % 4, st, rd_W(0) if st == 11 else None)
    A("s_mov_b32 s54, 0xffff")
    A("s_and_b32 s50, s53, s54")
    A("s_cmp_lg_u32 s50, s54")
    A("s_cbranch_scc1 L_o_poll1")
    A.label("L_o_ready1")
    A("s_barrier")
    A.raw(".p2align 6")
    A.label("L_o_loop")
    tstamp(A, "2")
    stage(0, 12, rd_W(1), [["s_add_u32 s37, s37, 0x8000", "s_and_b32 s37, s37, 0x1ffff"], ["s_cmp_eq_u32 s39, 6", "s_cselect_b32 s37, 0x20000, s37"]])
    stage(1, 13, rd_W(2))
    A("s_mov_b32 s8, s40")
    A("s_mov_b32 s9, s41")
    A("s_cmp_eq_u32 s39, 7")
    A("s_cbranch_scc1 L_o_tail")
    stage(2, 14, rd_W(3), [["s_add_u32 s39, s39, 1"]])
    A(f"v_add_u32 v{vWr}, s37, v{vWr0}")
    A(f"v_add_u32 v{vWr+1}, s37, v{vWr0+1}")
    stage(3, 15, rd_W(0))
    A("s_branch L_o_loop")
    A.label("L_o_tail")
    if "fulline" in VAR: A("s_barrier")
    R3 = rd_W(3)
    for j in range(8, 16):
        st, sq = j // 4, j % 4
        A(f"s_waitcnt vmcnt({15 - j}) lgkmcnt({12 if j < 12 else 4*(15-j)})")
        for c in range(2):
            A(mf(12 + st, sq, c, j))
            for _ in range(2):
                if R3: A(R3.pop(0))
    A("s_mov_b32 s40, s43")
    A("s_nop 2")
    OST = os.environ.get('OST', 'nt')
    if "fulline" not in VAR:
        A(f"v_lshlrev_b32 v{vT0}, 11, v{vL31}")
        A(f"v_lshl_add_u32 v{vT0}, v{vH}, 4, v{vT0}")
        A("s_nop 7")
        for c in range(2):
            for j in range(8):
                A(f"v_cvt_pk_bf16_f32 v{64+8*c+j}, v{ACC+16*c+2*j}, v{ACC+16*c+2*j+1}")
            for f in range(2):
                A(f"buffer_store_dwordx4 {vr(64+8*c+4*f,4)}, v{vT0}, s[56:59], s40 offen offset:{64*c+32*f} {OST}")
    else:
        A("s_nop 7")
        for c in range(2):
            for j in range(8):
                A(f"v_cvt_pk_bf16_f32 v{64+8*c+j}, v{ACC+16*c+2*j}, v{ACC+16*c+2*j+1}")
            for f in range(2):
                A(f"ds_write_b128 v{20+2*c+f}, {vr(64+8*c+4*f,4)}")
        A("s_waitcnt lgkmcnt(0)")
        for i in range(4):
            A(f"ds_read_b128 {vr(80+4*i,4)}, v24 offset:{1024*i}")
        for i in range(4):
            A(f"s_waitcnt lgkmcnt({3-i})")
            A(f"buffer_store_dwordx4 {vr(80+4*i,4)}, v25, s[56:59], s40 offen {OST}")
            A("s_add_u32 s40, s40, 0x4000")
    if TS == "2":
        tstamp(A, "2")
        A("s_waitcnt vmcnt(0)")
        tstamp(A, "2")
    if STAMP:
        A("s_waitcnt vmcnt(0)")
        _stamp(A, 1)
        stamp_flush(A, 0, 8, 26, 27, 20)
    A("s_endpgm")
    for k in (1, 0):
        tgt = f"L_o_ready{k}"
        A.label(f"L_o_poll{k}")
        A("s_mov_b32 s48, 0")
        A.label(f"L_o_spin{k}")
        A(f"buffer_load_dword v{vPl}, v{vT0}, s[16:19], s49 offen sc1")
        A("s_waitcnt vmcnt(0)")
        A(f"v_cmp_eq_u32 vcc, 1, v{vPl}")
        A("s_add_u32 s48, s48, 1")
        A("s_cmp_gt_u32 s48, 0x40000")
        A(f"s_cbranch_scc1 {tgt}")
        A("s_nop 2")
        A("s_mov_b32 s53, vcc_lo")
        A("s_and_b32 s50, s53, s54")
        A("s_cmp_eq_u32 s50, s54")
        A(f"s_cbranch_scc1 {tgt}")
        A(f"s_sleep {int(os.environ.get('SLEEP', '2'))}")
        A(f"s_branch L_o_spin{k}")

def main(path):
    ref = open("cdna_kernels/" + NAME + ".s.ref").read().split("\n")
    hdr = [l for l in ref if l.startswith(";") and "@launch" not in l and "Override" not in l and "grid=ceil" not in l]
    B = Asm()
    d1 = gen_attn(B)
    A = Asm()
    for l in hdr: A.raw(l)
    A.raw(f"; @launch grid=(256,1,1) block=(256,1,1) lds={LDS_ATTN}")
    A.raw('.amdgcn_target "amdgcn-amd-amdhsa--gfx950"')
    A.raw(".text")
    A.lines += B.lines
    A.raw("L_code_end:")
    A.raw('.section .rodata,"a"')
    for d in (d1,):
        A.raw(".p2align 6")
        A.raw(d)
    open(path, "w").write(A.text())

if __name__ == "__main__":
    main(sys.argv[1] if len(sys.argv) > 1 else "cdna_kernels/" + NAME + ".s")
```

```python
import sys
src, out, mode = sys.argv[1], sys.argv[2], sys.argv[3]
A = (0xA00020, 0xA00020 + 4*int(mode[1:])) if mode[0] == 'k' and mode[1:].isdigit() else {'startskew': (0xA00020, 0xA00020), 'endskew': (0xA1002C, 0xA1002C), 'full': (0xA00020, 0xA1002C), 'kaend': (0xA00038, 0xA00038), 'tail': (0xA1002C, 0xA1002C)}[mode]
s = open(src).read()
import re
s = re.sub(r"; @launch grid=", "; @launch kernel=gated_mix__grouped_kv_mqa__grouped_kv_mqa__prompt_kernel grid=", s)
s2 = s.replace('.amdgcn_target', '; @launch kernel=dbg_kernel grid=(1,1,1) block=(64,1,1) lds=0\n.amdgcn_target', 1)
loads = ""
for i in range(16):
    loads += f"    buffer_load_dword v{8+i}, v1, s[12:15], s22 offen\n    buffer_load_dword v{24+i}, v3, s[12:15], s22 offen\n    s_add_u32 s22, s22, 4096\n"
red = ""
for i in range(16):
    red += f"    v_sub_u32 v{8+i}, v{8+i}, v6\n    v_sub_u32 v{24+i}, v{24+i}, v6\n"
for i in range(1, 16):
    red += f"    v_min_i32 v8, v8, v{8+i}\n    v_max_i32 v24, v24, v{24+i}\n"
lanes = "    s_nop 1\n    v_readlane_b32 s24, v8, 0\n    v_readlane_b32 s25, v24, 0\n"
for l in range(1, 64):
    lanes += f"    v_readlane_b32 s26, v8, {l}\n    v_readlane_b32 s27, v24, {l}\n    s_nop 1\n    s_min_i32 s24, s24, s26\n    s_max_i32 s25, s25, s27\n"
fin = "    s_sub_u32 s20, s25, s24\n"
if mode == 'tail':
    fin = "    s_sub_u32 s20, s28, s30\n    s_sub_u32 s20, s20, s25\n"
s2 = s2.replace('.section .rodata,"a"', f'''.globl dbg_kernel
.p2align 8
.type dbg_kernel,@function
dbg_kernel:
    s_cmp_ge_u32 s2, 1
    s_cbranch_scc1 L_dbg_end
    s_memrealtime s[28:29]
    s_load_dwordx2 s[6:7], s[0:1], 104
    s_waitcnt lgkmcnt(0)
    s_mov_b32 s12, s6
    s_mov_b32 s13, s7
    s_mov_b32 s14, 0xB00000
    s_mov_b32 s15, 0x00020000
    v_lshlrev_b32 v2, 6, v0
    v_add_u32 v1, {A[0]}, v2
    v_add_u32 v3, {A[1]}, v2
    v_mov_b32 v5, 0xA00020
    buffer_load_dword v6, v5, s[12:15], 0 offen
    s_mov_b32 s22, 0
{loads}
    s_waitcnt vmcnt(0)
    v_readfirstlane_b32 s30, v6
{red}
{lanes}
{fin}
    s_min_u32 s20, s20, 20000
    s_memrealtime s[16:17]
    s_waitcnt lgkmcnt(0)
L_dbg_spin:
    s_memrealtime s[18:19]
    s_waitcnt lgkmcnt(0)
    s_sub_u32 s21, s18, s16
    s_cmp_lt_u32 s21, s20
    s_cbranch_scc1 L_dbg_spin
L_dbg_end:
    s_endpgm
.section .rodata,"a"
.p2align 6
.amdhsa_kernel dbg_kernel
  .amdhsa_next_free_vgpr 48
  .amdhsa_next_free_sgpr 40
  .amdhsa_accum_offset 48
  .amdhsa_group_segment_fixed_size 0
  .amdhsa_kernarg_size 112
  .amdhsa_user_sgpr_count 2
  .amdhsa_user_sgpr_kernarg_segment_ptr 1
  .amdhsa_system_sgpr_workgroup_id_x 1
.end_amdhsa_kernel
''', 1)
if len(sys.argv) > 4: s2 = s2.replace("s_min_u32 s20, s20, 20000", "s_min_u32 s20, s20, 0")
open(out, "w").write(s2)
```

```python
import sys, math, struct, os
from asmlib import *

NAME = "gated_mix__grouped_kv_mqa__grouped_kv_mqa__prompt"
WS_KV = 0
WS_G = 0x80000
WS_FL = 0x90000
WS_OF = 0x100000
WS_USED = 0x900000
STAMP = os.environ.get("STAMP", "0") == "1"
VAR = os.environ.get("VAR", "")
XNT = "nt" if "xnt" in VAR else ""
WNT = "nt" if "wnt" in VAR else ""
WS_ST = 0xA00000

FINE = os.environ.get("FINE", "0") == "1"
TS = os.environ.get("TS", "0")
def tstamp(A, ph="1"):
    if TS != ph: return
    A("s_waitcnt lgkmcnt(0)")
    A("s_memtime s[96:97]")
    A("s_memrealtime s[98:99]")
    A("s_waitcnt lgkmcnt(0)")
    A("v_mov_b32 v6, s96")
    A("v_mov_b32 v7, s98")
    A("v_mov_b32 v5, 0")
    A("buffer_store_dwordx2 v[6:7], v5, s[92:95], s100 offen")
    A("s_add_u32 s100, s100, 8")
def tstamp_init(A, wsl, wsh, wave_sgpr, kern):
    if TS == "0": return
    A(f"s_mov_b32 s92, s{wsl}")
    A(f"s_mov_b32 s93, s{wsh}")
    A(f"s_mov_b32 s94, {0xC00000}")
    A("s_mov_b32 s95, 0x00020000")
    A("s_lshl_b32 s100, s2, 2")
    A(f"s_add_u32 s100, s100, s{wave_sgpr}")
    A("s_lshl_b32 s100, s100, 9")
    A(f"s_add_u32 s100, s100, {0xA00000 + kern*0x80000}")
FINE2 = os.environ.get("FINE2", "0") == "1"
def gstamp(A, k):
    if FINE2: _stamp(A, k)
def fstamp(A, k):
    if FINE: _stamp(A, k)
def stamp(A, k):
    if FINE and k not in (0,): return
    if FINE2: return
    _stamp(A, k)
def _stamp(A, k):
    if not STAMP: return
    A("s_waitcnt lgkmcnt(0)")
    A(f"s_memtime s[96:97]")
    A(f"s_memrealtime s[98:99]")
    A("s_waitcnt lgkmcnt(0)")
    A(f"s_mov_b32 s{76+k}, s96")
    A(f"s_mov_b32 s{84+k}, s98")
def stamp_flush(A, kern, n, wsl, wsh, wave_sgpr):
    if not STAMP: return
    A(f"s_mov_b32 s92, s{wsl}")
    A(f"s_mov_b32 s93, s{wsh}")
    A(f"s_mov_b32 s94, {WS_ST + 0x40000}")
    A("s_mov_b32 s95, 0x00020000")
    A("s_lshl_b32 s96, s2, 2")
    A(f"s_add_u32 s96, s96, s{wave_sgpr}")
    A("s_lshl_b32 s96, s96, 6")
    A(f"s_add_u32 s96, s96, {WS_ST + kern*0x10000}")
    A("v_mov_b32 v1, 0")
    for k in range(n):
        A(f"v_mov_b32 v2, s{76+k}")
        A(f"buffer_store_dword v2, v1, s[92:95], s96 offen offset:{4*k}")
        A("s_nop 1")
        A(f"v_mov_b32 v2, s{84+k}")
        A(f"buffer_store_dword v2, v1, s[92:95], s96 offen offset:{32+4*k}")
        A("s_nop 1")

def f32bits(x):
    return struct.unpack("<I", struct.pack("<f", x))[0]
KSCALE = f32bits(math.log2(math.e) / math.sqrt(32.0))
LOG2E = f32bits(math.log2(math.e))

def take_(L, n):
    r = L[:n]; del L[:n]; return r

def weave(A, M, streams):
    for k, m in enumerate(M):
        A(m)
        for items, q in streams:
            for _ in range(q(k)):
                if items:
                    x = items.pop(0)
                    if isinstance(x, (list, tuple)):
                        for y in x: A(y)
                    else: A(x)
    for items, q in streams:
        while items:
            x = items.pop(0)
            if isinstance(x, (list, tuple)):
                for y in x: A(y)
            else: A(x)

LDS_SCR = 0x14000
LDS_SCG = 0x1C000
LDS_DUMMY = 0x27C00
LDS_ATTN = 163840

def gen_attn(A):
    name = NAME + "_kernel"
    kernel_header(A, name)
    S0, C0, O0, Q0 = 32, 96, 160, 224
    L0, KB0, VB0, SEL, GF, FR = 0, 16, 32, 48, 64, 128
    vL, vH, vL31, vW_ = 1, 2, 3, 4
    vXd, vWd = 8, 12
    vXr, vWr = 16, 20
    vKV, vIDX, vT0, vT1, vG = 22, 23, 24, 25, 26
    vLane16, vLin, vPoll, vT2 = 28, 29, 30, 31
    ACC = S0
    PACC, GACC = Q0, Q0 + 16
    vPd, vPr, vPw = C0, C0 + 4, C0 + 8
    vRed = C0 + 12
    A("s_cmp_ge_u32 s2, 256")
    A("s_cbranch_scc1 L_at_end")
    stamp(A, 0)
    if "epf" in VAR:
        A("s_getpc_b64 s[72:73]")
        for k in range(1, 7):
            A(f"s_load_dword s74, s[72:73], {128*k}")
    A("s_load_dwordx8 s[4:11], s[0:1], 0")
    A("s_load_dwordx2 s[64:65], s[0:1], 32")
    A("s_load_dwordx8 s[12:19], s[0:1], 48")
    A("s_load_dwordx2 s[66:67], s[0:1], 80")
    A("s_load_dwordx4 s[24:27], s[0:1], 96")
    A("s_and_b32 s28, s2, 1")
    A("s_bfe_u32 s29, s2, 0x20001")
    A("s_bfe_u32 s30, s2, 0x20003")
    A("s_lshl_b32 s29, s29, 2")
    A("s_add_u32 s29, s29, s30")
    A("s_lshr_b32 s30, s2, 5")
    A("s_lshr_b32 s31, s2, 7")
    A("s_and_b32 s23, s30, 3")
    A("s_lshl_b32 s33, s29, 2")
    A("s_add_u32 s33, s33, s23")
    A("s_lshl_b32 s34, s31, 1")
    A("s_add_u32 s34, s34, s23")
    A("s_and_b32 s34, s34, 3")
    A("s_and_b32 s37, s29, 3")
    A("s_lshl_b32 s37, s37, 1")
    A("s_add_u32 s37, s37, s30")
    A("s_lshl_b32 s37, s37, 1")
    A("s_and_b32 s37, s37, 15")
    A("s_lshl_b32 s38, s29, 18")
    A("s_lshl_b32 s39, s30, 8")
    A(f"v_lshrrev_b32 v{vW_}, 6, v0")
    A(f"v_and_b32 v{vL}, 63, v0")
    A(f"v_readfirstlane_b32 s20, v{vW_}")
    A(f"v_lshrrev_b32 v{vH}, 5, v{vL}")
    A(f"v_and_b32 v{vL31}, 31, v{vL}")
    A(f"v_lshlrev_b32 v{vLane16}, 4, v{vL}")
    A(f"v_lshl_add_u32 v{vLin}, v{vW_}, 12, v{vLane16}")
    A(f"v_lshrrev_b32 v{vT0}, 3, v{vL}")
    A(f"v_lshl_add_u32 v{vT0}, v{vW_}, 5, v{vT0}")
    A(f"v_lshlrev_b32 v{vT0}, 11, v{vT0}")
    A(f"v_lshrrev_b32 v{vT1}, 4, v{vL}")
    A(f"v_and_b32 v5, 7, v{vL}")
    A(f"v_xor_b32 v5, v5, v{vT1}")
    A(f"v_lshl_add_u32 v{vXd}, v5, 4, v{vT0}")
    A(f"v_xor_b32 v{vXd+1}, 64, v{vXd}")
    A(f"v_add_u32 v{vXd+1}, {16384-1024}, v{vXd+1}")
    A(f"v_add_u32 v{vXd+2}, {2*(16384-1024)}, v{vXd}")
    A(f"v_add_u32 v{vXd+3}, {2*(16384-1024)}, v{vXd+1}")
    A(f"v_lshl_add_u32 v{vT0}, v{vW_}, 4, v{vT1}")
    A(f"v_lshlrev_b32 v{vT0}, 11, v{vT0}")
    A(f"v_lshlrev_b32 v{vT1}, 2, v{vT1}")
    A(f"v_and_b32 v5, 15, v{vL}")
    A(f"v_xor_b32 v5, v5, v{vT1}")
    A(f"v_lshl_add_u32 v{vWd}, v5, 4, v{vT0}")
    for t in range(1, 4):
        A(f"v_add_u32 v{vWd+t}, {t*(8192-1024)}, v{vWd}")
    A("s_waitcnt lgkmcnt(0)")
    fstamp(A, 1)
    if os.environ.get("WSOFF"):
        A(f"s_add_u32 s26, s26, {int(os.environ['WSOFF'], 0)}")
        A("s_addc_u32 s27, s27, 0")
    A("s_cmp_eq_u32 s28, 1")
    A("s_cselect_b64 s[6:7], s[12:13], s[6:7]")
    A("s_cselect_b64 s[8:9], s[14:15], s[8:9]")
    A("s_cselect_b64 s[10:11], s[16:17], s[10:11]")
    A("s_cselect_b64 s[72:73], s[18:19], s[64:65]")
    A("s_cselect_b64 s[74:75], s[64:65], s[18:19]")
    A("s_cmp_eq_u32 s31, 1")
    A("s_cselect_b64 s[8:9], s[10:11], s[8:9]")
    A("s_cselect_b64 s[64:65], s[18:19], s[64:65]")
    srd(A, 40, 8, 9, 1024*32*2)
    srd(A, 8, 4, 5, 2048*1024*2)
    srd(A, 12, 6, 7, 1024*1024*2)
    srd(A, 56, 66, 67, 2048)
    A("s_lshl_b32 s36, s20, 12")
    A("s_lshl_b32 s35, s33, 16")
    PARK = (6, 7) if "nopark" not in VAR else ()
    vWp = C0 + 16
    def dma_P(n):
        slot = (n % 4) * 0x8000
        I = []
        I.append([f"s_add_u32 m0, s36, {slot}", "s_lshl_b32 s48, s34, 9", "s_add_u32 s48, s48, s35",
                  f"buffer_load_dwordx4 v{vPd}, s[8:11], s48 offen lds"])
        for t in range(1, 4):
            I.append(f"buffer_load_dwordx4 v{vPd+t}, s[8:11], s48 offen offset:{1024*t} lds")
        I.append([f"s_add_u32 m0, s36, {slot+0x4000}", "s_lshl_b32 s49, s34, 14",
                  f"buffer_load_dwordx4 v{vLin}, s[40:43], s49 offen lds"])
        for t in range(1, 4):
            I.append(f"buffer_load_dwordx4 v{vLin}, s[40:43], s49 offen offset:{1024*t} lds")
        I.append(["s_add_u32 s34, s34, 1", "s_and_b32 s34, s34, 3"])
        return I
    def dma_G(n):
        slot = (n % 4) * 0x8000
        I = []
        I.append([f"s_add_u32 m0, s36, {slot}", "s_lshl_b32 s48, s37, 7", "s_add_u32 s48, s48, s38",
                  f"buffer_load_dwordx4 v{vXd}, s[8:11], s48 offen {XNT} lds"])
        for t in range(1, 4):
            I.append(f"buffer_load_dwordx4 v{vXd+t}, s[8:11], s48 offen offset:{1024*t} {XNT} lds")
        if n not in PARK:
            I.append([f"s_add_u32 m0, s36, {slot+0x4000}", "s_lshl_b32 s49, s37, 17", "s_add_u32 s49, s49, s39",
                      f"buffer_load_dwordx4 v{vWd}, s[12:15], s49 offen {WNT} lds"])
            for t in range(1, 4):
                I.append(f"buffer_load_dwordx4 v{vWd+t}, s[12:15], s49 offen offset:{1024*t} {WNT} lds")
        I.append(["s_add_u32 s37, s37, 1", "s_and_b32 s37, s37, 15"])
        return I
    def dma_park():
        I = []
        for k in range(2):
            I.append([f"s_add_u32 m0, s36, {0x20000+0x4000*k}", "s_lshl_b32 s49, s37, 17", "s_add_u32 s49, s49, s39"] +
                     ([f"s_add_u32 s49, s49, 0x20000"] if k else []) +
                     [f"buffer_load_dwordx4 v{vWd}, s[12:15], s49 offen lds"])
            for t in range(1, 4):
                I.append(f"buffer_load_dwordx4 v{vWd+t}, s[12:15], s49 offen offset:{1024*t} lds")
        return I
    def dma_C(c):
        slot = (c % 4) * 0x8000
        I = []
        I.append([f"s_add_u32 m0, s36, {slot}", f"s_mov_b32 s48, {c*0x8000}",
                  f"buffer_load_dwordx4 v{vLin}, s[44:47], s48 offen sc1 lds"])
        for t in range(1, 4):
            I.append(f"buffer_load_dwordx4 v{vLin}, s[44:47], s48 offen offset:{1024*t} sc1 lds")
        I.append([f"s_add_u32 m0, s36, {slot+0x4000}", f"s_mov_b32 s49, {c*0x8000+0x4000}",
                  f"buffer_load_dwordx4 v{vLin}, s[44:47], s49 offen sc1 lds"])
        for t in range(1, 4):
            I.append(f"buffer_load_dwordx4 v{vLin}, s[44:47], s49 offen offset:{1024*t} sc1 lds")
        return I
    def flat(I):
        for x in I:
            if isinstance(x, (list, tuple)):
                for y in x: A(y)
            else: A(x)
    ORDER = ["G", "G", "P", "P", "P", "P"] + ["G"] * 14
    PIDX = {n: k for k, n in enumerate([n for n in range(20) if ORDER[n] == "P"])}
    PLAST = max(PIDX)
    def dma(n):
        if n >= 20: return dma_C(n - 20)
        return dma_P(n) if ORDER[n] == "P" else dma_G(n)
    flat(dma(0))
    fstamp(A, 2)
    A(f"s_add_u32 m0, s36, 0x18000")
    A("s_bfe_u32 s48, s2, 0x40003")
    A("s_lshl_b32 s48, s48, 12")
    A("s_lshl_b32 s49, s20, 10")
    A("s_add_u32 s48, s48, s49")
    A(f"buffer_load_dwordx4 v{vLane16}, s[40:43], s48 offen lds")
    if "cpf" in VAR:
        A("s_getpc_b64 s[72:73]")
        A.label("L_at_pc")
        A("s_lshr_b32 s48, s2, 3")
        A("s_lshl_b32 s48, s48, 2")
        A("s_add_u32 s48, s48, s20")
        A("s_lshl_b32 s48, s48, 8")
        A("s_min_u32 s48, s48, L_code_end-L_at_pc-256")
        A("s_add_u32 s72, s72, s48")
        A("s_addc_u32 s73, s73, 0")
        for q in range(4):
            A(f"s_load_dword s74, s[72:73], {64*q}")
    srd(A, 16, 26, 27, WS_USED)
    srd(A, 52, 64, 65, 1024*1024*2)
    srd(A, 60, 24, 25, 256)
    A("s_load_dwordx2 s[64:65], s[0:1], 88")
    A("s_lshl_b32 s48, s28, 18")
    A("s_add_u32 s44, s26, s48")
    A("s_addc_u32 s45, s27, 0")
    A("s_mov_b32 s46, 0x40000")
    A("s_mov_b32 s47, 0x00020000")
    A("s_lshr_b32 s22, s20, 1")
    A("s_and_b32 s21, s20, 1")
    A("s_bfe_u32 s68, s2, 0x40003")
    A("s_lshl_b32 s68, s68, 2")
    A("s_add_u32 s68, s68, s20")
    A("s_lshl_b32 s68, s68, 15")
    A("s_lshl_b32 s69, s28, 10")
    A("s_add_u32 s68, s68, s69")
    A("s_or_b32 s70, s28, s31")
    A(f"v_lshl_add_u32 v{vT0}, v{vW_}, 3, v{vH}")
    A(f"v_and_b32 v{vT1}, 15, v{vT0}")
    A(f"v_xor_b32 v{vT1}, v{vT1}, v{vL31}")
    A(f"v_lshlrev_b32 v{vT1}, 4, v{vT1}")
    A(f"v_lshl_add_u32 v{vPd}, v{vT0}, 11, v{vT1}")
    for t in range(1, 4):
        A(f"v_xor_b32 v{vPd+t}, {(2*t) << 4}, v{vPd}")
        A(f"v_add_u32 v{vPd+t}, {t*(4096-1024)}, v{vPd+t}")
    A(f"v_lshl_add_u32 v{vT0}, v{vW_}, 3, v{vH}")
    A(f"v_and_b32 v{vT1}, 15, v{vL31}")
    A(f"v_xor_b32 v{vT0}, v{vT0}, v{vT1}")
    A(f"v_lshlrev_b32 v{vT0}, 4, v{vT0}")
    A(f"v_lshl_add_u32 v{vPr}, v{vL31}, 9, v{vT0}")
    for s in range(1, 4):
        A(f"v_xor_b32 v{vPr+s}, {(2*s) << 4}, v{vPr}")
    A(f"v_bfe_u32 v{vT0}, v{vL}, 2, 2")
    A(f"v_lshl_add_u32 v{vT0}, v{vH}, 3, v{vT0}")
    A(f"v_lshl_add_u32 v{vT0}, v{vW_}, 6, v{vT0}")
    A(f"v_lshlrev_b32 v{vT0}, 6, v{vT0}")
    A(f"v_bfe_u32 v{vT1}, v{vL}, 4, 1")
    A(f"v_lshl_add_u32 v{vT0}, v{vT1}, 5, v{vT0}")
    A(f"v_and_b32 v{vT1}, 3, v{vL}")
    A(f"v_lshl_add_u32 v{vT0}, v{vT1}, 3, v{vT0}")
    A(f"v_add_u32 v{vPw}, 0x4000, v{vT0}")
    A(f"v_bfe_u32 v{vT0}, v{vL}, 1, 3")
    A(f"v_xor_b32 v{vT0}, v{vT0}, v{vH}")
    A(f"v_lshlrev_b32 v{vT0}, 4, v{vT0}")
    A(f"v_lshl_add_u32 v{vT0}, v{vL31}, 7, v{vT0}")
    A(f"s_lshl_b32 s48, s22, 13")
    A(f"v_add_u32 v{vXr}, s48, v{vT0}")
    for s in range(1, 4):
        A(f"v_xor_b32 v{vXr+s}, {(2*s) << 4}, v{vXr}")
    A(f"v_bfe_u32 v{vT0}, v{vL}, 2, 2")
    A(f"v_lshl_add_u32 v{vT1}, v{vH}, 3, v{vT0}")
    A(f"v_lshlrev_b32 v{vT1}, 8, v{vT1}")
    A(f"s_lshl_b32 s48, s21, 1")
    A(f"v_xor_b32 v{vT0}, s48, v{vT0}")
    A(f"v_lshl_add_u32 v{vT1}, v{vT0}, 6, v{vT1}")
    A(f"v_bfe_u32 v{vT0}, v{vL}, 4, 1")
    A(f"v_lshl_add_u32 v{vT1}, v{vT0}, 5, v{vT1}")
    A(f"v_and_b32 v{vT0}, 3, v{vL}")
    A(f"v_lshl_add_u32 v{vT1}, v{vT0}, 3, v{vT1}")
    A(f"v_add_u32 v{vWr}, 0x4000, v{vT1}")
    A(f"v_xor_b32 v{vWr+1}, 64, v{vWr}")
    A(f"v_add_u32 v{vWp}, 0x1c000, v{vWr}")
    A(f"v_add_u32 v{vWp+1}, 0x1c000, v{vWr+1}")
    for i in range(0, 32, 2):
        A(f"v_mov_b64 {vr(PACC+i,2)}, 0")
    for i in range(0, 64, 2):
        A(f"v_mov_b64 {vr(ACC+i,2)}, 0")
    side = []
    side.append(f"v_mov_b32 v{vIDX}, 0xdddddddd")
    side += [f"v_and_b32 v{vT0}, 15, v{vL}", f"v_mov_b32 v{vT1}, 0x3f803f80", f"v_cmp_eq_u32 vcc, 0, v{vT0}", "s_nop 1",
             f"v_cndmask_b32 v{vT2}, 0, v{vT1}, vcc", f"v_cmp_eq_u32 vcc, 4, v{vT0}", "s_nop 1",
             f"v_cndmask_b32 v{vT1}, 0, v{vT1}, vcc",
             f"v_accvgpr_write_b32 a{SEL}, v{vT2}", f"v_accvgpr_write_b32 a{SEL+1}, v{vT2}",
             f"v_accvgpr_write_b32 a{SEL+2}, v{vT1}", f"v_accvgpr_write_b32 a{SEL+3}, v{vT1}"]
    side += [f"v_accvgpr_write_b32 a{L0+i}, 0" for i in range(16)]
    side += [f"v_accvgpr_write_b32 a{VB0+8+i}, 0" for i in range(8)]
    side += [f"v_mov_b64 {vr(O0+i,2)}, 0" for i in range(0, 64, 2)]
    side.append(f"v_mov_b32 v{vKV}, v{vLane16}")
    for x in side: A(x)
    tstamp_init(A, 26, 27, 20, 0)
    tstamp(A)
    fstamp(A, 3)
    flat(dma(1))
    fstamp(A, 4)
    stamp(A, 1)
    def rd_P(n):
        off = (n % 2) * 0x8000
        b = FR + 64*(n % 2)
        R = []
        for s in range(4):
            R.append(f"ds_read_b128 {ar(b+8*s,4)}, v{vPr+s} offset:{off}")
            R.append(f"ds_read_b64_tr_b16 {ar(b+8*s+4,2)}, v{vPw} offset:{off+1024*s}")
            R.append(f"ds_read_b64_tr_b16 {ar(b+8*s+6,2)}, v{vPw} offset:{off+1024*s+256}")
        return R
    def mf_P(n):
        b = FR + 64*(n % 2)
        A("s_cmp_eq_u32 s31, 1")
        A(f"s_cbranch_scc1 L_at_pv{n}")
        for s in range(4):
            A(f"v_mfma_f32_32x32x16_bf16 {vr(PACC,16)}, {ar(b+8*s+4,4)}, {ar(b+8*s,4)}, {vr(PACC,16)}")
        A("s_cmp_lg_u32 s70, 0")
        A(f"s_cbranch_scc1 L_at_pj{n}")
        for s in range(4):
            A(f"v_mfma_f32_32x32x16_bf16 {vr(GACC,16)}, {ar(GF+16*PIDX[n]+4*s,4)}, {ar(b+8*s,4)}, {vr(GACC,16)}")
        A(f"s_branch L_at_pj{n}")
        A.label(f"L_at_pv{n}")
        for s in range(4):
            A(f"v_mfma_f32_32x32x16_bf16 {vr(PACC,16)}, {ar(b+8*s,4)}, {ar(b+8*s+4,4)}, {vr(PACC,16)}")
        A.label(f"L_at_pj{n}")
    def rd_G(n):
        off = (n % 2) * 0x8000
        b = FR + 64*(n % 2)
        R = []
        for s in range(4):
            p = b + 16*s
            R.append(f"ds_read_b128 {ar(p,4)}, v{vXr+s} offset:{off}")
            wr, wo = (vWp, (n % 2)*0x4000) if n in PARK else (vWr, off)
            R.append(f"ds_read_b64_tr_b16 {ar(p+8,2)}, v{wr} offset:{wo+4096*s}")
            R.append(f"ds_read_b64_tr_b16 {ar(p+10,2)}, v{wr} offset:{wo+4096*s+1024}")
            R.append(f"ds_read_b128 {ar(p+4,4)}, v{vXr+s} offset:{off+4096}")
            R.append(f"ds_read_b64_tr_b16 {ar(p+12,2)}, v{wr+1} offset:{wo+4096*s}")
            R.append(f"ds_read_b64_tr_b16 {ar(p+14,2)}, v{wr+1} offset:{wo+4096*s+1024}")
        return R
    def mf_G(n, by_u=False):
        b = FR + 64*(n % 2)
        M = []
        order = [(s, a, t) for s in range(4) for a in range(2) for t in range(2)]
        if by_u: order = [(s, a, t) for a in range(2) for t in range(2) for s in range(4)]
        for (s, a, t) in order:
            p = b + 16*s; u = 2*a + t
            M.append(f"v_mfma_f32_32x32x16_bf16 {vr(ACC+16*u,16)}, {ar(p+8+4*a,4)}, {ar(p+4*t,4)}, {vr(ACC+16*u,16)}")
        return M
    def toggle(regs):
        return [f"v_xor_b32 v{r}, 0x10000, v{r}" for r in regs]
    Pregs = [vPr+s for s in range(4)] + [vPw]
    Gregs = [vXr+s for s in range(4)] + [vWr, vWr+1]
    hi = {"P": 0, "G": 0}
    for n in range(20):
        A.comment(f"---- iteration {n} ({ORDER[n]})")
        cnt = 9 if n in (8, 9, 17) else 8
        if PARK:
            if n in (5, 6): cnt = 4
        A(f"s_waitcnt vmcnt({cnt}) lgkmcnt(0)")
        A("s_barrier")
        tstamp(A)
        if n == 6: stamp(A, 2)
        if n == 0: fstamp(A, 5)
        if n == 1: fstamp(A, 6)
        D = dma(n + 2)
        if n == 0 and PARK: D = dma_park()
        if n == 1 and PARK: D = dma(2)
        assert hi[ORDER[n]] == (n >> 1) & 1
        R = rd_P(n) if ORDER[n] == "P" else rd_G(n)
        V = []
        T = []
        if n + 1 < 20 and hi[ORDER[n+1]] != ((n + 1) >> 1) & 1:
            T = toggle(Pregs if ORDER[n+1] == "P" else Gregs)
            hi[ORDER[n+1]] ^= 1
        if n == 18:
            A(f"v_cmp_gt_u32 vcc, 4, v{vPoll}")
            A("s_nop 4")
            A("s_cmp_eq_u64 vcc, 0")
            A("s_cbranch_scc1 L_at_flags_ok")
            A("s_mov_b32 s50, 0")
            A.label("L_at_spin")
            A("s_add_u32 s50, s50, 1")
            A("s_cmp_gt_u32 s50, 0x40000")
            A("s_cbranch_scc1 L_at_flags_ok")
            A("s_sleep 8")
            A(f"buffer_load_dword v{vPoll}, v{vT2}, s[60:63], 0 offen sc1")
            A("s_waitcnt vmcnt(0)")
            A(f"v_cmp_gt_u32 vcc, 4, v{vPoll}")
            A("s_nop 4")
            A("s_cmp_eq_u64 vcc, 0")
            A("s_cbranch_scc0 L_at_spin")
            A.label("L_at_flags_ok")
        if n == 0:
            A("s_cmp_lg_u32 s70, 0")
            A("s_cbranch_scc1 L_at_nogf")
            A(f"v_lshlrev_b32 v{vT0}, 4, v{vH}")
            A(f"v_lshl_add_u32 v{vT0}, v{vW_}, 7, v{vT0}")
            A("s_mov_b32 s50, s34")
            for q in range(4):
                A("s_lshl_b32 s51, s50, 9")
                for s in range(4):
                    A(f"buffer_load_dwordx4 {ar(GF+16*q+4*s,4)}, v{vT0}, s[56:59], s51 offen offset:{32*s}")
                A("s_add_u32 s50, s50, 1")
                A("s_and_b32 s50, s50, 3")
            A.label("L_at_nogf")
        if n == 0 or ORDER[n-1] == "P" or (n == 2 and PARK):
            def mixrd(R, D, k):
                while R or D:
                    if D: flat([D.pop(0)])
                    for _ in range(k):
                        if R: A(R.pop(0))
            if n - 1 == PLAST:
                A(f"v_add_u32 v{vRed}, {LDS_SCR}, v{vLin}")
                A(f"v_lshlrev_b32 v{vRed+1}, 2, v{vL}")
                A(f"v_lshlrev_b32 v{vRed+2}, 2, v0")
                A(f"v_add_u32 v{vRed+2}, {LDS_SCG}, v{vRed+2}")
            flat(D[:2]); del D[:2]
            if n > 0 and ORDER[n-1] == "P": mf_P(n - 1)
            if n - 1 == PLAST:
                mixrd(take_(R, 10), take_(D, 3), 4)
                for rg in range(4):
                    A(f"ds_write_b128 v{vRed}, {vr(PACC+4*rg,4)} offset:{1024*rg}")
                A(f"ds_write_b32 v{vRed+2}, v{GACC}")
                A(f"v_lshl_add_u32 v{vRed}, v{vW_}, 10, v{vLane16}")
                A(f"v_add_u32 v{vRed}, {LDS_SCR}, v{vRed}")
                A(f"v_add_u32 v{vRed+2}, {LDS_SCG}, v{vRed+1}")
            mixrd(R, D, 4 if len(R) > 12 else 2)
            for x in T: A(x)
            continue
        if n == 7:
            assert PLAST == 5
            for ww in range(4):
                A(f"ds_read_b128 {vr(Q0+4*ww,4)}, v{vRed} offset:{0x1000*ww}")
            for ww in range(4):
                A(f"ds_read_b32 v{Q0+16+ww}, v{vRed+2} offset:{0x100*ww}")
            V += ["s_nop 0", "s_nop 0", "s_waitcnt lgkmcnt(6)"]
        post = []
        if n == 7:
            for e in range(0, 4, 2):
                V.append([f"v_add_f32 v{Q0+e}, v{Q0+e}, v{Q0+4+e}", f"v_add_f32 v{Q0+8+e}, v{Q0+8+e}, v{Q0+12+e}",
                          f"v_add_f32 v{Q0+e+1}, v{Q0+e+1}, v{Q0+5+e}", f"v_add_f32 v{Q0+9+e}, v{Q0+9+e}, v{Q0+13+e}"])
            V.append([f"v_add_f32 v{Q0+e}, v{Q0+e}, v{Q0+8+e}" for e in range(4)])
            V.append(["s_mov_b32 s50, 1.0", "s_cmp_eq_u32 s31, 1", f"s_cselect_b32 s50, s50, {KSCALE:#x}", "s_cselect_b64 vcc, -1, 0"])
            V.append([f"v_mul_f32 v{Q0+e}, s50, v{Q0+e}" for e in range(4)])
            V.append([f"v_cvt_pk_bf16_f32 v{Q0+4}, v{Q0}, v{Q0+1}", f"v_cvt_pk_bf16_f32 v{Q0+5}, v{Q0+2}, v{Q0+3}"])
            V.append([f"v_bfe_u32 v{vT0}, v{vL31}, 2, 1", f"v_bfe_u32 v{vT1}, v{vL31}, 3, 1", f"v_and_b32 v{vRed}, 0x13, v{vL31}"])
            V.append([f"v_lshl_add_u32 v{vRed}, v{vT0}, 3, v{vRed}", f"v_lshl_add_u32 v{vRed}, v{vT1}, 2, v{vRed}",
                      f"v_cndmask_b32 v{vRed}, v{vRed}, v{vL31}, vcc"])
            V.append([f"v_lshl_add_u32 v{vRed}, v{vH}, 5, v{vRed}", f"v_lshlrev_b32 v{vRed}, 4, v{vRed}"])
            V.append(["s_lshl_b32 s50, s33, 12", "s_lshl_b32 s51, s31, 11", "s_add_u32 s50, s50, s51", "s_lshl_b32 s51, s22, 10"])
            V.append(["s_add_u32 s50, s50, s51", "s_lshl_b32 s51, s21, 3", "s_add_u32 s50, s50, s51"])
            V.append([f"v_add_f32 v{Q0+16}, v{Q0+16}, v{Q0+17}", f"v_add_f32 v{Q0+18}, v{Q0+18}, v{Q0+19}", f"v_add_f32 v{Q0+16}, v{Q0+16}, v{Q0+18}"])
            V.append([f"v_mul_f32 v{Q0+16}, {LOG2E ^ 0x80000000:#x}, v{Q0+16}", f"v_exp_f32 v{Q0+16}, v{Q0+16}", "s_nop 0",
                      f"v_add_f32 v{Q0+16}, 1.0, v{Q0+16}", f"v_rcp_f32 v{Q0+16}, v{Q0+16}", f"v_lshlrev_b32 v{vRed+1}, 2, v{vL31}"])
            post.append(f"buffer_store_dwordx2 {vr(Q0+4,2)}, v{vRed}, s[44:47], s50 offen sc1")
            post.append("s_cmp_lg_u32 s20, 0")
            post.append("s_cbranch_scc1 L_at_nogst")
            post.append("s_lshl_b32 s69, s29, 7")
            post.append("s_lshl_b32 s51, s28, 5")
            post.append("s_add_u32 s69, s69, s51")
            post.append("s_lshl_b32 s51, s30, 2")
            post.append("s_add_u32 s69, s69, s51")
            post.append(f"s_add_u32 s69, s69, {WS_FL}")
            post.append(f"v_mov_b32 v{vT0}, 0")
            post.append("s_mov_b64 exec, 1")
            post.append(f"buffer_atomic_swap v{vT0}, v{vT0}, s[16:19], s69 offen sc1")
            post.append("s_mov_b64 exec, -1")
            post.append("s_or_b32 s51, s70, s20")
            post.append("s_cmp_lg_u32 s51, 0")
            post.append("s_cbranch_scc1 L_at_nogst")
            post.append("s_lshl_b32 s51, s33, 7")
            post.append(f"s_add_u32 s51, s51, {WS_G}")
            post.append(f"buffer_store_dword v{Q0+16}, v{vRed+1}, s[16:19], s51 offen sc1")
            post.append("L_at_nogst:")
        if n == 10:
            post.append("s_cmp_lg_u32 s20, 0")
            post.append("s_cbranch_scc1 L_at_nosig")
            post.append("s_and_b32 s50, s2, 63")
            post.append("s_lshl_b32 s50, s50, 2")
            post.append(f"v_mov_b32 v{vT0}, 1")
            post.append(f"v_mov_b32 v{vT1}, 0")
            post.append("s_mov_b64 exec, 1")
            post.append(f"buffer_atomic_add v{vT0}, v{vT1}, s[60:63], s50 offen sc1")
            post.append("s_mov_b64 exec, -1")
            post.append("L_at_nosig:")
        if n == 16:
            V.append(f"v_lshlrev_b32 v{vT2}, 2, v{vL}")
            post.append(f"buffer_load_dword v{vPoll}, v{vT2}, s[60:63], 0 offen sc1")
        if n == 18:
            V += [f"v_lshrrev_b32 v{vT0}, 3, v{vL}", f"v_lshl_add_u32 v{vT0}, v{vW_}, 5, v{vT0}", f"v_lshlrev_b32 v{vT0}, 11, v{vT0}",
                  f"v_bfe_u32 v{vT1}, v{vL}, 4, 1", f"v_lshlrev_b32 v{vT1}, 2, v{vT1}", f"v_and_b32 v5, 7, v{vL}",
                  f"v_xor_b32 v5, v5, v{vT1}", f"v_lshl_add_u32 v{vWd}, v5, 4, v{vT0}",
                  ["s_lshl_b32 s31, s28, 3", "s_add_u32 s31, s31, s30", "s_lshl_b32 s31, s31, 7"],
                  f"v_add_u32 v{vWd}, s31, v{vWd}"]
            V += [f"v_add_u32 v{vWd+t}, {t*(16384-1024)}, v{vWd}" for t in range(1, 4)]
        if n == 19:
            V += [f"v_mov_b32 v{vXd+t}, v{vLin}" for t in range(4)]
            V += [["s_lshl_b32 s40, s29, 2", "s_lshl_b32 s41, s22, 1", "s_add_u32 s40, s40, s41"],
                  ["s_lshl_b32 s40, s40, 17", "s_lshl_b32 s41, s28, 5", "s_lshl_b32 s50, s30, 2"],
                  ["s_add_u32 s41, s41, s50", "s_lshl_b32 s50, s21, 1", "s_add_u32 s41, s41, s50"],
                  ["s_lshl_b32 s41, s41, 11", "s_add_u32 s40, s40, s41", f"s_add_u32 s40, s40, {WS_OF}"],
                  ["s_add_u32 s41, s40, 0x20000", "s_mov_b32 s42, s40"],
                  ["s_mov_b32 s56, s64", "s_mov_b32 s57, s65", f"s_mov_b32 s58, {2048*1024*2}"],
                  ["s_lshl_b32 s43, s29, 18", "s_lshl_b32 s50, s20, 16", "s_add_u32 s43, s43, s50"],
                  ["s_add_u32 s43, s43, s31"]]
        M = mf_G(n - 1)
        weave(A, M, [(R, lambda k: 2), (D, lambda k: 1 if k % 2 == 1 else 0), (V, lambda k: 1), (T, lambda k: 2 if k >= 12 else 0)])
        for x in post: A(x)
        if n == 1 and PARK:
            A.comment("---- iteration 1b")
            A("s_waitcnt lgkmcnt(0)")
            weave(A, mf_G(1), [(dma(3), lambda k: 1 if k % 2 == 1 else 0)])
    A("s_waitcnt vmcnt(8) lgkmcnt(0)")
    A("s_barrier")
    stamp(A, 3)
    tstamp(A)
    def cvtQ(u):
        return [f"v_cvt_pk_bf16_f32 v{Q0+8*u+j}, v{ACC+16*u+2*j}, v{ACC+16*u+2*j+1}" for j in range(8)]
    def QK(u, c):
        return [f"v_mfma_f32_32x32x16_bf16 {vr(S0+16*u,16)}, {ar(KB0,4)}, {vr(Q0+8*u,4)}, {c}",
                f"v_mfma_f32_32x32x16_bf16 {vr(S0+16*u,16)}, {ar(KB0+4,4)}, {vr(Q0+8*u+4,4)}, {vr(S0+16*u,16)}"]
    def max16(b):
        L = [f"v_max3_f32 v{b}, v{b}, v{b+1}, v{b+2}"]
        for j in range(3, 15, 2):
            L.append(f"v_max3_f32 v{b}, v{b}, v{b+j}, v{b+j+1}")
        L.append(f"v_max_f32 v{b}, v{b}, v{b+15}")
        return L
    def fill_C(u, b):
        L = [f"v_mov_b32 v{b+1}, v{b}", "s_nop 1", f"v_permlane32_swap_b32 v{b}, v{b+1}", "s_nop 1",
             f"v_max_f32 v{b}, v{b}, v{b+1}", f"v_sub_f32 v{C0+16*u}, 0, v{b}", f"v_sub_f32 v{C0+16*u+1}, 0, v{b}"]
        for j in range(2, 16, 2):
            L.append(f"v_mov_b64 {vr(C0+16*u+j,2)}, {vr(C0+16*u,2)}")
        return L
    G = mf_G(19, by_u=True)
    ldc = lambda t: f"buffer_load_dwordx4 v{vXd+t}, s[44:47], s32 offen offset:{1024*t} sc1 lds"
    ldw = lambda t: f"buffer_load_dwordx4 v{vWd+t}, s[12:15], s34 offen offset:{1024*t} lds"
    misc = [f"ds_read_b128 {ar(KB0,4)}, v{vKV}", f"ds_read_b128 {ar(KB0+4,4)}, v{vKV} offset:1024",
            f"ds_read_b128 {ar(VB0,4)}, v{vKV} offset:2048", f"ds_read_b128 {ar(VB0+4,4)}, v{vKV} offset:3072",
            f"v_lshlrev_b32 v{vT0}, 2, v{vL31}", "s_lshl_b32 s50, s29, 9", "s_lshl_b32 s51, s22, 8", "s_add_u32 s50, s50, s51",
            f"s_add_u32 s50, s50, {WS_G}", f"buffer_load_dword v{vG}, v{vT0}, s[16:19], s50 offen sc1",
            f"buffer_load_dword v{vG+1}, v{vT0}, s[16:19], s50 offen offset:128 sc1",
            "s_add_u32 m0, s36, 0x10000", "s_mov_b32 s32, 0x10000", ldc(0), ldc(1), ldc(2), ldc(3),
            "s_mov_b32 s37, 0x18000", "s_mov_b32 s39, 0", "s_mov_b32 s71, 0", "s_mov_b32 s33, 0x4000", "s_mov_b32 s38, -1"]
    def emit(L):
        for x in L: A(x)
    def take(L, n):
        r = L[:n]; del L[:n]; return r
    for k in range(0, 7):
        A(G[k]); emit(take(misc, 4 if k < 5 else 1))
    emit(misc)
    c0 = cvtQ(0)
    A(G[7]); emit(take(c0, 5))
    A(G[8]); emit(c0); A("s_waitcnt lgkmcnt(0)")
    A(G[9])
    q = QK(0, "0"); A(q[0]); A(q[1])
    c1 = cvtQ(1)
    A(G[10]); emit(take(c1, 5))
    A(G[11]); emit(c1)
    A(G[12])
    q = QK(1, "0"); A(q[0]); A(q[1])
    m0_ = max16(S0)
    A(G[13]); emit(take(m0_, 5))
    A(G[14]); emit(m0_)
    f0 = fill_C(0, S0)
    A(G[15]); emit(take(f0, 4))
    emit(cvtQ(2))
    emit(take(f0, 3))
    q = QK(2, "0"); A(q[0]); emit(take(f0, 4)); A(q[1]); emit(f0)
    emit(cvtQ(3))
    m1_ = max16(S0+16)
    emit(take(m1_, 2))
    q = QK(3, "0"); A(q[0]); emit(take(m1_, 4)); A(q[1]); emit(m1_)
    f1 = fill_C(1, S0+16)
    emit(take(f1, 3))
    q = QK(0, vr(C0, 16) if 'czero' not in VAR else "0"); A(q[0]); emit(take(f1, 5)); A(q[1]); emit(f1)
    emit(max16(S0+32)); emit(fill_C(2, S0+32))
    emit(max16(S0+48)); emit(fill_C(3, S0+48))
    for i in range(0, 16, 2):
        A(f"v_mov_b64 {vr(S0+48+i,2)}, 0")
    A("s_waitcnt vmcnt(6)")
    A("s_barrier")
    def PV(u0, p0):
        return [
            f"v_smfmac_f32_32x32x32_bf16 {vr(O0+16*u0,16)}, {ar(VB0+8*p0,4)}, {vr(S0+16*u0,8)}, v{vIDX}",
            f"v_smfmac_f32_32x32x32_bf16 {vr(O0+16*u0,16)}, {ar(VB0+8*p0+4,4)}, {vr(S0+16*u0+8,8)}, v{vIDX}",
            f"v_smfmac_f32_16x16x64_bf16 {ar(L0+4*u0,4)}, {ar(SEL,4)}, {vr(S0+16*u0,8)}, v{vIDX}",
            f"v_smfmac_f32_16x16x64_bf16 {ar(L0+4*u0,4)}, {ar(SEL,4)}, {vr(S0+16*u0+8,8)}, v{vIDX}",
        ]
    stamp(A, 4)
    body = []
    for i in range(8):
        for u in range(4):
            u1 = (u + 1) % 4; i1 = i + (1 if u == 3 else 0)
            u0 = (u + 3) % 4; i0 = i - (1 if u == 0 else 0)
            P = PV(u0, i0 % 2)
            M = [
                f"v_mfma_f32_32x32x16_bf16 {vr(S0+16*u1,16)}, {ar(KB0+8*(i1%2),4)}, {vr(Q0+8*u1,4)}, {vr(C0+16*u1,16) if 'czero' not in VAR else 0}",
                P[0],
                f"v_mfma_f32_32x32x16_bf16 {vr(S0+16*u1,16)}, {ar(KB0+8*(i1%2)+4,4)}, {vr(Q0+8*u1+4,4)}, {vr(S0+16*u1,16)}",
                P[1], P[2], P[3],
            ]
            X = [[] for _ in range(6)]
            tt = (i + 1) % 8
            pn = (i + 1) % 2
            if u == 0:
                X[3].append("s_waitcnt lgkmcnt(0)")
                X[4].append(f"ds_read_b128 {ar(KB0+8*pn,4)}, v{vKV} offset:{4096*tt}")
                X[5].append(f"ds_read_b128 {ar(KB0+8*pn+4,4)}, v{vKV} offset:{4096*tt+1024}")
            if u == 2:
                X[3].append("s_waitcnt lgkmcnt(0)")
                X[4].append(f"ds_read_b128 {ar(VB0+8*pn,4)}, v{vKV} offset:{4096*tt+2048}")
                X[5].append(f"ds_read_b128 {ar(VB0+8*pn+4,4)}, v{vKV} offset:{4096*tt+3072}")
            if i in (2, 4) and u == 1 and "nopf" not in VAR:
                X[2].append(f"s_mov_b32 m0, {LDS_DUMMY}")
                X[4].append(f"buffer_load_dwordx4 v{vLane16}, s[52:55], s68 offen lds")
                X[5].append("s_add_u32 s68, s68, 0x800")
            if i == 3 and u == 1 and "touch" in VAR:
                X[4].append(f"buffer_load_dwordx4 v{vLane16}, s[16:19], s42 offen lds")
                X[5].append("s_add_u32 s42, s42, 0x400")
            if i == 3 and u == 3 and "touch" in VAR:
                X[1].append("s_cmp_eq_u32 s39, 3")
                X[1].append("s_cselect_b32 s42, s41, s42")
            if i == 7 and u == 0:
                X[0].append("s_add_u32 s71, s71, 0x8000")
                X[1].append("s_and_b32 s71, s71, 0x1ffff")
                X[1].append("s_add_u32 s39, s39, 1")
                X[2].append("s_bitcmp1_b32 0x54, s39")
                X[3].append("@TOP")
            if i == 7 and u == 1:
                X[1].append("s_add_u32 m0, s37, s36")
                X[1].append("s_add_u32 s37, s37, 0x8000")
                X[3].append("s_and_b32 s37, s37, 0x1ffff")
                X[3].append("s_cmp_ge_u32 s39, 7")
                X[4].append(ldc(0)); X[5].append(ldc(1))
            if i == 7 and u == 2:
                X[0].append("s_cselect_b32 s37, 0x20000, s37")
            if i == 7 and u == 3:
                X[3].append("s_cmp_eq_u32 s39, 8")
                X[4].append(ldc(2)); X[5].append(ldc(3)); X[5].append("@EXIT")
            if i == 0 and u == 1:
                X[4].append(ldc(0)); X[5].append(ldc(1))
            if i == 0 and u == 3:
                X[4].append(ldc(2)); X[5].append(ldc(3))
            if i == 1 and u == 1:
                X[1].append("s_add_u32 s32, s32, s33")
                X[1].append("s_and_b32 s32, s32, s38")
            E = [f"v_exp_f32 v{S0+16*u+j}, v{S0+16*u+j}" for j in range(16)]
            ne = [3, 3, 3, 3, 2, 2]
            for k in range(6):
                body.append(M[k])
                body += X[k]
                for _ in range(ne[k]): body.append(E.pop(0))
    top = body.index("@TOP")
    first, second = body[:top], body[top+1:]
    A("s_branch L_at_pre_entry")
    A.raw(".p2align 6")
    A.label("L_at_top_bar")
    A("s_cmp_lg_u32 s39, 6")
    A("s_cbranch_scc1 L_at_top_bar2")
    for t in range(4):
        A(f"v_mov_b32 v{vXd+t}, v{vWd+t}")
    A("s_mov_b32 s44, s72")
    A("s_mov_b32 s45, s73")
    A("s_mov_b32 s46, 0x200000")
    A("s_lshl_b32 s32, s30, 18")
    A("s_mov_b32 s33, 0x40000")
    A("s_mov_b32 s38, 0x1fffff")
    A.label("L_at_top_bar2")
    A(f"s_waitcnt vmcnt({3 if 'touch' in VAR else 2})")
    A("s_barrier")
    A.label("L_at_top")
    tstamp(A)
    A(f"v_add_u32 v{vKV}, s71, v{vLane16}")
    ex = second.index("@EXIT")
    tail = second[ex+1:]
    for x in second[:ex]: A(x)
    A("s_cbranch_scc1 L_at_exit")
    for x in tail: A(x)
    A.label("L_at_pre_entry")
    A(first[0]); A("s_add_u32 m0, m0, 0x4000")
    for x in first[1:5]: A(x)
    A("s_add_u32 s32, s32, s33")
    A("s_and_b32 s32, s32, s38")
    rest = first[5:]
    for x in rest: A(x)
    A("s_cbranch_scc1 L_at_top_bar")
    A("s_branch L_at_top")
    A.label("L_at_exit")
    for x in tail: A(x)
    stamp(A, 5)
    A(f"s_waitcnt vmcnt(4) lgkmcnt(0)")
    A("s_barrier")
    gstamp(A, 0)
    tstamp(A, "2")
    P3 = PV(3, 1)
    def scale_store(u):
        a, t = u >> 1, u & 1
        L = []
        for j in range(0, 16, 2):
            L.append(f"v_pk_mul_f32 {vr(O0+16*u+j,2)}, {vr(O0+16*u+j,2)}, {vr(S0+2*u,2)} op_sel_hi:[1,0]")
        for j in range(8):
            L.append(f"v_cvt_pk_bf16_f32 v{C0+8*u+j}, v{O0+16*u+2*j}, v{O0+16*u+2*j+1}")
        for f in range(2):
            L.append(f"buffer_store_dwordx4 {vr(C0+8*u+4*f,4)}, v{vLane16}, s[16:19], s{40+t} offen offset:{2048*a+1024*f} sc1 {'nt' if 'ont' in VAR else ''}")
        return L
    addr = ["s_cmp_eq_u32 s28, 0", "s_cselect_b32 s50, 1.0, -1.0", "s_cselect_b32 s51, 0, 1.0"]
    addr += ["s_lshl_b32 s55, s30, 18", "s_add_u32 s34, s55, 0x140000", "s_and_b32 s34, s34, 0x1fffff",
             "s_mov_b32 s12, s72", "s_mov_b32 s13, s73", "s_add_u32 m0, s36, 0x24000"]
    A(P3[2]); emit(addr); A(P3[3])
    A(ldw(0)); A(ldw(1)); A(P3[0]); A(ldw(2)); A(ldw(3)); A(P3[1])
    emit(["s_add_u32 m0, s36, 0x10000", "s_add_u32 s34, s34, 0x40000", "s_and_b32 s34, s34, 0x1fffff"])
    for t in range(4): A(ldw(t))
    emit(["s_add_u32 s34, s34, 0x40000", "s_and_b32 s34, s34, 0x1fffff"])
    A(f"v_mov_b32 v{vT0}, s51")
    A(f"v_fma_f32 v{vG}, v{vG}, s50, v{vT0}")
    A(f"v_fma_f32 v{vG+1}, v{vG+1}, s50, v{vT0}")
    A("s_mov_b64 s[66:67], -1")
    A.label("L_at_store")
    for u in range(4):
        A(f"v_accvgpr_read_b32 v{S0+2*u}, a{L0+4*u}")
    if True:
        for u in range(4):
            A(f"v_mov_b32 v{S0+2*u+1}, v{S0+2*u}")
        A("s_nop 1")
        for u in range(4):
            A(f"v_permlane32_swap_b32 v{S0+2*u}, v{S0+2*u+1}")
        A("s_nop 1")
    A(f"v_add_f32 v{vT1}, v{S0}, v{S0+2}")
    A(f"v_add_f32 v{vT0}, v{S0+4}, v{S0+6}")
    A(f"v_add_f32 v{vT0}, v{vT0}, v{vT1}")
    A(f"v_cmp_ngt_f32 vcc, {0x4e800000 if 'forceslow' not in VAR else 0x3f000000:#x}, v{vT0}")
    for u in range(4):
        A(f"v_rcp_f32 v{S0+2*u}, v{S0+2*u}")
    A("s_and_b64 vcc, vcc, s[66:67]")
    if "lx" not in VAR: A("s_cbranch_scc1 L_at_slow")
    for u in range(4):
        A(f"v_mul_f32 v{S0+2*u}, v{S0+2*u}, v{vG+(u&1)}")
    for u in range(4):
        emit(scale_store(u))
    gen_out(A)
    A.label("L_at_slow")
    A("s_waitcnt vmcnt(0) lgkmcnt(0)")
    A("s_lshl_b32 s39, s28, 18")
    A("s_add_u32 s44, s26, s39")
    A("s_addc_u32 s45, s27, 0")
    A("s_mov_b32 s46, 0x40000")
    for u in range(4):
        A(f"v_mov_b32 v{O0+u}, 0xff7fffff")
    A("s_mov_b32 s39, 0")
    A.label("L_at_slow1")
    A(f"buffer_load_dwordx4 {ar(KB0,4)}, v{vLane16}, s[44:47], s39 offen sc1")
    A(f"buffer_load_dwordx4 {ar(KB0+4,4)}, v{vLane16}, s[44:47], s39 offen offset:1024 sc1")
    A("s_waitcnt vmcnt(0)")
    for u in range(4):
        for x in QK(u, "0"): A(x)
    A("s_nop 15")
    for u in range(4):
        for j in range(0, 16, 2):
            A(f"v_max3_f32 v{O0+u}, v{O0+u}, v{S0+16*u+j}, v{S0+16*u+j+1}")
    A("s_add_u32 s39, s39, 0x1000")
    A("s_cmp_lt_u32 s39, 0x40000")
    A("s_cbranch_scc1 L_at_slow1")
    for u in range(4):
        A(f"v_mov_b32 v{S0+16*u}, v{O0+u}")
        emit(fill_C(u, S0+16*u))
    for i in range(16):
        A(f"v_accvgpr_write_b32 a{L0+i}, 0")
    for i in range(64):
        A(f"v_mov_b32 v{O0+i}, 0")
    A("s_mov_b32 s39, 0")
    A.label("L_at_slow2")
    A(f"buffer_load_dwordx4 {ar(KB0,4)}, v{vLane16}, s[44:47], s39 offen sc1")
    A(f"buffer_load_dwordx4 {ar(KB0+4,4)}, v{vLane16}, s[44:47], s39 offen offset:1024 sc1")
    A(f"buffer_load_dwordx4 {ar(VB0,4)}, v{vLane16}, s[44:47], s39 offen offset:2048 sc1")
    A(f"buffer_load_dwordx4 {ar(VB0+4,4)}, v{vLane16}, s[44:47], s39 offen offset:3072 sc1")
    A("s_waitcnt vmcnt(0)")
    for u in range(4):
        for x in QK(u, vr(C0+16*u, 16)): A(x)
    A("s_nop 15")
    for j in range(64):
        A(f"v_exp_f32 v{S0+j}, v{S0+j}")
    A("s_nop 1")
    for u in range(4):
        for x in PV(u, 0): A(x)
    A("s_nop 15")
    A("s_add_u32 s39, s39, 0x1000")
    A("s_cmp_lt_u32 s39, 0x40000")
    A("s_cbranch_scc1 L_at_slow2")
    A("s_nop 15")
    A("s_mov_b64 s[66:67], 0")
    A("s_branch L_at_store")
    A.label("L_at_end")
    A("s_endpgm")
    return kernel_desc(name, 512, 256, 102)

def gen_out(A):
    LD = 8
    vL, vH, vL31, vW_ = 1, 2, 3, 4
    vOd, vWd = 28, 12
    vWr, vWr0 = 8, 10
    vT0, vT1, vPl = 16, 17, 18
    ACC = 32
    WF = 128
    OFr = 192
    def wreg(st, s, c, n=4, o=0):
        i = 8*s + 4*c + o
        if st < 2: return vr(WF + 32*st + i, n)
        if st < 10: return ar(32*(st - 2) + i, n)
        return vr(64 + 32*(st - 10) + i, n)
    def stash(st):
        R = []
        for s in range(4):
            for c in range(2):
                wo = (st % 8)*0x2000 + 2048*s
                R += [f"ds_read_b64_tr_b16 {wreg(st,s,c,2,0)}, v{vWr+c} offset:{wo}",
                      f"ds_read_b64_tr_b16 {wreg(st,s,c,2,2)}, v{vWr+c} offset:{wo+1024}"]
        return R
    gstamp(A, 2)
    A("s_lshl_b32 s45, s30, 1")
    A("s_lshl_b32 s33, s28, 3")
    A("s_add_u32 s30, s30, s33")
    A("s_add_u32 s35, s36, 0x14000")
    def dma_W():
        ldw = lambda t: f"buffer_load_dwordx4 v{vWd+t}, s[12:15], s34 offen offset:{1024*t} lds"
        return [["s_mov_b32 m0, s35", "s_add_u32 s35, s35, 0x4000", ldw(0)], [ldw(1)], [ldw(2)],
                [ldw(3), "s_add_u32 s34, s34, 0x40000", "s_and_b32 s34, s34, 0x1fffff"]]
    def fl(I):
        for x in I:
            for y in x: A(y)
    def mix(R, D, k):
        while R or D:
            for _ in range(k):
                if R: A(R.pop(0))
            if D:
                for y in D.pop(0): A(y)
    A(f"v_bfe_u32 v{vT0}, v{vL}, 2, 2")
    A(f"v_lshl_add_u32 v{vT1}, v{vH}, 2, v{vT0}")
    A(f"v_lshlrev_b32 v{vT1}, 7, v{vT1}")
    A(f"v_bfe_u32 v{vT0}, v{vL}, 3, 1")
    A(f"v_lshl_add_u32 v{vT1}, v{vT0}, 6, v{vT1}")
    A(f"v_bfe_u32 v{vT0}, v{vL}, 4, 1")
    A(f"v_lshl_add_u32 v{vT1}, v{vT0}, 5, v{vT1}")
    A(f"v_and_b32 v{vT0}, 1, v{vL}")
    A(f"v_lshl_add_u32 v{vT1}, v{vT0}, 4, v{vT1}")
    A(f"v_bfe_u32 v{vT0}, v{vL}, 1, 1")
    A(f"v_lshl_add_u32 v{vWr0}, v{vT0}, 3, v{vT1}")
    A(f"v_xor_b32 v{vWr0+1}, 64, v{vWr0}")
    A(f"v_mov_b32 v{vWr}, v{vWr0}")
    A(f"v_mov_b32 v{vWr+1}, v{vWr0+1}")
    R = []
    for st in range(8): R += stash(st)
    D = dma_W() + [["s_mov_b32 s12, s74", "s_mov_b32 s13, s75"]] + dma_W()
    mix(R, D, 14)
    A("s_lshl_b32 s46, s29, 2")
    A("s_add_u32 s46, s46, s20")
    A("s_lshl_b32 s46, s46, 17")
    A(f"s_add_u32 s46, s46, {WS_OF}")
    A("s_lshl_b32 s47, s28, 16")
    A("s_add_u32 s48, s46, s47")
    A("s_add_u32 s8, s26, s48")
    A("s_addc_u32 s9, s27, 0")
    A("s_mov_b32 s10, 0x10000")
    A("s_mov_b32 s11, 0x00020000")
    A("s_xor_b32 s47, s47, 0x10000")
    A("s_add_u32 s48, s46, s47")
    A("s_add_u32 s40, s26, s48")
    A("s_addc_u32 s41, s27, 0")
    A("s_lshl_b32 s32, s45, 12")
    A(f"v_add_u32 v{vT0}, s30, v{vL}")
    A(f"v_and_b32 v{vT0}, 7, v{vT0}")
    A(f"v_xor_b32 v{vT1}, s33, v{vL}")
    A(f"v_and_b32 v{vT1}, 8, v{vT1}")
    A(f"v_or_b32 v{vT0}, v{vT0}, v{vT1}")
    A(f"v_lshlrev_b32 v{vT0}, 2, v{vT0}")
    A("s_lshl_b32 s49, s29, 7")
    A(f"s_add_u32 s49, s49, {WS_FL}")
    A("s_cmp_eq_u32 s20, 0")
    A("s_cselect_b32 s53, 0, -1")
    for i in range(0, 32, 2):
        A(f"v_mov_b64 {vr(ACC+i,2)}, 0")
    A(f"v_add_u32 v{vWr}, 0x20000, v{vWr0}")
    A(f"v_add_u32 v{vWr+1}, 0x20000, v{vWr0+1}")
    gstamp(A, 3)
    A("s_waitcnt vmcnt(0) lgkmcnt(0)")
    A("s_barrier")
    gstamp(A, 4)
    tstamp(A, "2")
    stamp(A, 6)
    A("s_cmp_lg_u32 s20, 0")
    A("s_cbranch_scc1 L_o_nosig")
    A(f"v_mov_b32 v{vT1}, 1")
    A(f"v_mov_b32 v{vPl}, 0")
    A("s_mov_b64 exec, 1")
    A(f"buffer_atomic_swap v{vT1}, v{vPl}, s[16:19], s69 offen sc1")
    A("s_mov_b64 exec, -1")
    A.label("L_o_nosig")
    def ld_O(j):
        I = [f"buffer_load_dwordx4 {vr(OFr+4*(j%16),4)}, v{vOd}, s[8:11], s32 offen offset:{1024*(j%4)} sc1"]
        if j % 4 == 3: I += ["s_add_u32 s32, s32, 0x1000", "s_and_b32 s32, s32, 0xffff"]
        return I
    for j in range(8):
        for y in ld_O(j): A(y)
    mix(stash(8) + stash(9) + stash(10) + stash(11), dma_W() + [["s_mov_b32 s35, s36"]] + dma_W() + dma_W(), 5)
    def mf(st, s, c, j):
        w = wreg(st, s, c) if st < 12 else vr(WF + 32*(st % 2) + 8*s + 4*c, 4)
        return f"v_mfma_f32_32x32x16_bf16 {vr(ACC+16*c,16)}, {w}, {vr(OFr+4*(j%16),4)}, {vr(ACC+16*c,16)}"
    gstamp(A, 5)
    A("s_waitcnt vmcnt(12)")
    D = dma_W() + dma_W()
    for j in range(8):
        A(mf(j // 4, j % 4, 0, j)); A(mf(j // 4, j % 4, 1, j))
        for y in D.pop(0): A(y)
    A("s_add_u32 s35, s36, 0x20000")
    A("s_waitcnt lgkmcnt(0)")
    A("s_barrier")
    A("s_cmp_lg_u32 s20, 0")
    A("s_cbranch_scc1 L_o_nopoll")
    A(f"buffer_load_dword v{vPl}, v{vT0}, s[16:19], s49 offen sc1")
    A.label("L_o_nopoll")
    fl(dma_W()); fl(dma_W())
    gstamp(A, 6)
    A("s_mov_b32 s54, 0xff")
    A("s_cmp_lg_u32 s20, 0")
    A("s_cbranch_scc1 L_o_ready0")
    A("s_waitcnt vmcnt(8)")
    A(f"v_cmp_eq_u32 vcc, 1, v{vPl}")
    A("s_nop 4")
    A("s_mov_b32 s53, vcc_lo")
    A("s_and_b32 s50, s53, s54")
    A("s_cmp_lg_u32 s50, s54")
    A("s_cbranch_scc1 L_o_poll0")
    A.label("L_o_ready0")
    A("s_barrier")
    gstamp(A, 7)
    stamp(A, 7)
    tstamp(A, "2")
    for j in range(8, 16):
        for y in ld_O(j): A(y)
    def rd_W(st):
        R = []
        for s in range(4):
            for c in range(2):
                b = WF + 32*(st % 2) + 8*s + 4*c
                wo = st*0x2000 + 2048*s
                R += [f"ds_read_b64_tr_b16 {vr(b,2)}, v{vWr+c} offset:{wo}",
                      f"ds_read_b64_tr_b16 {vr(b+2,2)}, v{vWr+c} offset:{wo+1024}"]
        return R
    def stage(st, stw, rd, extra=None):
        for s in range(4):
            j = 4*st + s
            A(f"s_waitcnt vmcnt(7) lgkmcnt(12)" if stw >= 12 else "s_waitcnt vmcnt(7)")
            for c in range(2):
                A(mf(stw, s, c, j))
                for _ in range(2):
                    if rd: A(rd.pop(0))
                if c == 0:
                    for y in ld_O(j + LD): A(y)
                elif extra:
                    for y in extra.pop(0): A(y)
    A(f"v_add_u32 v{vWr}, 0x10000, v{vWr0}")
    A(f"v_add_u32 v{vWr+1}, 0x10000, v{vWr0+1}")
    A("s_mov_b32 s37, 0x10000")
    A("s_mov_b32 s39, 3")
    if "fulline" in VAR:
        A(f"v_and_b32 v24, 7, v{vL31}")
        A(f"v_xor_b32 v24, v24, v{vH}")
        A(f"v_lshlrev_b32 v24, 4, v24")
        A(f"v_lshl_add_u32 v24, v{vL31}, 7, v24")
        A("s_add_u32 s50, s36, 0x10000")
        A(f"v_add_u32 v20, s50, v24")
        for k in range(1, 4):
            A(f"v_xor_b32 v{20+k}, {32*k}, v20")
        A(f"v_add_u32 v24, s50, v{vOd}")
        A(f"v_lshrrev_b32 v25, 3, v{vL}")
        A(f"v_and_b32 v26, 7, v{vL}")
        A(f"v_xor_b32 v26, v26, v25")
        A(f"v_lshlrev_b32 v26, 4, v26")
        A(f"v_lshl_add_u32 v25, v25, 11, v26")
    for st in range(2, 12):
        stage(st % 4, st, rd_W(0) if st == 11 else None)
    A("s_mov_b32 s54, 0xffff")
    A("s_and_b32 s50, s53, s54")
    A("s_cmp_lg_u32 s50, s54")
    A("s_cbranch_scc1 L_o_poll1")
    A.label("L_o_ready1")
    A("s_barrier")
    A.raw(".p2align 6")
    A.label("L_o_loop")
    tstamp(A, "2")
    stage(0, 12, rd_W(1), [["s_add_u32 s37, s37, 0x8000", "s_and_b32 s37, s37, 0x1ffff"], ["s_cmp_eq_u32 s39, 6", "s_cselect_b32 s37, 0x20000, s37"]])
    stage(1, 13, rd_W(2))
    A("s_mov_b32 s8, s40")
    A("s_mov_b32 s9, s41")
    A("s_cmp_eq_u32 s39, 7")
    A("s_cbranch_scc1 L_o_tail")
    stage(2, 14, rd_W(3), [["s_add_u32 s39, s39, 1"]])
    A(f"v_add_u32 v{vWr}, s37, v{vWr0}")
    A(f"v_add_u32 v{vWr+1}, s37, v{vWr0+1}")
    stage(3, 15, rd_W(0))
    A("s_branch L_o_loop")
    A.label("L_o_tail")
    if "fulline" in VAR: A("s_barrier")
    R3 = rd_W(3)
    for j in range(8, 16):
        st, sq = j // 4, j % 4
        A(f"s_waitcnt vmcnt({15 - j}) lgkmcnt({12 if j < 12 else 4*(15-j)})")
        for c in range(2):
            A(mf(12 + st, sq, c, j))
            for _ in range(2):
                if R3: A(R3.pop(0))
    A("s_mov_b32 s40, s43")
    A("s_nop 2")
    OST = os.environ.get('OST', 'nt')
    if "fulline" not in VAR:
        A(f"v_lshlrev_b32 v{vT0}, 11, v{vL31}")
        A(f"v_lshl_add_u32 v{vT0}, v{vH}, 4, v{vT0}")
        A("s_nop 7")
        for c in range(2):
            for j in range(8):
                A(f"v_cvt_pk_bf16_f32 v{64+8*c+j}, v{ACC+16*c+2*j}, v{ACC+16*c+2*j+1}")
            for f in range(2):
                A(f"buffer_store_dwordx4 {vr(64+8*c+4*f,4)}, v{vT0}, s[56:59], s40 offen offset:{64*c+32*f} {OST}")
    else:
        A("s_nop 7")
        for c in range(2):
            for j in range(8):
                A(f"v_cvt_pk_bf16_f32 v{64+8*c+j}, v{ACC+16*c+2*j}, v{ACC+16*c+2*j+1}")
            for f in range(2):
                A(f"ds_write_b128 v{20+2*c+f}, {vr(64+8*c+4*f,4)}")
        A("s_waitcnt lgkmcnt(0)")
        for i in range(4):
            A(f"ds_read_b128 {vr(80+4*i,4)}, v24 offset:{1024*i}")
        for i in range(4):
            A(f"s_waitcnt lgkmcnt({3-i})")
            A(f"buffer_store_dwordx4 {vr(80+4*i,4)}, v25, s[56:59], s40 offen {OST}")
            A("s_add_u32 s40, s40, 0x4000")
    if TS == "2":
        tstamp(A, "2")
        A("s_waitcnt vmcnt(0)")
        tstamp(A, "2")
    if STAMP:
        A("s_waitcnt vmcnt(0)")
        _stamp(A, 1)
        stamp_flush(A, 0, 8, 26, 27, 20)
    A("s_endpgm")
    for k in (1, 0):
        tgt = f"L_o_ready{k}"
        A.label(f"L_o_poll{k}")
        A("s_mov_b32 s48, 0")
        A.label(f"L_o_spin{k}")
        A(f"buffer_load_dword v{vPl}, v{vT0}, s[16:19], s49 offen sc1")
        A("s_waitcnt vmcnt(0)")
        A(f"v_cmp_eq_u32 vcc, 1, v{vPl}")
        A("s_add_u32 s48, s48, 1")
        A("s_cmp_gt_u32 s48, 0x40000")
        A(f"s_cbranch_scc1 {tgt}")
        A("s_nop 2")
        A("s_mov_b32 s53, vcc_lo")
        A("s_and_b32 s50, s53, s54")
        A("s_cmp_eq_u32 s50, s54")
        A(f"s_cbranch_scc1 {tgt}")
        A(f"s_sleep {int(os.environ.get('SLEEP', '2'))}")
        A(f"s_branch L_o_spin{k}")

def main(path):
    ref = open("cdna_kernels/" + NAME + ".s.ref").read().split("\n")
    hdr = [l for l in ref if l.startswith(";") and "@launch" not in l and "Override" not in l and "grid=ceil" not in l]
    B = Asm()
    d1 = gen_attn(B)
    A = Asm()
    for l in hdr: A.raw(l)
    A.raw(f"; @launch grid=(256,1,1) block=(256,1,1) lds={LDS_ATTN}")
    A.raw('.amdgcn_target "amdgcn-amd-amdhsa--gfx950"')
    A.raw(".text")
    A.lines += B.lines
    A.raw("L_code_end:")
    A.raw('.section .rodata,"a"')
    for d in (d1,):
        A.raw(".p2align 6")
        A.raw(d)
    open(path, "w").write(A.text())

if __name__ == "__main__":
    main(sys.argv[1] if len(sys.argv) > 1 else "cdna_kernels/" + NAME + ".s")
```

```python
import sys, math, struct, os
from asmlib import *

NAME = "gated_mix__grouped_kv_mqa__grouped_kv_mqa__prompt"
WS_KV = 0
WS_G = 0x80000
WS_FL = 0x90000
WS_OF = 0x100000
WS_USED = 0x900000
STAMP = os.environ.get("STAMP", "0") == "1"
VAR = os.environ.get("VAR", "")
XNT = "nt" if "xnt" in VAR else ""
WNT = "nt" if "wnt" in VAR else ""
WS_ST = 0xA00000

FINE = os.environ.get("FINE", "0") == "1"
TS = os.environ.get("TS", "0")
def tstamp(A, ph="1"):
    if TS != ph: return
    A("s_waitcnt lgkmcnt(0)")
    A("s_memtime s[96:97]")
    A("s_memrealtime s[98:99]")
    A("s_waitcnt lgkmcnt(0)")
    A("v_mov_b32 v6, s96")
    A("v_mov_b32 v7, s98")
    A("v_mov_b32 v5, 0")
    A("buffer_store_dwordx2 v[6:7], v5, s[92:95], s100 offen")
    A("s_add_u32 s100, s100, 8")
def tstamp_init(A, wsl, wsh, wave_sgpr, kern):
    if TS == "0": return
    A(f"s_mov_b32 s92, s{wsl}")
    A(f"s_mov_b32 s93, s{wsh}")
    A(f"s_mov_b32 s94, {0xC00000}")
    A("s_mov_b32 s95, 0x00020000")
    A("s_lshl_b32 s100, s2, 2")
    A(f"s_add_u32 s100, s100, s{wave_sgpr}")
    A("s_lshl_b32 s100, s100, 9")
    A(f"s_add_u32 s100, s100, {0xA00000 + kern*0x80000}")
FINE2 = os.environ.get("FINE2", "0") == "1"
def gstamp(A, k):
    if FINE2: _stamp(A, k)
def fstamp(A, k):
    if FINE: _stamp(A, k)
def stamp(A, k):
    if FINE and k not in (0,): return
    if FINE2: return
    _stamp(A, k)
def _stamp(A, k):
    if not STAMP: return
    A("s_waitcnt lgkmcnt(0)")
    A(f"s_memtime s[96:97]")
    A(f"s_memrealtime s[98:99]")
    A("s_waitcnt lgkmcnt(0)")
    A(f"s_mov_b32 s{76+k}, s96")
    A(f"s_mov_b32 s{84+k}, s98")
def stamp_flush(A, kern, n, wsl, wsh, wave_sgpr):
    if not STAMP: return
    A(f"s_mov_b32 s92, s{wsl}")
    A(f"s_mov_b32 s93, s{wsh}")
    A(f"s_mov_b32 s94, {WS_ST + 0x40000}")
    A("s_mov_b32 s95, 0x00020000")
    A("s_lshl_b32 s96, s2, 2")
    A(f"s_add_u32 s96, s96, s{wave_sgpr}")
    A("s_lshl_b32 s96, s96, 6")
    A(f"s_add_u32 s96, s96, {WS_ST + kern*0x10000}")
    A("v_mov_b32 v1, 0")
    for k in range(n):
        A(f"v_mov_b32 v2, s{76+k}")
        A(f"buffer_store_dword v2, v1, s[92:95], s96 offen offset:{4*k}")
        A("s_nop 1")
        A(f"v_mov_b32 v2, s{84+k}")
        A(f"buffer_store_dword v2, v1, s[92:95], s96 offen offset:{32+4*k}")
        A("s_nop 1")

def f32bits(x):
    return struct.unpack("<I", struct.pack("<f", x))[0]
KSCALE = f32bits(math.log2(math.e) / math.sqrt(32.0))
LOG2E = f32bits(math.log2(math.e))

def take_(L, n):
    r = L[:n]; del L[:n]; return r

def weave(A, M, streams):
    for k, m in enumerate(M):
        A(m)
        for items, q in streams:
            for _ in range(q(k)):
                if items:
                    x = items.pop(0)
                    if isinstance(x, (list, tuple)):
                        for y in x: A(y)
                    else: A(x)
    for items, q in streams:
        while items:
            x = items.pop(0)
            if isinstance(x, (list, tuple)):
                for y in x: A(y)
            else: A(x)

LDS_SCR = 0x14000
LDS_SCG = 0x1C000
LDS_DUMMY = 0x27C00
LDS_ATTN = 163840

def gen_attn(A):
    name = NAME + "_kernel"
    kernel_header(A, name)
    S0, C0, O0, Q0 = 32, 96, 160, 224
    L0, KB0, VB0, SEL, GF, FR = 0, 16, 32, 48, 64, 128
    vL, vH, vL31, vW_ = 1, 2, 3, 4
    vXd, vWd = 8, 12
    vXr, vWr = 16, 20
    vKV, vIDX, vT0, vT1, vG = 22, 23, 24, 25, 26
    vLane16, vLin, vPoll, vT2 = 28, 29, 30, 31
    ACC = S0
    PACC, GACC = Q0, Q0 + 16
    vPd, vPr, vPw = C0, C0 + 4, C0 + 8
    vRed = C0 + 12
    A("s_cmp_ge_u32 s2, 256")
    A("s_cbranch_scc1 L_at_end")
    stamp(A, 0)
    if "epf" in VAR:
        A("s_getpc_b64 s[72:73]")
        for k in range(1, 7):
            A(f"s_load_dword s74, s[72:73], {128*k}")
    A("s_load_dwordx8 s[4:11], s[0:1], 0")
    A("s_load_dwordx2 s[64:65], s[0:1], 32")
    A("s_load_dwordx8 s[12:19], s[0:1], 48")
    A("s_load_dwordx2 s[66:67], s[0:1], 80")
    A("s_load_dwordx4 s[24:27], s[0:1], 96")
    A("s_and_b32 s28, s2, 1")
    A("s_bfe_u32 s29, s2, 0x20001")
    A("s_bfe_u32 s30, s2, 0x20003")
    A("s_lshl_b32 s29, s29, 2")
    A("s_add_u32 s29, s29, s30")
    A("s_lshr_b32 s30, s2, 5")
    A("s_lshr_b32 s31, s2, 7")
    A("s_and_b32 s23, s30, 3")
    A("s_lshl_b32 s33, s29, 2")
    A("s_add_u32 s33, s33, s23")
    A("s_lshl_b32 s34, s31, 1")
    A("s_add_u32 s34, s34, s23")
    A("s_and_b32 s34, s34, 3")
    A("s_lshl_b32 s37, s30, 1")
    if "rotg" in VAR:
        A("s_and_b32 s38, s29, 12")
        A("s_add_u32 s37, s37, s38")
        if "rotgb" in VAR: A("s_add_u32 s37, s37, s28")
        A("s_and_b32 s37, s37, 15")
    A("s_lshl_b32 s38, s29, 18")
    A("s_lshl_b32 s39, s30, 8")
    A(f"v_lshrrev_b32 v{vW_}, 6, v0")
    A(f"v_and_b32 v{vL}, 63, v0")
    A(f"v_readfirstlane_b32 s20, v{vW_}")
    A(f"v_lshrrev_b32 v{vH}, 5, v{vL}")
    A(f"v_and_b32 v{vL31}, 31, v{vL}")
    A(f"v_lshlrev_b32 v{vLane16}, 4, v{vL}")
    A(f"v_lshl_add_u32 v{vLin}, v{vW_}, 12, v{vLane16}")
    A(f"v_lshrrev_b32 v{vT0}, 3, v{vL}")
    A(f"v_lshl_add_u32 v{vT0}, v{vW_}, 5, v{vT0}")
    A(f"v_lshlrev_b32 v{vT0}, 11, v{vT0}")
    A(f"v_lshrrev_b32 v{vT1}, 4, v{vL}")
    A(f"v_and_b32 v5, 7, v{vL}")
    A(f"v_xor_b32 v5, v5, v{vT1}")
    A(f"v_lshl_add_u32 v{vXd}, v5, 4, v{vT0}")
    A(f"v_xor_b32 v{vXd+1}, 64, v{vXd}")
    A(f"v_add_u32 v{vXd+1}, {16384-1024}, v{vXd+1}")
    A(f"v_add_u32 v{vXd+2}, {2*(16384-1024)}, v{vXd}")
    A(f"v_add_u32 v{vXd+3}, {2*(16384-1024)}, v{vXd+1}")
    A(f"v_lshl_add_u32 v{vT0}, v{vW_}, 4, v{vT1}")
    A(f"v_lshlrev_b32 v{vT0}, 11, v{vT0}")
    A(f"v_lshlrev_b32 v{vT1}, 2, v{vT1}")
    A(f"v_and_b32 v5, 15, v{vL}")
    A(f"v_xor_b32 v5, v5, v{vT1}")
    A(f"v_lshl_add_u32 v{vWd}, v5, 4, v{vT0}")
    for t in range(1, 4):
        A(f"v_add_u32 v{vWd+t}, {t*(8192-1024)}, v{vWd}")
    A("s_waitcnt lgkmcnt(0)")
    fstamp(A, 1)
    if os.environ.get("WSOFF"):
        A(f"s_add_u32 s26, s26, {int(os.environ['WSOFF'], 0)}")
        A("s_addc_u32 s27, s27, 0")
    A("s_cmp_eq_u32 s28, 1")
    A("s_cselect_b64 s[6:7], s[12:13], s[6:7]")
    A("s_cselect_b64 s[8:9], s[14:15], s[8:9]")
    A("s_cselect_b64 s[10:11], s[16:17], s[10:11]")
    A("s_cselect_b64 s[72:73], s[18:19], s[64:65]")
    A("s_cselect_b64 s[74:75], s[64:65], s[18:19]")
    A("s_cmp_eq_u32 s31, 1")
    A("s_cselect_b64 s[8:9], s[10:11], s[8:9]")
    A("s_cselect_b64 s[64:65], s[18:19], s[64:65]")
    srd(A, 40, 8, 9, 1024*32*2)
    srd(A, 8, 4, 5, 2048*1024*2)
    srd(A, 12, 6, 7, 1024*1024*2)
    srd(A, 56, 66, 67, 2048)
    A("s_lshl_b32 s36, s20, 12")
    A("s_lshl_b32 s35, s33, 16")
    A("s_mov_b32 s71, s36")
    A("s_add_u32 s32, s36, 0x28000")
    A("s_and_b32 s23, s29, 3")
    PARK = ()
    adv = ["s_add_u32 s71, s71, 0x8000", "s_cmp_eq_u32 s71, s32", "s_cselect_b32 s71, s36, s71"]
    def dma_P():
        I = []
        I.append([f"s_mov_b32 m0, s71", "s_lshl_b32 s48, s34, 9", "s_add_u32 s48, s48, s35",
                  f"buffer_load_dwordx4 v{vPd}, s[8:11], s48 offen lds"])
        for t in range(1, 4):
            I.append(f"buffer_load_dwordx4 v{vPd+t}, s[8:11], s48 offen offset:{1024*t} lds")
        I.append([f"s_add_u32 m0, s71, 0x4000", "s_lshl_b32 s49, s34, 14",
                  f"buffer_load_dwordx4 v{vLin}, s[40:43], s49 offen lds"])
        for t in range(1, 4):
            I.append(f"buffer_load_dwordx4 v{vLin}, s[40:43], s49 offen offset:{1024*t} lds")
        I.append(["s_add_u32 s34, s34, 1", "s_and_b32 s34, s34, 3"] + adv)
        return I
    def dma_G():
        I = []
        I.append([f"s_mov_b32 m0, s71", "s_lshl_b32 s48, s37, 7", "s_add_u32 s48, s48, s38",
                  f"buffer_load_dwordx4 v{vXd}, s[8:11], s48 offen lds"])
        for t in range(1, 4):
            I.append(f"buffer_load_dwordx4 v{vXd+t}, s[8:11], s48 offen offset:{1024*t} lds")
        I.append([f"s_add_u32 m0, s71, 0x4000", "s_lshl_b32 s49, s37, 17", "s_add_u32 s49, s49, s39",
                  f"buffer_load_dwordx4 v{vWd}, s[12:15], s49 offen lds"])
        for t in range(1, 4):
            I.append(f"buffer_load_dwordx4 v{vWd+t}, s[12:15], s49 offen offset:{1024*t} lds")
        I.append(["s_add_u32 s37, s37, 1", "s_and_b32 s37, s37, 15"] + adv)
        return I
    def dma_C(c):
        slot = (c % 4) * 0x8000
        I = []
        I.append([f"s_add_u32 m0, s36, {slot}", f"s_mov_b32 s48, {c*0x8000}",
                  f"buffer_load_dwordx4 v{vLin}, s[44:47], s48 offen sc1 lds"])
        for t in range(1, 4):
            I.append(f"buffer_load_dwordx4 v{vLin}, s[44:47], s48 offen offset:{1024*t} sc1 lds")
        I.append([f"s_add_u32 m0, s36, {slot+0x4000}", f"s_mov_b32 s49, {c*0x8000+0x4000}",
                  f"buffer_load_dwordx4 v{vLin}, s[44:47], s49 offen sc1 lds"])
        for t in range(1, 4):
            I.append(f"buffer_load_dwordx4 v{vLin}, s[44:47], s49 offen offset:{1024*t} sc1 lds")
        return I
    def flat(I):
        for x in I:
            if isinstance(x, (list, tuple)):
                for y in x: A(y)
            else: A(x)
    ORDER = ["G", "G", "P", "P", "P", "P"] + ["G"] * 14
    PIDX = {n: k for k, n in enumerate([n for n in range(20) if ORDER[n] == "P"])}
    PLAST = max(PIDX)
    def dma(n):
        if n >= 20: return dma_C(n - 20)
        return dma_P() if ORDER[n] == "P" else dma_G()
    flat(dma(0))
    fstamp(A, 2)
    A(f"s_add_u32 m0, s36, 0x20000")
    A("s_bfe_u32 s48, s2, 0x40003")
    A("s_lshl_b32 s48, s48, 12")
    A("s_lshl_b32 s49, s20, 10")
    A("s_add_u32 s48, s48, s49")
    A(f"buffer_load_dwordx4 v{vLane16}, s[40:43], s48 offen lds")
    if "cpf" in VAR:
        A("s_getpc_b64 s[72:73]")
        A.label("L_at_pc")
        A("s_lshr_b32 s48, s2, 3")
        A("s_lshl_b32 s48, s48, 2")
        A("s_add_u32 s48, s48, s20")
        A("s_lshl_b32 s48, s48, 8")
        A("s_min_u32 s48, s48, L_code_end-L_at_pc-256")
        A("s_add_u32 s72, s72, s48")
        A("s_addc_u32 s73, s73, 0")
        for q in range(4):
            A(f"s_load_dword s74, s[72:73], {64*q}")
    srd(A, 16, 26, 27, WS_USED)
    srd(A, 52, 64, 65, 1024*1024*2)
    srd(A, 60, 24, 25, 256)
    A("s_load_dwordx2 s[64:65], s[0:1], 88")
    A("s_lshl_b32 s48, s28, 18")
    A("s_add_u32 s44, s26, s48")
    A("s_addc_u32 s45, s27, 0")
    A("s_mov_b32 s46, 0x40000")
    A("s_mov_b32 s47, 0x00020000")
    A("s_lshr_b32 s22, s20, 1")
    A("s_and_b32 s21, s20, 1")
    A("s_bfe_u32 s68, s2, 0x40003")
    A("s_lshl_b32 s68, s68, 2")
    A("s_add_u32 s68, s68, s20")
    A("s_lshl_b32 s68, s68, 15")
    A("s_lshl_b32 s69, s28, 10")
    A("s_add_u32 s68, s68, s69")
    A("s_or_b32 s70, s28, s31")
    A(f"v_lshl_add_u32 v{vT0}, v{vW_}, 3, v{vH}")
    A(f"v_and_b32 v{vT1}, 15, v{vT0}")
    A(f"v_xor_b32 v{vT1}, v{vT1}, v{vL31}")
    A(f"v_lshlrev_b32 v{vT1}, 4, v{vT1}")
    A(f"v_lshl_add_u32 v{vPd}, v{vT0}, 11, v{vT1}")
    for t in range(1, 4):
        A(f"v_xor_b32 v{vPd+t}, {(2*t) << 4}, v{vPd}")
        A(f"v_add_u32 v{vPd+t}, {t*(4096-1024)}, v{vPd+t}")
    A(f"v_lshl_add_u32 v{vT0}, v{vW_}, 3, v{vH}")
    A(f"v_and_b32 v{vT1}, 15, v{vL31}")
    A(f"v_xor_b32 v{vT0}, v{vT0}, v{vT1}")
    A(f"v_lshlrev_b32 v{vT0}, 4, v{vT0}")
    A(f"v_lshl_add_u32 v{vPr}, v{vL31}, 9, v{vT0}")
    for s in range(1, 4):
        A(f"v_xor_b32 v{vPr+s}, {(2*s) << 4}, v{vPr}")
    A(f"v_bfe_u32 v{vT0}, v{vL}, 2, 2")
    A(f"v_lshl_add_u32 v{vT0}, v{vH}, 3, v{vT0}")
    A(f"v_lshl_add_u32 v{vT0}, v{vW_}, 6, v{vT0}")
    A(f"v_lshlrev_b32 v{vT0}, 6, v{vT0}")
    A(f"v_bfe_u32 v{vT1}, v{vL}, 4, 1")
    A(f"v_lshl_add_u32 v{vT0}, v{vT1}, 5, v{vT0}")
    A(f"v_and_b32 v{vT1}, 3, v{vL}")
    A(f"v_lshl_add_u32 v{vT0}, v{vT1}, 3, v{vT0}")
    A(f"v_add_u32 v{vPw}, 0x4000, v{vT0}")
    A(f"v_bfe_u32 v{vT0}, v{vL}, 1, 3")
    A(f"v_xor_b32 v{vT0}, v{vT0}, v{vH}")
    A(f"v_lshlrev_b32 v{vT0}, 4, v{vT0}")
    A(f"v_lshl_add_u32 v{vT0}, v{vL31}, 7, v{vT0}")
    A(f"s_lshl_b32 s48, s22, 13")
    A(f"v_add_u32 v{vXr}, s48, v{vT0}")
    for s in range(1, 4):
        A(f"v_xor_b32 v{vXr+s}, {(2*s) << 4}, v{vXr}")
    A(f"v_bfe_u32 v{vT0}, v{vL}, 2, 2")
    A(f"v_lshl_add_u32 v{vT1}, v{vH}, 3, v{vT0}")
    A(f"v_lshlrev_b32 v{vT1}, 8, v{vT1}")
    A(f"s_lshl_b32 s48, s21, 1")
    A(f"v_xor_b32 v{vT0}, s48, v{vT0}")
    A(f"v_lshl_add_u32 v{vT1}, v{vT0}, 6, v{vT1}")
    A(f"v_bfe_u32 v{vT0}, v{vL}, 4, 1")
    A(f"v_lshl_add_u32 v{vT1}, v{vT0}, 5, v{vT1}")
    A(f"v_and_b32 v{vT0}, 3, v{vL}")
    A(f"v_lshl_add_u32 v{vT1}, v{vT0}, 3, v{vT1}")
    A(f"v_add_u32 v{vWr}, 0x4000, v{vT1}")
    A(f"v_xor_b32 v{vWr+1}, 64, v{vWr}")
    for i in range(0, 32, 2):
        A(f"v_mov_b64 {vr(PACC+i,2)}, 0")
    for i in range(0, 64, 2):
        A(f"v_mov_b64 {vr(ACC+i,2)}, 0")
    side = []
    side.append(f"v_mov_b32 v{vIDX}, 0xdddddddd")
    side += [f"v_and_b32 v{vT0}, 15, v{vL}", f"v_mov_b32 v{vT1}, 0x3f803f80", f"v_cmp_eq_u32 vcc, 0, v{vT0}", "s_nop 1",
             f"v_cndmask_b32 v{vT2}, 0, v{vT1}, vcc", f"v_cmp_eq_u32 vcc, 4, v{vT0}", "s_nop 1",
             f"v_cndmask_b32 v{vT1}, 0, v{vT1}, vcc",
             f"v_accvgpr_write_b32 a{SEL}, v{vT2}", f"v_accvgpr_write_b32 a{SEL+1}, v{vT2}",
             f"v_accvgpr_write_b32 a{SEL+2}, v{vT1}", f"v_accvgpr_write_b32 a{SEL+3}, v{vT1}"]
    side += [f"v_accvgpr_write_b32 a{L0+i}, 0" for i in range(16)]
    side += [f"v_accvgpr_write_b32 a{VB0+8+i}, 0" for i in range(8)]
    side += [f"v_mov_b64 {vr(O0+i,2)}, 0" for i in range(0, 64, 2)]
    side.append(f"v_mov_b32 v{vKV}, v{vLane16}")
    for x in side: A(x)
    tstamp_init(A, 26, 27, 20, 0)
    tstamp(A)
    fstamp(A, 3)
    A("s_mov_b32 s3, s34")
    flat(dma(1))
    A("s_cmp_lg_u32 s20, s23")
    A("s_cbranch_scc1 L_at_pro")
    flat(dma(2)); flat(dma(3))
    A.label("L_at_pro")
    fstamp(A, 4)
    stamp(A, 1)
    def rd_P(n):
        off = ((n % 5) % 2) * 0x8000
        b = FR + 64*(n % 2)
        R = []
        for s in range(4):
            R.append(f"ds_read_b128 {ar(b+8*s,4)}, v{vPr+s} offset:{off}")
            R.append(f"ds_read_b64_tr_b16 {ar(b+8*s+4,2)}, v{vPw} offset:{off+1024*s}")
            R.append(f"ds_read_b64_tr_b16 {ar(b+8*s+6,2)}, v{vPw} offset:{off+1024*s+256}")
        return R
    def mf_P(n):
        b = FR + 64*(n % 2)
        A("s_cmp_eq_u32 s31, 1")
        A(f"s_cbranch_scc1 L_at_pv{n}")
        for s in range(4):
            A(f"v_mfma_f32_32x32x16_bf16 {vr(PACC,16)}, {ar(b+8*s+4,4)}, {ar(b+8*s,4)}, {vr(PACC,16)}")
        A("s_cmp_lg_u32 s70, 0")
        A(f"s_cbranch_scc1 L_at_pj{n}")
        for s in range(4):
            A(f"v_mfma_f32_32x32x16_bf16 {vr(GACC,16)}, {ar(GF+16*PIDX[n]+4*s,4)}, {ar(b+8*s,4)}, {vr(GACC,16)}")
        A(f"s_branch L_at_pj{n}")
        A.label(f"L_at_pv{n}")
        for s in range(4):
            A(f"v_mfma_f32_32x32x16_bf16 {vr(PACC,16)}, {ar(b+8*s,4)}, {ar(b+8*s+4,4)}, {vr(PACC,16)}")
        A.label(f"L_at_pj{n}")
    def rd_G(n):
        off = ((n % 5) % 2) * 0x8000
        b = FR + 64*(n % 2)
        R = []
        for s in range(4):
            p = b + 16*s
            R.append(f"ds_read_b128 {ar(p,4)}, v{vXr+s} offset:{off}")
            wr, wo = vWr, off
            R.append(f"ds_read_b64_tr_b16 {ar(p+8,2)}, v{wr} offset:{wo+4096*s}")
            R.append(f"ds_read_b64_tr_b16 {ar(p+10,2)}, v{wr} offset:{wo+4096*s+1024}")
            R.append(f"ds_read_b128 {ar(p+4,4)}, v{vXr+s} offset:{off+4096}")
            R.append(f"ds_read_b64_tr_b16 {ar(p+12,2)}, v{wr+1} offset:{wo+4096*s}")
            R.append(f"ds_read_b64_tr_b16 {ar(p+14,2)}, v{wr+1} offset:{wo+4096*s+1024}")
        return R
    def mf_G(n, by_u=False):
        b = FR + 64*(n % 2)
        M = []
        order = [(s, a, t) for s in range(4) for a in range(2) for t in range(2)]
        if by_u: order = [(s, a, t) for a in range(2) for t in range(2) for s in range(4)]
        for (s, a, t) in order:
            p = b + 16*s; u = 2*a + t
            M.append(f"v_mfma_f32_32x32x16_bf16 {vr(ACC+16*u,16)}, {ar(p+8+4*a,4)}, {ar(p+4*t,4)}, {vr(ACC+16*u,16)}")
        return M
    def toggle(regs, d):
        return [f"v_add_u32 v{r}, {(d*0x10000) & 0xffffffff:#x}, v{r}" for r in regs]
    Pregs = [vPr+s for s in range(4)] + [vPw]
    Gregs = [vXr+s for s in range(4)] + [vWr, vWr+1]
    hi = {"P": 0, "G": 0}
    for n in range(20):
        A.comment(f"---- iteration {n} ({ORDER[n]})")
        cnt = 9 if n in (8, 9, 17) else 8
        A("s_cmp_eq_u32 s20, s23")
        A(f"s_waitcnt vmcnt(24) lgkmcnt(0)")
        A(f"s_cbranch_scc1 L_at_w{n}")
        A(f"s_waitcnt vmcnt({cnt})")
        A.label(f"L_at_w{n}")
        A("s_barrier")
        tstamp(A)
        if n == 6: stamp(A, 2)
        if n == 0: fstamp(A, 5)
        if n == 1: fstamp(A, 6)
        D = dma(n + 2)
        if n in (2, 3):
            A("s_cmp_eq_u32 s20, s23")
            A(f"s_cbranch_scc1 L_at_ds{n}")
            flat(D)
            A(f"s_branch L_at_dj{n}")
            A.label(f"L_at_ds{n}")
            flat(dma_G())
            A.label(f"L_at_dj{n}")
            D = []
        if n == 16:
            A("s_cmp_eq_u32 s20, s23")
            A("s_cselect_b32 s10, 0, s10")
            A("s_cselect_b32 s14, 0, s14")
            A("s_cselect_b32 s71, 0x30000, s71")
        win = lambda k: (k % 5) // 2
        assert hi[ORDER[n]] == win(n)
        R = rd_P(n) if ORDER[n] == "P" else rd_G(n)
        V = []
        T = []
        if n + 1 < 20 and hi[ORDER[n+1]] != win(n + 1):
            T = toggle(Pregs if ORDER[n+1] == "P" else Gregs, win(n + 1) - hi[ORDER[n+1]])
            hi[ORDER[n+1]] = win(n + 1)
        if n == 18:
            A("s_waitcnt vmcnt(8)")
            A(f"v_cmp_gt_u32 vcc, 4, v{vPoll}")
            A("s_nop 4")
            A("s_cmp_eq_u64 vcc, 0")
            A("s_cbranch_scc1 L_at_flags_ok")
            A("s_mov_b32 s50, 0")
            A.label("L_at_spin")
            A("s_add_u32 s50, s50, 1")
            A("s_cmp_gt_u32 s50, 0x40000")
            A("s_cbranch_scc1 L_at_flags_ok")
            A("s_sleep 8")
            A(f"buffer_load_dword v{vPoll}, v{vT2}, s[60:63], 0 offen sc1")
            A("s_waitcnt vmcnt(0)")
            A(f"v_cmp_gt_u32 vcc, 4, v{vPoll}")
            A("s_nop 4")
            A("s_cmp_eq_u64 vcc, 0")
            A("s_cbranch_scc0 L_at_spin")
            A.label("L_at_flags_ok")
        if n == 0:
            A("s_cmp_lg_u32 s70, 0")
            A("s_cbranch_scc1 L_at_nogf")
            A(f"v_lshlrev_b32 v{vT0}, 4, v{vH}")
            A(f"v_lshl_add_u32 v{vT0}, v{vW_}, 7, v{vT0}")
            A("s_mov_b32 s50, s3")
            for q in range(4):
                A("s_lshl_b32 s51, s50, 9")
                for s in range(4):
                    A(f"buffer_load_dwordx4 {ar(GF+16*q+4*s,4)}, v{vT0}, s[56:59], s51 offen offset:{32*s}")
                A("s_add_u32 s50, s50, 1")
                A("s_and_b32 s50, s50, 3")
            A.label("L_at_nogf")
        if n == 0 or ORDER[n-1] == "P" or (n == 2 and PARK):
            def mixrd(R, D, k):
                while R or D:
                    if D: flat([D.pop(0)])
                    for _ in range(k):
                        if R: A(R.pop(0))
            if n - 1 == PLAST:
                for k in (1, 2, 3):
                    A(f"s_add_u32 s{3+k}, s23, {k}")
                    A(f"s_and_b32 s{3+k}, s{3+k}, 3")
                    A(f"s_lshl_b32 s{3+k}, s{3+k}, 12")
                A("s_add_u32 s7, s4, 0x4000")
                A("s_add_u32 s3, s5, 0x4000")
                A("s_cmp_eq_u32 s20, s23")
                A("s_cselect_b32 s50, s7, s36")
                A(f"v_add_u32 v{vRed}, s50, v{vLane16}")
                A(f"v_lshlrev_b32 v{vRed+1}, 2, v{vL}")
                A(f"v_lshlrev_b32 v{vRed+2}, 2, v0")
                A(f"v_add_u32 v{vRed+2}, s3, v{vRed+2}")
            flat(D[:2]); del D[:2]
            if n > 0 and ORDER[n-1] == "P": mf_P(n - 1)
            if n - 1 == PLAST:
                mixrd(take_(R, 10), take_(D, 3), 4)
                for rg in range(4):
                    A(f"ds_write_b128 v{vRed}, {vr(PACC+4*rg,4)} offset:{1024*rg}")
                A(f"ds_write_b32 v{vRed+2}, v{GACC}")
                A(f"v_lshl_add_u32 v{vRed}, v{vW_}, 10, v{vLane16}")
                for k in range(4):
                    A(f"v_add_u32 v{vRed+4+k}, s{4+k}, v{vRed}")
                A(f"v_add_u32 v{vRed+2}, s3, v{vRed+1}")
            mixrd(R, D, 4 if len(R) > 12 else 2)
            for x in T: A(x)
            continue
        if n == 7:
            assert PLAST == 5
            for ww in range(4):
                A(f"ds_read_b128 {vr(Q0+4*ww,4)}, v{vRed+4+ww}")
            for ww in range(4):
                A(f"ds_read_b32 v{Q0+16+ww}, v{vRed+2} offset:{0x100*ww}")
            V += ["s_nop 0", "s_nop 0", "s_waitcnt lgkmcnt(6)"]
        post = []
        if n == 7:
            for e in range(0, 4, 2):
                V.append([f"v_add_f32 v{Q0+e}, v{Q0+e}, v{Q0+4+e}", f"v_add_f32 v{Q0+8+e}, v{Q0+8+e}, v{Q0+12+e}",
                          f"v_add_f32 v{Q0+e+1}, v{Q0+e+1}, v{Q0+5+e}", f"v_add_f32 v{Q0+9+e}, v{Q0+9+e}, v{Q0+13+e}"])
            V.append([f"v_add_f32 v{Q0+e}, v{Q0+e}, v{Q0+8+e}" for e in range(4)])
            V.append(["s_mov_b32 s50, 1.0", "s_cmp_eq_u32 s31, 1", f"s_cselect_b32 s50, s50, {KSCALE:#x}", "s_cselect_b64 vcc, -1, 0"])
            V.append([f"v_mul_f32 v{Q0+e}, s50, v{Q0+e}" for e in range(4)])
            V.append([f"v_cvt_pk_bf16_f32 v{Q0+4}, v{Q0}, v{Q0+1}", f"v_cvt_pk_bf16_f32 v{Q0+5}, v{Q0+2}, v{Q0+3}"])
            V.append([f"v_bfe_u32 v{vT0}, v{vL31}, 2, 1", f"v_bfe_u32 v{vT1}, v{vL31}, 3, 1", f"v_and_b32 v{vRed}, 0x13, v{vL31}"])
            V.append([f"v_lshl_add_u32 v{vRed}, v{vT0}, 3, v{vRed}", f"v_lshl_add_u32 v{vRed}, v{vT1}, 2, v{vRed}",
                      f"v_cndmask_b32 v{vRed}, v{vRed}, v{vL31}, vcc"])
            V.append([f"v_lshl_add_u32 v{vRed}, v{vH}, 5, v{vRed}", f"v_lshlrev_b32 v{vRed}, 4, v{vRed}"])
            V.append(["s_lshl_b32 s50, s33, 12", "s_lshl_b32 s51, s31, 11", "s_add_u32 s50, s50, s51", "s_lshl_b32 s51, s22, 10"])
            V.append(["s_add_u32 s50, s50, s51", "s_lshl_b32 s51, s21, 3", "s_add_u32 s50, s50, s51"])
            V.append([f"v_add_f32 v{Q0+16}, v{Q0+16}, v{Q0+17}", f"v_add_f32 v{Q0+18}, v{Q0+18}, v{Q0+19}", f"v_add_f32 v{Q0+16}, v{Q0+16}, v{Q0+18}"])
            V.append([f"v_mul_f32 v{Q0+16}, {LOG2E ^ 0x80000000:#x}, v{Q0+16}", f"v_exp_f32 v{Q0+16}, v{Q0+16}", "s_nop 0",
                      f"v_add_f32 v{Q0+16}, 1.0, v{Q0+16}", f"v_rcp_f32 v{Q0+16}, v{Q0+16}", f"v_lshlrev_b32 v{vRed+1}, 2, v{vL31}"])
            post.append(f"buffer_store_dwordx2 {vr(Q0+4,2)}, v{vRed}, s[44:47], s50 offen sc1")
            post.append("s_cmp_lg_u32 s20, 0")
            post.append("s_cbranch_scc1 L_at_nogst")
            post.append("s_lshl_b32 s69, s29, 7")
            post.append("s_lshl_b32 s51, s28, 5")
            post.append("s_add_u32 s69, s69, s51")
            post.append("s_lshl_b32 s51, s30, 2")
            post.append("s_add_u32 s69, s69, s51")
            post.append(f"s_add_u32 s69, s69, {WS_FL}")
            post.append(f"v_mov_b32 v{vT0}, 0")
            post.append("s_mov_b64 exec, 1")
            post.append(f"buffer_atomic_swap v{vT0}, v{vT0}, s[16:19], s69 offen sc1")
            post.append("s_mov_b64 exec, -1")
            post.append("s_or_b32 s51, s70, s20")
            post.append("s_cmp_lg_u32 s51, 0")
            post.append("s_cbranch_scc1 L_at_nogst")
            post.append("s_lshl_b32 s51, s33, 7")
            post.append(f"s_add_u32 s51, s51, {WS_G}")
            post.append(f"buffer_store_dword v{Q0+16}, v{vRed+1}, s[16:19], s51 offen sc1")
            post.append("L_at_nogst:")
        if n == 11:
            post.append("s_cmp_lg_u32 s20, 0")
            post.append("s_cbranch_scc1 L_at_nosig")
            post.append("s_and_b32 s50, s2, 63")
            post.append("s_lshl_b32 s50, s50, 2")
            post.append(f"v_mov_b32 v{vT0}, 1")
            post.append(f"v_mov_b32 v{vT1}, 0")
            post.append("s_mov_b64 exec, 1")
            post.append(f"buffer_atomic_add v{vT0}, v{vT1}, s[60:63], s50 offen sc1")
            post.append("s_mov_b64 exec, -1")
            post.append("L_at_nosig:")
        if n == 16:
            V.append(f"v_lshlrev_b32 v{vT2}, 2, v{vL}")
            post.append(f"buffer_load_dword v{vPoll}, v{vT2}, s[60:63], 0 offen sc1")
        if n == 18:
            V += [f"v_lshrrev_b32 v{vT0}, 3, v{vL}", f"v_lshl_add_u32 v{vT0}, v{vW_}, 5, v{vT0}", f"v_lshlrev_b32 v{vT0}, 11, v{vT0}",
                  f"v_bfe_u32 v{vT1}, v{vL}, 4, 1", f"v_lshlrev_b32 v{vT1}, 2, v{vT1}", f"v_and_b32 v5, 7, v{vL}",
                  f"v_xor_b32 v5, v5, v{vT1}", f"v_lshl_add_u32 v{vWd}, v5, 4, v{vT0}",
                  ["s_lshl_b32 s31, s28, 3", "s_add_u32 s31, s31, s30", "s_lshl_b32 s31, s31, 7"],
                  f"v_add_u32 v{vWd}, s31, v{vWd}"]
            V += [f"v_add_u32 v{vWd+t}, {t*(16384-1024)}, v{vWd}" for t in range(1, 4)]
        if n == 19:
            V += [f"v_mov_b32 v{vXd+t}, v{vLin}" for t in range(4)]
            V += ["s_mov_b32 s14, 0x200000"]
            V += [["s_lshl_b32 s40, s29, 2", "s_lshl_b32 s41, s22, 1", "s_add_u32 s40, s40, s41"],
                  ["s_lshl_b32 s40, s40, 17", "s_lshl_b32 s41, s28, 5", "s_lshl_b32 s50, s30, 2"],
                  ["s_add_u32 s41, s41, s50", "s_lshl_b32 s50, s21, 1", "s_add_u32 s41, s41, s50"],
                  ["s_lshl_b32 s41, s41, 11", "s_add_u32 s40, s40, s41", f"s_add_u32 s40, s40, {WS_OF}"],
                  ["s_add_u32 s41, s40, 0x20000", "s_mov_b32 s42, s40"],
                  ["s_mov_b32 s56, s64", "s_mov_b32 s57, s65", f"s_mov_b32 s58, {2048*1024*2}"],
                  ["s_lshl_b32 s43, s29, 18", "s_lshl_b32 s50, s20, 16", "s_add_u32 s43, s43, s50"],
                  ["s_add_u32 s43, s43, s31"]]
        M = mf_G(n - 1)
        weave(A, M, [(R, lambda k: 2), (D, lambda k: 1 if k % 2 == 1 else 0), (V, lambda k: 1), (T, lambda k: 2 if k >= 12 else 0)])
        for x in post: A(x)
        if n == 1 and PARK:
            A.comment("---- iteration 1b")
            A("s_waitcnt lgkmcnt(0)")
            weave(A, mf_G(1), [(dma(3), lambda k: 1 if k % 2 == 1 else 0)])
    A("s_waitcnt vmcnt(8) lgkmcnt(0)")
    A("s_barrier")
    stamp(A, 3)
    tstamp(A)
    def cvtQ(u):
        return [f"v_cvt_pk_bf16_f32 v{Q0+8*u+j}, v{ACC+16*u+2*j}, v{ACC+16*u+2*j+1}" for j in range(8)]
    def QK(u, c):
        return [f"v_mfma_f32_32x32x16_bf16 {vr(S0+16*u,16)}, {ar(KB0,4)}, {vr(Q0+8*u,4)}, {c}",
                f"v_mfma_f32_32x32x16_bf16 {vr(S0+16*u,16)}, {ar(KB0+4,4)}, {vr(Q0+8*u+4,4)}, {vr(S0+16*u,16)}"]
    def max16(b):
        L = [f"v_max3_f32 v{b}, v{b}, v{b+1}, v{b+2}"]
        for j in range(3, 15, 2):
            L.append(f"v_max3_f32 v{b}, v{b}, v{b+j}, v{b+j+1}")
        L.append(f"v_max_f32 v{b}, v{b}, v{b+15}")
        return L
    def fill_C(u, b):
        L = [f"v_mov_b32 v{b+1}, v{b}", "s_nop 1", f"v_permlane32_swap_b32 v{b}, v{b+1}", "s_nop 1",
             f"v_max_f32 v{b}, v{b}, v{b+1}", f"v_sub_f32 v{C0+16*u}, 0, v{b}", f"v_sub_f32 v{C0+16*u+1}, 0, v{b}"]
        for j in range(2, 16, 2):
            L.append(f"v_mov_b64 {vr(C0+16*u+j,2)}, {vr(C0+16*u,2)}")
        return L
    G = mf_G(19, by_u=True)
    ldc = lambda t: f"buffer_load_dwordx4 v{vXd+t}, s[44:47], s32 offen offset:{1024*t} sc1 lds"
    ldw = lambda t: f"buffer_load_dwordx4 v{vWd+t}, s[12:15], s34 offen offset:{1024*t} lds"
    misc = [f"ds_read_b128 {ar(KB0,4)}, v{vKV}", f"ds_read_b128 {ar(KB0+4,4)}, v{vKV} offset:1024",
            f"ds_read_b128 {ar(VB0,4)}, v{vKV} offset:2048", f"ds_read_b128 {ar(VB0+4,4)}, v{vKV} offset:3072",
            f"v_lshlrev_b32 v{vT0}, 2, v{vL31}", "s_lshl_b32 s50, s29, 9", "s_lshl_b32 s51, s22, 8", "s_add_u32 s50, s50, s51",
            f"s_add_u32 s50, s50, {WS_G}", f"buffer_load_dword v{vG}, v{vT0}, s[16:19], s50 offen sc1",
            f"buffer_load_dword v{vG+1}, v{vT0}, s[16:19], s50 offen offset:128 sc1",
            "s_add_u32 m0, s36, 0x10000", "s_mov_b32 s32, 0x10000", ldc(0), ldc(1), ldc(2), ldc(3),
            "s_mov_b32 s37, 0x18000", "s_mov_b32 s39, 0", "s_mov_b32 s71, 0", "s_mov_b32 s33, 0x4000", "s_mov_b32 s38, -1"]
    def emit(L):
        for x in L: A(x)
    def take(L, n):
        r = L[:n]; del L[:n]; return r
    for k in range(0, 7):
        A(G[k]); emit(take(misc, 4 if k < 5 else 1))
    emit(misc)
    c0 = cvtQ(0)
    A(G[7]); emit(take(c0, 5))
    A(G[8]); emit(c0); A("s_waitcnt lgkmcnt(0)")
    A(G[9])
    q = QK(0, "0"); A(q[0]); A(q[1])
    c1 = cvtQ(1)
    A(G[10]); emit(take(c1, 5))
    A(G[11]); emit(c1)
    A(G[12])
    q = QK(1, "0"); A(q[0]); A(q[1])
    m0_ = max16(S0)
    A(G[13]); emit(take(m0_, 5))
    A(G[14]); emit(m0_)
    f0 = fill_C(0, S0)
    A(G[15]); emit(take(f0, 4))
    emit(cvtQ(2))
    emit(take(f0, 3))
    q = QK(2, "0"); A(q[0]); emit(take(f0, 4)); A(q[1]); emit(f0)
    emit(cvtQ(3))
    m1_ = max16(S0+16)
    emit(take(m1_, 2))
    q = QK(3, "0"); A(q[0]); emit(take(m1_, 4)); A(q[1]); emit(m1_)
    f1 = fill_C(1, S0+16)
    emit(take(f1, 3))
    q = QK(0, vr(C0, 16) if 'czero' not in VAR else "0"); A(q[0]); emit(take(f1, 5)); A(q[1]); emit(f1)
    emit(max16(S0+32)); emit(fill_C(2, S0+32))
    emit(max16(S0+48)); emit(fill_C(3, S0+48))
    for i in range(0, 16, 2):
        A(f"v_mov_b64 {vr(S0+48+i,2)}, 0")
    A("s_waitcnt vmcnt(6)")
    A("s_barrier")
    def PV(u0, p0):
        return [
            f"v_smfmac_f32_32x32x32_bf16 {vr(O0+16*u0,16)}, {ar(VB0+8*p0,4)}, {vr(S0+16*u0,8)}, v{vIDX}",
            f"v_smfmac_f32_32x32x32_bf16 {vr(O0+16*u0,16)}, {ar(VB0+8*p0+4,4)}, {vr(S0+16*u0+8,8)}, v{vIDX}",
            f"v_smfmac_f32_16x16x64_bf16 {ar(L0+4*u0,4)}, {ar(SEL,4)}, {vr(S0+16*u0,8)}, v{vIDX}",
            f"v_smfmac_f32_16x16x64_bf16 {ar(L0+4*u0,4)}, {ar(SEL,4)}, {vr(S0+16*u0+8,8)}, v{vIDX}",
        ]
    stamp(A, 4)
    body = []
    for i in range(8):
        for u in range(4):
            u1 = (u + 1) % 4; i1 = i + (1 if u == 3 else 0)
            u0 = (u + 3) % 4; i0 = i - (1 if u == 0 else 0)
            P = PV(u0, i0 % 2)
            M = [
                f"v_mfma_f32_32x32x16_bf16 {vr(S0+16*u1,16)}, {ar(KB0+8*(i1%2),4)}, {vr(Q0+8*u1,4)}, {vr(C0+16*u1,16) if 'czero' not in VAR else 0}",
                P[0],
                f"v_mfma_f32_32x32x16_bf16 {vr(S0+16*u1,16)}, {ar(KB0+8*(i1%2)+4,4)}, {vr(Q0+8*u1+4,4)}, {vr(S0+16*u1,16)}",
                P[1], P[2], P[3],
            ]
            X = [[] for _ in range(6)]
            tt = (i + 1) % 8
            pn = (i + 1) % 2
            if u == 0:
                X[3].append("s_waitcnt lgkmcnt(0)")
                X[4].append(f"ds_read_b128 {ar(KB0+8*pn,4)}, v{vKV} offset:{4096*tt}")
                X[5].append(f"ds_read_b128 {ar(KB0+8*pn+4,4)}, v{vKV} offset:{4096*tt+1024}")
            if u == 2:
                X[3].append("s_waitcnt lgkmcnt(0)")
                X[4].append(f"ds_read_b128 {ar(VB0+8*pn,4)}, v{vKV} offset:{4096*tt+2048}")
                X[5].append(f"ds_read_b128 {ar(VB0+8*pn+4,4)}, v{vKV} offset:{4096*tt+3072}")
            if i in (2, 4) and u == 1 and "nopf" not in VAR:
                X[2].append(f"s_mov_b32 m0, {LDS_DUMMY}")
                X[4].append(f"buffer_load_dwordx4 v{vLane16}, s[52:55], s68 offen lds")
                X[5].append("s_add_u32 s68, s68, 0x800")
            if i == 3 and u == 1 and "touch" in VAR:
                X[4].append(f"buffer_load_dwordx4 v{vLane16}, s[16:19], s42 offen lds")
                X[5].append("s_add_u32 s42, s42, 0x400")
            if i == 3 and u == 3 and "touch" in VAR:
                X[1].append("s_cmp_eq_u32 s39, 3")
                X[1].append("s_cselect_b32 s42, s41, s42")
            if i == 7 and u == 0:
                X[0].append("s_add_u32 s71, s71, 0x8000")
                X[1].append("s_and_b32 s71, s71, 0x1ffff")
                X[1].append("s_add_u32 s39, s39, 1")
                X[2].append("s_bitcmp1_b32 0x54, s39")
                X[3].append("@TOP")
            if i == 7 and u == 1:
                X[1].append("s_add_u32 m0, s37, s36")
                X[1].append("s_add_u32 s37, s37, 0x8000")
                X[3].append("s_and_b32 s37, s37, 0x1ffff")
                X[3].append("s_cmp_ge_u32 s39, 7")
                X[4].append(ldc(0)); X[5].append(ldc(1))
            if i == 7 and u == 2:
                X[0].append("s_cselect_b32 s37, 0x20000, s37")
            if i == 7 and u == 3:
                X[3].append("s_cmp_eq_u32 s39, 8")
                X[4].append(ldc(2)); X[5].append(ldc(3)); X[5].append("@EXIT")
            if i == 0 and u == 1:
                X[4].append(ldc(0)); X[5].append(ldc(1))
            if i == 0 and u == 3:
                X[4].append(ldc(2)); X[5].append(ldc(3))
            if i == 1 and u == 1:
                X[1].append("s_add_u32 s32, s32, s33")
                X[1].append("s_and_b32 s32, s32, s38")
            E = [f"v_exp_f32 v{S0+16*u+j}, v{S0+16*u+j}" for j in range(16)]
            ne = [3, 3, 3, 3, 2, 2]
            for k in range(6):
                body.append(M[k])
                body += X[k]
                for _ in range(ne[k]): body.append(E.pop(0))
    top = body.index("@TOP")
    first, second = body[:top], body[top+1:]
    A("s_branch L_at_pre_entry")
    A.raw(".p2align 6")
    A.label("L_at_top_bar")
    A("s_cmp_lg_u32 s39, 6")
    A("s_cbranch_scc1 L_at_top_bar2")
    for t in range(4):
        A(f"v_mov_b32 v{vXd+t}, v{vWd+t}")
    A("s_mov_b32 s44, s72")
    A("s_mov_b32 s45, s73")
    A("s_mov_b32 s46, 0x200000")
    A("s_lshl_b32 s32, s30, 18")
    A("s_mov_b32 s33, 0x40000")
    A("s_mov_b32 s38, 0x1fffff")
    A.label("L_at_top_bar2")
    A(f"s_waitcnt vmcnt({3 if 'touch' in VAR else 2})")
    A("s_barrier")
    A.label("L_at_top")
    tstamp(A)
    A(f"v_add_u32 v{vKV}, s71, v{vLane16}")
    ex = second.index("@EXIT")
    tail = second[ex+1:]
    for x in second[:ex]: A(x)
    A("s_cbranch_scc1 L_at_exit")
    for x in tail: A(x)
    A.label("L_at_pre_entry")
    A(first[0]); A("s_add_u32 m0, m0, 0x4000")
    for x in first[1:5]: A(x)
    A("s_add_u32 s32, s32, s33")
    A("s_and_b32 s32, s32, s38")
    rest = first[5:]
    for x in rest: A(x)
    A("s_cbranch_scc1 L_at_top_bar")
    A("s_branch L_at_top")
    A.label("L_at_exit")
    for x in tail: A(x)
    stamp(A, 5)
    A(f"s_waitcnt vmcnt(4) lgkmcnt(0)")
    A("s_barrier")
    gstamp(A, 0)
    tstamp(A, "2")
    P3 = PV(3, 1)
    def scale_store(u):
        a, t = u >> 1, u & 1
        L = []
        for j in range(0, 16, 2):
            L.append(f"v_pk_mul_f32 {vr(O0+16*u+j,2)}, {vr(O0+16*u+j,2)}, {vr(S0+2*u,2)} op_sel_hi:[1,0]")
        for j in range(8):
            L.append(f"v_cvt_pk_bf16_f32 v{C0+8*u+j}, v{O0+16*u+2*j}, v{O0+16*u+2*j+1}")
        for f in range(2):
            L.append(f"buffer_store_dwordx4 {vr(C0+8*u+4*f,4)}, v{vLane16}, s[16:19], s{40+t} offen offset:{2048*a+1024*f} sc1 {'nt' if 'ont' in VAR else ''}")
        return L
    addr = ["s_cmp_eq_u32 s28, 0", "s_cselect_b32 s50, 1.0, -1.0", "s_cselect_b32 s51, 0, 1.0"]
    addr += ["s_lshl_b32 s55, s30, 18", "s_add_u32 s34, s55, 0x140000", "s_and_b32 s34, s34, 0x1fffff",
             "s_mov_b32 s12, s72", "s_mov_b32 s13, s73", "s_add_u32 m0, s36, 0x24000"]
    A(P3[2]); emit(addr); A(P3[3])
    A(ldw(0)); A(ldw(1)); A(P3[0]); A(ldw(2)); A(ldw(3)); A(P3[1])
    emit(["s_add_u32 m0, s36, 0x10000", "s_add_u32 s34, s34, 0x40000", "s_and_b32 s34, s34, 0x1fffff"])
    for t in range(4): A(ldw(t))
    emit(["s_add_u32 s34, s34, 0x40000", "s_and_b32 s34, s34, 0x1fffff"])
    A(f"v_mov_b32 v{vT0}, s51")
    A(f"v_fma_f32 v{vG}, v{vG}, s50, v{vT0}")
    A(f"v_fma_f32 v{vG+1}, v{vG+1}, s50, v{vT0}")
    A("s_mov_b64 s[66:67], -1")
    A.label("L_at_store")
    for u in range(4):
        A(f"v_accvgpr_read_b32 v{S0+2*u}, a{L0+4*u}")
    if True:
        for u in range(4):
            A(f"v_mov_b32 v{S0+2*u+1}, v{S0+2*u}")
        A("s_nop 1")
        for u in range(4):
            A(f"v_permlane32_swap_b32 v{S0+2*u}, v{S0+2*u+1}")
        A("s_nop 1")
    A(f"v_add_f32 v{vT1}, v{S0}, v{S0+2}")
    A(f"v_add_f32 v{vT0}, v{S0+4}, v{S0+6}")
    A(f"v_add_f32 v{vT0}, v{vT0}, v{vT1}")
    A(f"v_cmp_ngt_f32 vcc, {0x4e800000 if 'forceslow' not in VAR else 0x3f000000:#x}, v{vT0}")
    for u in range(4):
        A(f"v_rcp_f32 v{S0+2*u}, v{S0+2*u}")
    A("s_and_b64 vcc, vcc, s[66:67]")
    if "lx" not in VAR: A("s_cbranch_scc1 L_at_slow")
    for u in range(4):
        A(f"v_mul_f32 v{S0+2*u}, v{S0+2*u}, v{vG+(u&1)}")
    for u in range(4):
        emit(scale_store(u))
    gen_out(A)
    A.label("L_at_slow")
    A("s_waitcnt vmcnt(0) lgkmcnt(0)")
    A("s_lshl_b32 s39, s28, 18")
    A("s_add_u32 s44, s26, s39")
    A("s_addc_u32 s45, s27, 0")
    A("s_mov_b32 s46, 0x40000")
    for u in range(4):
        A(f"v_mov_b32 v{O0+u}, 0xff7fffff")
    A("s_mov_b32 s39, 0")
    A.label("L_at_slow1")
    A(f"buffer_load_dwordx4 {ar(KB0,4)}, v{vLane16}, s[44:47], s39 offen sc1")
    A(f"buffer_load_dwordx4 {ar(KB0+4,4)}, v{vLane16}, s[44:47], s39 offen offset:1024 sc1")
    A("s_waitcnt vmcnt(0)")
    for u in range(4):
        for x in QK(u, "0"): A(x)
    A("s_nop 15")
    for u in range(4):
        for j in range(0, 16, 2):
            A(f"v_max3_f32 v{O0+u}, v{O0+u}, v{S0+16*u+j}, v{S0+16*u+j+1}")
    A("s_add_u32 s39, s39, 0x1000")
    A("s_cmp_lt_u32 s39, 0x40000")
    A("s_cbranch_scc1 L_at_slow1")
    for u in range(4):
        A(f"v_mov_b32 v{S0+16*u}, v{O0+u}")
        emit(fill_C(u, S0+16*u))
    for i in range(16):
        A(f"v_accvgpr_write_b32 a{L0+i}, 0")
    for i in range(64):
        A(f"v_mov_b32 v{O0+i}, 0")
    A("s_mov_b32 s39, 0")
    A.label("L_at_slow2")
    A(f"buffer_load_dwordx4 {ar(KB0,4)}, v{vLane16}, s[44:47], s39 offen sc1")
    A(f"buffer_load_dwordx4 {ar(KB0+4,4)}, v{vLane16}, s[44:47], s39 offen offset:1024 sc1")
    A(f"buffer_load_dwordx4 {ar(VB0,4)}, v{vLane16}, s[44:47], s39 offen offset:2048 sc1")
    A(f"buffer_load_dwordx4 {ar(VB0+4,4)}, v{vLane16}, s[44:47], s39 offen offset:3072 sc1")
    A("s_waitcnt vmcnt(0)")
    for u in range(4):
        for x in QK(u, vr(C0+16*u, 16)): A(x)
    A("s_nop 15")
    for j in range(64):
        A(f"v_exp_f32 v{S0+j}, v{S0+j}")
    A("s_nop 1")
    for u in range(4):
        for x in PV(u, 0): A(x)
    A("s_nop 15")
    A("s_add_u32 s39, s39, 0x1000")
    A("s_cmp_lt_u32 s39, 0x40000")
    A("s_cbranch_scc1 L_at_slow2")
    A("s_nop 15")
    A("s_mov_b64 s[66:67], 0")
    A("s_branch L_at_store")
    A.label("L_at_end")
    A("s_endpgm")
    return kernel_desc(name, 512, 256, 102)

def gen_out(A):
    LD = 8
    vL, vH, vL31, vW_ = 1, 2, 3, 4
    vOd, vWd = 28, 12
    vWr, vWr0 = 8, 10
    vT0, vT1, vPl = 16, 17, 18
    ACC = 32
    WF = 128
    OFr = 192
    def wreg(st, s, c, n=4, o=0):
        i = 8*s + 4*c + o
        if st < 2: return vr(WF + 32*st + i, n)
        if st < 10: return ar(32*(st - 2) + i, n)
        return vr(64 + 32*(st - 10) + i, n)
    def stash(st):
        R = []
        for s in range(4):
            for c in range(2):
                wo = (st % 8)*0x2000 + 2048*s
                R += [f"ds_read_b64_tr_b16 {wreg(st,s,c,2,0)}, v{vWr+c} offset:{wo}",
                      f"ds_read_b64_tr_b16 {wreg(st,s,c,2,2)}, v{vWr+c} offset:{wo+1024}"]
        return R
    gstamp(A, 2)
    A("s_lshl_b32 s45, s30, 1")
    A("s_lshl_b32 s33, s28, 3")
    A("s_add_u32 s30, s30, s33")
    A("s_add_u32 s35, s36, 0x14000")
    def dma_W():
        ldw = lambda t: f"buffer_load_dwordx4 v{vWd+t}, s[12:15], s34 offen offset:{1024*t} lds"
        return [["s_mov_b32 m0, s35", "s_add_u32 s35, s35, 0x4000", ldw(0)], [ldw(1)], [ldw(2)],
                [ldw(3), "s_add_u32 s34, s34, 0x40000", "s_and_b32 s34, s34, 0x1fffff"]]
    def fl(I):
        for x in I:
            for y in x: A(y)
    def mix(R, D, k):
        while R or D:
            for _ in range(k):
                if R: A(R.pop(0))
            if D:
                for y in D.pop(0): A(y)
    A(f"v_bfe_u32 v{vT0}, v{vL}, 2, 2")
    A(f"v_lshl_add_u32 v{vT1}, v{vH}, 2, v{vT0}")
    A(f"v_lshlrev_b32 v{vT1}, 7, v{vT1}")
    A(f"v_bfe_u32 v{vT0}, v{vL}, 3, 1")
    A(f"v_lshl_add_u32 v{vT1}, v{vT0}, 6, v{vT1}")
    A(f"v_bfe_u32 v{vT0}, v{vL}, 4, 1")
    A(f"v_lshl_add_u32 v{vT1}, v{vT0}, 5, v{vT1}")
    A(f"v_and_b32 v{vT0}, 1, v{vL}")
    A(f"v_lshl_add_u32 v{vT1}, v{vT0}, 4, v{vT1}")
    A(f"v_bfe_u32 v{vT0}, v{vL}, 1, 1")
    A(f"v_lshl_add_u32 v{vWr0}, v{vT0}, 3, v{vT1}")
    A(f"v_xor_b32 v{vWr0+1}, 64, v{vWr0}")
    A(f"v_mov_b32 v{vWr}, v{vWr0}")
    A(f"v_mov_b32 v{vWr+1}, v{vWr0+1}")
    R = []
    for st in range(8): R += stash(st)
    D = dma_W() + [["s_mov_b32 s12, s74", "s_mov_b32 s13, s75"]] + dma_W()
    mix(R, D, 14)
    A("s_lshl_b32 s46, s29, 2")
    A("s_add_u32 s46, s46, s20")
    A("s_lshl_b32 s46, s46, 17")
    A(f"s_add_u32 s46, s46, {WS_OF}")
    A("s_lshl_b32 s47, s28, 16")
    A("s_add_u32 s48, s46, s47")
    A("s_add_u32 s8, s26, s48")
    A("s_addc_u32 s9, s27, 0")
    A("s_mov_b32 s10, 0x10000")
    A("s_mov_b32 s11, 0x00020000")
    A("s_xor_b32 s47, s47, 0x10000")
    A("s_add_u32 s48, s46, s47")
    A("s_add_u32 s40, s26, s48")
    A("s_addc_u32 s41, s27, 0")
    A("s_lshl_b32 s32, s45, 12")
    A(f"v_add_u32 v{vT0}, s30, v{vL}")
    A(f"v_and_b32 v{vT0}, 7, v{vT0}")
    A(f"v_xor_b32 v{vT1}, s33, v{vL}")
    A(f"v_and_b32 v{vT1}, 8, v{vT1}")
    A(f"v_or_b32 v{vT0}, v{vT0}, v{vT1}")
    A(f"v_lshlrev_b32 v{vT0}, 2, v{vT0}")
    A("s_lshl_b32 s49, s29, 7")
    A(f"s_add_u32 s49, s49, {WS_FL}")
    A("s_cmp_eq_u32 s20, 0")
    A("s_cselect_b32 s53, 0, -1")
    for i in range(0, 32, 2):
        A(f"v_mov_b64 {vr(ACC+i,2)}, 0")
    A(f"v_add_u32 v{vWr}, 0x20000, v{vWr0}")
    A(f"v_add_u32 v{vWr+1}, 0x20000, v{vWr0+1}")
    gstamp(A, 3)
    A("s_waitcnt vmcnt(0) lgkmcnt(0)")
    A("s_barrier")
    gstamp(A, 4)
    tstamp(A, "2")
    stamp(A, 6)
    A("s_cmp_lg_u32 s20, 0")
    A("s_cbranch_scc1 L_o_nosig")
    A(f"v_mov_b32 v{vT1}, 1")
    A(f"v_mov_b32 v{vPl}, 0")
    A("s_mov_b64 exec, 1")
    A(f"buffer_atomic_swap v{vT1}, v{vPl}, s[16:19], s69 offen sc1")
    A("s_mov_b64 exec, -1")
    A.label("L_o_nosig")
    def ld_O(j):
        I = [f"buffer_load_dwordx4 {vr(OFr+4*(j%16),4)}, v{vOd}, s[8:11], s32 offen offset:{1024*(j%4)} sc1"]
        if j % 4 == 3: I += ["s_add_u32 s32, s32, 0x1000", "s_and_b32 s32, s32, 0xffff"]
        return I
    for j in range(8):
        for y in ld_O(j): A(y)
    mix(stash(8) + stash(9) + stash(10) + stash(11), dma_W() + [["s_mov_b32 s35, s36"]] + dma_W() + dma_W(), 5)
    def mf(st, s, c, j):
        w = wreg(st, s, c) if st < 12 else vr(WF + 32*(st % 2) + 8*s + 4*c, 4)
        return f"v_mfma_f32_32x32x16_bf16 {vr(ACC+16*c,16)}, {w}, {vr(OFr+4*(j%16),4)}, {vr(ACC+16*c,16)}"
    gstamp(A, 5)
    A("s_waitcnt vmcnt(12)")
    D = dma_W() + dma_W()
    for j in range(8):
        A(mf(j // 4, j % 4, 0, j)); A(mf(j // 4, j % 4, 1, j))
        for y in D.pop(0): A(y)
    A("s_add_u32 s35, s36, 0x20000")
    A("s_waitcnt lgkmcnt(0)")
    A("s_barrier")
    A("s_cmp_lg_u32 s20, 0")
    A("s_cbranch_scc1 L_o_nopoll")
    A(f"buffer_load_dword v{vPl}, v{vT0}, s[16:19], s49 offen sc1")
    A.label("L_o_nopoll")
    fl(dma_W()); fl(dma_W())
    gstamp(A, 6)
    A("s_mov_b32 s54, 0xff")
    A("s_cmp_lg_u32 s20, 0")
    A("s_cbranch_scc1 L_o_ready0")
    A("s_waitcnt vmcnt(8)")
    A(f"v_cmp_eq_u32 vcc, 1, v{vPl}")
    A("s_nop 4")
    A("s_mov_b32 s53, vcc_lo")
    A("s_and_b32 s50, s53, s54")
    A("s_cmp_lg_u32 s50, s54")
    A("s_cbranch_scc1 L_o_poll0")
    A.label("L_o_ready0")
    A("s_barrier")
    gstamp(A, 7)
    stamp(A, 7)
    tstamp(A, "2")
    for j in range(8, 16):
        for y in ld_O(j): A(y)
    def rd_W(st):
        R = []
        for s in range(4):
            for c in range(2):
                b = WF + 32*(st % 2) + 8*s + 4*c
                wo = st*0x2000 + 2048*s
                R += [f"ds_read_b64_tr_b16 {vr(b,2)}, v{vWr+c} offset:{wo}",
                      f"ds_read_b64_tr_b16 {vr(b+2,2)}, v{vWr+c} offset:{wo+1024}"]
        return R
    def stage(st, stw, rd, extra=None):
        for s in range(4):
            j = 4*st + s
            A(f"s_waitcnt vmcnt(7) lgkmcnt(12)" if stw >= 12 else "s_waitcnt vmcnt(7)")
            for c in range(2):
                A(mf(stw, s, c, j))
                for _ in range(2):
                    if rd: A(rd.pop(0))
                if c == 0:
                    for y in ld_O(j + LD): A(y)
                elif extra:
                    for y in extra.pop(0): A(y)
    A(f"v_add_u32 v{vWr}, 0x10000, v{vWr0}")
    A(f"v_add_u32 v{vWr+1}, 0x10000, v{vWr0+1}")
    A("s_mov_b32 s37, 0x10000")
    A("s_mov_b32 s39, 3")
    if "fulline" in VAR:
        A(f"v_and_b32 v24, 7, v{vL31}")
        A(f"v_xor_b32 v24, v24, v{vH}")
        A(f"v_lshlrev_b32 v24, 4, v24")
        A(f"v_lshl_add_u32 v24, v{vL31}, 7, v24")
        A("s_add_u32 s50, s36, 0x10000")
        A(f"v_add_u32 v20, s50, v24")
        for k in range(1, 4):
            A(f"v_xor_b32 v{20+k}, {32*k}, v20")
        A(f"v_add_u32 v24, s50, v{vOd}")
        A(f"v_lshrrev_b32 v25, 3, v{vL}")
        A(f"v_and_b32 v26, 7, v{vL}")
        A(f"v_xor_b32 v26, v26, v25")
        A(f"v_lshlrev_b32 v26, 4, v26")
        A(f"v_lshl_add_u32 v25, v25, 11, v26")
    for st in range(2, 12):
        stage(st % 4, st, rd_W(0) if st == 11 else None)
    A("s_mov_b32 s54, 0xffff")
    A("s_and_b32 s50, s53, s54")
    A("s_cmp_lg_u32 s50, s54")
    A("s_cbranch_scc1 L_o_poll1")
    A.label("L_o_ready1")
    A("s_barrier")
    A.raw(".p2align 6")
    A.label("L_o_loop")
    tstamp(A, "2")
    stage(0, 12, rd_W(1), [["s_add_u32 s37, s37, 0x8000", "s_and_b32 s37, s37, 0x1ffff"], ["s_cmp_eq_u32 s39, 6", "s_cselect_b32 s37, 0x20000, s37"]])
    stage(1, 13, rd_W(2))
    A("s_mov_b32 s8, s40")
    A("s_mov_b32 s9, s41")
    A("s_cmp_eq_u32 s39, 7")
    A("s_cbranch_scc1 L_o_tail")
    stage(2, 14, rd_W(3), [["s_add_u32 s39, s39, 1"]])
    A(f"v_add_u32 v{vWr}, s37, v{vWr0}")
    A(f"v_add_u32 v{vWr+1}, s37, v{vWr0+1}")
    stage(3, 15, rd_W(0))
    A("s_branch L_o_loop")
    A.label("L_o_tail")
    if "fulline" in VAR: A("s_barrier")
    R3 = rd_W(3)
    for j in range(8, 16):
        st, sq = j // 4, j % 4
        A(f"s_waitcnt vmcnt({15 - j}) lgkmcnt({12 if j < 12 else 4*(15-j)})")
        for c in range(2):
            A(mf(12 + st, sq, c, j))
            for _ in range(2):
                if R3: A(R3.pop(0))
    A("s_mov_b32 s40, s43")
    A("s_nop 2")
    OST = os.environ.get('OST', 'nt')
    if "fulline" not in VAR:
        A(f"v_lshlrev_b32 v{vT0}, 11, v{vL31}")
        A(f"v_lshl_add_u32 v{vT0}, v{vH}, 4, v{vT0}")
        A("s_nop 7")
        for c in range(2):
            for j in range(8):
                A(f"v_cvt_pk_bf16_f32 v{64+8*c+j}, v{ACC+16*c+2*j}, v{ACC+16*c+2*j+1}")
            for f in range(2):
                A(f"buffer_store_dwordx4 {vr(64+8*c+4*f,4)}, v{vT0}, s[56:59], s40 offen offset:{64*c+32*f} {OST}")
    else:
        A("s_nop 7")
        for c in range(2):
            for j in range(8):
                A(f"v_cvt_pk_bf16_f32 v{64+8*c+j}, v{ACC+16*c+2*j}, v{ACC+16*c+2*j+1}")
            for f in range(2):
                A(f"ds_write_b128 v{20+2*c+f}, {vr(64+8*c+4*f,4)}")
        A("s_waitcnt lgkmcnt(0)")
        for i in range(4):
            A(f"ds_read_b128 {vr(80+4*i,4)}, v24 offset:{1024*i}")
        for i in range(4):
            A(f"s_waitcnt lgkmcnt({3-i})")
            A(f"buffer_store_dwordx4 {vr(80+4*i,4)}, v25, s[56:59], s40 offen {OST}")
            A("s_add_u32 s40, s40, 0x4000")
    if TS == "2":
        tstamp(A, "2")
        A("s_waitcnt vmcnt(0)")
        tstamp(A, "2")
    if STAMP:
        A("s_waitcnt vmcnt(0)")
        _stamp(A, 1)
        stamp_flush(A, 0, 8, 26, 27, 20)
    A("s_endpgm")
    for k in (1, 0):
        tgt = f"L_o_ready{k}"
        A.label(f"L_o_poll{k}")
        A("s_mov_b32 s48, 0")
        A.label(f"L_o_spin{k}")
        A(f"buffer_load_dword v{vPl}, v{vT0}, s[16:19], s49 offen sc1")
        A("s_waitcnt vmcnt(0)")
        A(f"v_cmp_eq_u32 vcc, 1, v{vPl}")
        A("s_add_u32 s48, s48, 1")
        A("s_cmp_gt_u32 s48, 0x40000")
        A(f"s_cbranch_scc1 {tgt}")
        A("s_nop 2")
        A("s_mov_b32 s53, vcc_lo")
        A("s_and_b32 s50, s53, s54")
        A("s_cmp_eq_u32 s50, s54")
        A(f"s_cbranch_scc1 {tgt}")
        A(f"s_sleep {int(os.environ.get('SLEEP', '2'))}")
        A(f"s_branch L_o_spin{k}")

def main(path):
    ref = open("cdna_kernels/" + NAME + ".s.ref").read().split("\n")
    hdr = [l for l in ref if l.startswith(";") and "@launch" not in l and "Override" not in l and "grid=ceil" not in l]
    B = Asm()
    d1 = gen_attn(B)
    A = Asm()
    for l in hdr: A.raw(l)
    A.raw(f"; @launch grid=(256,1,1) block=(256,1,1) lds={LDS_ATTN}")
    A.raw('.amdgcn_target "amdgcn-amd-amdhsa--gfx950"')
    A.raw(".text")
    A.lines += B.lines
    A.raw("L_code_end:")
    A.raw('.section .rodata,"a"')
    for d in (d1,):
        A.raw(".p2align 6")
        A.raw(d)
    open(path, "w").write(A.text())

if __name__ == "__main__":
    main(sys.argv[1] if len(sys.argv) > 1 else "cdna_kernels/" + NAME + ".s")
```

```python
import sys, re
src, out, a, b, mult = sys.argv[1], sys.argv[2], int(sys.argv[3]), int(sys.argv[4]), int(sys.argv[5])
base = 0xA00020
s = open(src).read()
s = re.sub(r"; @launch grid=", "; @launch kernel=gated_mix__grouped_kv_mqa__grouped_kv_mqa__prompt_kernel grid=", s)
s2 = s.replace('.amdgcn_target', '; @launch kernel=dbg_kernel grid=(1,1,1) block=(64,1,1) lds=0\n.amdgcn_target', 1)
loads = ""
for i in range(16):
    loads += f"    buffer_load_dword v{8+i}, v1, s[12:15], s22 offen\n    buffer_load_dword v{24+i}, v3, s[12:15], s22 offen\n    s_add_u32 s22, s22, 4096\n"
red = ""
for i in range(16):
    red += f"    v_sub_u32 v{8+i}, v{24+i}, v{8+i}\n"
for i in range(1, 16):
    red += f"    v_add_u32 v8, v8, v{8+i}\n"
lanes = "    s_nop 1\n    v_readlane_b32 s24, v8, 0\n"
for l in range(1, 64):
    lanes += f"    v_readlane_b32 s26, v8, {l}\n    s_nop 1\n    s_add_u32 s24, s24, s26\n"
s2 = s2.replace('.section .rodata,"a"', f'''.globl dbg_kernel
.p2align 8
.type dbg_kernel,@function
dbg_kernel:
    s_cmp_ge_u32 s2, 1
    s_cbranch_scc1 L_dbg_end
    s_load_dwordx2 s[6:7], s[0:1], 104
    s_waitcnt lgkmcnt(0)
    s_mov_b32 s12, s6
    s_mov_b32 s13, s7
    s_mov_b32 s14, 0xB00000
    s_mov_b32 s15, 0x00020000
    v_lshlrev_b32 v2, 6, v0
    v_add_u32 v1, {base + 4*a}, v2
    v_add_u32 v3, {base + 4*b}, v2
    s_mov_b32 s22, 0
{loads}
    s_waitcnt vmcnt(0)
{red}
{lanes}
    s_mul_i32 s20, s24, {mult}
    s_lshr_b32 s20, s20, 10
    s_min_u32 s20, s20, 20000
    s_memrealtime s[16:17]
    s_waitcnt lgkmcnt(0)
L_dbg_spin:
    s_memrealtime s[18:19]
    s_waitcnt lgkmcnt(0)
    s_sub_u32 s21, s18, s16
    s_cmp_lt_u32 s21, s20
    s_cbranch_scc1 L_dbg_spin
L_dbg_end:
    s_endpgm
.section .rodata,"a"
.p2align 6
.amdhsa_kernel dbg_kernel
  .amdhsa_next_free_vgpr 48
  .amdhsa_next_free_sgpr 40
  .amdhsa_accum_offset 48
  .amdhsa_group_segment_fixed_size 0
  .amdhsa_kernarg_size 112
  .amdhsa_user_sgpr_count 2
  .amdhsa_user_sgpr_kernarg_segment_ptr 1
  .amdhsa_system_sgpr_workgroup_id_x 1
.end_amdhsa_kernel
''', 1)
open(out, "w").write(s2)
```

```python
import sys, re
src, out = sys.argv[1], sys.argv[2]
a1, b1, m1, a2, b2, m2 = [int(x) for x in sys.argv[3:9]]
base = 0xA00020
s = open(src).read()
s = re.sub(r"; @launch grid=", "; @launch kernel=gated_mix__grouped_kv_mqa__grouped_kv_mqa__prompt_kernel grid=", s)
s2 = s.replace('.amdgcn_target', '; @launch kernel=dbg_kernel grid=(1,1,1) block=(64,1,1) lds=0\n.amdgcn_target', 1)
loads = ""
for i in range(16):
    for k, o in enumerate((a1, b1, a2, b2)):
        loads += f"    buffer_load_dword v{8+16*k+i}, v1, s[12:15], s22 offen offset:{4*o}\n"
    loads += "    s_add_u32 s22, s22, 4096\n    s_waitcnt vmcnt(32)\n"
red = ""
for i in range(16):
    red += f"    v_sub_u32 v{8+i}, v{24+i}, v{8+i}\n    v_sub_u32 v{40+i}, v{56+i}, v{40+i}\n"
    red += f"    v_mul_u32_u24 v{8+i}, {m1}, v{8+i}\n    v_mul_u32_u24 v{40+i}, {m2}, v{40+i}\n    v_add_u32 v{8+i}, v{8+i}, v{40+i}\n"
for i in range(1, 16):
    red += f"    v_add_u32 v8, v8, v{8+i}\n"
lanes = "    s_nop 1\n    v_readlane_b32 s24, v8, 0\n"
for l in range(1, 64):
    lanes += f"    v_readlane_b32 s26, v8, {l}\n    s_nop 1\n    s_add_u32 s24, s24, s26\n"
s2 = s2.replace('.section .rodata,"a"', f'''.globl dbg_kernel
.p2align 8
.type dbg_kernel,@function
dbg_kernel:
    s_cmp_ge_u32 s2, 1
    s_cbranch_scc1 L_dbg_end
    s_load_dwordx2 s[6:7], s[0:1], 104
    s_waitcnt lgkmcnt(0)
    s_mov_b32 s12, s6
    s_mov_b32 s13, s7
    s_mov_b32 s14, 0xB00000
    s_mov_b32 s15, 0x00020000
    v_lshlrev_b32 v2, 6, v0
    v_add_u32 v1, {base}, v2
    s_mov_b32 s22, 0
{loads}
    s_waitcnt vmcnt(0)
{red}
{lanes}
    s_lshr_b32 s20, s24, 10
    s_min_u32 s20, s20, 20000
    s_memrealtime s[16:17]
    s_waitcnt lgkmcnt(0)
L_dbg_spin:
    s_memrealtime s[18:19]
    s_waitcnt lgkmcnt(0)
    s_sub_u32 s21, s18, s16
    s_cmp_lt_u32 s21, s20
    s_cbranch_scc1 L_dbg_spin
L_dbg_end:
    s_endpgm
.section .rodata,"a"
.p2align 6
.amdhsa_kernel dbg_kernel
  .amdhsa_next_free_vgpr 80
  .amdhsa_next_free_sgpr 40
  .amdhsa_accum_offset 80
  .amdhsa_group_segment_fixed_size 0
  .amdhsa_kernarg_size 112
  .amdhsa_user_sgpr_count 2
  .amdhsa_user_sgpr_kernarg_segment_ptr 1
  .amdhsa_system_sgpr_workgroup_id_x 1
.end_amdhsa_kernel
''', 1)
open(out, "w").write(s2)
```

```python
import sys, math, struct, os
from asmlib import *

NAME = "gated_mix__grouped_kv_mqa__grouped_kv_mqa__prompt"
WS_KV = 0
WS_G = 0x80000
WS_FL = 0x90000
WS_OF = 0x100000
WS_USED = 0x900000
STAMP = os.environ.get("STAMP", "0") == "1"
VAR = os.environ.get("VAR", "")
XNT = "nt" if "xnt" in VAR else ""
WNT = "nt" if "wnt" in VAR else ""
WS_ST = 0xA00000

FINE = os.environ.get("FINE", "0") == "1"
TS = os.environ.get("TS", "0")
def tstamp(A, ph="1"):
    if TS != ph: return
    A("s_waitcnt lgkmcnt(0)")
    A("s_memtime s[96:97]")
    A("s_memrealtime s[98:99]")
    A("s_waitcnt lgkmcnt(0)")
    A("v_mov_b32 v6, s96")
    A("v_mov_b32 v7, s98")
    A("v_mov_b32 v5, 0")
    A("buffer_store_dwordx2 v[6:7], v5, s[92:95], s100 offen")
    A("s_add_u32 s100, s100, 8")
def tstamp_init(A, wsl, wsh, wave_sgpr, kern):
    if TS == "0": return
    A(f"s_mov_b32 s92, s{wsl}")
    A(f"s_mov_b32 s93, s{wsh}")
    A(f"s_mov_b32 s94, {0xC00000}")
    A("s_mov_b32 s95, 0x00020000")
    A("s_lshl_b32 s100, s2, 2")
    A(f"s_add_u32 s100, s100, s{wave_sgpr}")
    A("s_lshl_b32 s100, s100, 9")
    A(f"s_add_u32 s100, s100, {0xA00000 + kern*0x80000}")
FINE2 = os.environ.get("FINE2", "0") == "1"
def gstamp(A, k):
    if FINE2: _stamp(A, k)
def fstamp(A, k):
    if FINE: _stamp(A, k)
def stamp(A, k):
    if FINE and k not in (0,): return
    if FINE2: return
    _stamp(A, k)
def _stamp(A, k):
    if not STAMP: return
    A("s_waitcnt lgkmcnt(0)")
    A(f"s_memtime s[96:97]")
    A(f"s_memrealtime s[98:99]")
    A("s_waitcnt lgkmcnt(0)")
    A(f"s_mov_b32 s{76+k}, s96")
    A(f"s_mov_b32 s{84+k}, s98")
def stamp_flush(A, kern, n, wsl, wsh, wave_sgpr):
    if not STAMP: return
    A(f"s_mov_b32 s92, s{wsl}")
    A(f"s_mov_b32 s93, s{wsh}")
    A(f"s_mov_b32 s94, {WS_ST + 0x40000}")
    A("s_mov_b32 s95, 0x00020000")
    A("s_lshl_b32 s96, s2, 2")
    A(f"s_add_u32 s96, s96, s{wave_sgpr}")
    A("s_lshl_b32 s96, s96, 6")
    A(f"s_add_u32 s96, s96, {WS_ST + kern*0x10000}")
    A("v_mov_b32 v1, 0")
    for k in range(n):
        A(f"v_mov_b32 v2, s{76+k}")
        A(f"buffer_store_dword v2, v1, s[92:95], s96 offen offset:{4*k}")
        A("s_nop 1")
        A(f"v_mov_b32 v2, s{84+k}")
        A(f"buffer_store_dword v2, v1, s[92:95], s96 offen offset:{32+4*k}")
        A("s_nop 1")

def f32bits(x):
    return struct.unpack("<I", struct.pack("<f", x))[0]
KSCALE = f32bits(math.log2(math.e) / math.sqrt(32.0))
LOG2E = f32bits(math.log2(math.e))

def take_(L, n):
    r = L[:n]; del L[:n]; return r

def weave(A, M, streams):
    for k, m in enumerate(M):
        A(m)
        for items, q in streams:
            for _ in range(q(k)):
                if items:
                    x = items.pop(0)
                    if isinstance(x, (list, tuple)):
                        for y in x: A(y)
                    else: A(x)
    for items, q in streams:
        while items:
            x = items.pop(0)
            if isinstance(x, (list, tuple)):
                for y in x: A(y)
            else: A(x)

LDS_SCR = 0x14000
LDS_SCG = 0x1C000
LDS_DUMMY = 0x27C00
LDS_ATTN = 163840

def gen_attn(A):
    name = NAME + "_kernel"
    kernel_header(A, name)
    S0, C0, O0, Q0 = 32, 96, 160, 224
    L0, KB0, VB0, SEL, GF, FR = 0, 16, 32, 48, 0, 128
    vL, vH, vL31, vW_ = 1, 2, 3, 4
    vXd, vWd = 8, 12
    vXr, vWr = 16, 20
    vKV, vIDX, vT0, vT1, vG = 22, 23, 24, 25, 26
    vLane16, vLin, vPoll, vT2 = 28, 29, 30, 31
    ACC = S0
    PACC, GACC = Q0, Q0 + 4
    vPd, vPr, vPw = C0, C0 + 4, C0 + 8
    vRed = C0 + 12
    A("s_cmp_ge_u32 s2, 256")
    A("s_cbranch_scc1 L_at_end")
    stamp(A, 0)
    if "epf" in VAR:
        A("s_getpc_b64 s[72:73]")
        for k in range(1, 7):
            A(f"s_load_dword s74, s[72:73], {128*k}")
    A("s_load_dwordx8 s[4:11], s[0:1], 0")
    A("s_load_dwordx2 s[64:65], s[0:1], 32")
    A("s_load_dwordx8 s[12:19], s[0:1], 48")
    A("s_load_dwordx2 s[66:67], s[0:1], 80")
    A("s_load_dwordx4 s[24:27], s[0:1], 96")
    A("s_and_b32 s28, s2, 1")
    A("s_bfe_u32 s29, s2, 0x20001")
    A("s_bfe_u32 s30, s2, 0x20003")
    A("s_lshl_b32 s29, s29, 2")
    A("s_add_u32 s29, s29, s30")
    A("s_lshr_b32 s30, s2, 5")
    A("s_lshr_b32 s31, s2, 7")
    A("s_and_b32 s23, s30, 3")
    A("s_lshl_b32 s33, s29, 2")
    A("s_add_u32 s33, s33, s23")
    A("s_lshl_b32 s34, s31, 1")
    A("s_add_u32 s34, s34, s23")
    A("s_and_b32 s34, s34, 3")
    A("s_lshl_b32 s37, s30, 1")
    if True:
        A("s_and_b32 s38, s29, 12")
        A("s_add_u32 s37, s37, s38")
        if "rotgb" in VAR: A("s_add_u32 s37, s37, s28")
        A("s_and_b32 s37, s37, 15")
    A("s_lshl_b32 s38, s29, 18")
    A("s_lshl_b32 s39, s30, 8")
    A(f"v_lshrrev_b32 v{vW_}, 6, v0")
    A(f"v_and_b32 v{vL}, 63, v0")
    A(f"v_readfirstlane_b32 s20, v{vW_}")
    A(f"v_lshrrev_b32 v{vH}, 5, v{vL}")
    A(f"v_and_b32 v{vL31}, 31, v{vL}")
    A(f"v_lshlrev_b32 v{vLane16}, 4, v{vL}")
    A(f"v_lshl_add_u32 v{vLin}, v{vW_}, 12, v{vLane16}")
    A(f"v_lshrrev_b32 v{vT0}, 3, v{vL}")
    A(f"v_lshl_add_u32 v{vT0}, v{vW_}, 5, v{vT0}")
    A(f"v_lshlrev_b32 v{vT0}, 11, v{vT0}")
    A(f"v_lshrrev_b32 v{vT1}, 4, v{vL}")
    A(f"v_and_b32 v5, 7, v{vL}")
    A(f"v_xor_b32 v5, v5, v{vT1}")
    A(f"v_lshl_add_u32 v{vXd}, v5, 4, v{vT0}")
    A(f"v_xor_b32 v{vXd+1}, 64, v{vXd}")
    A(f"v_add_u32 v{vXd+1}, {16384-1024}, v{vXd+1}")
    A(f"v_add_u32 v{vXd+2}, {2*(16384-1024)}, v{vXd}")
    A(f"v_add_u32 v{vXd+3}, {2*(16384-1024)}, v{vXd+1}")
    A(f"v_lshl_add_u32 v{vT0}, v{vW_}, 4, v{vT1}")
    A(f"v_lshlrev_b32 v{vT0}, 11, v{vT0}")
    A(f"v_lshlrev_b32 v{vT1}, 2, v{vT1}")
    A(f"v_and_b32 v5, 15, v{vL}")
    A(f"v_xor_b32 v5, v5, v{vT1}")
    A(f"v_lshl_add_u32 v{vWd}, v5, 4, v{vT0}")
    for t in range(1, 4):
        A(f"v_add_u32 v{vWd+t}, {t*(8192-1024)}, v{vWd}")
    A("s_waitcnt lgkmcnt(0)")
    fstamp(A, 1)
    if os.environ.get("WSOFF"):
        A(f"s_add_u32 s26, s26, {int(os.environ['WSOFF'], 0)}")
        A("s_addc_u32 s27, s27, 0")
    A("s_cmp_eq_u32 s28, 1")
    A("s_cselect_b64 s[6:7], s[12:13], s[6:7]")
    A("s_cselect_b64 s[8:9], s[14:15], s[8:9]")
    A("s_cselect_b64 s[10:11], s[16:17], s[10:11]")
    A("s_cselect_b64 s[72:73], s[18:19], s[64:65]")
    A("s_cselect_b64 s[74:75], s[64:65], s[18:19]")
    A("s_cmp_eq_u32 s31, 1")
    A("s_cselect_b64 s[8:9], s[10:11], s[8:9]")
    A("s_cselect_b64 s[64:65], s[18:19], s[64:65]")
    srd(A, 40, 8, 9, 1024*32*2)
    srd(A, 8, 4, 5, 2048*1024*2)
    srd(A, 12, 6, 7, 1024*1024*2)
    srd(A, 56, 66, 67, 2048)
    A("s_lshl_b32 s36, s20, 12")
    A("s_lshl_b32 s35, s33, 16")
    A("s_mov_b32 s71, s36")
    A("s_add_u32 s32, s36, 0x28000")
    A("s_and_b32 s23, s29, 3")
    PARK = ()
    adv = ["s_add_u32 s71, s71, 0x8000", "s_cmp_eq_u32 s71, s32", "s_cselect_b32 s71, s36, s71"]
    def dma_P():
        I = []
        I.append([f"s_mov_b32 m0, s71", "s_lshl_b32 s48, s34, 9", "s_add_u32 s48, s48, s35",
                  f"buffer_load_dwordx4 v{vPd}, s[8:11], s48 offen lds"])
        for t in range(1, 4):
            I.append(f"buffer_load_dwordx4 v{vPd+t}, s[8:11], s48 offen offset:{1024*t} lds")
        I.append([f"s_add_u32 m0, s71, 0x4000", "s_lshl_b32 s49, s34, 14",
                  f"buffer_load_dwordx4 v{vLin}, s[40:43], s49 offen lds"])
        for t in range(1, 4):
            I.append(f"buffer_load_dwordx4 v{vLin}, s[40:43], s49 offen offset:{1024*t} lds")
        I.append(["s_add_u32 s34, s34, 1", "s_and_b32 s34, s34, 3"] + adv)
        return I
    def dma_G():
        I = []
        I.append([f"s_mov_b32 m0, s71", "s_lshl_b32 s48, s37, 7", "s_add_u32 s48, s48, s38",
                  f"buffer_load_dwordx4 v{vXd}, s[8:11], s48 offen lds"])
        for t in range(1, 4):
            I.append(f"buffer_load_dwordx4 v{vXd+t}, s[8:11], s48 offen offset:{1024*t} lds")
        I.append([f"s_add_u32 m0, s71, 0x4000", "s_lshl_b32 s49, s37, 17", "s_add_u32 s49, s49, s39",
                  f"buffer_load_dwordx4 v{vWd}, s[12:15], s49 offen lds"])
        for t in range(1, 4):
            I.append(f"buffer_load_dwordx4 v{vWd+t}, s[12:15], s49 offen offset:{1024*t} lds")
        I.append(["s_add_u32 s37, s37, 1", "s_and_b32 s37, s37, 15"] + adv)
        return I
    def dma_C(c):
        slot = (c % 4) * 0x8000
        I = []
        I.append([f"s_add_u32 m0, s36, {slot}", f"s_mov_b32 s48, {c*0x8000}",
                  f"buffer_load_dwordx4 v{vLin}, s[44:47], s48 offen sc1 lds"])
        for t in range(1, 4):
            I.append(f"buffer_load_dwordx4 v{vLin}, s[44:47], s48 offen offset:{1024*t} sc1 lds")
        I.append([f"s_add_u32 m0, s36, {slot+0x4000}", f"s_mov_b32 s49, {c*0x8000+0x4000}",
                  f"buffer_load_dwordx4 v{vLin}, s[44:47], s49 offen sc1 lds"])
        for t in range(1, 4):
            I.append(f"buffer_load_dwordx4 v{vLin}, s[44:47], s49 offen offset:{1024*t} sc1 lds")
        return I
    def flat(I):
        for x in I:
            if isinstance(x, (list, tuple)):
                for y in x: A(y)
            else: A(x)
    ORDER = ["G", "G", "P", "P", "P", "P"] + ["G"] * 14
    PIDX = {n: k for k, n in enumerate([n for n in range(20) if ORDER[n] == "P"])}
    PLAST = max(PIDX)
    def dma(n):
        if n >= 20: return dma_C(n - 20)
        return dma_P() if ORDER[n] == "P" else dma_G()
    flat(dma(0))
    fstamp(A, 2)
    A(f"s_add_u32 m0, s36, 0x20000")
    A("s_bfe_u32 s48, s2, 0x40003")
    A("s_lshl_b32 s48, s48, 12")
    A("s_lshl_b32 s49, s20, 10")
    A("s_add_u32 s48, s48, s49")
    A(f"buffer_load_dwordx4 v{vLane16}, s[40:43], s48 offen lds")
    if "cpf" in VAR:
        A("s_getpc_b64 s[72:73]")
        A.label("L_at_pc")
        A("s_lshr_b32 s48, s2, 3")
        A("s_lshl_b32 s48, s48, 2")
        A("s_add_u32 s48, s48, s20")
        A("s_lshl_b32 s48, s48, 8")
        A("s_min_u32 s48, s48, L_code_end-L_at_pc-256")
        A("s_add_u32 s72, s72, s48")
        A("s_addc_u32 s73, s73, 0")
        for q in range(4):
            A(f"s_load_dword s74, s[72:73], {64*q}")
    srd(A, 16, 26, 27, WS_USED)
    srd(A, 52, 64, 65, 1024*1024*2)
    srd(A, 60, 24, 25, 256)
    A("s_load_dwordx2 s[64:65], s[0:1], 88")
    A("s_lshl_b32 s48, s28, 18")
    A("s_add_u32 s44, s26, s48")
    A("s_addc_u32 s45, s27, 0")
    A("s_mov_b32 s46, 0x40000")
    A("s_mov_b32 s47, 0x00020000")
    A("s_lshr_b32 s22, s20, 1")
    A("s_and_b32 s21, s20, 1")
    A("s_bfe_u32 s68, s2, 0x40003")
    A("s_lshl_b32 s68, s68, 2")
    A("s_add_u32 s68, s68, s20")
    A("s_lshl_b32 s68, s68, 15")
    A("s_lshl_b32 s69, s28, 10")
    A("s_add_u32 s68, s68, s69")
    A("s_or_b32 s70, s28, s31")
    A("s_or_b32 s70, s70, s21")
    A(f"v_lshl_add_u32 v{vT0}, v{vW_}, 3, v{vH}")
    A(f"v_and_b32 v{vT1}, 15, v{vT0}")
    A(f"v_xor_b32 v{vT1}, v{vT1}, v{vL31}")
    A(f"v_lshlrev_b32 v{vT1}, 4, v{vT1}")
    A(f"v_lshl_add_u32 v{vPd}, v{vT0}, 11, v{vT1}")
    for t in range(1, 4):
        A(f"v_xor_b32 v{vPd+t}, {(2*t) << 4}, v{vPd}")
        A(f"v_add_u32 v{vPd+t}, {t*(4096-1024)}, v{vPd+t}")
    A(f"v_and_b32 v6, 15, v{vL}")
    A(f"v_lshrrev_b32 v7, 4, v{vL}")
    A(f"v_xor_b32 v{vT0}, v6, v7")
    A(f"v_lshlrev_b32 v{vT0}, 4, v{vT0}")
    A(f"v_lshl_add_u32 v{vT0}, v6, 9, v{vT0}")
    A("s_lshl_b32 s48, s22, 13")
    A(f"v_add_u32 v{vPr}, s48, v{vT0}")
    for s in range(1, 4):
        A(f"v_xor_b32 v{vPr+s}, {64*s}, v{vPr}")
    A(f"v_bfe_u32 v{vT0}, v{vL}, 2, 2")
    A(f"v_lshl_add_u32 v{vT0}, v7, 3, v{vT0}")
    A(f"v_lshlrev_b32 v{vT0}, 6, v{vT0}")
    A(f"v_and_b32 v{vT1}, 3, v{vL}")
    A(f"v_lshl_add_u32 v{vT0}, v{vT1}, 3, v{vT0}")
    A("s_lshl_b32 s48, s21, 5")
    A("s_add_u32 s48, s48, 0x4000")
    A(f"v_add_u32 v{vPw}, s48, v{vT0}")
    A(f"v_bfe_u32 v{vT0}, v{vL}, 1, 3")
    A(f"v_xor_b32 v{vT0}, v{vT0}, v{vH}")
    A(f"v_lshlrev_b32 v{vT0}, 4, v{vT0}")
    A(f"v_lshl_add_u32 v{vT0}, v{vL31}, 7, v{vT0}")
    A(f"s_lshl_b32 s48, s22, 13")
    A(f"v_add_u32 v{vXr}, s48, v{vT0}")
    for s in range(1, 4):
        A(f"v_xor_b32 v{vXr+s}, {(2*s) << 4}, v{vXr}")
    A(f"v_bfe_u32 v{vT0}, v{vL}, 2, 2")
    A(f"v_lshl_add_u32 v{vT1}, v{vH}, 3, v{vT0}")
    A(f"v_lshlrev_b32 v{vT1}, 8, v{vT1}")
    A(f"s_lshl_b32 s48, s21, 1")
    A(f"v_xor_b32 v{vT0}, s48, v{vT0}")
    A(f"v_lshl_add_u32 v{vT1}, v{vT0}, 6, v{vT1}")
    A(f"v_bfe_u32 v{vT0}, v{vL}, 4, 1")
    A(f"v_lshl_add_u32 v{vT1}, v{vT0}, 5, v{vT1}")
    A(f"v_and_b32 v{vT0}, 3, v{vL}")
    A(f"v_lshl_add_u32 v{vT1}, v{vT0}, 3, v{vT1}")
    A(f"v_add_u32 v{vWr}, 0x4000, v{vT1}")
    A(f"v_xor_b32 v{vWr+1}, 64, v{vWr}")
    for i in range(0, 8, 2):
        A(f"v_mov_b64 {vr(PACC+i,2)}, 0")
    for i in range(0, 64, 2):
        A(f"v_mov_b64 {vr(ACC+i,2)}, 0")
    side = []
    side.append(f"v_mov_b32 v{vIDX}, 0xdddddddd")
    side += [f"v_and_b32 v{vT0}, 15, v{vL}", f"v_mov_b32 v{vT1}, 0x3f803f80", f"v_cmp_eq_u32 vcc, 0, v{vT0}", "s_nop 1",
             f"v_cndmask_b32 v{vT2}, 0, v{vT1}, vcc", f"v_cmp_eq_u32 vcc, 4, v{vT0}", "s_nop 1",
             f"v_cndmask_b32 v{vT1}, 0, v{vT1}, vcc",
             f"v_accvgpr_write_b32 a{SEL}, v{vT2}", f"v_accvgpr_write_b32 a{SEL+1}, v{vT2}",
             f"v_accvgpr_write_b32 a{SEL+2}, v{vT1}", f"v_accvgpr_write_b32 a{SEL+3}, v{vT1}"]
    side += [f"v_accvgpr_write_b32 a{L0+i}, 0" for i in range(16)]
    side += [f"v_accvgpr_write_b32 a{VB0+8+i}, 0" for i in range(8)]
    side.append(f"v_mov_b32 v{vKV}, v{vLane16}")
    A(f"v_bfe_u32 v{vT0}, v6, 2, 1")
    A(f"v_bfe_u32 v{vT1}, v6, 3, 1")
    A(f"v_and_b32 v{vRed+8}, 3, v6")
    A(f"v_lshl_add_u32 v{vRed+8}, v{vT0}, 3, v{vRed+8}")
    A(f"v_lshl_add_u32 v{vRed+8}, v{vT1}, 2, v{vRed+8}")
    A("s_cmp_eq_u32 s31, 1")
    A("s_cselect_b64 vcc, -1, 0")
    A("s_cselect_b32 s50, s21, s22")
    A("s_cselect_b32 s51, s22, s21")
    A(f"v_cndmask_b32 v{vRed+8}, v{vRed+8}, v6, vcc")
    A(f"v_and_b32 v{vT0}, 1, v7")
    A(f"v_lshl_add_u32 v{vRed+8}, v{vT0}, 5, v{vRed+8}")
    A(f"v_lshlrev_b32 v{vRed+8}, 4, v{vRed+8}")
    A(f"v_lshl_add_u32 v{vRed+8}, v{vH}, 3, v{vRed+8}")
    A("s_lshl_b32 s50, s50, 8")
    A("s_lshl_b32 s51, s51, 10")
    A("s_add_u32 s50, s50, s51")
    A("s_lshl_b32 s51, s33, 12")
    A("s_add_u32 s50, s50, s51")
    A("s_lshl_b32 s51, s31, 11")
    A("s_add_u32 s50, s50, s51")
    A(f"v_add_u32 v{vRed+8}, s50, v{vRed+8}")
    A("s_lshl_b32 s50, s33, 7")
    A("s_lshl_b32 s51, s22, 6")
    A("s_add_u32 s50, s50, s51")
    A(f"s_add_u32 s50, s50, {WS_G}")
    A("s_cmp_eq_u32 s70, 0")
    A(f"s_cselect_b32 s50, s50, {WS_USED}")
    A(f"v_lshl_add_u32 v{vRed+9}, v6, 2, s50")
    A(f"v_lshl_add_u32 v{vRed+9}, v7, 24, v{vRed+9}")
    A("s_lshl_b32 s69, s29, 7")
    A("s_lshl_b32 s51, s28, 5")
    A("s_add_u32 s69, s69, s51")
    A("s_lshl_b32 s51, s30, 2")
    A("s_add_u32 s69, s69, s51")
    A(f"s_add_u32 s69, s69, {WS_FL}")
    A("s_cmp_lg_u32 s20, 0")
    A("s_cbranch_scc1 L_at_nofr")
    A(f"v_mov_b32 v{vT0}, 0")
    A("s_mov_b64 exec, 1")
    A(f"buffer_atomic_swap v{vT0}, v{vT0}, s[16:19], s69 offen sc1")
    A("s_mov_b64 exec, -1")
    A.label("L_at_nofr")
    tstamp_init(A, 26, 27, 20, 0)
    tstamp(A)
    fstamp(A, 3)
    A("s_mov_b32 s3, s34")
    flat(dma(1))
    if "wtouch" in VAR:
        A(f"v_lshlrev_b32 v{vT0}, 11, v7")
        A(f"v_lshl_add_u32 v{vT0}, v6, 4, v{vT0}")
        A("s_add_u32 s48, s37, s22")
        A("s_and_b32 s48, s48, 15")
        A("s_lshl_b32 s48, s48, 17")
        A("s_add_u32 s48, s48, s39")
        A("s_lshl_b32 s49, s23, 15")
        A("s_add_u32 s48, s48, s49")
        A("s_lshl_b32 s49, s21, 14")
        A("s_add_u32 s48, s48, s49")
        A("s_add_u32 m0, s36, 0x20000")
        A("s_add_u32 s49, s48, 0x2000")
        A(f"buffer_load_dwordx4 v{vT0}, s[12:15], s48 offen lds")
        A(f"buffer_load_dwordx4 v{vT0}, s[12:15], s49 offen lds")
    A("s_cmp_lg_u32 s20, s23")
    A("s_cbranch_scc1 L_at_pro")
    flat(dma(2)); flat(dma(3))
    A.label("L_at_pro")
    fstamp(A, 4)
    stamp(A, 1)
    def rd_P(n):
        off = ((n % 5) % 2) * 0x8000
        R = []
        for ks in range(8):
            b = O0 + 8*ks
            R.append(f"ds_read_b128 {vr(b,4)}, v{vPr+(ks%4)} offset:{off+256*(ks//4)}")
            R.append(f"ds_read_b64_tr_b16 {vr(b+4,2)}, v{vPw} offset:{off+2048*ks}")
            R.append(f"ds_read_b64_tr_b16 {vr(b+6,2)}, v{vPw} offset:{off+2048*ks+256}")
        return R
    def mf_P(n):
        A("s_cmp_eq_u32 s31, 1")
        A(f"s_cbranch_scc1 L_at_pv{n}")
        for ks in range(8):
            A(f"v_mfma_f32_16x16x32_bf16 {vr(PACC,4)}, {vr(O0+8*ks+4,4)}, {vr(O0+8*ks,4)}, {vr(PACC,4)}")
        A("s_cmp_lg_u32 s70, 0")
        A(f"s_cbranch_scc1 L_at_pj{n}")
        for ks in range(8):
            A(f"v_mfma_f32_16x16x32_bf16 {vr(GACC,4)}, {ar(GF+32*PIDX[n]+4*ks,4)}, {vr(O0+8*ks,4)}, {vr(GACC,4)}")
        A(f"s_branch L_at_pj{n}")
        A.label(f"L_at_pv{n}")
        for ks in range(8):
            A(f"v_mfma_f32_16x16x32_bf16 {vr(PACC,4)}, {vr(O0+8*ks,4)}, {vr(O0+8*ks+4,4)}, {vr(PACC,4)}")
        A.label(f"L_at_pj{n}")
    def rd_G(n):
        off = ((n % 5) % 2) * 0x8000
        b = FR + 64*(n % 2)
        R = []
        for s in range(4):
            p = b + 16*s
            R.append(f"ds_read_b128 {ar(p,4)}, v{vXr+s} offset:{off}")
            wr, wo = vWr, off
            R.append(f"ds_read_b64_tr_b16 {ar(p+8,2)}, v{wr} offset:{wo+4096*s}")
            R.append(f"ds_read_b64_tr_b16 {ar(p+10,2)}, v{wr} offset:{wo+4096*s+1024}")
            R.append(f"ds_read_b128 {ar(p+4,4)}, v{vXr+s} offset:{off+4096}")
            R.append(f"ds_read_b64_tr_b16 {ar(p+12,2)}, v{wr+1} offset:{wo+4096*s}")
            R.append(f"ds_read_b64_tr_b16 {ar(p+14,2)}, v{wr+1} offset:{wo+4096*s+1024}")
        return R
    def mf_G(n, by_u=False):
        b = FR + 64*(n % 2)
        M = []
        order = [(s, a, t) for s in range(4) for a in range(2) for t in range(2)]
        if by_u: order = [(s, a, t) for a in range(2) for t in range(2) for s in range(4)]
        for (s, a, t) in order:
            p = b + 16*s; u = 2*a + t
            M.append(f"v_mfma_f32_32x32x16_bf16 {vr(ACC+16*u,16)}, {ar(p+8+4*a,4)}, {ar(p+4*t,4)}, {vr(ACC+16*u,16)}")
        return M
    def toggle(regs, d):
        return [f"v_add_u32 v{r}, {(d*0x10000) & 0xffffffff:#x}, v{r}" for r in regs]
    Pregs = [vPr+s for s in range(4)] + [vPw]
    Gregs = [vXr+s for s in range(4)] + [vWr, vWr+1]
    hi = {"P": 0, "G": 0}
    for n in range(20):
        A.comment(f"---- iteration {n} ({ORDER[n]})")
        cnt = 10 if n in (7, 8) else (9 if n == 17 else 8)
        if "wtouch" in VAR and n in (0, 1): cnt = 10
        A("s_cmp_eq_u32 s20, s23")
        A(f"s_waitcnt vmcnt({16 if n == 9 else 24}) lgkmcnt(0)")
        A(f"s_cbranch_scc1 L_at_w{n}")
        A(f"s_waitcnt vmcnt({cnt})")
        A.label(f"L_at_w{n}")
        A("s_barrier")
        tstamp(A)
        if n == (18 if os.environ.get("FINE3") else 6): stamp(A, 2)
        if n == 0: fstamp(A, 5)
        if n == 1: fstamp(A, 6)
        D = dma(n + 2)
        if n == 16:
            A("s_cmp_eq_u32 s20, s23")
            A("s_cselect_b32 s10, 0, s10")
            A("s_cselect_b32 s14, 0, s14")
            A("s_cselect_b32 s71, 0x30000, s71")
        win = lambda k: (k % 5) // 2
        assert hi[ORDER[n]] == win(n)
        R = rd_P(n) if ORDER[n] == "P" else rd_G(n)
        V = []
        T = []
        if n + 1 < 20 and hi[ORDER[n+1]] != win(n + 1):
            T = toggle(Pregs if ORDER[n+1] == "P" else Gregs, win(n + 1) - hi[ORDER[n+1]])
            hi[ORDER[n+1]] = win(n + 1)
        if n == 18:
            A("s_waitcnt vmcnt(8)")
            A(f"v_cmp_gt_u32 vcc, 4, v{vPoll}")
            A("s_nop 4")
            A("s_cmp_eq_u64 vcc, 0")
            A("s_cbranch_scc1 L_at_flags_ok")
            A("s_mov_b32 s50, 0")
            A.label("L_at_spin")
            A("s_add_u32 s50, s50, 1")
            A("s_cmp_gt_u32 s50, 0x40000")
            A("s_cbranch_scc1 L_at_flags_ok")
            A("s_sleep 8")
            A(f"buffer_load_dword v{vPoll}, v{vT2}, s[60:63], 0 offen sc1")
            A("s_waitcnt vmcnt(0)")
            A(f"v_cmp_gt_u32 vcc, 4, v{vPoll}")
            A("s_nop 4")
            A("s_cmp_eq_u64 vcc, 0")
            A("s_cbranch_scc0 L_at_spin")
            A.label("L_at_flags_ok")
            if os.environ.get("FINE3"): stamp(A, 3)
        if n == 0:
            A("s_cmp_lg_u32 s70, 0")
            A("s_cbranch_scc1 L_at_nogf")
            A(f"v_and_b32 v{vT0}, 0x30, v{vL}")
            A("s_mov_b32 s50, s3")
            A("s_mov_b32 exec_lo, 0x00010001")
            A("s_mov_b32 exec_hi, 0x00010001")
            for q in range(4):
                A("s_lshl_b32 s51, s50, 9")
                for ks in range(8):
                    A(f"buffer_load_dwordx4 {ar(GF+32*q+4*ks,4)}, v{vT0}, s[56:59], s51 offen offset:{64*ks}")
                A("s_add_u32 s50, s50, 1")
                A("s_and_b32 s50, s50, 3")
            A("s_mov_b64 exec, -1")
            A.label("L_at_nogf")
        def mixrd(R, D, k):
            while R or D:
                if D: flat([D.pop(0)])
                for _ in range(k):
                    if R: A(R.pop(0))
        if n == 0 or 2 <= n <= 5:
            if n in (2, 3):
                if n >= 3: mf_P(n - 1)
                A("s_cmp_eq_u32 s20, s23")
                A(f"s_cbranch_scc1 L_at_ds{n}")
                mixrd(list(R), D, 3)
                A(f"s_branch L_at_dj{n}")
                A.label(f"L_at_ds{n}")
                mixrd(R, dma_G(), 3)
                A.label(f"L_at_dj{n}")
            else:
                flat(D[:2]); del D[:2]
                if n >= 3: mf_P(n - 1)
                mixrd(R, D, 4)
            for x in T: A(x)
            continue
        post = []
        if n == 6:
            mf_P(5)
            V += ["s_nop 0", "s_nop 0"]
            V.append(["s_mov_b32 s50, 1.0", "s_cmp_eq_u32 s31, 1", f"s_cselect_b32 s50, s50, {KSCALE:#x}"])
            V.append([f"v_mul_f32 v{PACC+e}, s50, v{PACC+e}" for e in range(4)])
            V.append([f"v_cvt_pk_bf16_f32 v{Q0+8}, v{Q0}, v{Q0+1}", f"v_cvt_pk_bf16_f32 v{Q0+9}, v{Q0+2}, v{Q0+3}"])
            V.append([f"v_mul_f32 v{GACC}, {LOG2E ^ 0x80000000:#x}, v{GACC}", f"v_exp_f32 v{GACC}, v{GACC}"])
            V.append([f"v_add_f32 v{GACC}, 1.0, v{GACC}", f"v_rcp_f32 v{GACC}, v{GACC}"])
            post.append(f"buffer_store_dwordx2 {vr(Q0+8,2)}, v{vRed+8}, s[44:47], 0 offen sc1")
            post.append(f"buffer_store_dword v{GACC}, v{vRed+9}, s[16:19], 0 offen sc1")
        if 10 <= n <= 11 or n == 14:
            V += take_(side, 16)
        if n == 9:
            post.append("s_cmp_lg_u32 s20, 0")
            post.append("s_cbranch_scc1 L_at_nosig")
            post.append("s_and_b32 s50, s2, 63")
            post.append("s_lshl_b32 s50, s50, 2")
            post.append(f"v_mov_b32 v{vT0}, 1")
            post.append(f"v_mov_b32 v{vT1}, 0")
            post.append("s_mov_b64 exec, 1")
            post.append(f"buffer_atomic_add v{vT0}, v{vT1}, s[60:63], s50 offen sc1")
            post.append("s_mov_b64 exec, -1")
            post.append("L_at_nosig:")
        if n == 16:
            assert not side
            V.append(f"v_lshlrev_b32 v{vT2}, 2, v{vL}")
            post.append(f"buffer_load_dword v{vPoll}, v{vT2}, s[60:63], 0 offen sc1")
        if n == 18:
            V += [f"v_lshrrev_b32 v{vT0}, 3, v{vL}", f"v_lshl_add_u32 v{vT0}, v{vW_}, 5, v{vT0}", f"v_lshlrev_b32 v{vT0}, 11, v{vT0}",
                  f"v_bfe_u32 v{vT1}, v{vL}, 4, 1", f"v_lshlrev_b32 v{vT1}, 2, v{vT1}", f"v_and_b32 v5, 7, v{vL}",
                  f"v_xor_b32 v5, v5, v{vT1}", f"v_lshl_add_u32 v{vWd}, v5, 4, v{vT0}",
                  ["s_lshl_b32 s31, s28, 3", "s_add_u32 s31, s31, s30", "s_lshl_b32 s31, s31, 7"],
                  f"v_add_u32 v{vWd}, s31, v{vWd}"]
            V += [f"v_add_u32 v{vWd+t}, {t*(16384-1024)}, v{vWd}" for t in range(1, 4)]
        if n == 19:
            V += [f"v_mov_b32 v{vXd+t}, v{vLin}" for t in range(4)]
            V += ["s_mov_b32 s14, 0x200000"]
            V += [["s_lshl_b32 s40, s29, 2", "s_lshl_b32 s41, s22, 1", "s_add_u32 s40, s40, s41"],
                  ["s_lshl_b32 s40, s40, 17", "s_lshl_b32 s41, s28, 5", "s_lshl_b32 s50, s30, 2"],
                  ["s_add_u32 s41, s41, s50", "s_lshl_b32 s50, s21, 1", "s_add_u32 s41, s41, s50"],
                  ["s_lshl_b32 s41, s41, 11", "s_add_u32 s40, s40, s41", f"s_add_u32 s40, s40, {WS_OF}"],
                  ["s_add_u32 s41, s40, 0x20000", "s_mov_b32 s42, s40"],
                  ["s_mov_b32 s56, s64", "s_mov_b32 s57, s65", f"s_mov_b32 s58, {2048*1024*2}"],
                  ["s_lshl_b32 s43, s29, 18", "s_lshl_b32 s50, s20, 16", "s_add_u32 s43, s43, s50"],
                  ["s_add_u32 s43, s43, s31"]]
        if n in (12, 13):
            V += [f"v_mov_b64 {vr(O0+32*(n-12)+i,2)}, 0" for i in range(0, 32, 2)]
        M = mf_G(n - 1 if n != 6 else 1)
        weave(A, M, [(R, lambda k: 2), (D, lambda k: 1 if (k % 2 == 0 or k == 15) else 0), (V, lambda k: 1), (T, lambda k: 2 if k >= 12 else 0)])
        for x in post: A(x)
        if n == 1 and PARK:
            A.comment("---- iteration 1b")
            A("s_waitcnt lgkmcnt(0)")
            weave(A, mf_G(1), [(dma(3), lambda k: 1 if k % 2 == 1 else 0)])
    A("s_waitcnt vmcnt(8) lgkmcnt(0)")
    A("s_barrier")
    if not os.environ.get("FINE3"): stamp(A, 3)
    tstamp(A)
    def cvtQ(u):
        return [f"v_cvt_pk_bf16_f32 v{Q0+8*u+j}, v{ACC+16*u+2*j}, v{ACC+16*u+2*j+1}" for j in range(8)]
    def QK(u, c):
        return [f"v_mfma_f32_32x32x16_bf16 {vr(S0+16*u,16)}, {ar(KB0,4)}, {vr(Q0+8*u,4)}, {c}",
                f"v_mfma_f32_32x32x16_bf16 {vr(S0+16*u,16)}, {ar(KB0+4,4)}, {vr(Q0+8*u+4,4)}, {vr(S0+16*u,16)}"]
    def max16(b):
        L = [f"v_max3_f32 v{b}, v{b}, v{b+1}, v{b+2}"]
        for j in range(3, 15, 2):
            L.append(f"v_max3_f32 v{b}, v{b}, v{b+j}, v{b+j+1}")
        L.append(f"v_max_f32 v{b}, v{b}, v{b+15}")
        return L
    def fill_C(u, b):
        L = [f"v_mov_b32 v{b+1}, v{b}", "s_nop 1", f"v_permlane32_swap_b32 v{b}, v{b+1}", "s_nop 1",
             f"v_max_f32 v{b}, v{b}, v{b+1}", f"v_sub_f32 v{C0+16*u}, 0, v{b}", f"v_sub_f32 v{C0+16*u+1}, 0, v{b}"]
        for j in range(2, 16, 2):
            L.append(f"v_mov_b64 {vr(C0+16*u+j,2)}, {vr(C0+16*u,2)}")
        return L
    G = mf_G(19, by_u=True)
    ldc = lambda t: f"buffer_load_dwordx4 v{vXd+t}, s[44:47], s32 offen offset:{1024*t} sc1 lds"
    ldw = lambda t: f"buffer_load_dwordx4 v{vWd+t}, s[12:15], s34 offen offset:{1024*t} lds"
    misc = [f"ds_read_b128 {ar(KB0,4)}, v{vKV}", f"ds_read_b128 {ar(KB0+4,4)}, v{vKV} offset:1024",
            f"ds_read_b128 {ar(VB0,4)}, v{vKV} offset:2048", f"ds_read_b128 {ar(VB0+4,4)}, v{vKV} offset:3072",
            f"v_lshlrev_b32 v{vT0}, 2, v{vL31}", "s_lshl_b32 s50, s29, 9", "s_lshl_b32 s51, s22, 8", "s_add_u32 s50, s50, s51",
            f"s_add_u32 s50, s50, {WS_G}", f"buffer_load_dword v{vG}, v{vT0}, s[16:19], s50 offen sc1",
            f"buffer_load_dword v{vG+1}, v{vT0}, s[16:19], s50 offen offset:128 sc1",
            "s_add_u32 m0, s36, 0x10000", "s_mov_b32 s32, 0x10000", ldc(0), ldc(1), ldc(2), ldc(3),
            "s_mov_b32 s37, 0x18000", "s_mov_b32 s39, 0", "s_mov_b32 s71, 0", "s_mov_b32 s33, 0x4000", "s_mov_b32 s38, -1"]
    def emit(L):
        for x in L: A(x)
    def take(L, n):
        r = L[:n]; del L[:n]; return r
    for k in range(0, 7):
        A(G[k]); emit(take(misc, 4 if k < 5 else 1))
    emit(misc)
    c0 = cvtQ(0)
    A(G[7]); emit(take(c0, 5))
    A(G[8]); emit(c0); A("s_waitcnt lgkmcnt(0)")
    A(G[9])
    q = QK(0, "0"); A(q[0]); A(q[1])
    c1 = cvtQ(1)
    A(G[10]); emit(take(c1, 5))
    A(G[11]); emit(c1)
    A(G[12])
    q = QK(1, "0"); A(q[0]); A(q[1])
    m0_ = max16(S0)
    A(G[13]); emit(take(m0_, 5))
    A(G[14]); emit(m0_)
    f0 = fill_C(0, S0)
    A(G[15]); emit(take(f0, 4))
    emit(cvtQ(2))
    emit(take(f0, 3))
    q = QK(2, "0"); A(q[0]); emit(take(f0, 4)); A(q[1]); emit(f0)
    emit(cvtQ(3))
    m1_ = max16(S0+16)
    emit(take(m1_, 2))
    q = QK(3, "0"); A(q[0]); emit(take(m1_, 4)); A(q[1]); emit(m1_)
    f1 = fill_C(1, S0+16)
    emit(take(f1, 3))
    q = QK(0, vr(C0, 16) if 'czero' not in VAR else "0"); A(q[0]); emit(take(f1, 5)); A(q[1]); emit(f1)
    emit(max16(S0+32)); emit(fill_C(2, S0+32))
    emit(max16(S0+48)); emit(fill_C(3, S0+48))
    for i in range(0, 16, 2):
        A(f"v_mov_b64 {vr(S0+48+i,2)}, 0")
    A("s_waitcnt vmcnt(6)")
    A("s_barrier")
    def PV(u0, p0):
        return [
            f"v_smfmac_f32_32x32x32_bf16 {vr(O0+16*u0,16)}, {ar(VB0+8*p0,4)}, {vr(S0+16*u0,8)}, v{vIDX}",
            f"v_smfmac_f32_32x32x32_bf16 {vr(O0+16*u0,16)}, {ar(VB0+8*p0+4,4)}, {vr(S0+16*u0+8,8)}, v{vIDX}",
            f"v_smfmac_f32_16x16x64_bf16 {ar(L0+4*u0,4)}, {ar(SEL,4)}, {vr(S0+16*u0,8)}, v{vIDX}",
            f"v_smfmac_f32_16x16x64_bf16 {ar(L0+4*u0,4)}, {ar(SEL,4)}, {vr(S0+16*u0+8,8)}, v{vIDX}",
        ]
    stamp(A, 4)
    body = []
    for i in range(8):
        for u in range(4):
            u1 = (u + 1) % 4; i1 = i + (1 if u == 3 else 0)
            u0 = (u + 3) % 4; i0 = i - (1 if u == 0 else 0)
            P = PV(u0, i0 % 2)
            M = [
                f"v_mfma_f32_32x32x16_bf16 {vr(S0+16*u1,16)}, {ar(KB0+8*(i1%2),4)}, {vr(Q0+8*u1,4)}, {vr(C0+16*u1,16) if 'czero' not in VAR else 0}",
                P[0],
                f"v_mfma_f32_32x32x16_bf16 {vr(S0+16*u1,16)}, {ar(KB0+8*(i1%2)+4,4)}, {vr(Q0+8*u1+4,4)}, {vr(S0+16*u1,16)}",
                P[1], P[2], P[3],
            ]
            X = [[] for _ in range(6)]
            tt = (i + 1) % 8
            pn = (i + 1) % 2
            if u == 0:
                X[3].append("s_waitcnt lgkmcnt(0)")
                X[4].append(f"ds_read_b128 {ar(KB0+8*pn,4)}, v{vKV} offset:{4096*tt}")
                X[5].append(f"ds_read_b128 {ar(KB0+8*pn+4,4)}, v{vKV} offset:{4096*tt+1024}")
            if u == 2:
                X[3].append("s_waitcnt lgkmcnt(0)")
                X[4].append(f"ds_read_b128 {ar(VB0+8*pn,4)}, v{vKV} offset:{4096*tt+2048}")
                X[5].append(f"ds_read_b128 {ar(VB0+8*pn+4,4)}, v{vKV} offset:{4096*tt+3072}")
            if i in (2, 4) and u == 1 and "nopf" not in VAR:
                X[2].append(f"s_mov_b32 m0, {LDS_DUMMY}")
                X[4].append(f"buffer_load_dwordx4 v{vLane16}, s[52:55], s68 offen lds")
                X[5].append("s_add_u32 s68, s68, 0x800")
            if i == 3 and u == 1 and "touch" in VAR:
                X[4].append(f"buffer_load_dwordx4 v{vLane16}, s[16:19], s42 offen lds")
                X[5].append("s_add_u32 s42, s42, 0x400")
            if i == 3 and u == 3 and "touch" in VAR:
                X[1].append("s_cmp_eq_u32 s39, 3")
                X[1].append("s_cselect_b32 s42, s41, s42")
            if i == 6 and u == 3:
                X[1].append("s_cmp_eq_u32 s39, 5")
                X[1].append("s_cselect_b64 vcc, -1, 0")
            if i == 7 and u == 0:
                X[0].append("s_add_u32 s71, s71, 0x8000")
                X[1].append("s_and_b32 s71, s71, 0x1ffff")
                X[1].append("s_add_u32 s39, s39, 1")
                X[2].append("s_bitcmp1_b32 0x54, s39")
                X[3].append("@TOP")
            if i == 7 and u == 1:
                X[1].append("s_add_u32 m0, s37, s36")
                X[1].append("s_add_u32 s37, s37, 0x8000")
                X[3].append("s_and_b32 s37, s37, 0x1ffff")
                X[3].append("s_cmp_ge_u32 s39, 7")
                X[4].append(ldc(0)); X[5].append(ldc(1))
            if i == 7 and u == 2:
                X[0].append("s_cselect_b32 s37, 0x20000, s37")
            if i == 7 and u == 3:
                X[3].append("s_cmp_eq_u32 s39, 8")
                X[4].append(ldc(2)); X[5].append(ldc(3)); X[5].append("@EXIT")
            if i == 0 and u == 1:
                X[4].append(ldc(0)); X[5].append(ldc(1))
            if i == 0 and u == 3:
                X[4].append(ldc(2)); X[5].append(ldc(3))
            if i == 1 and u == 1:
                X[1].append("s_add_u32 s32, s32, s33")
                X[1].append("s_and_b32 s32, s32, s38")
            E = [f"v_exp_f32 v{S0+16*u+j}, v{S0+16*u+j}" for j in range(16)]
            ne = [3, 3, 3, 3, 2, 2]
            for k in range(6):
                body.append(M[k])
                body += X[k]
                for _ in range(ne[k]): body.append(E.pop(0))
    top = body.index("@TOP")
    first, second = body[:top], body[top+1:]
    A("s_branch L_at_pre_entry")
    A.label("L_at_switch")
    for t in range(4):
        A(f"v_mov_b32 v{vXd+t}, v{vWd+t}")
    A("s_mov_b32 s44, s72")
    A("s_mov_b32 s45, s73")
    A("s_mov_b32 s46, 0x200000")
    A("s_lshl_b32 s32, s30, 18")
    A("s_mov_b32 s33, 0x40000")
    A("s_mov_b32 s38, 0x1fffff")
    A("s_branch L_at_top_bar")
    A.raw(".p2align 6")
    A.label("L_at_top_bar")
    A(f"s_waitcnt vmcnt(2)")
    A("s_barrier")
    A.label("L_at_top")
    tstamp(A)
    A(f"v_add_u32 v{vKV}, s71, v{vLane16}")
    ex = second.index("@EXIT")
    tail = second[ex+1:]
    for x in second[:ex]: A(x)
    A("s_cbranch_scc1 L_at_exit")
    for x in tail: A(x)
    A.label("L_at_pre_entry")
    A(first[0]); A("s_add_u32 m0, m0, 0x4000")
    for x in first[1:5]: A(x)
    A("s_add_u32 s32, s32, s33")
    A("s_and_b32 s32, s32, s38")
    rest = first[5:]
    for x in rest: A(x)
    A("s_cbranch_scc0 L_at_top")
    A("s_cbranch_vccz L_at_top_bar")
    A("s_branch L_at_switch")
    A.label("L_at_exit")
    for x in tail: A(x)
    stamp(A, 5)
    A(f"s_waitcnt vmcnt(4) lgkmcnt(0)")
    A("s_barrier")
    gstamp(A, 0)
    tstamp(A, "2")
    P3 = PV(3, 1)
    def scale_store(u):
        a, t = u >> 1, u & 1
        L = []
        for j in range(0, 16, 2):
            L.append(f"v_pk_mul_f32 {vr(O0+16*u+j,2)}, {vr(O0+16*u+j,2)}, {vr(S0+2*u,2)} op_sel_hi:[1,0]")
        for j in range(8):
            L.append(f"v_cvt_pk_bf16_f32 v{C0+8*u+j}, v{O0+16*u+2*j}, v{O0+16*u+2*j+1}")
        for f in range(2):
            L.append(f"buffer_store_dwordx4 {vr(C0+8*u+4*f,4)}, v{vLane16}, s[16:19], s{40+t} offen offset:{2048*a+1024*f} sc1 {'nt' if 'ont' in VAR else ''}")
        return L
    addr = ["s_cmp_eq_u32 s28, 0", "s_cselect_b32 s50, 1.0, -1.0", "s_cselect_b32 s51, 0, 1.0"]
    addr += ["s_lshl_b32 s55, s30, 18", "s_add_u32 s34, s55, 0x140000", "s_and_b32 s34, s34, 0x1fffff",
             "s_mov_b32 s12, s72", "s_mov_b32 s13, s73", "s_add_u32 m0, s36, 0x24000"]
    A(P3[2]); emit(addr); A(P3[3])
    A(ldw(0)); A(ldw(1)); A(P3[0]); A(ldw(2)); A(ldw(3)); A(P3[1])
    emit(["s_add_u32 m0, s36, 0x10000", "s_add_u32 s34, s34, 0x40000", "s_and_b32 s34, s34, 0x1fffff"])
    for t in range(4): A(ldw(t))
    emit(["s_add_u32 s34, s34, 0x40000", "s_and_b32 s34, s34, 0x1fffff"])
    A(f"v_mov_b32 v{vT0}, s51")
    A(f"v_fma_f32 v{vG}, v{vG}, s50, v{vT0}")
    A(f"v_fma_f32 v{vG+1}, v{vG+1}, s50, v{vT0}")
    A("s_mov_b64 s[66:67], -1")
    A.label("L_at_store")
    for u in range(4):
        A(f"v_accvgpr_read_b32 v{S0+2*u}, a{L0+4*u}")
    if True:
        for u in range(4):
            A(f"v_mov_b32 v{S0+2*u+1}, v{S0+2*u}")
        A("s_nop 1")
        for u in range(4):
            A(f"v_permlane32_swap_b32 v{S0+2*u}, v{S0+2*u+1}")
        A("s_nop 1")
    A(f"v_add_f32 v{vT1}, v{S0}, v{S0+2}")
    A(f"v_add_f32 v{vT0}, v{S0+4}, v{S0+6}")
    A(f"v_add_f32 v{vT0}, v{vT0}, v{vT1}")
    A(f"v_cmp_ngt_f32 vcc, {0x4e800000 if 'forceslow' not in VAR else 0x3f000000:#x}, v{vT0}")
    for u in range(4):
        A(f"v_rcp_f32 v{S0+2*u}, v{S0+2*u}")
    A("s_and_b64 vcc, vcc, s[66:67]")
    if "lx" not in VAR: A("s_cbranch_scc1 L_at_slow")
    for u in range(4):
        A(f"v_mul_f32 v{S0+2*u}, v{S0+2*u}, v{vG+(u&1)}")
    for u in range(4):
        emit(scale_store(u))
    gen_out(A)
    A.label("L_at_slow")
    A("s_waitcnt vmcnt(0) lgkmcnt(0)")
    A("s_lshl_b32 s39, s28, 18")
    A("s_add_u32 s44, s26, s39")
    A("s_addc_u32 s45, s27, 0")
    A("s_mov_b32 s46, 0x40000")
    for u in range(4):
        A(f"v_mov_b32 v{O0+u}, 0xff7fffff")
    A("s_mov_b32 s39, 0")
    A.label("L_at_slow1")
    A(f"buffer_load_dwordx4 {ar(KB0,4)}, v{vLane16}, s[44:47], s39 offen sc1")
    A(f"buffer_load_dwordx4 {ar(KB0+4,4)}, v{vLane16}, s[44:47], s39 offen offset:1024 sc1")
    A("s_waitcnt vmcnt(0)")
    for u in range(4):
        for x in QK(u, "0"): A(x)
    A("s_nop 15")
    for u in range(4):
        for j in range(0, 16, 2):
            A(f"v_max3_f32 v{O0+u}, v{O0+u}, v{S0+16*u+j}, v{S0+16*u+j+1}")
    A("s_add_u32 s39, s39, 0x1000")
    A("s_cmp_lt_u32 s39, 0x40000")
    A("s_cbranch_scc1 L_at_slow1")
    for u in range(4):
        A(f"v_mov_b32 v{S0+16*u}, v{O0+u}")
        emit(fill_C(u, S0+16*u))
    for i in range(16):
        A(f"v_accvgpr_write_b32 a{L0+i}, 0")
    for i in range(64):
        A(f"v_mov_b32 v{O0+i}, 0")
    A("s_mov_b32 s39, 0")
    A.label("L_at_slow2")
    A(f"buffer_load_dwordx4 {ar(KB0,4)}, v{vLane16}, s[44:47], s39 offen sc1")
    A(f"buffer_load_dwordx4 {ar(KB0+4,4)}, v{vLane16}, s[44:47], s39 offen offset:1024 sc1")
    A(f"buffer_load_dwordx4 {ar(VB0,4)}, v{vLane16}, s[44:47], s39 offen offset:2048 sc1")
    A(f"buffer_load_dwordx4 {ar(VB0+4,4)}, v{vLane16}, s[44:47], s39 offen offset:3072 sc1")
    A("s_waitcnt vmcnt(0)")
    for u in range(4):
        for x in QK(u, vr(C0+16*u, 16)): A(x)
    A("s_nop 15")
    for j in range(64):
        A(f"v_exp_f32 v{S0+j}, v{S0+j}")
    A("s_nop 1")
    for u in range(4):
        for x in PV(u, 0): A(x)
    A("s_nop 15")
    A("s_add_u32 s39, s39, 0x1000")
    A("s_cmp_lt_u32 s39, 0x40000")
    A("s_cbranch_scc1 L_at_slow2")
    A("s_nop 15")
    A("s_mov_b64 s[66:67], 0")
    A("s_branch L_at_store")
    A.label("L_at_end")
    A("s_endpgm")
    return kernel_desc(name, 512, 256, 102)

def gen_out(A):
    LD = 8
    vL, vH, vL31, vW_ = 1, 2, 3, 4
    vOd, vWd = 28, 12
    vWr, vWr0 = 8, 10
    vT0, vT1, vPl = 16, 17, 18
    ACC = 32
    WF = 128
    OFr = 192
    def wreg(st, s, c, n=4, o=0):
        i = 8*s + 4*c + o
        if st < 2: return vr(WF + 32*st + i, n)
        if st < 10: return ar(32*(st - 2) + i, n)
        return vr(64 + 32*(st - 10) + i, n)
    def stash(st):
        R = []
        for s in range(4):
            for c in range(2):
                wo = (st % 8)*0x2000 + 2048*s
                R += [f"ds_read_b64_tr_b16 {wreg(st,s,c,2,0)}, v{vWr+c} offset:{wo}",
                      f"ds_read_b64_tr_b16 {wreg(st,s,c,2,2)}, v{vWr+c} offset:{wo+1024}"]
        return R
    gstamp(A, 2)
    A("s_lshl_b32 s45, s30, 1")
    A("s_lshl_b32 s33, s28, 3")
    A("s_add_u32 s30, s30, s33")
    A("s_add_u32 s35, s36, 0x14000")
    def dma_W():
        ldw = lambda t: f"buffer_load_dwordx4 v{vWd+t}, s[12:15], s34 offen offset:{1024*t} lds"
        return [["s_mov_b32 m0, s35", "s_add_u32 s35, s35, 0x4000", ldw(0)], [ldw(1)], [ldw(2)],
                [ldw(3), "s_add_u32 s34, s34, 0x40000", "s_and_b32 s34, s34, 0x1fffff"]]
    def fl(I):
        for x in I:
            for y in x: A(y)
    def mix(R, D, k):
        while R or D:
            for _ in range(k):
                if R: A(R.pop(0))
            if D:
                for y in D.pop(0): A(y)
    A(f"v_bfe_u32 v{vT0}, v{vL}, 2, 2")
    A(f"v_lshl_add_u32 v{vT1}, v{vH}, 2, v{vT0}")
    A(f"v_lshlrev_b32 v{vT1}, 7, v{vT1}")
    A(f"v_bfe_u32 v{vT0}, v{vL}, 3, 1")
    A(f"v_lshl_add_u32 v{vT1}, v{vT0}, 6, v{vT1}")
    A(f"v_bfe_u32 v{vT0}, v{vL}, 4, 1")
    A(f"v_lshl_add_u32 v{vT1}, v{vT0}, 5, v{vT1}")
    A(f"v_and_b32 v{vT0}, 1, v{vL}")
    A(f"v_lshl_add_u32 v{vT1}, v{vT0}, 4, v{vT1}")
    A(f"v_bfe_u32 v{vT0}, v{vL}, 1, 1")
    A(f"v_lshl_add_u32 v{vWr0}, v{vT0}, 3, v{vT1}")
    A(f"v_xor_b32 v{vWr0+1}, 64, v{vWr0}")
    A(f"v_mov_b32 v{vWr}, v{vWr0}")
    A(f"v_mov_b32 v{vWr+1}, v{vWr0+1}")
    R = []
    for st in range(8): R += stash(st)
    D = dma_W() + [["s_mov_b32 s12, s74", "s_mov_b32 s13, s75"]] + dma_W()
    mix(R, D, 14)
    A("s_lshl_b32 s46, s29, 2")
    A("s_add_u32 s46, s46, s20")
    A("s_lshl_b32 s46, s46, 17")
    A(f"s_add_u32 s46, s46, {WS_OF}")
    A("s_lshl_b32 s47, s28, 16")
    A("s_add_u32 s48, s46, s47")
    A("s_add_u32 s8, s26, s48")
    A("s_addc_u32 s9, s27, 0")
    A("s_mov_b32 s10, 0x10000")
    A("s_mov_b32 s11, 0x00020000")
    A("s_xor_b32 s47, s47, 0x10000")
    A("s_add_u32 s48, s46, s47")
    A("s_add_u32 s40, s26, s48")
    A("s_addc_u32 s41, s27, 0")
    A("s_lshl_b32 s32, s45, 12")
    A(f"v_add_u32 v{vT0}, s30, v{vL}")
    A(f"v_and_b32 v{vT0}, 7, v{vT0}")
    A(f"v_xor_b32 v{vT1}, s33, v{vL}")
    A(f"v_and_b32 v{vT1}, 8, v{vT1}")
    A(f"v_or_b32 v{vT0}, v{vT0}, v{vT1}")
    A(f"v_lshlrev_b32 v{vT0}, 2, v{vT0}")
    A("s_lshl_b32 s49, s29, 7")
    A(f"s_add_u32 s49, s49, {WS_FL}")
    A("s_cmp_eq_u32 s20, 0")
    A("s_cselect_b32 s53, 0, -1")
    for i in range(0, 32, 2):
        A(f"v_mov_b64 {vr(ACC+i,2)}, 0")
    A(f"v_add_u32 v{vWr}, 0x20000, v{vWr0}")
    A(f"v_add_u32 v{vWr+1}, 0x20000, v{vWr0+1}")
    gstamp(A, 3)
    A("s_waitcnt vmcnt(0) lgkmcnt(0)")
    A("s_barrier")
    gstamp(A, 4)
    tstamp(A, "2")
    stamp(A, 6)
    A("s_cmp_lg_u32 s20, 0")
    A("s_cbranch_scc1 L_o_nosig")
    A(f"v_mov_b32 v{vT1}, 1")
    A(f"v_mov_b32 v{vPl}, 0")
    A("s_mov_b64 exec, 1")
    A(f"buffer_atomic_swap v{vT1}, v{vPl}, s[16:19], s69 offen sc1")
    A("s_mov_b64 exec, -1")
    A.label("L_o_nosig")
    def ld_O(j):
        I = [f"buffer_load_dwordx4 {vr(OFr+4*(j%16),4)}, v{vOd}, s[8:11], s32 offen offset:{1024*(j%4)} sc1"]
        if j % 4 == 3: I += ["s_add_u32 s32, s32, 0x1000", "s_and_b32 s32, s32, 0xffff"]
        return I
    for j in range(8):
        for y in ld_O(j): A(y)
    mix(stash(8) + stash(9) + stash(10) + stash(11), dma_W() + [["s_mov_b32 s35, s36"]] + dma_W() + dma_W(), 5)
    def mf(st, s, c, j):
        w = wreg(st, s, c) if st < 12 else vr(WF + 32*(st % 2) + 8*s + 4*c, 4)
        return f"v_mfma_f32_32x32x16_bf16 {vr(ACC+16*c,16)}, {w}, {vr(OFr+4*(j%16),4)}, {vr(ACC+16*c,16)}"
    gstamp(A, 5)
    A("s_waitcnt vmcnt(12)")
    D = dma_W() + dma_W()
    for j in range(8):
        A(mf(j // 4, j % 4, 0, j)); A(mf(j // 4, j % 4, 1, j))
        for y in D.pop(0): A(y)
    A("s_add_u32 s35, s36, 0x20000")
    A("s_waitcnt lgkmcnt(0)")
    A("s_barrier")
    A("s_cmp_lg_u32 s20, 0")
    A("s_cbranch_scc1 L_o_nopoll")
    A(f"buffer_load_dword v{vPl}, v{vT0}, s[16:19], s49 offen sc1")
    A.label("L_o_nopoll")
    fl(dma_W()); fl(dma_W())
    gstamp(A, 6)
    A("s_mov_b32 s54, 0xff")
    A("s_cmp_lg_u32 s20, 0")
    A("s_cbranch_scc1 L_o_ready0")
    A("s_waitcnt vmcnt(8)")
    A(f"v_cmp_eq_u32 vcc, 1, v{vPl}")
    A("s_nop 4")
    A("s_mov_b32 s53, vcc_lo")
    A("s_and_b32 s50, s53, s54")
    A("s_cmp_lg_u32 s50, s54")
    A("s_cbranch_scc1 L_o_poll0")
    A.label("L_o_ready0")
    A("s_barrier")
    gstamp(A, 7)
    stamp(A, 7)
    tstamp(A, "2")
    for j in range(8, 16):
        for y in ld_O(j): A(y)
    def rd_W(st):
        R = []
        for s in range(4):
            for c in range(2):
                b = WF + 32*(st % 2) + 8*s + 4*c
                wo = st*0x2000 + 2048*s
                R += [f"ds_read_b64_tr_b16 {vr(b,2)}, v{vWr+c} offset:{wo}",
                      f"ds_read_b64_tr_b16 {vr(b+2,2)}, v{vWr+c} offset:{wo+1024}"]
        return R
    def stage(st, stw, rd, extra=None):
        for s in range(4):
            j = 4*st + s
            A(f"s_waitcnt vmcnt(7) lgkmcnt(12)" if stw >= 12 else "s_waitcnt vmcnt(7)")
            for c in range(2):
                A(mf(stw, s, c, j))
                for _ in range(2):
                    if rd: A(rd.pop(0))
                if c == 0:
                    for y in ld_O(j + LD): A(y)
                elif extra:
                    for y in extra.pop(0): A(y)
    A(f"v_add_u32 v{vWr}, 0x10000, v{vWr0}")
    A(f"v_add_u32 v{vWr+1}, 0x10000, v{vWr0+1}")
    A("s_mov_b32 s37, 0x10000")
    A("s_mov_b32 s39, 3")
    if "fulline" in VAR:
        A(f"v_and_b32 v24, 7, v{vL31}")
        A(f"v_xor_b32 v24, v24, v{vH}")
        A(f"v_lshlrev_b32 v24, 4, v24")
        A(f"v_lshl_add_u32 v24, v{vL31}, 7, v24")
        A("s_add_u32 s50, s36, 0x10000")
        A(f"v_add_u32 v20, s50, v24")
        for k in range(1, 4):
            A(f"v_xor_b32 v{20+k}, {32*k}, v20")
        A(f"v_add_u32 v24, s50, v{vOd}")
        A(f"v_lshrrev_b32 v25, 3, v{vL}")
        A(f"v_and_b32 v26, 7, v{vL}")
        A(f"v_xor_b32 v26, v26, v25")
        A(f"v_lshlrev_b32 v26, 4, v26")
        A(f"v_lshl_add_u32 v25, v25, 11, v26")
    for st in range(2, 12):
        stage(st % 4, st, rd_W(0) if st == 11 else None)
    A("s_mov_b32 s54, 0xffff")
    A("s_and_b32 s50, s53, s54")
    A("s_cmp_lg_u32 s50, s54")
    A("s_cbranch_scc1 L_o_poll1")
    A.label("L_o_ready1")
    A("s_barrier")
    A.raw(".p2align 6")
    A.label("L_o_loop")
    tstamp(A, "2")
    stage(0, 12, rd_W(1), [["s_add_u32 s37, s37, 0x8000", "s_and_b32 s37, s37, 0x1ffff"], ["s_cmp_eq_u32 s39, 6", "s_cselect_b32 s37, 0x20000, s37"]])
    stage(1, 13, rd_W(2))
    A("s_mov_b32 s8, s40")
    A("s_mov_b32 s9, s41")
    A("s_cmp_eq_u32 s39, 7")
    A("s_cbranch_scc1 L_o_tail")
    stage(2, 14, rd_W(3), [["s_add_u32 s39, s39, 1"]])
    A(f"v_add_u32 v{vWr}, s37, v{vWr0}")
    A(f"v_add_u32 v{vWr+1}, s37, v{vWr0+1}")
    stage(3, 15, rd_W(0))
    A("s_branch L_o_loop")
    A.label("L_o_tail")
    if "fulline" in VAR: A("s_barrier")
    R3 = rd_W(3)
    for j in range(8, 16):
        st, sq = j // 4, j % 4
        A(f"s_waitcnt vmcnt({15 - j}) lgkmcnt({12 if j < 12 else 4*(15-j)})")
        for c in range(2):
            A(mf(12 + st, sq, c, j))
            for _ in range(2):
                if R3: A(R3.pop(0))
    A("s_mov_b32 s40, s43")
    A("s_nop 2")
    OST = os.environ.get('OST', 'nt')
    if "fulline" not in VAR:
        A(f"v_lshlrev_b32 v{vT0}, 11, v{vL31}")
        A(f"v_lshl_add_u32 v{vT0}, v{vH}, 4, v{vT0}")
        A("s_nop 7")
        for c in range(2):
            for j in range(8):
                A(f"v_cvt_pk_bf16_f32 v{64+8*c+j}, v{ACC+16*c+2*j}, v{ACC+16*c+2*j+1}")
            for f in range(2):
                A(f"buffer_store_dwordx4 {vr(64+8*c+4*f,4)}, v{vT0}, s[56:59], s40 offen offset:{64*c+32*f} {OST}")
    else:
        A("s_nop 7")
        for c in range(2):
            for j in range(8):
                A(f"v_cvt_pk_bf16_f32 v{64+8*c+j}, v{ACC+16*c+2*j}, v{ACC+16*c+2*j+1}")
            for f in range(2):
                A(f"ds_write_b128 v{20+2*c+f}, {vr(64+8*c+4*f,4)}")
        A("s_waitcnt lgkmcnt(0)")
        for i in range(4):
            A(f"ds_read_b128 {vr(80+4*i,4)}, v24 offset:{1024*i}")
        for i in range(4):
            A(f"s_waitcnt lgkmcnt({3-i})")
            A(f"buffer_store_dwordx4 {vr(80+4*i,4)}, v25, s[56:59], s40 offen {OST}")
            A("s_add_u32 s40, s40, 0x4000")
    if TS == "2":
        tstamp(A, "2")
        A("s_waitcnt vmcnt(0)")
        tstamp(A, "2")
    if STAMP:
        A("s_waitcnt vmcnt(0)")
        _stamp(A, 1)
        stamp_flush(A, 0, 8, 26, 27, 20)
    A("s_endpgm")
    for k in (1, 0):
        tgt = f"L_o_ready{k}"
        A.label(f"L_o_poll{k}")
        A("s_mov_b32 s48, 0")
        A.label(f"L_o_spin{k}")
        A(f"buffer_load_dword v{vPl}, v{vT0}, s[16:19], s49 offen sc1")
        A("s_waitcnt vmcnt(0)")
        A(f"v_cmp_eq_u32 vcc, 1, v{vPl}")
        A("s_add_u32 s48, s48, 1")
        A("s_cmp_gt_u32 s48, 0x40000")
        A(f"s_cbranch_scc1 {tgt}")
        A("s_nop 2")
        A("s_mov_b32 s53, vcc_lo")
        A("s_and_b32 s50, s53, s54")
        A("s_cmp_eq_u32 s50, s54")
        A(f"s_cbranch_scc1 {tgt}")
        A(f"s_sleep {int(os.environ.get('SLEEP', '2'))}")
        A(f"s_branch L_o_spin{k}")

def main(path):
    ref = open("cdna_kernels/" + NAME + ".s.ref").read().split("\n")
    hdr = [l for l in ref if l.startswith(";") and "@launch" not in l and "Override" not in l and "grid=ceil" not in l]
    B = Asm()
    d1 = gen_attn(B)
    A = Asm()
    for l in hdr: A.raw(l)
    A.raw(f"; @launch grid=(256,1,1) block=(256,1,1) lds={LDS_ATTN}")
    A.raw('.amdgcn_target "amdgcn-amd-amdhsa--gfx950"')
    A.raw(".text")
    A.lines += B.lines
    A.raw("L_code_end:")
    A.raw('.section .rodata,"a"')
    for d in (d1,):
        A.raw(".p2align 6")
        A.raw(d)
    open(path, "w").write(A.text())

if __name__ == "__main__":
    main(sys.argv[1] if len(sys.argv) > 1 else "cdna_kernels/" + NAME + ".s")
```

```python
import sys, math, struct, os
from asmlib import *

NAME = "gated_mix__grouped_kv_mqa__grouped_kv_mqa__prompt"
WS_KV = 0
WS_G = 0x80000
WS_FL = 0x90000
WS_OF = 0x100000
WS_USED = 0x900000
STAMP = os.environ.get("STAMP", "0") == "1"
VAR = os.environ.get("VAR", "")
XNT = "nt" if "xnt" in VAR else ""
WNT = "nt" if "wnt" in VAR else ""
WS_ST = 0xA00000

MINST = os.environ.get("MINST", "0") == "1"
FINE = os.environ.get("FINE", "0") == "1" or MINST
TS = os.environ.get("TS", "0")
def tstamp(A, ph="1"):
    if TS != ph: return
    A("s_waitcnt lgkmcnt(0)")
    A("s_memtime s[96:97]")
    A("s_memrealtime s[98:99]")
    A("s_waitcnt lgkmcnt(0)")
    A("v_mov_b32 v6, s96")
    A("v_mov_b32 v7, s98")
    A("v_mov_b32 v5, 0")
    A("buffer_store_dwordx2 v[6:7], v5, s[92:95], s100 offen")
    A("s_add_u32 s100, s100, 8")
def tstamp_init(A, wsl, wsh, wave_sgpr, kern):
    if TS == "0": return
    A(f"s_mov_b32 s92, s{wsl}")
    A(f"s_mov_b32 s93, s{wsh}")
    A(f"s_mov_b32 s94, {0xC00000}")
    A("s_mov_b32 s95, 0x00020000")
    A("s_lshl_b32 s100, s2, 2")
    A(f"s_add_u32 s100, s100, s{wave_sgpr}")
    A("s_lshl_b32 s100, s100, 9")
    A(f"s_add_u32 s100, s100, {0xA00000 + kern*0x80000}")
FINE2 = os.environ.get("FINE2", "0") == "1"
def gstamp(A, k):
    if FINE2: _stamp(A, k)
def fstamp(A, k):
    if FINE and not MINST: _stamp(A, k)
def stamp(A, k):
    if FINE and k not in (0,): return
    if FINE2: return
    _stamp(A, k)
def _stamp(A, k):
    if not STAMP: return
    A("s_waitcnt lgkmcnt(0)")
    A(f"s_memtime s[96:97]")
    A(f"s_memrealtime s[98:99]")
    A("s_waitcnt lgkmcnt(0)")
    A(f"s_mov_b32 s{76+k}, s96")
    A(f"s_mov_b32 s{84+k}, s98")
def stamp_flush(A, kern, n, wsl, wsh, wave_sgpr):
    if not STAMP: return
    A(f"s_mov_b32 s92, s{wsl}")
    A(f"s_mov_b32 s93, s{wsh}")
    A(f"s_mov_b32 s94, {WS_ST + 0x40000}")
    A("s_mov_b32 s95, 0x00020000")
    A("s_lshl_b32 s96, s2, 2")
    A(f"s_add_u32 s96, s96, s{wave_sgpr}")
    A("s_lshl_b32 s96, s96, 6")
    A(f"s_add_u32 s96, s96, {WS_ST + kern*0x10000}")
    A("v_mov_b32 v1, 0")
    for k in range(n):
        A(f"v_mov_b32 v2, s{76+k}")
        A(f"buffer_store_dword v2, v1, s[92:95], s96 offen offset:{4*k}")
        A("s_nop 1")
        A(f"v_mov_b32 v2, s{84+k}")
        A(f"buffer_store_dword v2, v1, s[92:95], s96 offen offset:{32+4*k}")
        A("s_nop 1")

def f32bits(x):
    return struct.unpack("<I", struct.pack("<f", x))[0]
KSCALE = f32bits(math.log2(math.e) / math.sqrt(32.0))
LOG2E = f32bits(math.log2(math.e))

def take_(L, n):
    r = L[:n]; del L[:n]; return r

def weave(A, M, streams):
    for k, m in enumerate(M):
        A(m)
        for items, q in streams:
            for _ in range(q(k)):
                if items:
                    x = items.pop(0)
                    if isinstance(x, (list, tuple)):
                        for y in x: A(y)
                    else: A(x)
    for items, q in streams:
        while items:
            x = items.pop(0)
            if isinstance(x, (list, tuple)):
                for y in x: A(y)
            else: A(x)

LDS_SCR = 0x14000
LDS_SCG = 0x1C000
LDS_DUMMY = 0x27C00
LDS_ATTN = 163840

def gen_attn(A):
    name = NAME + "_kernel"
    kernel_header(A, name)
    S0, C0, O0, Q0 = 32, 96, 160, 224
    L0, KB0, VB0, SEL, GF, FR = 0, 16, 32, 48, 0, 128
    vL, vH, vL31, vW_ = 1, 2, 3, 4
    vXd, vWd = 8, 12
    vXr, vWr = 16, 20
    vKV, vIDX, vT0, vT1, vG = 22, 23, 24, 25, 26
    vLane16, vLin, vPoll, vT2 = 28, 29, 30, 31
    ACC = S0
    PACC, GACC = Q0, Q0 + 4
    vPd, vPr, vPw = C0, C0 + 4, C0 + 8
    vRed = C0 + 12
    A("s_cmp_ge_u32 s2, 256")
    A("s_cbranch_scc1 L_at_end")
    stamp(A, 0)
    if "epf" in VAR:
        A("s_getpc_b64 s[72:73]")
        for k in range(1, 7):
            A(f"s_load_dword s74, s[72:73], {128*k}")
    A("s_load_dwordx8 s[4:11], s[0:1], 0")
    A("s_load_dwordx2 s[64:65], s[0:1], 32")
    A("s_load_dwordx8 s[12:19], s[0:1], 48")
    A("s_load_dwordx2 s[66:67], s[0:1], 80")
    A("s_load_dwordx4 s[24:27], s[0:1], 96")
    if "perm" in VAR:
        A("s_bfe_u32 s28, s2, 0x30003")
        A("s_lshr_b32 s29, s2, 6")
        A("s_and_b32 s2, s2, 7")
        A("s_lshl_b32 s28, s28, 5")
        A("s_lshl_b32 s29, s29, 3")
        A("s_or_b32 s2, s2, s28")
        A("s_or_b32 s2, s2, s29")
    A("s_and_b32 s28, s2, 1")
    A("s_bfe_u32 s29, s2, 0x20001")
    A("s_bfe_u32 s30, s2, 0x20003")
    A("s_lshl_b32 s29, s29, 2")
    A("s_add_u32 s29, s29, s30")
    A("s_lshr_b32 s30, s2, 5")
    A("s_lshr_b32 s31, s2, 7")
    A("s_and_b32 s23, s30, 3")
    A("s_lshl_b32 s33, s29, 2")
    A("s_add_u32 s33, s33, s23")
    A("s_lshl_b32 s34, s31, 1")
    A("s_add_u32 s34, s34, s23")
    A("s_and_b32 s34, s34, 3")
    A("s_lshl_b32 s37, s30, 1")
    if True:
        A("s_and_b32 s38, s29, 12")
        A("s_add_u32 s37, s37, s38")
        if "rotgb" in VAR: A("s_add_u32 s37, s37, s28")
        A("s_and_b32 s37, s37, 15")
    A("s_lshl_b32 s38, s29, 18")
    A("s_lshl_b32 s39, s30, 8")
    A(f"v_lshrrev_b32 v{vW_}, 6, v0")
    A(f"v_and_b32 v{vL}, 63, v0")
    A(f"v_readfirstlane_b32 s20, v{vW_}")
    A(f"v_lshrrev_b32 v{vH}, 5, v{vL}")
    A(f"v_and_b32 v{vL31}, 31, v{vL}")
    A(f"v_lshlrev_b32 v{vLane16}, 4, v{vL}")
    A(f"v_lshl_add_u32 v{vLin}, v{vW_}, 12, v{vLane16}")
    A(f"v_lshrrev_b32 v{vT0}, 3, v{vL}")
    A(f"v_lshl_add_u32 v{vT0}, v{vW_}, 5, v{vT0}")
    A(f"v_lshlrev_b32 v{vT0}, 11, v{vT0}")
    A(f"v_lshrrev_b32 v{vT1}, 4, v{vL}")
    A(f"v_and_b32 v5, 7, v{vL}")
    A(f"v_xor_b32 v5, v5, v{vT1}")
    A(f"v_lshl_add_u32 v{vXd}, v5, 4, v{vT0}")
    A(f"v_xor_b32 v{vXd+1}, 64, v{vXd}")
    A(f"v_add_u32 v{vXd+1}, {16384-1024}, v{vXd+1}")
    A(f"v_add_u32 v{vXd+2}, {2*(16384-1024)}, v{vXd}")
    A(f"v_add_u32 v{vXd+3}, {2*(16384-1024)}, v{vXd+1}")
    A(f"v_lshl_add_u32 v{vT0}, v{vW_}, 4, v{vT1}")
    A(f"v_lshlrev_b32 v{vT0}, 11, v{vT0}")
    A(f"v_lshlrev_b32 v{vT1}, 2, v{vT1}")
    A(f"v_and_b32 v5, 15, v{vL}")
    A(f"v_xor_b32 v5, v5, v{vT1}")
    A(f"v_lshl_add_u32 v{vWd}, v5, 4, v{vT0}")
    for t in range(1, 4):
        A(f"v_add_u32 v{vWd+t}, {t*(8192-1024)}, v{vWd}")
    A("s_waitcnt lgkmcnt(0)")
    fstamp(A, 1)
    if os.environ.get("WSOFF"):
        A(f"s_add_u32 s26, s26, {int(os.environ['WSOFF'], 0)}")
        A("s_addc_u32 s27, s27, 0")
    A("s_cmp_eq_u32 s28, 1")
    A("s_cselect_b64 s[6:7], s[12:13], s[6:7]")
    A("s_cselect_b64 s[8:9], s[14:15], s[8:9]")
    A("s_cselect_b64 s[10:11], s[16:17], s[10:11]")
    A("s_cselect_b64 s[72:73], s[18:19], s[64:65]")
    A("s_cselect_b64 s[74:75], s[64:65], s[18:19]")
    A("s_cmp_eq_u32 s31, 1")
    A("s_cselect_b64 s[8:9], s[10:11], s[8:9]")
    A("s_cselect_b64 s[64:65], s[18:19], s[64:65]")
    srd(A, 40, 8, 9, 1024*32*2)
    srd(A, 8, 4, 5, 2048*1024*2)
    srd(A, 12, 6, 7, 1024*1024*2)
    srd(A, 56, 66, 67, 2048)
    A("s_lshl_b32 s36, s20, 12")
    A("s_lshl_b32 s35, s33, 16")
    A("s_mov_b32 s71, s36")
    A("s_add_u32 s32, s36, 0x28000")
    A("s_and_b32 s23, s29, 3")
    PARK = ()
    adv = ["s_add_u32 s71, s71, 0x8000", "s_cmp_eq_u32 s71, s32", "s_cselect_b32 s71, s36, s71"]
    def dma_P():
        I = []
        I.append([f"s_mov_b32 m0, s71", "s_lshl_b32 s48, s34, 9", "s_add_u32 s48, s48, s35",
                  f"buffer_load_dwordx4 v{vPd}, s[8:11], s48 offen lds"])
        for t in range(1, 4):
            I.append(f"buffer_load_dwordx4 v{vPd+t}, s[8:11], s48 offen offset:{1024*t} lds")
        I.append([f"s_add_u32 m0, s71, 0x4000", "s_lshl_b32 s49, s34, 14",
                  f"buffer_load_dwordx4 v{vLin}, s[40:43], s49 offen lds"])
        for t in range(1, 4):
            I.append(f"buffer_load_dwordx4 v{vLin}, s[40:43], s49 offen offset:{1024*t} lds")
        I.append(["s_add_u32 s34, s34, 1", "s_and_b32 s34, s34, 3"] + adv)
        return I
    def dma_G():
        I = []
        I.append([f"s_mov_b32 m0, s71", "s_lshl_b32 s48, s37, 7", "s_add_u32 s48, s48, s38",
                  f"buffer_load_dwordx4 v{vXd}, s[8:11], s48 offen lds"])
        for t in range(1, 4):
            I.append(f"buffer_load_dwordx4 v{vXd+t}, s[8:11], s48 offen offset:{1024*t} lds")
        I.append([f"s_add_u32 m0, s71, 0x4000", "s_lshl_b32 s49, s37, 17", "s_add_u32 s49, s49, s39",
                  f"buffer_load_dwordx4 v{vWd}, s[12:15], s49 offen lds"])
        for t in range(1, 4):
            I.append(f"buffer_load_dwordx4 v{vWd+t}, s[12:15], s49 offen offset:{1024*t} lds")
        I.append(["s_add_u32 s37, s37, 1", "s_and_b32 s37, s37, 15"] + adv)
        return I
    def dma_C(c):
        slot = (c % 4) * 0x8000
        I = []
        I.append([f"s_add_u32 m0, s36, {slot}", f"s_mov_b32 s48, {c*0x8000}",
                  f"buffer_load_dwordx4 v{vLin}, s[44:47], s48 offen sc1 lds"])
        for t in range(1, 4):
            I.append(f"buffer_load_dwordx4 v{vLin}, s[44:47], s48 offen offset:{1024*t} sc1 lds")
        I.append([f"s_add_u32 m0, s36, {slot+0x4000}", f"s_mov_b32 s49, {c*0x8000+0x4000}",
                  f"buffer_load_dwordx4 v{vLin}, s[44:47], s49 offen sc1 lds"])
        for t in range(1, 4):
            I.append(f"buffer_load_dwordx4 v{vLin}, s[44:47], s49 offen offset:{1024*t} sc1 lds")
        return I
    def flat(I):
        for x in I:
            if isinstance(x, (list, tuple)):
                for y in x: A(y)
            else: A(x)
    ORDER = ["G", "G", "P", "P", "P", "P"] + ["G"] * 14
    PIDX = {n: k for k, n in enumerate([n for n in range(20) if ORDER[n] == "P"])}
    PLAST = max(PIDX)
    def dma(n):
        if n >= 20: return dma_C(n - 20)
        return dma_P() if ORDER[n] == "P" else dma_G()
    flat(dma(0))
    fstamp(A, 2)
    A(f"s_add_u32 m0, s36, 0x20000")
    A("s_bfe_u32 s48, s2, 0x40003")
    A("s_lshl_b32 s48, s48, 12")
    A("s_lshl_b32 s49, s20, 10")
    A("s_add_u32 s48, s48, s49")
    A(f"buffer_load_dwordx4 v{vLane16}, s[40:43], s48 offen lds")
    if "cpf" in VAR:
        A("s_getpc_b64 s[72:73]")
        A.label("L_at_pc")
        A("s_lshr_b32 s48, s2, 3")
        A("s_lshl_b32 s48, s48, 2")
        A("s_add_u32 s48, s48, s20")
        A("s_lshl_b32 s48, s48, 8")
        A("s_min_u32 s48, s48, L_code_end-L_at_pc-256")
        A("s_add_u32 s72, s72, s48")
        A("s_addc_u32 s73, s73, 0")
        for q in range(4):
            A(f"s_load_dword s74, s[72:73], {64*q}")
    srd(A, 16, 26, 27, WS_USED)
    srd(A, 52, 64, 65, 1024*1024*2)
    srd(A, 60, 24, 25, 256)
    A("s_load_dwordx2 s[64:65], s[0:1], 88")
    A("s_lshl_b32 s48, s28, 18")
    A("s_add_u32 s44, s26, s48")
    A("s_addc_u32 s45, s27, 0")
    A("s_mov_b32 s46, 0x40000")
    A("s_mov_b32 s47, 0x00020000")
    A("s_lshr_b32 s22, s20, 1")
    A("s_and_b32 s21, s20, 1")
    A("s_bfe_u32 s68, s2, 0x40003")
    A("s_lshl_b32 s68, s68, 2")
    A("s_add_u32 s68, s68, s20")
    A("s_lshl_b32 s68, s68, 15")
    A("s_lshl_b32 s69, s28, 10")
    A("s_add_u32 s68, s68, s69")
    A("s_or_b32 s70, s28, s31")
    A("s_or_b32 s70, s70, s21")
    A(f"v_lshl_add_u32 v{vT0}, v{vW_}, 3, v{vH}")
    A(f"v_and_b32 v{vT1}, 15, v{vT0}")
    A(f"v_xor_b32 v{vT1}, v{vT1}, v{vL31}")
    A(f"v_lshlrev_b32 v{vT1}, 4, v{vT1}")
    A(f"v_lshl_add_u32 v{vPd}, v{vT0}, 11, v{vT1}")
    for t in range(1, 4):
        A(f"v_xor_b32 v{vPd+t}, {(2*t) << 4}, v{vPd}")
        A(f"v_add_u32 v{vPd+t}, {t*(4096-1024)}, v{vPd+t}")
    A(f"v_and_b32 v6, 15, v{vL}")
    A(f"v_lshrrev_b32 v7, 4, v{vL}")
    A(f"v_xor_b32 v{vT0}, v6, v7")
    A(f"v_lshlrev_b32 v{vT0}, 4, v{vT0}")
    A(f"v_lshl_add_u32 v{vT0}, v6, 9, v{vT0}")
    A("s_lshl_b32 s48, s22, 13")
    A(f"v_add_u32 v{vPr}, s48, v{vT0}")
    for s in range(1, 4):
        A(f"v_xor_b32 v{vPr+s}, {64*s}, v{vPr}")
    A(f"v_bfe_u32 v{vT0}, v{vL}, 2, 2")
    A(f"v_lshl_add_u32 v{vT0}, v7, 3, v{vT0}")
    A(f"v_lshlrev_b32 v{vT0}, 6, v{vT0}")
    A(f"v_and_b32 v{vT1}, 3, v{vL}")
    A(f"v_lshl_add_u32 v{vT0}, v{vT1}, 3, v{vT0}")
    A("s_lshl_b32 s48, s21, 5")
    A("s_add_u32 s48, s48, 0x4000")
    A(f"v_add_u32 v{vPw}, s48, v{vT0}")
    A(f"v_bfe_u32 v{vT0}, v{vL}, 1, 3")
    A(f"v_xor_b32 v{vT0}, v{vT0}, v{vH}")
    A(f"v_lshlrev_b32 v{vT0}, 4, v{vT0}")
    A(f"v_lshl_add_u32 v{vT0}, v{vL31}, 7, v{vT0}")
    A(f"s_lshl_b32 s48, s22, 13")
    A(f"v_add_u32 v{vXr}, s48, v{vT0}")
    for s in range(1, 4):
        A(f"v_xor_b32 v{vXr+s}, {(2*s) << 4}, v{vXr}")
    A(f"v_bfe_u32 v{vT0}, v{vL}, 2, 2")
    A(f"v_lshl_add_u32 v{vT1}, v{vH}, 3, v{vT0}")
    A(f"v_lshlrev_b32 v{vT1}, 8, v{vT1}")
    A(f"s_lshl_b32 s48, s21, 1")
    A(f"v_xor_b32 v{vT0}, s48, v{vT0}")
    A(f"v_lshl_add_u32 v{vT1}, v{vT0}, 6, v{vT1}")
    A(f"v_bfe_u32 v{vT0}, v{vL}, 4, 1")
    A(f"v_lshl_add_u32 v{vT1}, v{vT0}, 5, v{vT1}")
    A(f"v_and_b32 v{vT0}, 3, v{vL}")
    A(f"v_lshl_add_u32 v{vT1}, v{vT0}, 3, v{vT1}")
    A(f"v_add_u32 v{vWr}, 0x4000, v{vT1}")
    A(f"v_xor_b32 v{vWr+1}, 64, v{vWr}")
    for i in range(0, 8, 2):
        A(f"v_mov_b64 {vr(PACC+i,2)}, 0")
    for i in range(0, 64, 2):
        A(f"v_mov_b64 {vr(ACC+i,2)}, 0")
    side = []
    side.append(f"v_mov_b32 v{vIDX}, 0xdddddddd")
    side += [f"v_and_b32 v{vT0}, 15, v{vL}", f"v_mov_b32 v{vT1}, 0x3f803f80", f"v_cmp_eq_u32 vcc, 0, v{vT0}", "s_nop 1",
             f"v_cndmask_b32 v{vT2}, 0, v{vT1}, vcc", f"v_cmp_eq_u32 vcc, 4, v{vT0}", "s_nop 1",
             f"v_cndmask_b32 v{vT1}, 0, v{vT1}, vcc",
             f"v_accvgpr_write_b32 a{SEL}, v{vT2}", f"v_accvgpr_write_b32 a{SEL+1}, v{vT2}",
             f"v_accvgpr_write_b32 a{SEL+2}, v{vT1}", f"v_accvgpr_write_b32 a{SEL+3}, v{vT1}"]
    side += [f"v_accvgpr_write_b32 a{L0+i}, 0" for i in range(16)]
    side += [f"v_accvgpr_write_b32 a{VB0+8+i}, 0" for i in range(8)]
    side.append(f"v_mov_b32 v{vKV}, v{vLane16}")
    A(f"v_bfe_u32 v{vT0}, v6, 2, 1")
    A(f"v_bfe_u32 v{vT1}, v6, 3, 1")
    A(f"v_and_b32 v{vRed+8}, 3, v6")
    A(f"v_lshl_add_u32 v{vRed+8}, v{vT0}, 3, v{vRed+8}")
    A(f"v_lshl_add_u32 v{vRed+8}, v{vT1}, 2, v{vRed+8}")
    A("s_cmp_eq_u32 s31, 1")
    A("s_cselect_b64 vcc, -1, 0")
    A("s_cselect_b32 s50, s21, s22")
    A("s_cselect_b32 s51, s22, s21")
    A(f"v_cndmask_b32 v{vRed+8}, v{vRed+8}, v6, vcc")
    A(f"v_and_b32 v{vT0}, 1, v7")
    A(f"v_lshl_add_u32 v{vRed+8}, v{vT0}, 5, v{vRed+8}")
    A(f"v_lshlrev_b32 v{vRed+8}, 4, v{vRed+8}")
    A(f"v_lshl_add_u32 v{vRed+8}, v{vH}, 3, v{vRed+8}")
    A("s_lshl_b32 s50, s50, 8")
    A("s_lshl_b32 s51, s51, 10")
    A("s_add_u32 s50, s50, s51")
    A("s_lshl_b32 s51, s33, 12")
    A("s_add_u32 s50, s50, s51")
    A("s_lshl_b32 s51, s31, 11")
    A("s_add_u32 s50, s50, s51")
    A(f"v_add_u32 v{vRed+8}, s50, v{vRed+8}")
    A("s_lshl_b32 s50, s33, 7")
    A("s_lshl_b32 s51, s22, 6")
    A("s_add_u32 s50, s50, s51")
    A(f"s_add_u32 s50, s50, {WS_G}")
    A("s_cmp_eq_u32 s70, 0")
    A(f"s_cselect_b32 s50, s50, {WS_USED}")
    A(f"v_lshl_add_u32 v{vRed+9}, v6, 2, s50")
    A(f"v_lshl_add_u32 v{vRed+9}, v7, 24, v{vRed+9}")
    A("s_lshl_b32 s69, s29, 7")
    A("s_lshl_b32 s51, s28, 5")
    A("s_add_u32 s69, s69, s51")
    A("s_lshl_b32 s51, s30, 2")
    A("s_add_u32 s69, s69, s51")
    A(f"s_add_u32 s69, s69, {WS_FL}")
    A("s_cmp_lg_u32 s20, 0")
    A("s_cbranch_scc1 L_at_nofr")
    A(f"v_mov_b32 v{vT0}, 0")
    A("s_mov_b64 exec, 1")
    A(f"buffer_atomic_swap v{vT0}, v{vT0}, s[16:19], s69 offen sc1")
    A("s_mov_b64 exec, -1")
    A.label("L_at_nofr")
    tstamp_init(A, 26, 27, 20, 0)
    tstamp(A)
    fstamp(A, 3)
    A("s_mov_b32 s3, s34")
    flat(dma(1))
    if "wtch" in VAR:
        A(f"v_lshlrev_b32 v{vT0}, 11, v7")
        A(f"v_lshl_add_u32 v{vT0}, v6, 4, v{vT0}")
        A("s_add_u32 s48, s37, s22")
        A("s_and_b32 s48, s48, 15")
        A("s_lshl_b32 s48, s48, 17")
        A("s_add_u32 s48, s48, s39")
        A("s_lshl_b32 s49, s23, 15")
        A("s_add_u32 s48, s48, s49")
        A("s_lshl_b32 s49, s21, 14")
        A("s_add_u32 s48, s48, s49")
        A("s_add_u32 m0, s36, 0x20000")
        A("s_add_u32 s49, s48, 0x2000")
        A(f"buffer_load_dwordx4 v{vT0}, s[12:15], s48 offen lds")
        A(f"buffer_load_dwordx4 v{vT0}, s[12:15], s49 offen lds")
    A("s_cmp_lg_u32 s20, s23")
    A("s_cbranch_scc1 L_at_pro")
    flat(dma(2)); flat(dma(3))
    A.label("L_at_pro")
    fstamp(A, 4)
    stamp(A, 1)
    def rd_P(n):
        off = ((n % 5) % 2) * 0x8000
        R = []
        for ks in range(8):
            b = O0 + 8*ks
            R.append(f"ds_read_b128 {vr(b,4)}, v{vPr+(ks%4)} offset:{off+256*(ks//4)}")
            R.append(f"ds_read_b64_tr_b16 {vr(b+4,2)}, v{vPw} offset:{off+2048*ks}")
            R.append(f"ds_read_b64_tr_b16 {vr(b+6,2)}, v{vPw} offset:{off+2048*ks+256}")
        return R
    def mf_P(n):
        A("s_cmp_eq_u32 s31, 1")
        A(f"s_cbranch_scc1 L_at_pv{n}")
        for ks in range(8):
            A(f"v_mfma_f32_16x16x32_bf16 {vr(PACC,4)}, {vr(O0+8*ks+4,4)}, {vr(O0+8*ks,4)}, {vr(PACC,4)}")
        A("s_cmp_lg_u32 s70, 0")
        A(f"s_cbranch_scc1 L_at_pj{n}")
        for ks in range(8):
            A(f"v_mfma_f32_16x16x32_bf16 {vr(GACC,4)}, {ar(GF+32*PIDX[n]+4*ks,4)}, {vr(O0+8*ks,4)}, {vr(GACC,4)}")
        A(f"s_branch L_at_pj{n}")
        A.label(f"L_at_pv{n}")
        for ks in range(8):
            A(f"v_mfma_f32_16x16x32_bf16 {vr(PACC,4)}, {vr(O0+8*ks,4)}, {vr(O0+8*ks+4,4)}, {vr(PACC,4)}")
        A.label(f"L_at_pj{n}")
    def rd_G(n):
        off = ((n % 5) % 2) * 0x8000
        b = FR + 64*(n % 2)
        R = []
        for s in range(4):
            p = b + 16*s
            R.append(f"ds_read_b128 {ar(p,4)}, v{vXr+s} offset:{off}")
            wr, wo = vWr, off
            R.append(f"ds_read_b64_tr_b16 {ar(p+8,2)}, v{wr} offset:{wo+4096*s}")
            R.append(f"ds_read_b64_tr_b16 {ar(p+10,2)}, v{wr} offset:{wo+4096*s+1024}")
            R.append(f"ds_read_b128 {ar(p+4,4)}, v{vXr+s} offset:{off+4096}")
            R.append(f"ds_read_b64_tr_b16 {ar(p+12,2)}, v{wr+1} offset:{wo+4096*s}")
            R.append(f"ds_read_b64_tr_b16 {ar(p+14,2)}, v{wr+1} offset:{wo+4096*s+1024}")
        return R
    def mf_G(n, by_u=False):
        b = FR + 64*(n % 2)
        M = []
        order = [(s, a, t) for s in range(4) for a in range(2) for t in range(2)]
        if by_u: order = [(s, a, t) for a in range(2) for t in range(2) for s in range(4)]
        for (s, a, t) in order:
            p = b + 16*s; u = 2*a + t
            if "fake16" in VAR:
                q = ACC + 16*u + 8*(s % 2)
                p2 = b + 16*(s ^ 1)
                M.append(f"v_mfma_f32_16x16x32_bf16 {vr(q,4)}, {ar(p+8+4*a,4)}, {ar(p+4*t,4)}, {vr(q,4)}\n"
                         f"v_mfma_f32_16x16x32_bf16 {vr(q+4,4)}, {ar(p+8+4*a,4)}, {ar(p2+4*t,4)}, {vr(q+4,4)}")
                continue
            M.append(f"v_mfma_f32_32x32x16_bf16 {vr(ACC+16*u,16)}, {ar(p+8+4*a,4)}, {ar(p+4*t,4)}, {vr(ACC+16*u,16)}")
        return M
    def toggle(regs, d):
        return [f"v_add_u32 v{r}, {(d*0x10000) & 0xffffffff:#x}, v{r}" for r in regs]
    Pregs = [vPr+s for s in range(4)] + [vPw]
    Gregs = [vXr+s for s in range(4)] + [vWr, vWr+1]
    hi = {"P": 0, "G": 0}
    for n in range(20):
        A.comment(f"---- iteration {n} ({ORDER[n]})")
        cnt = 10 if n in (7, 8) else (9 if n == 17 else 8)
        if "wtch" in VAR and n in (0, 1): cnt = 10
        A("s_cmp_eq_u32 s20, s23")
        A(f"s_waitcnt vmcnt({16 if n == 9 else 24}) lgkmcnt(0)")
        A(f"s_cbranch_scc1 L_at_w{n}")
        A(f"s_waitcnt vmcnt({cnt})")
        A.label(f"L_at_w{n}")
        A("s_barrier")
        tstamp(A)
        if n == (18 if os.environ.get("FINE3") else 6): stamp(A, 2)
        if n == 0: fstamp(A, 5)
        if n == 1: fstamp(A, 6)
        D = dma(n + 2)
        if n == 16:
            A("s_cmp_eq_u32 s20, s23")
            A("s_cselect_b32 s10, 0, s10")
            A("s_cselect_b32 s14, 0, s14")
            A("s_cselect_b32 s71, 0x30000, s71")
        win = lambda k: (k % 5) // 2
        assert hi[ORDER[n]] == win(n)
        R = rd_P(n) if ORDER[n] == "P" else rd_G(n)
        V = []
        T = []
        if n + 1 < 20 and hi[ORDER[n+1]] != win(n + 1):
            T = toggle(Pregs if ORDER[n+1] == "P" else Gregs, win(n + 1) - hi[ORDER[n+1]])
            hi[ORDER[n+1]] = win(n + 1)
        if n == 18:
            A("s_waitcnt vmcnt(8)")
            A(f"v_cmp_gt_u32 vcc, 4, v{vPoll}")
            A("s_nop 4")
            A("s_cmp_eq_u64 vcc, 0")
            A("s_cbranch_scc1 L_at_flags_ok")
            A("s_mov_b32 s50, 0")
            A.label("L_at_spin")
            A("s_add_u32 s50, s50, 1")
            A("s_cmp_gt_u32 s50, 0x40000")
            A("s_cbranch_scc1 L_at_flags_ok")
            A("s_sleep 8")
            A(f"buffer_load_dword v{vPoll}, v{vT2}, s[60:63], 0 offen sc1")
            A("s_waitcnt vmcnt(0)")
            A(f"v_cmp_gt_u32 vcc, 4, v{vPoll}")
            A("s_nop 4")
            A("s_cmp_eq_u64 vcc, 0")
            A("s_cbranch_scc0 L_at_spin")
            A.label("L_at_flags_ok")
            if os.environ.get("FINE3"): stamp(A, 3)
        if n == 0:
            A("s_cmp_lg_u32 s70, 0")
            A("s_cbranch_scc1 L_at_nogf")
            A(f"v_and_b32 v{vT0}, 0x30, v{vL}")
            A("s_mov_b32 s50, s3")
            A("s_mov_b32 exec_lo, 0x00010001")
            A("s_mov_b32 exec_hi, 0x00010001")
            for q in range(4):
                A("s_lshl_b32 s51, s50, 9")
                for ks in range(8):
                    A(f"buffer_load_dwordx4 {ar(GF+32*q+4*ks,4)}, v{vT0}, s[56:59], s51 offen offset:{64*ks}")
                A("s_add_u32 s50, s50, 1")
                A("s_and_b32 s50, s50, 3")
            A("s_mov_b64 exec, -1")
            A.label("L_at_nogf")
        def mixrd(R, D, k):
            while R or D:
                if D: flat([D.pop(0)])
                for _ in range(k):
                    if R: A(R.pop(0))
        if n == 0 or 2 <= n <= 5:
            if n in (2, 3):
                if n >= 3: mf_P(n - 1)
                A("s_cmp_eq_u32 s20, s23")
                A(f"s_cbranch_scc1 L_at_ds{n}")
                mixrd(list(R), D, 3)
                A(f"s_branch L_at_dj{n}")
                A.label(f"L_at_ds{n}")
                mixrd(R, dma_G(), 3)
                A.label(f"L_at_dj{n}")
            else:
                flat(D[:2]); del D[:2]
                if n >= 3: mf_P(n - 1)
                mixrd(R, D, 4)
            for x in T: A(x)
            continue
        post = []
        if n == 6:
            mf_P(5)
            V += ["s_nop 0", "s_nop 0"]
            V.append(["s_mov_b32 s50, 1.0", "s_cmp_eq_u32 s31, 1", f"s_cselect_b32 s50, s50, {KSCALE:#x}"])
            V.append([f"v_mul_f32 v{PACC+e}, s50, v{PACC+e}" for e in range(4)])
            V.append([f"v_cvt_pk_bf16_f32 v{Q0+8}, v{Q0}, v{Q0+1}", f"v_cvt_pk_bf16_f32 v{Q0+9}, v{Q0+2}, v{Q0+3}"])
            V.append([f"v_mul_f32 v{GACC}, {LOG2E ^ 0x80000000:#x}, v{GACC}", f"v_exp_f32 v{GACC}, v{GACC}"])
            V.append([f"v_add_f32 v{GACC}, 1.0, v{GACC}", f"v_rcp_f32 v{GACC}, v{GACC}"])
            post.append(f"buffer_store_dwordx2 {vr(Q0+8,2)}, v{vRed+8}, s[44:47], 0 offen sc1")
            post.append(f"buffer_store_dword v{GACC}, v{vRed+9}, s[16:19], 0 offen sc1")
        if 10 <= n <= 11 or n == 14:
            V += take_(side, 16)
        if n == 9:
            post.append("s_cmp_lg_u32 s20, 0")
            post.append("s_cbranch_scc1 L_at_nosig")
            post.append("s_and_b32 s50, s2, 63")
            post.append("s_lshl_b32 s50, s50, 2")
            post.append(f"v_mov_b32 v{vT0}, 1")
            post.append(f"v_mov_b32 v{vT1}, 0")
            post.append("s_mov_b64 exec, 1")
            post.append(f"buffer_atomic_add v{vT0}, v{vT1}, s[60:63], s50 offen sc1")
            post.append("s_mov_b64 exec, -1")
            post.append("L_at_nosig:")
        if n == 16:
            assert not side
            V.append(f"v_lshlrev_b32 v{vT2}, 2, v{vL}")
            post.append(f"buffer_load_dword v{vPoll}, v{vT2}, s[60:63], 0 offen sc1")
        if n == 18:
            V += [f"v_lshrrev_b32 v{vT0}, 3, v{vL}", f"v_lshl_add_u32 v{vT0}, v{vW_}, 5, v{vT0}", f"v_lshlrev_b32 v{vT0}, 11, v{vT0}",
                  f"v_bfe_u32 v{vT1}, v{vL}, 4, 1", f"v_lshlrev_b32 v{vT1}, 2, v{vT1}", f"v_and_b32 v5, 7, v{vL}",
                  f"v_xor_b32 v5, v5, v{vT1}", f"v_lshl_add_u32 v{vWd}, v5, 4, v{vT0}",
                  ["s_lshl_b32 s31, s28, 3", "s_add_u32 s31, s31, s30", "s_lshl_b32 s31, s31, 7"],
                  f"v_add_u32 v{vWd}, s31, v{vWd}"]
            V += [f"v_add_u32 v{vWd+t}, {t*(16384-1024)}, v{vWd}" for t in range(1, 4)]
        if n == 19:
            V += [f"v_mov_b32 v{vXd+t}, v{vLin}" for t in range(4)]
            V += ["s_mov_b32 s14, 0x200000"]
            V += [["s_lshl_b32 s40, s29, 2", "s_lshl_b32 s41, s22, 1", "s_add_u32 s40, s40, s41"],
                  ["s_lshl_b32 s40, s40, 17", "s_lshl_b32 s41, s28, 5", "s_lshl_b32 s50, s30, 2"],
                  ["s_add_u32 s41, s41, s50", "s_lshl_b32 s50, s21, 1", "s_add_u32 s41, s41, s50"],
                  ["s_lshl_b32 s41, s41, 11", "s_add_u32 s40, s40, s41", f"s_add_u32 s40, s40, {WS_OF}"],
                  ["s_add_u32 s41, s40, 0x20000", "s_mov_b32 s42, s40"],
                  ["s_mov_b32 s56, s64", "s_mov_b32 s57, s65", f"s_mov_b32 s58, {2048*1024*2}"],
                  ["s_lshl_b32 s43, s29, 18", "s_lshl_b32 s50, s20, 16", "s_add_u32 s43, s43, s50"],
                  ["s_add_u32 s43, s43, s31"],
                  ["s_lshl_b32 s50, s29, 2", "s_add_u32 s50, s50, s20", "s_lshl_b32 s50, s50, 17", f"s_add_u32 s50, s50, {WS_OF}",
                   "s_lshl_b32 s51, s28, 16", "s_add_u32 s7, s50, s51"],
                  ["s_add_u32 s8, s26, s7", "s_addc_u32 s9, s27, 0", "s_mov_b32 s10, 0x10000", "s_xor_b32 s51, s51, 0x10000",
                   "s_add_u32 s7, s50, s51", "s_add_u32 s4, s26, s7", "s_addc_u32 s5, s27, 0"],
                  ["s_lshl_b32 s3, s30, 13", "s_lshl_b32 s6, s29, 7", f"s_add_u32 s6, s6, {WS_FL}", "s_lshl_b32 s7, s28, 3",
                   "s_mov_b32 s12, s72", "s_mov_b32 s13, s73"]]
            T += [[f"v_bfe_u32 v{vT0}, v{vL}, 2, 2", f"v_lshl_add_u32 v{vT1}, v{vH}, 2, v{vT0}", f"v_lshlrev_b32 v{vT1}, 7, v{vT1}"],
                  [f"v_bfe_u32 v{vT0}, v{vL}, 3, 1", f"v_lshl_add_u32 v{vT1}, v{vT0}, 6, v{vT1}"],
                  [f"v_bfe_u32 v{vT0}, v{vL}, 4, 1", f"v_lshl_add_u32 v{vT1}, v{vT0}, 5, v{vT1}"],
                  [f"v_and_b32 v{vT0}, 1, v{vL}", f"v_lshl_add_u32 v{vT1}, v{vT0}, 4, v{vT1}"],
                  [f"v_bfe_u32 v{vT0}, v{vL}, 1, 1", f"v_lshl_add_u32 v16, v{vT0}, 3, v{vT1}", f"v_xor_b32 v17, 64, v16"],
                  [f"v_add_u32 v{vT0}, s30, v{vL}", f"v_and_b32 v{vT0}, 7, v{vT0}"]]
            post += [f"v_xor_b32 v{vT1}, s7, v{vL}", f"v_and_b32 v{vT1}, 8, v{vT1}", f"v_or_b32 v{vT0}, v{vT0}, v{vT1}",
                     f"v_lshlrev_b32 v18, 2, v{vT0}"]
        if n in (12, 13):
            V += [f"v_mov_b64 {vr(O0+32*(n-12)+i,2)}, 0" for i in range(0, 32, 2)]
        M = mf_G(n - 1 if n != 6 else 1)
        weave(A, M, [(R, lambda k: 2), (D, lambda k: 1 if (k % 2 == 0 or k == 15) else 0), (V, lambda k: 1), (T, lambda k: 2 if k >= 12 else 0)])
        for x in post: A(x)
        if n == 1 and PARK:
            A.comment("---- iteration 1b")
            A("s_waitcnt lgkmcnt(0)")
            weave(A, mf_G(1), [(dma(3), lambda k: 1 if k % 2 == 1 else 0)])
    A("s_waitcnt vmcnt(8) lgkmcnt(0)")
    A("s_barrier")
    if not os.environ.get("FINE3"): stamp(A, 3)
    tstamp(A)
    def cvtQ(u):
        return [f"v_cvt_pk_bf16_f32 v{Q0+8*u+j}, v{ACC+16*u+2*j}, v{ACC+16*u+2*j+1}" for j in range(8)]
    def QK(u, c):
        return [f"v_mfma_f32_32x32x16_bf16 {vr(S0+16*u,16)}, {ar(KB0,4)}, {vr(Q0+8*u,4)}, {c}",
                f"v_mfma_f32_32x32x16_bf16 {vr(S0+16*u,16)}, {ar(KB0+4,4)}, {vr(Q0+8*u+4,4)}, {vr(S0+16*u,16)}"]
    def max16(b):
        L = [f"v_max3_f32 v{b}, v{b}, v{b+1}, v{b+2}"]
        for j in range(3, 15, 2):
            L.append(f"v_max3_f32 v{b}, v{b}, v{b+j}, v{b+j+1}")
        L.append(f"v_max_f32 v{b}, v{b}, v{b+15}")
        return L
    def fill_C(u, b):
        L = [f"v_mov_b32 v{b+1}, v{b}", "s_nop 1", f"v_permlane32_swap_b32 v{b}, v{b+1}", "s_nop 1",
             f"v_max_f32 v{b}, v{b}, v{b+1}", f"v_sub_f32 v{C0+16*u}, 0, v{b}", f"v_sub_f32 v{C0+16*u+1}, 0, v{b}"]
        for j in range(2, 16, 2):
            L.append(f"v_mov_b64 {vr(C0+16*u+j,2)}, {vr(C0+16*u,2)}")
        return L
    G = mf_G(19, by_u=True)
    ldc = lambda t: f"buffer_load_dwordx4 v{vXd+t}, s[44:47], s32 offen offset:{1024*t} sc1 lds"
    ldw = lambda t: f"buffer_load_dwordx4 v{vWd+t}, s[12:15], s34 offen offset:{1024*t} lds"
    misc = [f"ds_read_b128 {ar(KB0,4)}, v{vKV}", f"ds_read_b128 {ar(KB0+4,4)}, v{vKV} offset:1024",
            f"ds_read_b128 {ar(VB0,4)}, v{vKV} offset:2048", f"ds_read_b128 {ar(VB0+4,4)}, v{vKV} offset:3072",
            f"v_lshlrev_b32 v{vT0}, 2, v{vL31}", "s_lshl_b32 s50, s29, 9", "s_lshl_b32 s51, s22, 8", "s_add_u32 s50, s50, s51",
            f"s_add_u32 s50, s50, {WS_G}", f"buffer_load_dword v{vG}, v{vT0}, s[16:19], s50 offen sc1",
            f"buffer_load_dword v{vG+1}, v{vT0}, s[16:19], s50 offen offset:128 sc1",
            "s_add_u32 m0, s36, 0x10000", "s_mov_b32 s32, 0x10000", ldc(0), ldc(1), ldc(2), ldc(3),
            "s_mov_b32 s37, 0x18000", "s_mov_b32 s39, 0", "s_mov_b32 s71, 0", "s_mov_b32 s33, 0x4000", "s_mov_b32 s38, -1"]
    def emit(L):
        for x in L: A(x)
    def take(L, n):
        r = L[:n]; del L[:n]; return r
    for k in range(0, 7):
        A(G[k]); emit(take(misc, 4 if k < 5 else 1))
    emit(misc)
    c0 = cvtQ(0)
    A(G[7]); emit(take(c0, 5))
    A(G[8]); emit(c0); A("s_waitcnt lgkmcnt(0)")
    A(G[9])
    q = QK(0, "0"); A(q[0]); A(q[1])
    c1 = cvtQ(1)
    A(G[10]); emit(take(c1, 5))
    A(G[11]); emit(c1)
    A(G[12])
    q = QK(1, "0"); A(q[0]); A(q[1])
    m0_ = max16(S0)
    A(G[13]); emit(take(m0_, 5))
    A(G[14]); emit(m0_)
    f0 = fill_C(0, S0)
    A(G[15]); emit(take(f0, 4))
    emit(cvtQ(2))
    emit(take(f0, 3))
    q = QK(2, "0"); A(q[0]); emit(take(f0, 4)); A(q[1]); emit(f0)
    emit(cvtQ(3))
    m1_ = max16(S0+16)
    emit(take(m1_, 2))
    q = QK(3, "0"); A(q[0]); emit(take(m1_, 4)); A(q[1]); emit(m1_)
    f1 = fill_C(1, S0+16)
    emit(take(f1, 3))
    q = QK(0, vr(C0, 16) if 'czero' not in VAR else "0"); A(q[0]); emit(take(f1, 5)); A(q[1]); emit(f1)
    emit(max16(S0+32)); emit(fill_C(2, S0+32))
    emit(max16(S0+48)); emit(fill_C(3, S0+48))
    for i in range(0, 16, 2):
        A(f"v_mov_b64 {vr(S0+48+i,2)}, 0")
    A("s_waitcnt vmcnt(6)")
    A("s_barrier")
    def PV(u0, p0):
        return [
            f"v_smfmac_f32_32x32x32_bf16 {vr(O0+16*u0,16)}, {ar(VB0+8*p0,4)}, {vr(S0+16*u0,8)}, v{vIDX}",
            f"v_smfmac_f32_32x32x32_bf16 {vr(O0+16*u0,16)}, {ar(VB0+8*p0+4,4)}, {vr(S0+16*u0+8,8)}, v{vIDX}",
            f"v_smfmac_f32_16x16x64_bf16 {ar(L0+4*u0,4)}, {ar(SEL,4)}, {vr(S0+16*u0,8)}, v{vIDX}",
            f"v_smfmac_f32_16x16x64_bf16 {ar(L0+4*u0,4)}, {ar(SEL,4)}, {vr(S0+16*u0+8,8)}, v{vIDX}",
        ]
    stamp(A, 4)
    body = []
    for i in range(8):
        for u in range(4):
            u1 = (u + 1) % 4; i1 = i + (1 if u == 3 else 0)
            u0 = (u + 3) % 4; i0 = i - (1 if u == 0 else 0)
            P = PV(u0, i0 % 2)
            M = [
                f"v_mfma_f32_32x32x16_bf16 {vr(S0+16*u1,16)}, {ar(KB0+8*(i1%2),4)}, {vr(Q0+8*u1,4)}, {vr(C0+16*u1,16) if 'czero' not in VAR else 0}",
                P[0],
                f"v_mfma_f32_32x32x16_bf16 {vr(S0+16*u1,16)}, {ar(KB0+8*(i1%2)+4,4)}, {vr(Q0+8*u1+4,4)}, {vr(S0+16*u1,16)}",
                P[1], P[2], P[3],
            ]
            X = [[] for _ in range(6)]
            tt = (i + 1) % 8
            pn = (i + 1) % 2
            if u == 0:
                X[3].append("s_waitcnt lgkmcnt(0)")
                X[4].append(f"ds_read_b128 {ar(KB0+8*pn,4)}, v{vKV} offset:{4096*tt}")
                X[5].append(f"ds_read_b128 {ar(KB0+8*pn+4,4)}, v{vKV} offset:{4096*tt+1024}")
            if u == 2:
                X[3].append("s_waitcnt lgkmcnt(0)")
                X[4].append(f"ds_read_b128 {ar(VB0+8*pn,4)}, v{vKV} offset:{4096*tt+2048}")
                X[5].append(f"ds_read_b128 {ar(VB0+8*pn+4,4)}, v{vKV} offset:{4096*tt+3072}")
            if i in (1, 3) and u == 1:
                X[2].append(f"s_add_u32 m0, s36, 0x20000")
                X[4].append(f"buffer_load_dwordx4 v{vLane16}, s[52:55], s68 offen lds")
                X[5].append("s_add_u32 s68, s68, 0x800")
            if i == 3 and u == 3:
                X[3].append("s_cmp_eq_u32 s39, 7")
                X[5].append("@EXIT")
            if i == 6 and u == 3:
                X[1].append("s_cmp_eq_u32 s39, 5")
                X[1].append("s_cselect_b64 vcc, -1, 0")
            if i == 7 and u == 0:
                X[0].append("s_add_u32 s71, s71, 0x8000")
                X[1].append("s_and_b32 s71, s71, 0x1ffff")
                X[1].append("s_add_u32 s39, s39, 1")
                X[2].append("s_bitcmp1_b32 0x54, s39")
                X[3].append("@TOP")
            if i == 7 and u == 1:
                X[1].append("s_add_u32 m0, s37, s36")
                X[1].append("s_add_u32 s37, s37, 0x8000")
                X[3].append("s_and_b32 s37, s37, 0x1ffff")
                X[4].append(ldc(0)); X[5].append(ldc(1))
            if i == 7 and u == 3:
                X[4].append(ldc(2)); X[5].append(ldc(3))
            if i == 0 and u == 1:
                X[4].append(ldc(0)); X[5].append(ldc(1))
            if i == 0 and u == 3:
                X[4].append(ldc(2)); X[5].append(ldc(3))
            if i == 1 and u == 1:
                X[1].append("s_add_u32 s32, s32, s33")
                X[1].append("s_and_b32 s32, s32, s38")
            E = [f"v_exp_f32 v{S0+16*u+j}, v{S0+16*u+j}" for j in range(16)]
            ne = [3, 3, 3, 3, 2, 2]
            order = {"": [0, 1, 2, 3, 4, 5], "A": [0, 2, 1, 3, 4, 5], "B": [0, 2, 4, 1, 3, 5], "C": [0, 2, 1, 4, 3, 5]}[os.environ.get("MORD", "")]
            if order != [0, 1, 2, 3, 4, 5]:
                S_ = X[0] + X[1] + X[2] + X[3]
                slots = order[:order.index(4)]
                for k in range(4): X[k] = []
                cap = {0: 1, 2: 1, 1: 2, 3: 2}
                for k in reversed(slots):
                    n_ = cap[k] + (1 if S_ and S_[-1] == "@TOP" else 0)
                    X[k] = S_[-n_:] if k != slots[0] else S_
                    S_ = S_[:-n_] if k != slots[0] else []
            for k in order:
                body.append(M[k])
                body += X[k]
                for _ in range(ne[k]): body.append(E.pop(0))
    top = body.index("@TOP")
    first, second = body[:top], body[top+1:]
    A("s_branch L_at_pre_entry")
    A.label("L_at_switch")
    for t in range(4):
        A(f"v_mov_b32 v{vXd+t}, v{vWd+t}")
    A("s_mov_b32 s44, s72")
    A("s_mov_b32 s45, s73")
    A("s_mov_b32 s46, 0x200000")
    A("s_lshl_b32 s32, s30, 18")
    A("s_mov_b32 s33, 0x40000")
    A("s_mov_b32 s38, 0x1fffff")
    A("s_branch L_at_top_bar")
    A.raw(".p2align 6")
    A.label("L_at_top_bar")
    A(f"s_waitcnt vmcnt(2)")
    A("s_barrier")
    A.label("L_at_top")
    tstamp(A)
    A(f"v_add_u32 v{vKV}, s71, v{vLane16}")
    for x in second: A(x)
    A.label("L_at_pre_entry")
    A(first[0]); A("s_add_u32 m0, m0, 0x4000")
    for x in first[1:5]: A(x)
    A("s_add_u32 s32, s32, s33")
    A("s_and_b32 s32, s32, s38")
    rest = first[5:]
    ex = rest.index("@EXIT")
    for x in rest[:ex]: A(x)
    A("s_cbranch_scc1 L_at_exit")
    for x in rest[ex+1:]: A(x)
    A("s_cbranch_scc0 L_at_top")
    A("s_cbranch_vccz L_at_top_bar")
    A("s_branch L_at_switch")
    A.label("L_at_exit")
    for x in rest[ex+1:ex+3]: A(x)
    TU = [(60, u) for u in range(4)] + [(t, u) for u in range(4) for t in (61, 62, 63)]
    kreg = lambda t: KB0 if t == 60 else 64 + 16*(t - 61)
    vreg = lambda t: (VB0 + 8 if t == 59 else VB0) if t <= 60 else 64 + 16*(t - 61) + 8
    def PVt(p):
        t, u = TU[p] if p >= 0 else (59, 3)
        sb = S0 + 16*(p % 4)
        return [
            f"v_smfmac_f32_32x32x32_bf16 {vr(O0+16*u,16)}, {ar(vreg(t),4)}, {vr(sb,8)}, v{vIDX}",
            f"v_smfmac_f32_32x32x32_bf16 {vr(O0+16*u,16)}, {ar(vreg(t)+4,4)}, {vr(sb+8,8)}, v{vIDX}",
            f"v_smfmac_f32_16x16x64_bf16 {ar(L0+4*u,4)}, {ar(SEL,4)}, {vr(sb,8)}, v{vIDX}",
            f"v_smfmac_f32_16x16x64_bf16 {ar(L0+4*u,4)}, {ar(SEL,4)}, {vr(sb+8,8)}, v{vIDX}",
        ]
    vSc, vSum = vT0, vT2
    def fin_valu(u):
        L = [f"v_accvgpr_read_b32 v{vSc}, a{L0+4*u}", f"v_accvgpr_read_b32 v{vSc+1}, a{L0+4*u}", "s_nop 1",
             f"v_permlane32_swap_b32 v{vSc}, v{vSc+1}", "s_nop 1",
             f"v_add_f32 v{vSum}, v{vSum}, v{vSc}", f"v_rcp_f32 v{vSc}, v{vSc}", "s_nop 0",
             f"v_mul_f32 v{vSc}, v{vSc}, v{vG+(u&1)}"]
        for j in range(0, 16, 2):
            L.append(f"v_pk_mul_f32 {vr(O0+16*u+j,2)}, {vr(O0+16*u+j,2)}, {vr(vSc,2)} op_sel_hi:[1,0]")
        for j in range(8):
            L.append(f"v_cvt_pk_bf16_f32 v{C0+16*u+j}, v{O0+16*u+2*j}, v{O0+16*u+2*j+1}")
        return L
    def fin_st(u):
        a, t = u >> 1, u & 1
        return [f"buffer_store_dwordx4 {vr(C0+16*u+4*f,4)}, v{vLane16}, s[16:19], s{40+t} offen offset:{2048*a+1024*f} sc1" for f in range(2)]
    rdK = lambda t: [f"ds_read_b128 {ar(kreg(t)+4*f,4)}, v{vKV} offset:{4096*(t-56)+1024*f}" for f in range(2)]
    rdV = lambda t: [f"ds_read_b128 {ar(vreg(t)+4*f,4)}, v{vKV} offset:{4096*(t-56)+2048+1024*f}" for f in range(2)]
    RD = [rdK(61), rdK(62), rdV(61), rdK(63), rdV(62), rdV(63)]
    nxt = ["s_add_u32 s34, s34, 0x40000", "s_and_b32 s34, s34, 0x1fffff"]
    def wpair(dst, pre=()):
        return [(list(pre) + [f"s_add_u32 m0, s36, {dst}"], ldw(0)), ([], ldw(1)), ([], ldw(2)), ([], ldw(3))]
    WA = wpair(0x20000, ["s_mov_b32 s34, s32"]) + wpair(0x24000, nxt)
    WB = wpair(0x10000, nxt) + wpair(0x14000, nxt)
    WB += wpair(0x18000, nxt + ["s_mov_b32 s12, s74", "s_mov_b32 s13, s75"]) + wpair(0x1c000, nxt)
    for p in range(16):
        t, u = TU[p]
        P = PVt(p - 1)
        if p < 15:
            t1, u1 = TU[p + 1]; sb = S0 + 16*((p + 1) % 4)
            q0 = f"v_mfma_f32_32x32x16_bf16 {vr(sb,16)}, {ar(kreg(t1),4)}, {vr(Q0+8*u1,4)}, {vr(C0+16*u1,16)}"
            q1 = f"v_mfma_f32_32x32x16_bf16 {vr(sb,16)}, {ar(kreg(t1)+4,4)}, {vr(Q0+8*u1+4,4)}, {vr(sb,16)}"
        else: q0 = q1 = None
        M = [q0, P[0], q1, P[1], P[2], P[3]]
        X = [[] for _ in range(6)]
        XV = [[] for _ in range(6)]
        if p <= 6: X[3].append("s_waitcnt lgkmcnt(0)")
        if p < 6: X[4].append(RD[p][0]); X[5].append(RD[p][1])
        def put(W, k):
            pre, ld = W.pop(0)
            X[k-1] += pre; X[k].append(ld)
        if 1 <= p <= 4: put(WA, 1); put(WA, 3)
        if p == 0:
            X[1] += ["s_cmp_eq_u32 s28, 0", "s_cselect_b32 s50, 1.0, -1.0"]
            X[2] += ["s_cselect_b32 s51, 0, 1.0"]
            XV[3] += [f"v_mov_b32 v{vSum}, s51", f"v_fma_f32 v{vG}, v{vG}, s50, v{vSum}", f"v_fma_f32 v{vG+1}, v{vG+1}, s50, v{vSum}",
                      f"v_mov_b32 v{vSum}, 0"]
        if p == 6:
            X[3] = ["s_waitcnt vmcnt(9) lgkmcnt(0)", "s_barrier"]
        fu = {8: 0, 11: 1, 14: 2}.get(p)
        if p >= 6:
            if WB: put(WB, 4)
            if fu is None:
                if WB: put(WB, 5)
            else:
                X[5] += fin_st(fu)
        if fu is not None:
            FV = [x for x in fin_valu(fu) if x != "s_nop 1"]
            XV[1] += FV[:2]; XV[2] += FV[2:3]; XV[3] += FV[3:15]; XV[4] += FV[15:]
        E = [f"v_exp_f32 v{S0+16*(p%4)+j}, v{S0+16*(p%4)+j}" for j in range(16)]
        ne = [3, 3, 3, 3, 2, 2]
        for k in range(6):
            if M[k]: A(M[k])
            emit(X[k])
            for _ in range(ne[k]): A(E.pop(0))
            emit(XV[k])
    assert not WA and not WB
    stamp(A, 5)
    gstamp(A, 0)
    tstamp(A, "2")
    P3 = PVt(15)
    A(P3[2]); emit(nxt); A(P3[3]); A(P3[0]); A(P3[1])
    A("s_nop 5")
    FV = fin_valu(3)
    emit(FV[:7])
    A(f"v_cmp_ngt_f32 vcc, {0x4e800000 if 'forceslow' not in VAR else 0x3f000000:#x}, v{vSum}")
    emit(FV[8:])
    emit(fin_st(3))
    A("s_cmp_lg_u64 vcc, 0")
    if "lx" not in VAR: A("s_cbranch_scc1 L_at_slow")
    A.label("L_at_done")
    gen_out(A)
    A.label("L_at_slow")
    A("s_waitcnt vmcnt(0) lgkmcnt(0)")
    A("s_lshl_b32 s39, s28, 18")
    A("s_add_u32 s44, s26, s39")
    A("s_addc_u32 s45, s27, 0")
    A("s_mov_b32 s46, 0x40000")
    for u in range(4):
        A(f"v_mov_b32 v{O0+u}, 0xff7fffff")
    A("s_mov_b32 s39, 0")
    A.label("L_at_slow1")
    A(f"buffer_load_dwordx4 {ar(KB0,4)}, v{vLane16}, s[44:47], s39 offen sc1")
    A(f"buffer_load_dwordx4 {ar(KB0+4,4)}, v{vLane16}, s[44:47], s39 offen offset:1024 sc1")
    A("s_waitcnt vmcnt(0)")
    for u in range(4):
        for x in QK(u, "0"): A(x)
    A("s_nop 15")
    for u in range(4):
        for j in range(0, 16, 2):
            A(f"v_max3_f32 v{O0+u}, v{O0+u}, v{S0+16*u+j}, v{S0+16*u+j+1}")
    A("s_add_u32 s39, s39, 0x1000")
    A("s_cmp_lt_u32 s39, 0x40000")
    A("s_cbranch_scc1 L_at_slow1")
    for u in range(4):
        A(f"v_mov_b32 v{S0+16*u}, v{O0+u}")
        emit(fill_C(u, S0+16*u))
    for i in range(16):
        A(f"v_accvgpr_write_b32 a{L0+i}, 0")
    for i in range(64):
        A(f"v_mov_b32 v{O0+i}, 0")
    A("s_mov_b32 s39, 0")
    A.label("L_at_slow2")
    A(f"buffer_load_dwordx4 {ar(KB0,4)}, v{vLane16}, s[44:47], s39 offen sc1")
    A(f"buffer_load_dwordx4 {ar(KB0+4,4)}, v{vLane16}, s[44:47], s39 offen offset:1024 sc1")
    A(f"buffer_load_dwordx4 {ar(VB0,4)}, v{vLane16}, s[44:47], s39 offen offset:2048 sc1")
    A(f"buffer_load_dwordx4 {ar(VB0+4,4)}, v{vLane16}, s[44:47], s39 offen offset:3072 sc1")
    A("s_waitcnt vmcnt(0)")
    for u in range(4):
        for x in QK(u, vr(C0+16*u, 16)): A(x)
    A("s_nop 15")
    for j in range(64):
        A(f"v_exp_f32 v{S0+j}, v{S0+j}")
    A("s_nop 1")
    for u in range(4):
        for x in PV(u, 0): A(x)
    A("s_nop 15")
    A("s_add_u32 s39, s39, 0x1000")
    A("s_cmp_lt_u32 s39, 0x40000")
    A("s_cbranch_scc1 L_at_slow2")
    A("s_nop 15")
    for u in range(4):
        emit(fin_valu(u)); emit(fin_st(u))
    A("s_branch L_at_done")
    A.label("L_at_end")
    A("s_endpgm")
    return kernel_desc(name, 512, 256, 102)

def gen_out(A):
    LD = 8
    vL, vH, vL31, vW_ = 1, 2, 3, 4
    vOd, vWd = 28, 12
    vWr, vWr0 = 8, 16
    vT0, vT1, vPl = 18, 19, 27
    ACC = 32
    WF = 128
    OFr = 192
    def wreg(st, s, c, n=4, o=0):
        i = 8*s + 4*c + o
        if st < 2: return vr(WF + 32*st + i, n)
        if st < 10: return ar(32*(st - 2) + i, n)
        return vr(64 + 32*(st - 10) + i, n)
    def stash(st):
        R = []
        for s in range(4):
            for c in range(2):
                wo = (st % 8)*0x2000 + 2048*s
                R += [f"ds_read_b64_tr_b16 {wreg(st,s,c,2,0)}, v{vWr+c} offset:{wo}",
                      f"ds_read_b64_tr_b16 {wreg(st,s,c,2,2)}, v{vWr+c} offset:{wo+1024}"]
        return R
    gstamp(A, 2)
    def dma_W():
        ldw = lambda t: f"buffer_load_dwordx4 v{vWd+t}, s[12:15], s34 offen offset:{1024*t} lds"
        return [["s_mov_b32 m0, s35", "s_add_u32 s35, s35, 0x4000", ldw(0)], [ldw(1)], [ldw(2)],
                [ldw(3), "s_add_u32 s34, s34, 0x40000", "s_and_b32 s34, s34, 0x1fffff"]]
    def fl(I):
        for x in I:
            for y in x: A(y)
    def mix(R, D, k):
        while R or D:
            for _ in range(k):
                if R: A(R.pop(0))
            if D:
                for y in D.pop(0): A(y)
    A(f"v_mov_b32 v{vWr}, v{vWr0}")
    A(f"v_mov_b32 v{vWr+1}, v{vWr0+1}")
    A("s_cmp_eq_u32 s20, 0")
    A("s_cselect_b32 s53, 0, -1")
    A("s_mov_b32 s35, s36")
    for st in (2, 3, 1, 0):
        for x in stash(st): A(x)
    gstamp(A, 3)
    A("s_waitcnt vmcnt(0) lgkmcnt(0)")
    A("s_barrier")
    gstamp(A, 4)
    tstamp(A, "2")
    stamp(A, 6)
    A("s_cmp_lg_u32 s20, 0")
    A("s_cbranch_scc1 L_o_nosig")
    A(f"v_mov_b32 v{vT1}, 1")
    A(f"v_mov_b32 v{vPl}, 0")
    A("s_mov_b64 exec, 1")
    A(f"buffer_atomic_swap v{vT1}, v{vPl}, s[16:19], s69 offen sc1")
    A("s_mov_b64 exec, -1")
    A.label("L_o_nosig")
    def ld_O(j):
        I = [f"buffer_load_dwordx4 {vr(OFr+4*(j%16),4)}, v{vOd}, s[8:11], s3 offen offset:{1024*(j%4)} sc1"]
        if j % 4 == 3: I += ["s_add_u32 s3, s3, 0x1000", "s_and_b32 s3, s3, 0xffff"]
        return I
    for j in range(8):
        for y in ld_O(j): A(y)
    mix(stash(4) + stash(5) + stash(6) + stash(7), dma_W() + dma_W(), 8)
    A(f"v_add_u32 v{vWr}, 0x20000, v{vWr0}")
    A(f"v_add_u32 v{vWr+1}, 0x20000, v{vWr0+1}")
    A("s_waitcnt lgkmcnt(0)")
    A("s_barrier")
    mix(stash(8) + stash(9) + stash(10) + stash(11), dma_W() + dma_W(), 8)
    def mf(st, s, c, j):
        w = wreg(st, s, c) if st < 12 else vr(WF + 32*(st % 2) + 8*s + 4*c, 4)
        if "fakeo16" in VAR:
            q = ACC + 16*c + 8*(j % 2)
            return (f"v_mfma_f32_16x16x32_bf16 {vr(q,4)}, {w}, {vr(OFr+4*(j%16),4)}, {vr(q,4)}\n"
                    f"v_mfma_f32_16x16x32_bf16 {vr(q+4,4)}, {w}, {vr(OFr+4*((j+15)%16),4)}, {vr(q+4,4)}")
        return f"v_mfma_f32_32x32x16_bf16 {vr(ACC+16*c,16)}, {w}, {vr(OFr+4*(j%16),4)}, {vr(ACC+16*c,16) if (st, s) != (0, 0) else 0}"
    gstamp(A, 5)
    A("s_add_u32 s35, s36, 0x20000")
    A("s_waitcnt vmcnt(16) lgkmcnt(0)")
    A("s_barrier")
    A("s_cmp_lg_u32 s20, 0")
    A("s_cbranch_scc1 L_o_nopoll")
    A(f"buffer_load_dword v{vPl}, v{vT0}, s[16:19], s6 offen sc1")
    A.label("L_o_nopoll")
    D = dma_W() + dma_W()
    for j in range(8):
        A(mf(j // 4, j % 4, 0, j)); A(mf(j // 4, j % 4, 1, j))
        for y in D.pop(0): A(y)
    gstamp(A, 6)
    A("s_mov_b32 s54, 0xff")
    A("s_cmp_lg_u32 s20, 0")
    A("s_cbranch_scc1 L_o_ready0")
    A("s_waitcnt vmcnt(8)")
    A(f"v_cmp_eq_u32 vcc, 1, v{vPl}")
    A("s_nop 4")
    A("s_mov_b32 s53, vcc_lo")
    A("s_and_b32 s50, s53, s54")
    A("s_cmp_lg_u32 s50, s54")
    A("s_cbranch_scc1 L_o_poll0")
    A.label("L_o_ready0")
    A("s_barrier")
    gstamp(A, 7)
    stamp(A, 7)
    tstamp(A, "2")
    for j in range(8, 16):
        for y in ld_O(j): A(y)
    def rd_W(st):
        R = []
        for s in range(4):
            for c in range(2):
                b = WF + 32*(st % 2) + 8*s + 4*c
                wo = st*0x2000 + 2048*s
                R += [f"ds_read_b64_tr_b16 {vr(b,2)}, v{vWr+c} offset:{wo}",
                      f"ds_read_b64_tr_b16 {vr(b+2,2)}, v{vWr+c} offset:{wo+1024}"]
        return R
    def stage(st, stw, rd, extra=None):
        for s in range(4):
            j = 4*st + s
            A(f"s_waitcnt vmcnt(7) lgkmcnt(12)" if stw >= 12 else "s_waitcnt vmcnt(7)")
            for c in range(2):
                A(mf(stw, s, c, j))
                for _ in range(2):
                    if rd: A(rd.pop(0))
                if c == 0:
                    for y in ld_O(j + LD): A(y)
                elif extra:
                    for y in extra.pop(0): A(y)
    A(f"v_add_u32 v{vWr}, 0x10000, v{vWr0}")
    A(f"v_add_u32 v{vWr+1}, 0x10000, v{vWr0+1}")
    A("s_mov_b32 s37, 0x10000")
    A("s_mov_b32 s39, 3")
    if "fulline" in VAR:
        A(f"v_and_b32 v24, 7, v{vL31}")
        A(f"v_xor_b32 v24, v24, v{vH}")
        A(f"v_lshlrev_b32 v24, 4, v24")
        A(f"v_lshl_add_u32 v24, v{vL31}, 7, v24")
        A("s_add_u32 s50, s36, 0x10000")
        A(f"v_add_u32 v20, s50, v24")
        for k in range(1, 4):
            A(f"v_xor_b32 v{20+k}, {32*k}, v20")
        A(f"v_add_u32 v24, s50, v{vOd}")
        A(f"v_lshrrev_b32 v25, 3, v{vL}")
        A(f"v_and_b32 v26, 7, v{vL}")
        A(f"v_xor_b32 v26, v26, v25")
        A(f"v_lshlrev_b32 v26, 4, v26")
        A(f"v_lshl_add_u32 v25, v25, 11, v26")
    for st in range(2, 12):
        stage(st % 4, st, rd_W(0) if st == 11 else None)
    A("s_mov_b32 s54, 0xffff")
    A("s_and_b32 s50, s53, s54")
    A("s_cmp_lg_u32 s50, s54")
    A("s_cbranch_scc1 L_o_poll1")
    A.label("L_o_ready1")
    A("s_barrier")
    A.raw(".p2align 6")
    A.label("L_o_loop")
    tstamp(A, "2")
    stage(0, 12, rd_W(1), [["s_add_u32 s37, s37, 0x8000", "s_and_b32 s37, s37, 0x1ffff"], ["s_cmp_eq_u32 s39, 6", "s_cselect_b32 s37, 0x20000, s37"]])
    stage(1, 13, rd_W(2))
    A("s_mov_b32 s8, s4")
    A("s_mov_b32 s9, s5")
    A("s_cmp_eq_u32 s39, 7")
    A("s_cbranch_scc1 L_o_tail")
    stage(2, 14, rd_W(3), [["s_add_u32 s39, s39, 1"]])
    A(f"v_add_u32 v{vWr}, s37, v{vWr0}")
    A(f"v_add_u32 v{vWr+1}, s37, v{vWr0+1}")
    stage(3, 15, rd_W(0))
    A("s_branch L_o_loop")
    A.label("L_o_tail")
    if "fulline" in VAR: A("s_barrier")
    R3 = rd_W(3)
    for j in range(8, 16):
        st, sq = j // 4, j % 4
        A(f"s_waitcnt vmcnt({15 - j}) lgkmcnt({12 if j < 12 else 4*(15-j)})")
        for c in range(2):
            A(mf(12 + st, sq, c, j))
            for _ in range(2):
                if R3: A(R3.pop(0))
    A("s_mov_b32 s40, s43")
    A("s_nop 2")
    OST = os.environ.get('OST', 'nt')
    if "fulline" not in VAR:
        A(f"v_lshlrev_b32 v{vT0}, 11, v{vL31}")
        A(f"v_lshl_add_u32 v{vT0}, v{vH}, 4, v{vT0}")
        A("s_nop 7")
        for c in range(2):
            for j in range(8):
                A(f"v_cvt_pk_bf16_f32 v{64+8*c+j}, v{ACC+16*c+2*j}, v{ACC+16*c+2*j+1}")
            for f in range(2):
                A(f"buffer_store_dwordx4 {vr(64+8*c+4*f,4)}, v{vT0}, s[56:59], s40 offen offset:{64*c+32*f} {OST}")
    else:
        A("s_nop 7")
        for c in range(2):
            for j in range(8):
                A(f"v_cvt_pk_bf16_f32 v{64+8*c+j}, v{ACC+16*c+2*j}, v{ACC+16*c+2*j+1}")
            for f in range(2):
                A(f"ds_write_b128 v{20+2*c+f}, {vr(64+8*c+4*f,4)}")
        A("s_waitcnt lgkmcnt(0)")
        for i in range(4):
            A(f"ds_read_b128 {vr(80+4*i,4)}, v24 offset:{1024*i}")
        for i in range(4):
            A(f"s_waitcnt lgkmcnt({3-i})")
            A(f"buffer_store_dwordx4 {vr(80+4*i,4)}, v25, s[56:59], s40 offen {OST}")
            A("s_add_u32 s40, s40, 0x4000")
    if TS == "2":
        tstamp(A, "2")
        A("s_waitcnt vmcnt(0)")
        tstamp(A, "2")
    if STAMP:
        A("s_waitcnt vmcnt(0)")
        _stamp(A, 1)
        stamp_flush(A, 0, 8, 26, 27, 20)
    A("s_endpgm")
    for k in (1, 0):
        tgt = f"L_o_ready{k}"
        A.label(f"L_o_poll{k}")
        A("s_mov_b32 s48, 0")
        A.label(f"L_o_spin{k}")
        A(f"buffer_load_dword v{vPl}, v{vT0}, s[16:19], s6 offen sc1")
        A("s_waitcnt vmcnt(0)")
        A(f"v_cmp_eq_u32 vcc, 1, v{vPl}")
        A("s_add_u32 s48, s48, 1")
        A("s_cmp_gt_u32 s48, 0x40000")
        A(f"s_cbranch_scc1 {tgt}")
        A("s_nop 2")
        A("s_mov_b32 s53, vcc_lo")
        A("s_and_b32 s50, s53, s54")
        A("s_cmp_eq_u32 s50, s54")
        A(f"s_cbranch_scc1 {tgt}")
        A(f"s_sleep {int(os.environ.get('SLEEP', '2'))}")
        A(f"s_branch L_o_spin{k}")

def main(path):
    ref = open("cdna_kernels/" + NAME + ".s.ref").read().split("\n")
    hdr = [l for l in ref if l.startswith(";") and "@launch" not in l and "Override" not in l and "grid=ceil" not in l]
    B = Asm()
    d1 = gen_attn(B)
    A = Asm()
    for l in hdr: A.raw(l)
    A.raw(f"; @launch grid=(256,1,1) block=(256,1,1) lds={LDS_ATTN}")
    A.raw('.amdgcn_target "amdgcn-amd-amdhsa--gfx950"')
    A.raw(".text")
    A.lines += B.lines
    A.raw("L_code_end:")
    A.raw('.section .rodata,"a"')
    for d in (d1,):
        A.raw(".p2align 6")
        A.raw(d)
    open(path, "w").write(A.text())

if __name__ == "__main__":
    main(sys.argv[1] if len(sys.argv) > 1 else "cdna_kernels/" + NAME + ".s")
```

```python
import sys, math, struct, os
from asmlib import *

NAME = "gated_mix__grouped_kv_mqa__grouped_kv_mqa__prompt"
WS_KV = 0
WS_G = 0x80000
WS_FL = 0x90000
WS_OF = 0x100000
WS_USED = 0x900000
STAMP = os.environ.get("STAMP", "0") == "1"
VAR = os.environ.get("VAR", "")
XNT = "nt" if "xnt" in VAR else ""
WNT = "nt" if "wnt" in VAR else ""
WS_ST = 0xA00000

MINST = os.environ.get("MINST", "0") == "1"
FINE = os.environ.get("FINE", "0") == "1" or MINST
TS = os.environ.get("TS", "0")
def tstamp(A, ph="1"):
    if TS != ph: return
    A("s_waitcnt lgkmcnt(0)")
    A("s_memtime s[96:97]")
    A("s_memrealtime s[98:99]")
    A("s_waitcnt lgkmcnt(0)")
    A("v_mov_b32 v6, s96")
    A("v_mov_b32 v7, s98")
    A("v_mov_b32 v5, 0")
    A("buffer_store_dwordx2 v[6:7], v5, s[92:95], s100 offen")
    A("s_add_u32 s100, s100, 8")
def tstamp_init(A, wsl, wsh, wave_sgpr, kern):
    if TS == "0": return
    A(f"s_mov_b32 s92, s{wsl}")
    A(f"s_mov_b32 s93, s{wsh}")
    A(f"s_mov_b32 s94, {0xC00000}")
    A("s_mov_b32 s95, 0x00020000")
    A("s_lshl_b32 s100, s2, 2")
    A(f"s_add_u32 s100, s100, s{wave_sgpr}")
    A("s_lshl_b32 s100, s100, 9")
    A(f"s_add_u32 s100, s100, {0xA00000 + kern*0x80000}")
FINE2 = os.environ.get("FINE2", "0") == "1"
def gstamp(A, k):
    if FINE2: _stamp(A, k)
def fstamp(A, k):
    if FINE and not MINST: _stamp(A, k)
def stamp(A, k):
    if FINE and k not in (0,): return
    if FINE2: return
    _stamp(A, k)
def _stamp(A, k):
    if not STAMP: return
    A("s_waitcnt lgkmcnt(0)")
    A(f"s_memtime s[96:97]")
    A(f"s_memrealtime s[98:99]")
    A("s_waitcnt lgkmcnt(0)")
    A(f"s_mov_b32 s{76+k}, s96")
    A(f"s_mov_b32 s{84+k}, s98")
def stamp_flush(A, kern, n, wsl, wsh, wave_sgpr):
    if not STAMP: return
    A(f"s_mov_b32 s92, s{wsl}")
    A(f"s_mov_b32 s93, s{wsh}")
    A(f"s_mov_b32 s94, {WS_ST + 0x40000}")
    A("s_mov_b32 s95, 0x00020000")
    A("s_lshl_b32 s96, s2, 2")
    A(f"s_add_u32 s96, s96, s{wave_sgpr}")
    A("s_lshl_b32 s96, s96, 6")
    A(f"s_add_u32 s96, s96, {WS_ST + kern*0x10000}")
    A("v_mov_b32 v1, 0")
    for k in range(n):
        A(f"v_mov_b32 v2, s{76+k}")
        A(f"buffer_store_dword v2, v1, s[92:95], s96 offen offset:{4*k}")
        A("s_nop 1")
        A(f"v_mov_b32 v2, s{84+k}")
        A(f"buffer_store_dword v2, v1, s[92:95], s96 offen offset:{32+4*k}")
        A("s_nop 1")

def f32bits(x):
    return struct.unpack("<I", struct.pack("<f", x))[0]
KSCALE = f32bits(math.log2(math.e) / math.sqrt(32.0))
LOG2E = f32bits(math.log2(math.e))

def take_(L, n):
    r = L[:n]; del L[:n]; return r

def weave(A, M, streams):
    for k, m in enumerate(M):
        A(m)
        for items, q in streams:
            for _ in range(q(k)):
                if items:
                    x = items.pop(0)
                    if isinstance(x, (list, tuple)):
                        for y in x: A(y)
                    else: A(x)
    for items, q in streams:
        while items:
            x = items.pop(0)
            if isinstance(x, (list, tuple)):
                for y in x: A(y)
            else: A(x)

LDS_SCR = 0x14000
LDS_SCG = 0x1C000
LDS_DUMMY = 0x27C00
LDS_ATTN = 163840

def gen_attn(A):
    name = NAME + "_kernel"
    kernel_header(A, name)
    S0, C0, O0, Q0 = 32, 96, 160, 224
    L0, KB0, VB0, SEL, GF, FR = 0, 16, 32, 48, 0, 128
    vL, vH, vL31, vW_ = 1, 2, 3, 4
    vXd, vWd = 8, 12
    vXr, vWr = 16, 20
    vKV, vIDX, vT0, vT1, vG = 22, 23, 24, 25, 26
    vLane16, vLin, vPoll, vT2 = 28, 29, 30, 31
    ACC = S0
    PACC, GACC = Q0, Q0 + 4
    vPd, vPr, vPw = C0, C0 + 4, C0 + 8
    vRed = C0 + 12
    A("s_cmp_ge_u32 s2, 256")
    A("s_cbranch_scc1 L_at_end")
    stamp(A, 0)
    if "epf" in VAR:
        A("s_getpc_b64 s[72:73]")
        for k in range(1, 7):
            A(f"s_load_dword s74, s[72:73], {128*k}")
    A("s_load_dwordx8 s[4:11], s[0:1], 0")
    A("s_load_dwordx2 s[64:65], s[0:1], 32")
    A("s_load_dwordx8 s[12:19], s[0:1], 48")
    A("s_load_dwordx2 s[66:67], s[0:1], 80")
    A("s_load_dwordx4 s[24:27], s[0:1], 96")
    if "perm" in VAR:
        A("s_bfe_u32 s28, s2, 0x30003")
        A("s_lshr_b32 s29, s2, 6")
        A("s_and_b32 s2, s2, 7")
        A("s_lshl_b32 s28, s28, 5")
        A("s_lshl_b32 s29, s29, 3")
        A("s_or_b32 s2, s2, s28")
        A("s_or_b32 s2, s2, s29")
    if "swapb" in VAR: A("s_xor_b32 s2, s2, 1")
    A("s_and_b32 s28, s2, 1")
    A("s_bfe_u32 s29, s2, 0x20001")
    A("s_bfe_u32 s30, s2, 0x20003")
    A("s_lshl_b32 s29, s29, 2")
    A("s_add_u32 s29, s29, s30")
    A("s_lshr_b32 s30, s2, 5")
    A("s_lshr_b32 s31, s2, 7")
    A("s_and_b32 s23, s30, 3")
    A("s_lshl_b32 s33, s29, 2")
    A("s_add_u32 s33, s33, s23")
    A("s_lshl_b32 s34, s31, 1")
    A("s_add_u32 s34, s34, s23")
    A("s_and_b32 s34, s34, 3")
    A("s_lshl_b32 s37, s30, 1")
    if True:
        A("s_and_b32 s38, s29, 12")
        A("s_add_u32 s37, s37, s38")
        if "rotgb" in VAR: A("s_add_u32 s37, s37, s28")
        A("s_and_b32 s37, s37, 15")
    A("s_lshl_b32 s38, s29, 18")
    A("s_lshl_b32 s39, s30, 8")
    A(f"v_lshrrev_b32 v{vW_}, 6, v0")
    A(f"v_and_b32 v{vL}, 63, v0")
    A(f"v_readfirstlane_b32 s20, v{vW_}")
    A(f"v_lshrrev_b32 v{vH}, 5, v{vL}")
    A(f"v_and_b32 v{vL31}, 31, v{vL}")
    A(f"v_lshlrev_b32 v{vLane16}, 4, v{vL}")
    A(f"v_lshl_add_u32 v{vLin}, v{vW_}, 12, v{vLane16}")
    A(f"v_lshrrev_b32 v{vT0}, 3, v{vL}")
    A(f"v_lshl_add_u32 v{vT0}, v{vW_}, 5, v{vT0}")
    A(f"v_lshlrev_b32 v{vT0}, 11, v{vT0}")
    A(f"v_lshrrev_b32 v{vT1}, 4, v{vL}")
    A(f"v_and_b32 v5, 7, v{vL}")
    A(f"v_xor_b32 v5, v5, v{vT1}")
    A(f"v_lshl_add_u32 v{vXd}, v5, 4, v{vT0}")
    A(f"v_xor_b32 v{vXd+1}, 64, v{vXd}")
    A(f"v_add_u32 v{vXd+1}, {16384-1024}, v{vXd+1}")
    A(f"v_add_u32 v{vXd+2}, {2*(16384-1024)}, v{vXd}")
    A(f"v_add_u32 v{vXd+3}, {2*(16384-1024)}, v{vXd+1}")
    A(f"v_lshl_add_u32 v{vT0}, v{vW_}, 4, v{vT1}")
    A(f"v_lshlrev_b32 v{vT0}, 11, v{vT0}")
    A(f"v_lshlrev_b32 v{vT1}, 2, v{vT1}")
    A(f"v_and_b32 v5, 15, v{vL}")
    A(f"v_xor_b32 v5, v5, v{vT1}")
    A(f"v_lshl_add_u32 v{vWd}, v5, 4, v{vT0}")
    for t in range(1, 4):
        A(f"v_add_u32 v{vWd+t}, {t*(8192-1024)}, v{vWd}")
    A("s_waitcnt lgkmcnt(0)")
    fstamp(A, 1)
    if os.environ.get("WSOFF"):
        A(f"s_add_u32 s26, s26, {int(os.environ['WSOFF'], 0)}")
        A("s_addc_u32 s27, s27, 0")
    A("s_cmp_eq_u32 s28, 1")
    A("s_cselect_b64 s[6:7], s[12:13], s[6:7]")
    A("s_cselect_b64 s[8:9], s[14:15], s[8:9]")
    A("s_cselect_b64 s[10:11], s[16:17], s[10:11]")
    A("s_cselect_b64 s[72:73], s[18:19], s[64:65]")
    A("s_cselect_b64 s[74:75], s[64:65], s[18:19]")
    A("s_cmp_eq_u32 s31, 1")
    A("s_cselect_b64 s[8:9], s[10:11], s[8:9]")
    A("s_cselect_b64 s[64:65], s[18:19], s[64:65]")
    srd(A, 40, 8, 9, 1024*32*2)
    srd(A, 8, 4, 5, 2048*1024*2)
    srd(A, 12, 6, 7, 1024*1024*2)
    srd(A, 56, 66, 67, 2048)
    A("s_lshl_b32 s36, s20, 12")
    A("s_lshl_b32 s35, s33, 16")
    A("s_mov_b32 s71, s36")
    A("s_add_u32 s32, s36, 0x28000")
    A("s_and_b32 s23, s29, 3")
    PARK = ()
    adv = ["s_add_u32 s71, s71, 0x8000", "s_cmp_eq_u32 s71, s32", "s_cselect_b32 s71, s36, s71"]
    def dma_P():
        I = []
        I.append([f"s_mov_b32 m0, s71", "s_lshl_b32 s48, s34, 9", "s_add_u32 s48, s48, s35",
                  f"buffer_load_dwordx4 v{vPd}, s[8:11], s48 offen lds"])
        for t in range(1, 4):
            I.append(f"buffer_load_dwordx4 v{vPd+t}, s[8:11], s48 offen offset:{1024*t} lds")
        I.append([f"s_add_u32 m0, s71, 0x4000", "s_lshl_b32 s49, s34, 14",
                  f"buffer_load_dwordx4 v{vLin}, s[40:43], s49 offen lds"])
        for t in range(1, 4):
            I.append(f"buffer_load_dwordx4 v{vLin}, s[40:43], s49 offen offset:{1024*t} lds")
        I.append(["s_add_u32 s34, s34, 1", "s_and_b32 s34, s34, 3"] + adv)
        return I
    def dma_G():
        I = []
        I.append([f"s_mov_b32 m0, s71", "s_lshl_b32 s48, s37, 7", "s_add_u32 s48, s48, s38",
                  f"buffer_load_dwordx4 v{vXd}, s[8:11], s48 offen lds"])
        for t in range(1, 4):
            I.append(f"buffer_load_dwordx4 v{vXd+t}, s[8:11], s48 offen offset:{1024*t} lds")
        I.append([f"s_add_u32 m0, s71, 0x4000", "s_lshl_b32 s49, s37, 17", "s_add_u32 s49, s49, s39",
                  f"buffer_load_dwordx4 v{vWd}, s[12:15], s49 offen lds"])
        for t in range(1, 4):
            I.append(f"buffer_load_dwordx4 v{vWd+t}, s[12:15], s49 offen offset:{1024*t} lds")
        I.append(["s_add_u32 s37, s37, 1", "s_and_b32 s37, s37, 15"] + adv)
        return I
    def dma_C(c):
        slot = (c % 4) * 0x8000
        I = []
        I.append([f"s_add_u32 m0, s36, {slot}", f"s_mov_b32 s48, {c*0x8000}",
                  f"buffer_load_dwordx4 v{vLin}, s[44:47], s48 offen sc1 lds"])
        for t in range(1, 4):
            I.append(f"buffer_load_dwordx4 v{vLin}, s[44:47], s48 offen offset:{1024*t} sc1 lds")
        I.append([f"s_add_u32 m0, s36, {slot+0x4000}", f"s_mov_b32 s49, {c*0x8000+0x4000}",
                  f"buffer_load_dwordx4 v{vLin}, s[44:47], s49 offen sc1 lds"])
        for t in range(1, 4):
            I.append(f"buffer_load_dwordx4 v{vLin}, s[44:47], s49 offen offset:{1024*t} sc1 lds")
        return I
    def flat(I):
        for x in I:
            if isinstance(x, (list, tuple)):
                for y in x: A(y)
            else: A(x)
    ORDER = ["G", "G", "P", "P", "P", "P"] + ["G"] * 14
    PIDX = {n: k for k, n in enumerate([n for n in range(20) if ORDER[n] == "P"])}
    PLAST = max(PIDX)
    def dma(n):
        if n >= 20: return dma_C(n - 20)
        return dma_P() if ORDER[n] == "P" else dma_G()
    flat(dma(0))
    fstamp(A, 2)
    A(f"s_add_u32 m0, s36, 0x20000")
    A("s_bfe_u32 s48, s2, 0x40003")
    A("s_lshl_b32 s48, s48, 12")
    A("s_lshl_b32 s49, s20, 10")
    A("s_add_u32 s48, s48, s49")
    A(f"buffer_load_dwordx4 v{vLane16}, s[40:43], s48 offen lds")
    if "cpf" in VAR:
        A("s_getpc_b64 s[72:73]")
        A.label("L_at_pc")
        A("s_lshr_b32 s48, s2, 3")
        A("s_lshl_b32 s48, s48, 2")
        A("s_add_u32 s48, s48, s20")
        A("s_lshl_b32 s48, s48, 8")
        A("s_min_u32 s48, s48, L_code_end-L_at_pc-256")
        A("s_add_u32 s72, s72, s48")
        A("s_addc_u32 s73, s73, 0")
        for q in range(4):
            A(f"s_load_dword s74, s[72:73], {64*q}")
    if "gtouch" in VAR:
        A(f"v_lshlrev_b32 v{vT0}, 5, v{vL}")
        A(f"buffer_load_dword v{vT0}, s[56:59], 0 offen lds")
    srd(A, 16, 26, 27, WS_USED)
    srd(A, 52, 64, 65, 1024*1024*2)
    srd(A, 60, 24, 25, 256)
    A("s_load_dwordx2 s[64:65], s[0:1], 88")
    A("s_lshl_b32 s48, s28, 18")
    A("s_add_u32 s44, s26, s48")
    A("s_addc_u32 s45, s27, 0")
    A("s_mov_b32 s46, 0x40000")
    A("s_mov_b32 s47, 0x00020000")
    A("s_lshr_b32 s22, s20, 1")
    A("s_and_b32 s21, s20, 1")
    A("s_bfe_u32 s68, s2, 0x40003")
    A("s_lshl_b32 s68, s68, 2")
    A("s_add_u32 s68, s68, s20")
    A("s_lshl_b32 s68, s68, 15")
    A("s_lshl_b32 s69, s28, 10")
    A("s_add_u32 s68, s68, s69")
    if "gateb" in VAR:
        A("s_xor_b32 s70, s28, 1")
        A("s_or_b32 s70, s70, s31")
    elif "gatex" in VAR:
        A("s_and_b32 s70, s33, 1")
        A("s_xor_b32 s70, s70, s28")
        A("s_or_b32 s70, s70, s31")
    else:
        A("s_or_b32 s70, s28, s31")
    A("s_or_b32 s70, s70, s21")
    A(f"v_lshl_add_u32 v{vT0}, v{vW_}, 3, v{vH}")
    A(f"v_and_b32 v{vT1}, 15, v{vT0}")
    A(f"v_xor_b32 v{vT1}, v{vT1}, v{vL31}")
    A(f"v_lshlrev_b32 v{vT1}, 4, v{vT1}")
    A(f"v_lshl_add_u32 v{vPd}, v{vT0}, 11, v{vT1}")
    for t in range(1, 4):
        A(f"v_xor_b32 v{vPd+t}, {(2*t) << 4}, v{vPd}")
        A(f"v_add_u32 v{vPd+t}, {t*(4096-1024)}, v{vPd+t}")
    A(f"v_and_b32 v6, 15, v{vL}")
    A(f"v_lshrrev_b32 v7, 4, v{vL}")
    A(f"v_xor_b32 v{vT0}, v6, v7")
    A(f"v_lshlrev_b32 v{vT0}, 4, v{vT0}")
    A(f"v_lshl_add_u32 v{vT0}, v6, 9, v{vT0}")
    A("s_lshl_b32 s48, s22, 13")
    A(f"v_add_u32 v{vPr}, s48, v{vT0}")
    for s in range(1, 4):
        A(f"v_xor_b32 v{vPr+s}, {64*s}, v{vPr}")
    A(f"v_bfe_u32 v{vT0}, v{vL}, 2, 2")
    A(f"v_lshl_add_u32 v{vT0}, v7, 3, v{vT0}")
    A(f"v_lshlrev_b32 v{vT0}, 6, v{vT0}")
    A(f"v_and_b32 v{vT1}, 3, v{vL}")
    A(f"v_lshl_add_u32 v{vT0}, v{vT1}, 3, v{vT0}")
    A("s_lshl_b32 s48, s21, 5")
    A("s_add_u32 s48, s48, 0x4000")
    A(f"v_add_u32 v{vPw}, s48, v{vT0}")
    A(f"v_bfe_u32 v{vT0}, v{vL}, 1, 3")
    A(f"v_xor_b32 v{vT0}, v{vT0}, v{vH}")
    A(f"v_lshlrev_b32 v{vT0}, 4, v{vT0}")
    A(f"v_lshl_add_u32 v{vT0}, v{vL31}, 7, v{vT0}")
    A(f"s_lshl_b32 s48, s22, 13")
    A(f"v_add_u32 v{vXr}, s48, v{vT0}")
    for s in range(1, 4):
        A(f"v_xor_b32 v{vXr+s}, {(2*s) << 4}, v{vXr}")
    A(f"v_bfe_u32 v{vT0}, v{vL}, 2, 2")
    A(f"v_lshl_add_u32 v{vT1}, v{vH}, 3, v{vT0}")
    A(f"v_lshlrev_b32 v{vT1}, 8, v{vT1}")
    A(f"s_lshl_b32 s48, s21, 1")
    A(f"v_xor_b32 v{vT0}, s48, v{vT0}")
    A(f"v_lshl_add_u32 v{vT1}, v{vT0}, 6, v{vT1}")
    A(f"v_bfe_u32 v{vT0}, v{vL}, 4, 1")
    A(f"v_lshl_add_u32 v{vT1}, v{vT0}, 5, v{vT1}")
    A(f"v_and_b32 v{vT0}, 3, v{vL}")
    A(f"v_lshl_add_u32 v{vT1}, v{vT0}, 3, v{vT1}")
    A(f"v_add_u32 v{vWr}, 0x4000, v{vT1}")
    A(f"v_xor_b32 v{vWr+1}, 64, v{vWr}")
    for i in range(0, 8, 2):
        A(f"v_mov_b64 {vr(PACC+i,2)}, 0")
    for i in range(0, 64, 2):
        A(f"v_mov_b64 {vr(ACC+i,2)}, 0")
    side = []
    side.append(f"v_mov_b32 v{vIDX}, 0xdddddddd")
    side += [f"v_and_b32 v{vT0}, 15, v{vL}", f"v_mov_b32 v{vT1}, 0x3f803f80", f"v_cmp_eq_u32 vcc, 0, v{vT0}", "s_nop 1",
             f"v_cndmask_b32 v{vT2}, 0, v{vT1}, vcc", f"v_cmp_eq_u32 vcc, 4, v{vT0}", "s_nop 1",
             f"v_cndmask_b32 v{vT1}, 0, v{vT1}, vcc",
             f"v_accvgpr_write_b32 a{SEL}, v{vT2}", f"v_accvgpr_write_b32 a{SEL+1}, v{vT2}",
             f"v_accvgpr_write_b32 a{SEL+2}, v{vT1}", f"v_accvgpr_write_b32 a{SEL+3}, v{vT1}"]
    side += [f"v_accvgpr_write_b32 a{L0+i}, 0" for i in range(16)]
    side += [f"v_accvgpr_write_b32 a{VB0+8+i}, 0" for i in range(8)]
    side.append(f"v_mov_b32 v{vKV}, v{vLane16}")
    A(f"v_bfe_u32 v{vT0}, v6, 2, 1")
    A(f"v_bfe_u32 v{vT1}, v6, 3, 1")
    A(f"v_and_b32 v{vRed+8}, 3, v6")
    A(f"v_lshl_add_u32 v{vRed+8}, v{vT0}, 3, v{vRed+8}")
    A(f"v_lshl_add_u32 v{vRed+8}, v{vT1}, 2, v{vRed+8}")
    A("s_cmp_eq_u32 s31, 1")
    A("s_cselect_b64 vcc, -1, 0")
    A("s_cselect_b32 s50, s21, s22")
    A("s_cselect_b32 s51, s22, s21")
    A(f"v_cndmask_b32 v{vRed+8}, v{vRed+8}, v6, vcc")
    A(f"v_and_b32 v{vT0}, 1, v7")
    A(f"v_lshl_add_u32 v{vRed+8}, v{vT0}, 5, v{vRed+8}")
    A(f"v_lshlrev_b32 v{vRed+8}, 4, v{vRed+8}")
    A(f"v_lshl_add_u32 v{vRed+8}, v{vH}, 3, v{vRed+8}")
    A("s_lshl_b32 s50, s50, 8")
    A("s_lshl_b32 s51, s51, 10")
    A("s_add_u32 s50, s50, s51")
    A("s_lshl_b32 s51, s33, 12")
    A("s_add_u32 s50, s50, s51")
    A("s_lshl_b32 s51, s31, 11")
    A("s_add_u32 s50, s50, s51")
    A(f"v_add_u32 v{vRed+8}, s50, v{vRed+8}")
    A("s_lshl_b32 s50, s33, 7")
    A("s_lshl_b32 s51, s22, 6")
    A("s_add_u32 s50, s50, s51")
    A(f"s_add_u32 s50, s50, {WS_G}")
    A("s_cmp_eq_u32 s70, 0")
    A(f"s_cselect_b32 s50, s50, {WS_USED}")
    A(f"v_lshl_add_u32 v{vRed+9}, v6, 2, s50")
    A(f"v_lshl_add_u32 v{vRed+9}, v7, 24, v{vRed+9}")
    A("s_lshl_b32 s69, s29, 7")
    A("s_lshl_b32 s51, s28, 5")
    A("s_add_u32 s69, s69, s51")
    A("s_lshl_b32 s51, s30, 2")
    A("s_add_u32 s69, s69, s51")
    A(f"s_add_u32 s69, s69, {WS_FL}")
    A("s_cmp_lg_u32 s20, 0")
    A("s_cbranch_scc1 L_at_nofr")
    A(f"v_mov_b32 v{vT0}, 0")
    A("s_mov_b64 exec, 1")
    A(f"buffer_atomic_swap v{vT0}, v{vT0}, s[16:19], s69 offen sc1")
    A("s_mov_b64 exec, -1")
    A.label("L_at_nofr")
    tstamp_init(A, 26, 27, 20, 0)
    tstamp(A)
    fstamp(A, 3)
    A("s_mov_b32 s3, s34")
    def gate_loads():
        A("s_cmp_lg_u32 s70, 0")
        A("s_cbranch_scc1 L_at_nogf")
        A(f"v_and_b32 v{vT0}, 0x30, v{vL}")
        A("s_mov_b32 s50, s3")
        A("s_mov_b32 exec_lo, 0x00010001")
        A("s_mov_b32 exec_hi, 0x00010001")
        for q in range(4):
            A("s_lshl_b32 s51, s50, 9")
            for ks in range(8):
                A(f"buffer_load_dwordx4 {ar(GF+32*q+4*ks,4)}, v{vT0}, s[56:59], s51 offen offset:{64*ks}")
            A("s_add_u32 s50, s50, 1")
            A("s_and_b32 s50, s50, 3")
        A("s_mov_b64 exec, -1")
        A.label("L_at_nogf")
    gate_loads()
    flat(dma(1))
    if "wtch" in VAR:
        A(f"v_lshlrev_b32 v{vT0}, 11, v7")
        A(f"v_lshl_add_u32 v{vT0}, v6, 4, v{vT0}")
        A("s_add_u32 s48, s37, s22")
        A("s_and_b32 s48, s48, 15")
        A("s_lshl_b32 s48, s48, 17")
        A("s_add_u32 s48, s48, s39")
        A("s_lshl_b32 s49, s23, 15")
        A("s_add_u32 s48, s48, s49")
        A("s_lshl_b32 s49, s21, 14")
        A("s_add_u32 s48, s48, s49")
        A("s_add_u32 m0, s36, 0x20000")
        A("s_add_u32 s49, s48, 0x2000")
        A(f"buffer_load_dwordx4 v{vT0}, s[12:15], s48 offen lds")
        A(f"buffer_load_dwordx4 v{vT0}, s[12:15], s49 offen lds")
    A("s_cmp_lg_u32 s20, s23")
    A("s_cbranch_scc1 L_at_pro")
    flat(dma(2)); flat(dma(3))
    A.label("L_at_pro")
    fstamp(A, 4)
    stamp(A, 1)
    def rd_P(n):
        off = ((n % 5) % 2) * 0x8000
        R = []
        for ks in range(8):
            b = O0 + 8*ks
            R.append(f"ds_read_b128 {vr(b,4)}, v{vPr+(ks%4)} offset:{off+256*(ks//4)}")
            R.append(f"ds_read_b64_tr_b16 {vr(b+4,2)}, v{vPw} offset:{off+2048*ks}")
            R.append(f"ds_read_b64_tr_b16 {vr(b+6,2)}, v{vPw} offset:{off+2048*ks+256}")
        return R
    def mf_P(n):
        A("s_cmp_eq_u32 s31, 1")
        A(f"s_cbranch_scc1 L_at_pv{n}")
        for ks in range(8):
            A(f"v_mfma_f32_16x16x32_bf16 {vr(PACC,4)}, {vr(O0+8*ks+4,4)}, {vr(O0+8*ks,4)}, {vr(PACC,4)}")
        A("s_cmp_lg_u32 s70, 0")
        A(f"s_cbranch_scc1 L_at_pj{n}")
        for ks in range(8):
            A(f"v_mfma_f32_16x16x32_bf16 {vr(GACC,4)}, {ar(GF+32*PIDX[n]+4*ks,4)}, {vr(O0+8*ks,4)}, {vr(GACC,4)}")
        A(f"s_branch L_at_pj{n}")
        A.label(f"L_at_pv{n}")
        for ks in range(8):
            A(f"v_mfma_f32_16x16x32_bf16 {vr(PACC,4)}, {vr(O0+8*ks,4)}, {vr(O0+8*ks+4,4)}, {vr(PACC,4)}")
        A.label(f"L_at_pj{n}")
    def rd_G(n):
        off = ((n % 5) % 2) * 0x8000
        b = FR + 64*(n % 2)
        R = []
        for s in range(4):
            p = b + 16*s
            R.append(f"ds_read_b128 {ar(p,4)}, v{vXr+s} offset:{off}")
            wr, wo = vWr, off
            R.append(f"ds_read_b64_tr_b16 {ar(p+8,2)}, v{wr} offset:{wo+4096*s}")
            R.append(f"ds_read_b64_tr_b16 {ar(p+10,2)}, v{wr} offset:{wo+4096*s+1024}")
            R.append(f"ds_read_b128 {ar(p+4,4)}, v{vXr+s} offset:{off+4096}")
            R.append(f"ds_read_b64_tr_b16 {ar(p+12,2)}, v{wr+1} offset:{wo+4096*s}")
            R.append(f"ds_read_b64_tr_b16 {ar(p+14,2)}, v{wr+1} offset:{wo+4096*s+1024}")
        return R
    def mf_G(n, by_u=False):
        b = FR + 64*(n % 2)
        M = []
        order = [(s, a, t) for s in range(4) for a in range(2) for t in range(2)]
        if by_u: order = [(s, a, t) for a in range(2) for t in range(2) for s in range(4)]
        for (s, a, t) in order:
            p = b + 16*s; u = 2*a + t
            if "fake16" in VAR:
                q = ACC + 16*u + 8*(s % 2)
                p2 = b + 16*(s ^ 1)
                M.append(f"v_mfma_f32_16x16x32_bf16 {vr(q,4)}, {ar(p+8+4*a,4)}, {ar(p+4*t,4)}, {vr(q,4)}\n"
                         f"v_mfma_f32_16x16x32_bf16 {vr(q+4,4)}, {ar(p+8+4*a,4)}, {ar(p2+4*t,4)}, {vr(q+4,4)}")
                continue
            M.append(f"v_mfma_f32_32x32x16_bf16 {vr(ACC+16*u,16)}, {ar(p+8+4*a,4)}, {ar(p+4*t,4)}, {vr(ACC+16*u,16)}")
        return M
    def toggle(regs, d):
        return [f"v_add_u32 v{r}, {(d*0x10000) & 0xffffffff:#x}, v{r}" for r in regs]
    Pregs = [vPr+s for s in range(4)] + [vPw]
    Gregs = [vXr+s for s in range(4)] + [vWr, vWr+1]
    hi = {"P": 0, "G": 0}
    for n in range(20):
        A.comment(f"---- iteration {n} ({ORDER[n]})")
        cnt = 10 if n in (7, 8) else (9 if n == 17 else 8)
        if "wtch" in VAR and n in (0, 1): cnt = 10
        A("s_cmp_eq_u32 s20, s23")
        A(f"s_waitcnt vmcnt({16 if n == 9 else 24}) lgkmcnt(0)")
        A(f"s_cbranch_scc1 L_at_w{n}")
        A(f"s_waitcnt vmcnt({cnt})")
        A.label(f"L_at_w{n}")
        A("s_barrier")
        tstamp(A)
        if n == (18 if os.environ.get("FINE3") else 6): stamp(A, 2)
        if n == 0: fstamp(A, 5)
        if n == 1: fstamp(A, 6)
        D = dma(n + 2)
        if n == 16:
            A("s_cmp_eq_u32 s20, s23")
            A("s_cselect_b32 s10, 0, s10")
            A("s_cselect_b32 s14, 0, s14")
            A("s_cselect_b32 s71, 0x30000, s71")
        win = lambda k: (k % 5) // 2
        assert hi[ORDER[n]] == win(n)
        R = rd_P(n) if ORDER[n] == "P" else rd_G(n)
        V = []
        T = []
        if n + 1 < 20 and hi[ORDER[n+1]] != win(n + 1):
            T = toggle(Pregs if ORDER[n+1] == "P" else Gregs, win(n + 1) - hi[ORDER[n+1]])
            hi[ORDER[n+1]] = win(n + 1)
        if n == 18:
            A("s_waitcnt vmcnt(8)")
            A(f"v_cmp_gt_u32 vcc, 4, v{vPoll}")
            A("s_nop 4")
            A("s_cmp_eq_u64 vcc, 0")
            A("s_cbranch_scc1 L_at_flags_ok")
            A("s_mov_b32 s50, 0")
            A.label("L_at_spin")
            A("s_add_u32 s50, s50, 1")
            A("s_cmp_gt_u32 s50, 0x40000")
            A("s_cbranch_scc1 L_at_flags_ok")
            A("s_sleep 8")
            A(f"buffer_load_dword v{vPoll}, v{vT2}, s[60:63], 0 offen sc1")
            A("s_waitcnt vmcnt(0)")
            A(f"v_cmp_gt_u32 vcc, 4, v{vPoll}")
            A("s_nop 4")
            A("s_cmp_eq_u64 vcc, 0")
            A("s_cbranch_scc0 L_at_spin")
            A.label("L_at_flags_ok")
            if os.environ.get("FINE3"): stamp(A, 3)
        def mixrd(R, D, k):
            while R or D:
                if D: flat([D.pop(0)])
                for _ in range(k):
                    if R: A(R.pop(0))
        if n == 0 or 2 <= n <= 5:
            if n in (2, 3):
                if n >= 3: mf_P(n - 1)
                A("s_cmp_eq_u32 s20, s23")
                A(f"s_cbranch_scc1 L_at_ds{n}")
                mixrd(list(R), D, 3)
                A(f"s_branch L_at_dj{n}")
                A.label(f"L_at_ds{n}")
                mixrd(R, dma_G(), 3)
                A.label(f"L_at_dj{n}")
            else:
                flat(D[:2]); del D[:2]
                if n >= 3: mf_P(n - 1)
                mixrd(R, D, 4)
            for x in T: A(x)
            continue
        post = []
        if n == 6:
            mf_P(5)
            V += ["s_nop 0", "s_nop 0"]
            V.append(["s_mov_b32 s50, 1.0", "s_cmp_eq_u32 s31, 1", f"s_cselect_b32 s50, s50, {KSCALE:#x}"])
            V.append([f"v_mul_f32 v{PACC+e}, s50, v{PACC+e}" for e in range(4)])
            V.append([f"v_cvt_pk_bf16_f32 v{Q0+8}, v{Q0}, v{Q0+1}", f"v_cvt_pk_bf16_f32 v{Q0+9}, v{Q0+2}, v{Q0+3}"])
            V.append([f"v_mul_f32 v{GACC}, {LOG2E ^ 0x80000000:#x}, v{GACC}", f"v_exp_f32 v{GACC}, v{GACC}"])
            V.append([f"v_add_f32 v{GACC}, 1.0, v{GACC}", f"v_rcp_f32 v{GACC}, v{GACC}"])
            post.append(f"buffer_store_dwordx2 {vr(Q0+8,2)}, v{vRed+8}, s[44:47], 0 offen sc1")
            post.append(f"buffer_store_dword v{GACC}, v{vRed+9}, s[16:19], 0 offen sc1")
        if 10 <= n <= 11 or n == 14:
            V += take_(side, 16)
        if n == 9:
            post.append("s_cmp_lg_u32 s20, 0")
            post.append("s_cbranch_scc1 L_at_nosig")
            post.append("s_and_b32 s50, s2, 63")
            post.append("s_lshl_b32 s50, s50, 2")
            post.append(f"v_mov_b32 v{vT0}, 1")
            post.append(f"v_mov_b32 v{vT1}, 0")
            post.append("s_mov_b64 exec, 1")
            post.append(f"buffer_atomic_add v{vT0}, v{vT1}, s[60:63], s50 offen sc1")
            post.append("s_mov_b64 exec, -1")
            post.append("L_at_nosig:")
        if n == 16:
            assert not side
            V.append(f"v_lshlrev_b32 v{vT2}, 2, v{vL}")
            post.append(f"buffer_load_dword v{vPoll}, v{vT2}, s[60:63], 0 offen sc1")
        if n == 18:
            V += [f"v_lshrrev_b32 v{vT0}, 3, v{vL}", f"v_lshl_add_u32 v{vT0}, v{vW_}, 5, v{vT0}", f"v_lshlrev_b32 v{vT0}, 11, v{vT0}",
                  f"v_bfe_u32 v{vT1}, v{vL}, 4, 1", f"v_lshlrev_b32 v{vT1}, 2, v{vT1}", f"v_and_b32 v5, 7, v{vL}",
                  f"v_xor_b32 v5, v5, v{vT1}", f"v_lshl_add_u32 v{vWd}, v5, 4, v{vT0}",
                  ["s_lshl_b32 s31, s28, 3", "s_add_u32 s31, s31, s30", "s_lshl_b32 s31, s31, 7"],
                  f"v_add_u32 v{vWd}, s31, v{vWd}"]
            V += [f"v_add_u32 v{vWd+t}, {t*(16384-1024)}, v{vWd}" for t in range(1, 4)]
        if n == 19:
            V += [f"v_mov_b32 v{vXd+t}, v{vLin}" for t in range(4)]
            V += ["s_mov_b32 s14, 0x200000"]
            V += [["s_lshl_b32 s40, s29, 2", "s_lshl_b32 s41, s22, 1", "s_add_u32 s40, s40, s41"],
                  ["s_lshl_b32 s40, s40, 17", "s_lshl_b32 s41, s28, 5", "s_lshl_b32 s50, s30, 2"],
                  ["s_add_u32 s41, s41, s50", "s_lshl_b32 s50, s21, 1", "s_add_u32 s41, s41, s50"],
                  ["s_lshl_b32 s41, s41, 11", "s_add_u32 s40, s40, s41", f"s_add_u32 s40, s40, {WS_OF}"],
                  ["s_add_u32 s41, s40, 0x20000", "s_mov_b32 s42, s40"],
                  ["s_mov_b32 s56, s64", "s_mov_b32 s57, s65", f"s_mov_b32 s58, {2048*1024*2}"],
                  ["s_lshl_b32 s43, s29, 18", "s_lshl_b32 s50, s20, 16", "s_add_u32 s43, s43, s50"],
                  ["s_add_u32 s43, s43, s31"],
                  ["s_lshl_b32 s50, s29, 2", "s_add_u32 s50, s50, s20", "s_lshl_b32 s50, s50, 17", f"s_add_u32 s50, s50, {WS_OF}",
                   "s_lshl_b32 s51, s28, 16", "s_add_u32 s7, s50, s51"],
                  ["s_add_u32 s8, s26, s7", "s_addc_u32 s9, s27, 0", "s_mov_b32 s10, 0x10000", "s_xor_b32 s51, s51, 0x10000",
                   "s_add_u32 s7, s50, s51", "s_add_u32 s4, s26, s7", "s_addc_u32 s5, s27, 0"],
                  ["s_lshl_b32 s3, s30, 13", "s_lshl_b32 s6, s29, 7", f"s_add_u32 s6, s6, {WS_FL}", "s_lshl_b32 s7, s28, 3",
                   "s_mov_b32 s12, s72", "s_mov_b32 s13, s73"]]
            T += [[f"v_bfe_u32 v{vT0}, v{vL}, 2, 2", f"v_lshl_add_u32 v{vT1}, v{vH}, 2, v{vT0}", f"v_lshlrev_b32 v{vT1}, 7, v{vT1}"],
                  [f"v_bfe_u32 v{vT0}, v{vL}, 3, 1", f"v_lshl_add_u32 v{vT1}, v{vT0}, 6, v{vT1}"],
                  [f"v_bfe_u32 v{vT0}, v{vL}, 4, 1", f"v_lshl_add_u32 v{vT1}, v{vT0}, 5, v{vT1}"],
                  [f"v_and_b32 v{vT0}, 1, v{vL}", f"v_lshl_add_u32 v{vT1}, v{vT0}, 4, v{vT1}"],
                  [f"v_bfe_u32 v{vT0}, v{vL}, 1, 1", f"v_lshl_add_u32 v16, v{vT0}, 3, v{vT1}", f"v_xor_b32 v17, 64, v16"],
                  [f"v_add_u32 v{vT0}, s30, v{vL}", f"v_and_b32 v{vT0}, 7, v{vT0}"]]
            post += [f"v_xor_b32 v{vT1}, s7, v{vL}", f"v_and_b32 v{vT1}, 8, v{vT1}", f"v_or_b32 v{vT0}, v{vT0}, v{vT1}",
                     f"v_lshlrev_b32 v18, 2, v{vT0}"]
        if n in (12, 13):
            V += [f"v_mov_b64 {vr(O0+32*(n-12)+i,2)}, 0" for i in range(0, 32, 2)]
        M = mf_G(n - 1 if n != 6 else 1)
        weave(A, M, [(R, lambda k: 2), (D, lambda k: 1 if (k % 2 == 0 or k == 15) else 0), (V, lambda k: 1), (T, lambda k: 2 if k >= 12 else 0)])
        for x in post: A(x)
        if n == 1 and PARK:
            A.comment("---- iteration 1b")
            A("s_waitcnt lgkmcnt(0)")
            weave(A, mf_G(1), [(dma(3), lambda k: 1 if k % 2 == 1 else 0)])
    A("s_waitcnt vmcnt(8) lgkmcnt(0)")
    A("s_barrier")
    if not os.environ.get("FINE3"): stamp(A, 3)
    tstamp(A)
    def cvtQ(u):
        return [f"v_cvt_pk_bf16_f32 v{Q0+8*u+j}, v{ACC+16*u+2*j}, v{ACC+16*u+2*j+1}" for j in range(8)]
    def QK(u, c):
        return [f"v_mfma_f32_32x32x16_bf16 {vr(S0+16*u,16)}, {ar(KB0,4)}, {vr(Q0+8*u,4)}, {c}",
                f"v_mfma_f32_32x32x16_bf16 {vr(S0+16*u,16)}, {ar(KB0+4,4)}, {vr(Q0+8*u+4,4)}, {vr(S0+16*u,16)}"]
    def max16(b):
        L = [f"v_max3_f32 v{b}, v{b}, v{b+1}, v{b+2}"]
        for j in range(3, 15, 2):
            L.append(f"v_max3_f32 v{b}, v{b}, v{b+j}, v{b+j+1}")
        L.append(f"v_max_f32 v{b}, v{b}, v{b+15}")
        return L
    def fill_C(u, b):
        L = [f"v_mov_b32 v{b+1}, v{b}", "s_nop 1", f"v_permlane32_swap_b32 v{b}, v{b+1}", "s_nop 1",
             f"v_max_f32 v{b}, v{b}, v{b+1}", f"v_sub_f32 v{C0+16*u}, 0, v{b}", f"v_sub_f32 v{C0+16*u+1}, 0, v{b}"]
        for j in range(2, 16, 2):
            L.append(f"v_mov_b64 {vr(C0+16*u+j,2)}, {vr(C0+16*u,2)}")
        return L
    G = mf_G(19, by_u=True)
    ldc = lambda t: f"buffer_load_dwordx4 v{vXd+t}, s[44:47], s32 offen offset:{1024*t} sc1 lds"
    ldw = lambda t: f"buffer_load_dwordx4 v{vWd+t}, s[12:15], s34 offen offset:{1024*t} lds"
    misc = [f"ds_read_b128 {ar(KB0,4)}, v{vKV}", f"ds_read_b128 {ar(KB0+4,4)}, v{vKV} offset:1024",
            f"ds_read_b128 {ar(VB0,4)}, v{vKV} offset:2048", f"ds_read_b128 {ar(VB0+4,4)}, v{vKV} offset:3072",
            f"v_lshlrev_b32 v{vT0}, 2, v{vL31}", "s_lshl_b32 s50, s29, 9", "s_lshl_b32 s51, s22, 8", "s_add_u32 s50, s50, s51",
            f"s_add_u32 s50, s50, {WS_G}", f"buffer_load_dword v{vG}, v{vT0}, s[16:19], s50 offen sc1",
            f"buffer_load_dword v{vG+1}, v{vT0}, s[16:19], s50 offen offset:128 sc1",
            "s_add_u32 m0, s36, 0x10000", "s_mov_b32 s32, 0x10000", ldc(0), ldc(1), ldc(2), ldc(3),
            "s_mov_b32 s37, 0x18000", "s_mov_b32 s39, 0", "s_mov_b32 s71, 0", "s_mov_b32 s33, 0x4000", "s_mov_b32 s38, -1"]
    def emit(L):
        for x in L: A(x)
    def take(L, n):
        r = L[:n]; del L[:n]; return r
    for k in range(0, 7):
        A(G[k]); emit(take(misc, 4 if k < 5 else 1))
    emit(misc)
    c0 = cvtQ(0)
    A(G[7]); emit(take(c0, 5))
    A(G[8]); emit(c0); A("s_waitcnt lgkmcnt(0)")
    A(G[9])
    q = QK(0, "0"); A(q[0]); A(q[1])
    c1 = cvtQ(1)
    A(G[10]); emit(take(c1, 5))
    A(G[11]); emit(c1)
    A(G[12])
    q = QK(1, "0"); A(q[0]); A(q[1])
    m0_ = max16(S0)
    A(G[13]); emit(take(m0_, 5))
    A(G[14]); emit(m0_)
    f0 = fill_C(0, S0)
    A(G[15]); emit(take(f0, 4))
    emit(cvtQ(2))
    emit(take(f0, 3))
    q = QK(2, "0"); A(q[0]); emit(take(f0, 4)); A(q[1]); emit(f0)
    emit(cvtQ(3))
    m1_ = max16(S0+16)
    emit(take(m1_, 2))
    q = QK(3, "0"); A(q[0]); emit(take(m1_, 4)); A(q[1]); emit(m1_)
    f1 = fill_C(1, S0+16)
    emit(take(f1, 3))
    q = QK(0, vr(C0, 16) if 'czero' not in VAR else "0"); A(q[0]); emit(take(f1, 5)); A(q[1]); emit(f1)
    emit(max16(S0+32)); emit(fill_C(2, S0+32))
    emit(max16(S0+48)); emit(fill_C(3, S0+48))
    for i in range(0, 16, 2):
        A(f"v_mov_b64 {vr(S0+48+i,2)}, 0")
    A("s_waitcnt vmcnt(6)")
    A("s_barrier")
    def PV(u0, p0):
        return [
            f"v_smfmac_f32_32x32x32_bf16 {vr(O0+16*u0,16)}, {ar(VB0+8*p0,4)}, {vr(S0+16*u0,8)}, v{vIDX}",
            f"v_smfmac_f32_32x32x32_bf16 {vr(O0+16*u0,16)}, {ar(VB0+8*p0+4,4)}, {vr(S0+16*u0+8,8)}, v{vIDX}",
            f"v_smfmac_f32_16x16x64_bf16 {ar(L0+4*u0,4)}, {ar(SEL,4)}, {vr(S0+16*u0,8)}, v{vIDX}",
            f"v_smfmac_f32_16x16x64_bf16 {ar(L0+4*u0,4)}, {ar(SEL,4)}, {vr(S0+16*u0+8,8)}, v{vIDX}",
        ]
    stamp(A, 4)
    body = []
    for i in range(8):
        for u in range(4):
            u1 = (u + 1) % 4; i1 = i + (1 if u == 3 else 0)
            u0 = (u + 3) % 4; i0 = i - (1 if u == 0 else 0)
            P = PV(u0, i0 % 2)
            M = [
                f"v_mfma_f32_32x32x16_bf16 {vr(S0+16*u1,16)}, {ar(KB0+8*(i1%2),4)}, {vr(Q0+8*u1,4)}, {vr(C0+16*u1,16) if 'czero' not in VAR else 0}",
                P[0],
                f"v_mfma_f32_32x32x16_bf16 {vr(S0+16*u1,16)}, {ar(KB0+8*(i1%2)+4,4)}, {vr(Q0+8*u1+4,4)}, {vr(S0+16*u1,16)}",
                P[1], P[2], P[3],
            ]
            X = [[] for _ in range(6)]
            tt = (i + 1) % 8
            pn = (i + 1) % 2
            if u == 0:
                X[3].append("s_waitcnt lgkmcnt(0)")
                X[4].append(f"ds_read_b128 {ar(KB0+8*pn,4)}, v{vKV} offset:{4096*tt}")
                X[5].append(f"ds_read_b128 {ar(KB0+8*pn+4,4)}, v{vKV} offset:{4096*tt+1024}")
            if u == 2:
                X[3].append("s_waitcnt lgkmcnt(0)")
                X[4].append(f"ds_read_b128 {ar(VB0+8*pn,4)}, v{vKV} offset:{4096*tt+2048}")
                X[5].append(f"ds_read_b128 {ar(VB0+8*pn+4,4)}, v{vKV} offset:{4096*tt+3072}")
            if i in (1, 3) and u == 1:
                X[2].append(f"s_add_u32 m0, s36, 0x20000")
                X[4].append(f"buffer_load_dwordx4 v{vLane16}, s[52:55], s68 offen lds")
                X[5].append("s_add_u32 s68, s68, 0x800")
            if i == 3 and u == 3:
                X[3].append("s_cmp_eq_u32 s39, 7")
                X[5].append("@EXIT")
            if i == 6 and u == 3:
                X[1].append("s_cmp_eq_u32 s39, 5")
                X[1].append("s_cselect_b64 vcc, -1, 0")
            if i == 7 and u == 0:
                X[0].append("s_add_u32 s71, s71, 0x8000")
                X[1].append("s_and_b32 s71, s71, 0x1ffff")
                X[1].append("s_add_u32 s39, s39, 1")
                X[2].append("s_bitcmp1_b32 0x54, s39")
                X[3].append("@TOP")
            if i == 7 and u == 1:
                X[1].append("s_add_u32 m0, s37, s36")
                X[1].append("s_add_u32 s37, s37, 0x8000")
                X[3].append("s_and_b32 s37, s37, 0x1ffff")
                X[4].append(ldc(0)); X[5].append(ldc(1))
            if i == 7 and u == 3:
                X[4].append(ldc(2)); X[5].append(ldc(3))
            if i == 0 and u == 1:
                X[4].append(ldc(0)); X[5].append(ldc(1))
            if i == 0 and u == 3:
                X[4].append(ldc(2)); X[5].append(ldc(3))
            if i == 1 and u == 1:
                X[1].append("s_add_u32 s32, s32, s33")
                X[1].append("s_and_b32 s32, s32, s38")
            E = [f"v_exp_f32 v{S0+16*u+j}, v{S0+16*u+j}" for j in range(16)]
            ne = [3, 3, 3, 3, 2, 2]
            order = {"": [0, 1, 2, 3, 4, 5], "A": [0, 2, 1, 3, 4, 5], "B": [0, 2, 4, 1, 3, 5], "C": [0, 2, 1, 4, 3, 5]}[os.environ.get("MORD", "")]
            if order != [0, 1, 2, 3, 4, 5]:
                S_ = X[0] + X[1] + X[2] + X[3]
                slots = order[:order.index(4)]
                for k in range(4): X[k] = []
                cap = {0: 1, 2: 1, 1: 2, 3: 2}
                for k in reversed(slots):
                    n_ = cap[k] + (1 if S_ and S_[-1] == "@TOP" else 0)
                    X[k] = S_[-n_:] if k != slots[0] else S_
                    S_ = S_[:-n_] if k != slots[0] else []
            for k in order:
                body.append(M[k])
                body += X[k]
                for _ in range(ne[k]): body.append(E.pop(0))
    top = body.index("@TOP")
    first, second = body[:top], body[top+1:]
    A("s_branch L_at_pre_entry")
    A.label("L_at_switch")
    for t in range(4):
        A(f"v_mov_b32 v{vXd+t}, v{vWd+t}")
    A("s_mov_b32 s44, s72")
    A("s_mov_b32 s45, s73")
    A("s_mov_b32 s46, 0x200000")
    A("s_lshl_b32 s32, s30, 18")
    A("s_mov_b32 s33, 0x40000")
    A("s_mov_b32 s38, 0x1fffff")
    A("s_branch L_at_top_bar")
    A.raw(".p2align 6")
    A.label("L_at_top_bar")
    A(f"s_waitcnt vmcnt(2)")
    A("s_barrier")
    A.label("L_at_top")
    tstamp(A)
    A(f"v_add_u32 v{vKV}, s71, v{vLane16}")
    for x in second: A(x)
    A.label("L_at_pre_entry")
    A(first[0]); A("s_add_u32 m0, m0, 0x4000")
    for x in first[1:5]: A(x)
    A("s_add_u32 s32, s32, s33")
    A("s_and_b32 s32, s32, s38")
    rest = first[5:]
    ex = rest.index("@EXIT")
    for x in rest[:ex]: A(x)
    A("s_cbranch_scc1 L_at_exit")
    for x in rest[ex+1:]: A(x)
    A("s_cbranch_scc0 L_at_top")
    A("s_cbranch_vccz L_at_top_bar")
    A("s_branch L_at_switch")
    A.label("L_at_exit")
    for x in rest[ex+1:ex+3]: A(x)
    TU = [(60, u) for u in range(4)] + [(t, u) for u in range(4) for t in (61, 62, 63)]
    kreg = lambda t: KB0 if t == 60 else 64 + 16*(t - 61)
    vreg = lambda t: (VB0 + 8 if t == 59 else VB0) if t <= 60 else 64 + 16*(t - 61) + 8
    def PVt(p):
        t, u = TU[p] if p >= 0 else (59, 3)
        sb = S0 + 16*(p % 4)
        return [
            f"v_smfmac_f32_32x32x32_bf16 {vr(O0+16*u,16)}, {ar(vreg(t),4)}, {vr(sb,8)}, v{vIDX}",
            f"v_smfmac_f32_32x32x32_bf16 {vr(O0+16*u,16)}, {ar(vreg(t)+4,4)}, {vr(sb+8,8)}, v{vIDX}",
            f"v_smfmac_f32_16x16x64_bf16 {ar(L0+4*u,4)}, {ar(SEL,4)}, {vr(sb,8)}, v{vIDX}",
            f"v_smfmac_f32_16x16x64_bf16 {ar(L0+4*u,4)}, {ar(SEL,4)}, {vr(sb+8,8)}, v{vIDX}",
        ]
    vSc, vSum = vT0, vT2
    def fin_valu(u):
        L = [f"v_accvgpr_read_b32 v{vSc}, a{L0+4*u}", f"v_accvgpr_read_b32 v{vSc+1}, a{L0+4*u}", "s_nop 1",
             f"v_permlane32_swap_b32 v{vSc}, v{vSc+1}", "s_nop 1",
             f"v_add_f32 v{vSum}, v{vSum}, v{vSc}", f"v_rcp_f32 v{vSc}, v{vSc}", "s_nop 0",
             f"v_mul_f32 v{vSc}, v{vSc}, v{vG+(u&1)}"]
        for j in range(0, 16, 2):
            L.append(f"v_pk_mul_f32 {vr(O0+16*u+j,2)}, {vr(O0+16*u+j,2)}, {vr(vSc,2)} op_sel_hi:[1,0]")
        for j in range(8):
            L.append(f"v_cvt_pk_bf16_f32 v{C0+16*u+j}, v{O0+16*u+2*j}, v{O0+16*u+2*j+1}")
        return L
    def fin_st(u):
        a, t = u >> 1, u & 1
        return [f"buffer_store_dwordx4 {vr(C0+16*u+4*f,4)}, v{vLane16}, s[16:19], s{40+t} offen offset:{2048*a+1024*f} sc1" for f in range(2)]
    rdK = lambda t: [f"ds_read_b128 {ar(kreg(t)+4*f,4)}, v{vKV} offset:{4096*(t-56)+1024*f}" for f in range(2)]
    rdV = lambda t: [f"ds_read_b128 {ar(vreg(t)+4*f,4)}, v{vKV} offset:{4096*(t-56)+2048+1024*f}" for f in range(2)]
    RD = [rdK(61), rdK(62), rdV(61), rdK(63), rdV(62), rdV(63)]
    nxt = ["s_add_u32 s34, s34, 0x40000", "s_and_b32 s34, s34, 0x1fffff"]
    def wpair(dst, pre=()):
        return [(list(pre) + [f"s_add_u32 m0, s36, {dst}"], ldw(0)), ([], ldw(1)), ([], ldw(2)), ([], ldw(3))]
    WA = wpair(0x20000, ["s_mov_b32 s34, s32"]) + wpair(0x24000, nxt)
    WB = wpair(0x10000, nxt) + wpair(0x14000, nxt)
    WB += wpair(0x18000, nxt + ["s_mov_b32 s12, s74", "s_mov_b32 s13, s75"]) + wpair(0x1c000, nxt)
    for p in range(16):
        t, u = TU[p]
        P = PVt(p - 1)
        if p < 15:
            t1, u1 = TU[p + 1]; sb = S0 + 16*((p + 1) % 4)
            q0 = f"v_mfma_f32_32x32x16_bf16 {vr(sb,16)}, {ar(kreg(t1),4)}, {vr(Q0+8*u1,4)}, {vr(C0+16*u1,16)}"
            q1 = f"v_mfma_f32_32x32x16_bf16 {vr(sb,16)}, {ar(kreg(t1)+4,4)}, {vr(Q0+8*u1+4,4)}, {vr(sb,16)}"
        else: q0 = q1 = None
        M = [q0, P[0], q1, P[1], P[2], P[3]]
        X = [[] for _ in range(6)]
        XV = [[] for _ in range(6)]
        if p <= 6: X[3].append("s_waitcnt lgkmcnt(0)")
        if p < 6: X[4].append(RD[p][0]); X[5].append(RD[p][1])
        def put(W, k):
            pre, ld = W.pop(0)
            X[k-1] += pre; X[k].append(ld)
        if 1 <= p <= 4: put(WA, 1); put(WA, 3)
        if p == 0:
            X[1] += ["s_cmp_eq_u32 s28, 0", "s_cselect_b32 s50, 1.0, -1.0"]
            X[2] += ["s_cselect_b32 s51, 0, 1.0"]
            XV[3] += [f"v_mov_b32 v{vSum}, s51", f"v_fma_f32 v{vG}, v{vG}, s50, v{vSum}", f"v_fma_f32 v{vG+1}, v{vG+1}, s50, v{vSum}",
                      f"v_mov_b32 v{vSum}, 0"]
        if p == 6:
            X[3] = ["s_waitcnt vmcnt(9) lgkmcnt(0)", "s_barrier"]
        fu = {8: 0, 11: 1, 14: 2}.get(p)
        if p >= 6:
            if WB: put(WB, 4)
            if fu is None:
                if WB: put(WB, 5)
            else:
                X[5] += fin_st(fu)
        if fu is not None:
            FV = [x for x in fin_valu(fu) if x != "s_nop 1"]
            XV[1] += FV[:2]; XV[2] += FV[2:3]; XV[3] += FV[3:15]; XV[4] += FV[15:]
        E = [f"v_exp_f32 v{S0+16*(p%4)+j}, v{S0+16*(p%4)+j}" for j in range(16)]
        ne = [3, 3, 3, 3, 2, 2]
        for k in range(6):
            if M[k]: A(M[k])
            emit(X[k])
            for _ in range(ne[k]): A(E.pop(0))
            emit(XV[k])
    assert not WA and not WB
    stamp(A, 5)
    gstamp(A, 0)
    tstamp(A, "2")
    P3 = PVt(15)
    A(P3[2]); emit(nxt); A(P3[3]); A(P3[0]); A(P3[1])
    A("s_nop 5")
    FV = fin_valu(3)
    emit(FV[:7])
    A(f"v_cmp_ngt_f32 vcc, {0x4e800000 if 'forceslow' not in VAR else 0x3f000000:#x}, v{vSum}")
    emit(FV[8:])
    emit(fin_st(3))
    A("s_cmp_lg_u64 vcc, 0")
    if "lx" not in VAR: A("s_cbranch_scc1 L_at_slow")
    A.label("L_at_done")
    gen_out(A)
    A.label("L_at_slow")
    A("s_waitcnt vmcnt(0) lgkmcnt(0)")
    A("s_lshl_b32 s39, s28, 18")
    A("s_add_u32 s44, s26, s39")
    A("s_addc_u32 s45, s27, 0")
    A("s_mov_b32 s46, 0x40000")
    for u in range(4):
        A(f"v_mov_b32 v{O0+u}, 0xff7fffff")
    A("s_mov_b32 s39, 0")
    A.label("L_at_slow1")
    A(f"buffer_load_dwordx4 {ar(KB0,4)}, v{vLane16}, s[44:47], s39 offen sc1")
    A(f"buffer_load_dwordx4 {ar(KB0+4,4)}, v{vLane16}, s[44:47], s39 offen offset:1024 sc1")
    A("s_waitcnt vmcnt(0)")
    for u in range(4):
        for x in QK(u, "0"): A(x)
    A("s_nop 15")
    for u in range(4):
        for j in range(0, 16, 2):
            A(f"v_max3_f32 v{O0+u}, v{O0+u}, v{S0+16*u+j}, v{S0+16*u+j+1}")
    A("s_add_u32 s39, s39, 0x1000")
    A("s_cmp_lt_u32 s39, 0x40000")
    A("s_cbranch_scc1 L_at_slow1")
    for u in range(4):
        A(f"v_mov_b32 v{S0+16*u}, v{O0+u}")
        emit(fill_C(u, S0+16*u))
    for i in range(16):
        A(f"v_accvgpr_write_b32 a{L0+i}, 0")
    for i in range(64):
        A(f"v_mov_b32 v{O0+i}, 0")
    A("s_mov_b32 s39, 0")
    A.label("L_at_slow2")
    A(f"buffer_load_dwordx4 {ar(KB0,4)}, v{vLane16}, s[44:47], s39 offen sc1")
    A(f"buffer_load_dwordx4 {ar(KB0+4,4)}, v{vLane16}, s[44:47], s39 offen offset:1024 sc1")
    A(f"buffer_load_dwordx4 {ar(VB0,4)}, v{vLane16}, s[44:47], s39 offen offset:2048 sc1")
    A(f"buffer_load_dwordx4 {ar(VB0+4,4)}, v{vLane16}, s[44:47], s39 offen offset:3072 sc1")
    A("s_waitcnt vmcnt(0)")
    for u in range(4):
        for x in QK(u, vr(C0+16*u, 16)): A(x)
    A("s_nop 15")
    for j in range(64):
        A(f"v_exp_f32 v{S0+j}, v{S0+j}")
    A("s_nop 1")
    for u in range(4):
        for x in PV(u, 0): A(x)
    A("s_nop 15")
    A("s_add_u32 s39, s39, 0x1000")
    A("s_cmp_lt_u32 s39, 0x40000")
    A("s_cbranch_scc1 L_at_slow2")
    A("s_nop 15")
    for u in range(4):
        emit(fin_valu(u)); emit(fin_st(u))
    A("s_branch L_at_done")
    A.label("L_at_end")
    A("s_endpgm")
    return kernel_desc(name, 512, 256, 102)

def gen_out(A):
    LD = 8
    vL, vH, vL31, vW_ = 1, 2, 3, 4
    vOd, vWd = 28, 12
    vWr, vWr0 = 8, 16
    vT0, vT1, vPl = 18, 19, 27
    ACC = 32
    WF = 128
    OFr = 192
    def wreg(st, s, c, n=4, o=0):
        i = 8*s + 4*c + o
        if st < 2: return vr(WF + 32*st + i, n)
        if st < 10: return ar(32*(st - 2) + i, n)
        return vr(64 + 32*(st - 10) + i, n)
    def stash(st):
        R = []
        for s in range(4):
            for c in range(2):
                wo = (st % 8)*0x2000 + 2048*s
                R += [f"ds_read_b64_tr_b16 {wreg(st,s,c,2,0)}, v{vWr+c} offset:{wo}",
                      f"ds_read_b64_tr_b16 {wreg(st,s,c,2,2)}, v{vWr+c} offset:{wo+1024}"]
        return R
    gstamp(A, 2)
    def dma_W():
        ldw = lambda t: f"buffer_load_dwordx4 v{vWd+t}, s[12:15], s34 offen offset:{1024*t} lds"
        return [["s_mov_b32 m0, s35", "s_add_u32 s35, s35, 0x4000", ldw(0)], [ldw(1)], [ldw(2)],
                [ldw(3), "s_add_u32 s34, s34, 0x40000", "s_and_b32 s34, s34, 0x1fffff"]]
    def fl(I):
        for x in I:
            for y in x: A(y)
    def mix(R, D, k):
        while R or D:
            for _ in range(k):
                if R: A(R.pop(0))
            if D:
                for y in D.pop(0): A(y)
    A(f"v_mov_b32 v{vWr}, v{vWr0}")
    A(f"v_mov_b32 v{vWr+1}, v{vWr0+1}")
    A("s_cmp_eq_u32 s20, 0")
    A("s_cselect_b32 s53, 0, -1")
    A("s_mov_b32 s35, s36")
    for st in (2, 3, 1, 0):
        for x in stash(st): A(x)
    gstamp(A, 3)
    A("s_waitcnt vmcnt(0) lgkmcnt(0)")
    A("s_barrier")
    gstamp(A, 4)
    tstamp(A, "2")
    stamp(A, 6)
    A("s_cmp_lg_u32 s20, 0")
    A("s_cbranch_scc1 L_o_nosig")
    A(f"v_mov_b32 v{vT1}, 1")
    A(f"v_mov_b32 v{vPl}, 0")
    A("s_mov_b64 exec, 1")
    A(f"buffer_atomic_swap v{vT1}, v{vPl}, s[16:19], s69 offen sc1")
    A("s_mov_b64 exec, -1")
    A.label("L_o_nosig")
    def ld_O(j):
        I = [f"buffer_load_dwordx4 {vr(OFr+4*(j%16),4)}, v{vOd}, s[8:11], s3 offen offset:{1024*(j%4)} sc1"]
        if j % 4 == 3: I += ["s_add_u32 s3, s3, 0x1000", "s_and_b32 s3, s3, 0xffff"]
        return I
    for j in range(8):
        for y in ld_O(j): A(y)
    mix(stash(4) + stash(5) + stash(6) + stash(7), dma_W() + dma_W(), 8)
    A(f"v_add_u32 v{vWr}, 0x20000, v{vWr0}")
    A(f"v_add_u32 v{vWr+1}, 0x20000, v{vWr0+1}")
    A("s_waitcnt lgkmcnt(0)")
    A("s_barrier")
    mix(stash(8) + stash(9) + stash(10) + stash(11), dma_W() + dma_W(), 8)
    def mf(st, s, c, j):
        w = wreg(st, s, c) if st < 12 else vr(WF + 32*(st % 2) + 8*s + 4*c, 4)
        if "fakeo16" in VAR:
            q = ACC + 16*c + 8*(j % 2)
            return (f"v_mfma_f32_16x16x32_bf16 {vr(q,4)}, {w}, {vr(OFr+4*(j%16),4)}, {vr(q,4)}\n"
                    f"v_mfma_f32_16x16x32_bf16 {vr(q+4,4)}, {w}, {vr(OFr+4*((j+15)%16),4)}, {vr(q+4,4)}")
        return f"v_mfma_f32_32x32x16_bf16 {vr(ACC+16*c,16)}, {w}, {vr(OFr+4*(j%16),4)}, {vr(ACC+16*c,16) if (st, s) != (0, 0) else 0}"
    gstamp(A, 5)
    A("s_add_u32 s35, s36, 0x20000")
    A("s_waitcnt vmcnt(16) lgkmcnt(0)")
    A("s_barrier")
    A("s_cmp_lg_u32 s20, 0")
    A("s_cbranch_scc1 L_o_nopoll")
    A(f"buffer_load_dword v{vPl}, v{vT0}, s[16:19], s6 offen sc1")
    A.label("L_o_nopoll")
    D = dma_W() + dma_W()
    for j in range(8):
        A(mf(j // 4, j % 4, 0, j)); A(mf(j // 4, j % 4, 1, j))
        for y in D.pop(0): A(y)
    gstamp(A, 6)
    A("s_mov_b32 s54, 0xff")
    A("s_cmp_lg_u32 s20, 0")
    A("s_cbranch_scc1 L_o_ready0")
    A("s_waitcnt vmcnt(8)")
    A(f"v_cmp_eq_u32 vcc, 1, v{vPl}")
    A("s_nop 4")
    A("s_mov_b32 s53, vcc_lo")
    A("s_and_b32 s50, s53, s54")
    A("s_cmp_lg_u32 s50, s54")
    A("s_cbranch_scc1 L_o_poll0")
    A.label("L_o_ready0")
    A("s_barrier")
    gstamp(A, 7)
    stamp(A, 7)
    tstamp(A, "2")
    for j in range(8, 16):
        for y in ld_O(j): A(y)
    def rd_W(st):
        R = []
        for s in range(4):
            for c in range(2):
                b = WF + 32*(st % 2) + 8*s + 4*c
                wo = st*0x2000 + 2048*s
                R += [f"ds_read_b64_tr_b16 {vr(b,2)}, v{vWr+c} offset:{wo}",
                      f"ds_read_b64_tr_b16 {vr(b+2,2)}, v{vWr+c} offset:{wo+1024}"]
        return R
    def stage(st, stw, rd, extra=None):
        for s in range(4):
            j = 4*st + s
            A(f"s_waitcnt vmcnt(7) lgkmcnt(12)" if stw >= 12 else "s_waitcnt vmcnt(7)")
            for c in range(2):
                A(mf(stw, s, c, j))
                for _ in range(2):
                    if rd: A(rd.pop(0))
                if c == 0:
                    for y in ld_O(j + LD): A(y)
                elif extra:
                    for y in extra.pop(0): A(y)
    A(f"v_add_u32 v{vWr}, 0x10000, v{vWr0}")
    A(f"v_add_u32 v{vWr+1}, 0x10000, v{vWr0+1}")
    A("s_mov_b32 s37, 0x10000")
    A("s_mov_b32 s39, 3")
    if "fulline" in VAR:
        A(f"v_and_b32 v24, 7, v{vL31}")
        A(f"v_xor_b32 v24, v24, v{vH}")
        A(f"v_lshlrev_b32 v24, 4, v24")
        A(f"v_lshl_add_u32 v24, v{vL31}, 7, v24")
        A("s_add_u32 s50, s36, 0x10000")
        A(f"v_add_u32 v20, s50, v24")
        for k in range(1, 4):
            A(f"v_xor_b32 v{20+k}, {32*k}, v20")
        A(f"v_add_u32 v24, s50, v{vOd}")
        A(f"v_lshrrev_b32 v25, 3, v{vL}")
        A(f"v_and_b32 v26, 7, v{vL}")
        A(f"v_xor_b32 v26, v26, v25")
        A(f"v_lshlrev_b32 v26, 4, v26")
        A(f"v_lshl_add_u32 v25, v25, 11, v26")
    for st in range(2, 12):
        stage(st % 4, st, rd_W(0) if st == 11 else None)
    A("s_mov_b32 s54, 0xffff")
    A("s_and_b32 s50, s53, s54")
    A("s_cmp_lg_u32 s50, s54")
    A("s_cbranch_scc1 L_o_poll1")
    A.label("L_o_ready1")
    A("s_barrier")
    A.raw(".p2align 6")
    A.label("L_o_loop")
    tstamp(A, "2")
    stage(0, 12, rd_W(1), [["s_add_u32 s37, s37, 0x8000", "s_and_b32 s37, s37, 0x1ffff"], ["s_cmp_eq_u32 s39, 6", "s_cselect_b32 s37, 0x20000, s37"]])
    stage(1, 13, rd_W(2))
    A("s_mov_b32 s8, s4")
    A("s_mov_b32 s9, s5")
    A("s_cmp_eq_u32 s39, 7")
    A("s_cbranch_scc1 L_o_tail")
    stage(2, 14, rd_W(3), [["s_add_u32 s39, s39, 1"]])
    A(f"v_add_u32 v{vWr}, s37, v{vWr0}")
    A(f"v_add_u32 v{vWr+1}, s37, v{vWr0+1}")
    stage(3, 15, rd_W(0))
    A("s_branch L_o_loop")
    A.label("L_o_tail")
    if "fulline" in VAR: A("s_barrier")
    R3 = rd_W(3)
    for j in range(8, 16):
        st, sq = j // 4, j % 4
        A(f"s_waitcnt vmcnt({15 - j}) lgkmcnt({12 if j < 12 else 4*(15-j)})")
        for c in range(2):
            A(mf(12 + st, sq, c, j))
            for _ in range(2):
                if R3: A(R3.pop(0))
    A("s_mov_b32 s40, s43")
    A("s_nop 2")
    OST = os.environ.get('OST', 'nt')
    if "fulline" not in VAR:
        A(f"v_lshlrev_b32 v{vT0}, 11, v{vL31}")
        A(f"v_lshl_add_u32 v{vT0}, v{vH}, 4, v{vT0}")
        A("s_nop 7")
        for c in range(2):
            for j in range(8):
                A(f"v_cvt_pk_bf16_f32 v{64+8*c+j}, v{ACC+16*c+2*j}, v{ACC+16*c+2*j+1}")
            for f in range(2):
                A(f"buffer_store_dwordx4 {vr(64+8*c+4*f,4)}, v{vT0}, s[56:59], s40 offen offset:{64*c+32*f} {OST}")
    else:
        A("s_nop 7")
        for c in range(2):
            for j in range(8):
                A(f"v_cvt_pk_bf16_f32 v{64+8*c+j}, v{ACC+16*c+2*j}, v{ACC+16*c+2*j+1}")
            for f in range(2):
                A(f"ds_write_b128 v{20+2*c+f}, {vr(64+8*c+4*f,4)}")
        A("s_waitcnt lgkmcnt(0)")
        for i in range(4):
            A(f"ds_read_b128 {vr(80+4*i,4)}, v24 offset:{1024*i}")
        for i in range(4):
            A(f"s_waitcnt lgkmcnt({3-i})")
            A(f"buffer_store_dwordx4 {vr(80+4*i,4)}, v25, s[56:59], s40 offen {OST}")
            A("s_add_u32 s40, s40, 0x4000")
    if TS == "2":
        tstamp(A, "2")
        A("s_waitcnt vmcnt(0)")
        tstamp(A, "2")
    if STAMP:
        A("s_waitcnt vmcnt(0)")
        _stamp(A, 1)
        stamp_flush(A, 0, 8, 26, 27, 20)
    A("s_endpgm")
    for k in (1, 0):
        tgt = f"L_o_ready{k}"
        A.label(f"L_o_poll{k}")
        A("s_mov_b32 s48, 0")
        A.label(f"L_o_spin{k}")
        A(f"buffer_load_dword v{vPl}, v{vT0}, s[16:19], s6 offen sc1")
        A("s_waitcnt vmcnt(0)")
        A(f"v_cmp_eq_u32 vcc, 1, v{vPl}")
        A("s_add_u32 s48, s48, 1")
        A("s_cmp_gt_u32 s48, 0x40000")
        A(f"s_cbranch_scc1 {tgt}")
        A("s_nop 2")
        A("s_mov_b32 s53, vcc_lo")
        A("s_and_b32 s50, s53, s54")
        A("s_cmp_eq_u32 s50, s54")
        A(f"s_cbranch_scc1 {tgt}")
        A(f"s_sleep {int(os.environ.get('SLEEP', '2'))}")
        A(f"s_branch L_o_spin{k}")

def main(path):
    ref = open("cdna_kernels/" + NAME + ".s.ref").read().split("\n")
    hdr = [l for l in ref if l.startswith(";") and "@launch" not in l and "Override" not in l and "grid=ceil" not in l]
    B = Asm()
    d1 = gen_attn(B)
    A = Asm()
    for l in hdr: A.raw(l)
    A.raw(f"; @launch grid=(256,1,1) block=(256,1,1) lds={LDS_ATTN}")
    A.raw('.amdgcn_target "amdgcn-amd-amdhsa--gfx950"')
    A.raw(".text")
    A.lines += B.lines
    A.raw("L_code_end:")
    A.raw('.section .rodata,"a"')
    for d in (d1,):
        A.raw(".p2align 6")
        A.raw(d)
    open(path, "w").write(A.text())

if __name__ == "__main__":
    main(sys.argv[1] if len(sys.argv) > 1 else "cdna_kernels/" + NAME + ".s")
```

```python
import sys, math, struct, os
from asmlib import *

NAME = "gated_mix__grouped_kv_mqa__grouped_kv_mqa__prompt"
WS_KV = 0
WS_G = 0x80000
WS_FL = 0x90000
WS_OF = 0x100000
WS_USED = 0x900000
STAMP = os.environ.get("STAMP", "0") == "1"
VAR = os.environ.get("VAR", "")
XNT = "nt" if "xnt" in VAR else ""
WNT = "nt" if "wnt" in VAR else ""
WS_ST = 0xA00000

MINST = os.environ.get("MINST", "0") == "1"
FINE = os.environ.get("FINE", "0") == "1" or MINST
TS = os.environ.get("TS", "0")
def tstamp(A, ph="1"):
    if TS != ph: return
    A("s_waitcnt lgkmcnt(0)")
    A("s_memtime s[96:97]")
    A("s_memrealtime s[98:99]")
    A("s_waitcnt lgkmcnt(0)")
    A("v_mov_b32 v6, s96")
    A("v_mov_b32 v7, s98")
    A("v_mov_b32 v5, 0")
    A("buffer_store_dwordx2 v[6:7], v5, s[92:95], s100 offen")
    A("s_add_u32 s100, s100, 8")
def tstamp_init(A, wsl, wsh, wave_sgpr, kern):
    if TS == "0": return
    A(f"s_mov_b32 s92, s{wsl}")
    A(f"s_mov_b32 s93, s{wsh}")
    A(f"s_mov_b32 s94, {0xC00000}")
    A("s_mov_b32 s95, 0x00020000")
    A("s_lshl_b32 s100, s2, 2")
    A(f"s_add_u32 s100, s100, s{wave_sgpr}")
    A("s_lshl_b32 s100, s100, 9")
    A(f"s_add_u32 s100, s100, {0xA00000 + kern*0x80000}")
FINE2 = os.environ.get("FINE2", "0") == "1"
def gstamp(A, k):
    if FINE2: _stamp(A, k)
def fstamp(A, k):
    if FINE and not MINST: _stamp(A, k)
def stamp(A, k):
    if FINE and k not in (0,): return
    if FINE2: return
    _stamp(A, k)
def _stamp(A, k):
    if not STAMP: return
    A("s_waitcnt lgkmcnt(0)")
    A(f"s_memtime s[96:97]")
    A(f"s_memrealtime s[98:99]")
    A("s_waitcnt lgkmcnt(0)")
    A(f"s_mov_b32 s{76+k}, s96")
    A(f"s_mov_b32 s{84+k}, s98")
def stamp_flush(A, kern, n, wsl, wsh, wave_sgpr):
    if not STAMP: return
    A(f"s_mov_b32 s92, s{wsl}")
    A(f"s_mov_b32 s93, s{wsh}")
    A(f"s_mov_b32 s94, {WS_ST + 0x40000}")
    A("s_mov_b32 s95, 0x00020000")
    A("s_lshl_b32 s96, s2, 2")
    A(f"s_add_u32 s96, s96, s{wave_sgpr}")
    A("s_lshl_b32 s96, s96, 6")
    A(f"s_add_u32 s96, s96, {WS_ST + kern*0x10000}")
    A("v_mov_b32 v1, 0")
    for k in range(n):
        A(f"v_mov_b32 v2, s{76+k}")
        A(f"buffer_store_dword v2, v1, s[92:95], s96 offen offset:{4*k}")
        A("s_nop 1")
        A(f"v_mov_b32 v2, s{84+k}")
        A(f"buffer_store_dword v2, v1, s[92:95], s96 offen offset:{32+4*k}")
        A("s_nop 1")

def f32bits(x):
    return struct.unpack("<I", struct.pack("<f", x))[0]
KSCALE = f32bits(math.log2(math.e) / math.sqrt(32.0))
LOG2E = f32bits(math.log2(math.e))

def take_(L, n):
    r = L[:n]; del L[:n]; return r

def weave(A, M, streams):
    for k, m in enumerate(M):
        A(m)
        for items, q in streams:
            for _ in range(q(k)):
                if items:
                    x = items.pop(0)
                    if isinstance(x, (list, tuple)):
                        for y in x: A(y)
                    else: A(x)
    for items, q in streams:
        while items:
            x = items.pop(0)
            if isinstance(x, (list, tuple)):
                for y in x: A(y)
            else: A(x)

LDS_SCR = 0x14000
LDS_SCG = 0x1C000
LDS_DUMMY = 0x27C00
LDS_ATTN = 163840

def gen_attn(A):
    name = NAME + "_kernel"
    kernel_header(A, name)
    S0, C0, O0, Q0 = 32, 96, 160, 224
    L0, KB0, VB0, SEL, GF, FR = 0, 16, 32, 48, 0, 128
    vL, vH, vL31, vW_ = 1, 2, 3, 4
    vXd, vWd = 8, 12
    vXr, vWr = 16, 20
    vKV, vIDX, vT0, vT1, vG = 22, 23, 24, 25, 26
    vLane16, vLin, vPoll, vT2 = 28, 29, 30, 31
    ACC = S0
    PACC, GACC = Q0, Q0 + 4
    vPd, vPr, vPw = C0, C0 + 4, C0 + 8
    vRed = C0 + 12
    A("s_cmp_ge_u32 s2, 256")
    A("s_cbranch_scc1 L_at_end")
    stamp(A, 0)
    if "epf" in VAR:
        A("s_getpc_b64 s[72:73]")
        for k in range(1, 7):
            A(f"s_load_dword s74, s[72:73], {128*k}")
    A("s_load_dwordx8 s[4:11], s[0:1], 0")
    A("s_load_dwordx2 s[64:65], s[0:1], 32")
    A("s_load_dwordx8 s[12:19], s[0:1], 48")
    A("s_load_dwordx2 s[66:67], s[0:1], 80")
    A("s_load_dwordx4 s[24:27], s[0:1], 96")
    if "perm" in VAR:
        A("s_bfe_u32 s28, s2, 0x30003")
        A("s_lshr_b32 s29, s2, 6")
        A("s_and_b32 s2, s2, 7")
        A("s_lshl_b32 s28, s28, 5")
        A("s_lshl_b32 s29, s29, 3")
        A("s_or_b32 s2, s2, s28")
        A("s_or_b32 s2, s2, s29")
    if "swapb" in VAR: A("s_xor_b32 s2, s2, 1")
    A("s_and_b32 s28, s2, 1")
    A("s_bfe_u32 s29, s2, 0x20001")
    A("s_bfe_u32 s30, s2, 0x20003")
    A("s_lshl_b32 s29, s29, 2")
    A("s_add_u32 s29, s29, s30")
    A("s_lshr_b32 s30, s2, 5")
    A("s_lshr_b32 s31, s2, 7")
    A("s_and_b32 s23, s30, 3")
    A("s_lshl_b32 s33, s29, 2")
    A("s_add_u32 s33, s33, s23")
    A("s_lshl_b32 s34, s31, 1")
    A("s_add_u32 s34, s34, s23")
    A("s_and_b32 s34, s34, 3")
    A("s_lshl_b32 s37, s30, 1")
    if True:
        A("s_and_b32 s38, s29, 12")
        A("s_add_u32 s37, s37, s38")
        if "rotgb" in VAR: A("s_add_u32 s37, s37, s28")
        A("s_and_b32 s37, s37, 15")
    A("s_lshl_b32 s38, s29, 18")
    A("s_lshl_b32 s39, s30, 8")
    A(f"v_lshrrev_b32 v{vW_}, 6, v0")
    A(f"v_and_b32 v{vL}, 63, v0")
    A(f"v_readfirstlane_b32 s20, v{vW_}")
    A(f"v_lshrrev_b32 v{vH}, 5, v{vL}")
    A(f"v_and_b32 v{vL31}, 31, v{vL}")
    A(f"v_lshlrev_b32 v{vLane16}, 4, v{vL}")
    A(f"v_lshl_add_u32 v{vLin}, v{vW_}, 12, v{vLane16}")
    A(f"v_lshrrev_b32 v{vT0}, 3, v{vL}")
    A(f"v_lshl_add_u32 v{vT0}, v{vW_}, 5, v{vT0}")
    A(f"v_lshlrev_b32 v{vT0}, 11, v{vT0}")
    A(f"v_lshrrev_b32 v{vT1}, 4, v{vL}")
    A(f"v_and_b32 v5, 7, v{vL}")
    A(f"v_xor_b32 v5, v5, v{vT1}")
    A(f"v_lshl_add_u32 v{vXd}, v5, 4, v{vT0}")
    A(f"v_xor_b32 v{vXd+1}, 64, v{vXd}")
    A(f"v_add_u32 v{vXd+1}, {16384-1024}, v{vXd+1}")
    A(f"v_add_u32 v{vXd+2}, {2*(16384-1024)}, v{vXd}")
    A(f"v_add_u32 v{vXd+3}, {2*(16384-1024)}, v{vXd+1}")
    A(f"v_lshl_add_u32 v{vT0}, v{vW_}, 4, v{vT1}")
    A(f"v_lshlrev_b32 v{vT0}, 11, v{vT0}")
    A(f"v_lshlrev_b32 v{vT1}, 2, v{vT1}")
    A(f"v_and_b32 v5, 15, v{vL}")
    A(f"v_xor_b32 v5, v5, v{vT1}")
    A(f"v_lshl_add_u32 v{vWd}, v5, 4, v{vT0}")
    for t in range(1, 4):
        A(f"v_add_u32 v{vWd+t}, {t*(8192-1024)}, v{vWd}")
    A("s_waitcnt lgkmcnt(0)")
    fstamp(A, 1)
    if os.environ.get("WSOFF"):
        A(f"s_add_u32 s26, s26, {int(os.environ['WSOFF'], 0)}")
        A("s_addc_u32 s27, s27, 0")
    A("s_cmp_eq_u32 s28, 1")
    A("s_cselect_b64 s[6:7], s[12:13], s[6:7]")
    A("s_cselect_b64 s[8:9], s[14:15], s[8:9]")
    A("s_cselect_b64 s[10:11], s[16:17], s[10:11]")
    A("s_cselect_b64 s[72:73], s[18:19], s[64:65]")
    A("s_cselect_b64 s[74:75], s[64:65], s[18:19]")
    A("s_cmp_eq_u32 s31, 1")
    A("s_cselect_b64 s[8:9], s[10:11], s[8:9]")
    A("s_cselect_b64 s[64:65], s[18:19], s[64:65]")
    srd(A, 40, 8, 9, 1024*32*2)
    srd(A, 8, 4, 5, 2048*1024*2)
    srd(A, 12, 6, 7, 1024*1024*2)
    srd(A, 56, 66, 67, 2048)
    A("s_lshl_b32 s36, s20, 12")
    A("s_lshl_b32 s35, s33, 16")
    A("s_mov_b32 s71, s36")
    A("s_add_u32 s32, s36, 0x28000")
    A("s_and_b32 s23, s29, 3")
    PARK = ()
    adv = ["s_add_u32 s71, s71, 0x8000", "s_cmp_eq_u32 s71, s32", "s_cselect_b32 s71, s36, s71"]
    def dma_P():
        I = []
        I.append([f"s_mov_b32 m0, s71", "s_lshl_b32 s48, s34, 9", "s_add_u32 s48, s48, s35",
                  f"buffer_load_dwordx4 v{vPd}, s[8:11], s48 offen lds"])
        for t in range(1, 4):
            I.append(f"buffer_load_dwordx4 v{vPd+t}, s[8:11], s48 offen offset:{1024*t} lds")
        I.append([f"s_add_u32 m0, s71, 0x4000", "s_lshl_b32 s49, s34, 14",
                  f"buffer_load_dwordx4 v{vLin}, s[40:43], s49 offen lds"])
        for t in range(1, 4):
            I.append(f"buffer_load_dwordx4 v{vLin}, s[40:43], s49 offen offset:{1024*t} lds")
        I.append(["s_add_u32 s34, s34, 1", "s_and_b32 s34, s34, 3"] + adv)
        return I
    def dma_G():
        I = []
        I.append([f"s_mov_b32 m0, s71", "s_lshl_b32 s48, s37, 7", "s_add_u32 s48, s48, s38",
                  f"buffer_load_dwordx4 v{vXd}, s[8:11], s48 offen lds"])
        for t in range(1, 4):
            I.append(f"buffer_load_dwordx4 v{vXd+t}, s[8:11], s48 offen offset:{1024*t} lds")
        I.append([f"s_add_u32 m0, s71, 0x4000", "s_lshl_b32 s49, s37, 17", "s_add_u32 s49, s49, s39",
                  f"buffer_load_dwordx4 v{vWd}, s[12:15], s49 offen lds"])
        for t in range(1, 4):
            I.append(f"buffer_load_dwordx4 v{vWd+t}, s[12:15], s49 offen offset:{1024*t} lds")
        I.append(["s_add_u32 s37, s37, 1", "s_and_b32 s37, s37, 15"] + adv)
        return I
    def dma_C(c):
        slot = (c % 4) * 0x8000
        I = []
        I.append([f"s_add_u32 m0, s36, {slot}", f"s_mov_b32 s48, {c*0x8000}",
                  f"buffer_load_dwordx4 v{vLin}, s[44:47], s48 offen sc1 lds"])
        for t in range(1, 4):
            I.append(f"buffer_load_dwordx4 v{vLin}, s[44:47], s48 offen offset:{1024*t} sc1 lds")
        I.append([f"s_add_u32 m0, s36, {slot+0x4000}", f"s_mov_b32 s49, {c*0x8000+0x4000}",
                  f"buffer_load_dwordx4 v{vLin}, s[44:47], s49 offen sc1 lds"])
        for t in range(1, 4):
            I.append(f"buffer_load_dwordx4 v{vLin}, s[44:47], s49 offen offset:{1024*t} sc1 lds")
        return I
    def flat(I):
        for x in I:
            if isinstance(x, (list, tuple)):
                for y in x: A(y)
            else: A(x)
    ORDER = ["G", "G", "P", "P", "P", "P"] + ["G"] * 14
    PIDX = {n: k for k, n in enumerate([n for n in range(20) if ORDER[n] == "P"])}
    PLAST = max(PIDX)
    def dma(n):
        if n >= 20: return dma_C(n - 20)
        return dma_P() if ORDER[n] == "P" else dma_G()
    flat(dma(0))
    fstamp(A, 2)
    A(f"s_add_u32 m0, s36, 0x20000")
    A("s_bfe_u32 s48, s2, 0x40003")
    A("s_lshl_b32 s48, s48, 12")
    A("s_lshl_b32 s49, s20, 10")
    A("s_add_u32 s48, s48, s49")
    A(f"buffer_load_dwordx4 v{vLane16}, s[40:43], s48 offen lds")
    if "cpf" in VAR:
        A("s_getpc_b64 s[72:73]")
        A.label("L_at_pc")
        A("s_lshr_b32 s48, s2, 3")
        A("s_lshl_b32 s48, s48, 2")
        A("s_add_u32 s48, s48, s20")
        A("s_lshl_b32 s48, s48, 8")
        A("s_min_u32 s48, s48, L_code_end-L_at_pc-256")
        A("s_add_u32 s72, s72, s48")
        A("s_addc_u32 s73, s73, 0")
        for q in range(4):
            A(f"s_load_dword s74, s[72:73], {64*q}")
    if "gtouch" in VAR:
        A(f"v_lshlrev_b32 v{vT0}, 5, v{vL}")
        A(f"buffer_load_dword v{vT0}, s[56:59], 0 offen lds")
    srd(A, 16, 26, 27, WS_USED)
    srd(A, 52, 64, 65, 1024*1024*2)
    srd(A, 60, 24, 25, 256)
    A("s_load_dwordx2 s[64:65], s[0:1], 88")
    A("s_lshl_b32 s48, s28, 18")
    A("s_add_u32 s44, s26, s48")
    A("s_addc_u32 s45, s27, 0")
    A("s_mov_b32 s46, 0x40000")
    A("s_mov_b32 s47, 0x00020000")
    A("s_lshr_b32 s22, s20, 1")
    A("s_and_b32 s21, s20, 1")
    A("s_bfe_u32 s68, s2, 0x40003")
    A("s_lshl_b32 s68, s68, 2")
    A("s_add_u32 s68, s68, s20")
    A("s_lshl_b32 s68, s68, 15")
    A("s_lshl_b32 s69, s28, 10")
    A("s_add_u32 s68, s68, s69")
    if "gateb" in VAR:
        A("s_xor_b32 s70, s28, 1")
        A("s_or_b32 s70, s70, s31")
    elif "gatex" in VAR:
        A("s_and_b32 s70, s33, 1")
        A("s_xor_b32 s70, s70, s28")
        A("s_or_b32 s70, s70, s31")
    else:
        A("s_or_b32 s70, s28, s31")
    A("s_or_b32 s70, s70, s21")
    A(f"v_lshl_add_u32 v{vT0}, v{vW_}, 3, v{vH}")
    A(f"v_and_b32 v{vT1}, 15, v{vT0}")
    A(f"v_xor_b32 v{vT1}, v{vT1}, v{vL31}")
    A(f"v_lshlrev_b32 v{vT1}, 4, v{vT1}")
    A(f"v_lshl_add_u32 v{vPd}, v{vT0}, 11, v{vT1}")
    for t in range(1, 4):
        A(f"v_xor_b32 v{vPd+t}, {(2*t) << 4}, v{vPd}")
        A(f"v_add_u32 v{vPd+t}, {t*(4096-1024)}, v{vPd+t}")
    A(f"v_and_b32 v6, 15, v{vL}")
    A(f"v_lshrrev_b32 v7, 4, v{vL}")
    A(f"v_xor_b32 v{vT0}, v6, v7")
    A(f"v_lshlrev_b32 v{vT0}, 4, v{vT0}")
    A(f"v_lshl_add_u32 v{vT0}, v6, 9, v{vT0}")
    A("s_lshl_b32 s48, s22, 13")
    A(f"v_add_u32 v{vPr}, s48, v{vT0}")
    for s in range(1, 4):
        A(f"v_xor_b32 v{vPr+s}, {64*s}, v{vPr}")
    A(f"v_bfe_u32 v{vT0}, v{vL}, 2, 2")
    A(f"v_lshl_add_u32 v{vT0}, v7, 3, v{vT0}")
    A(f"v_lshlrev_b32 v{vT0}, 6, v{vT0}")
    A(f"v_and_b32 v{vT1}, 3, v{vL}")
    A(f"v_lshl_add_u32 v{vT0}, v{vT1}, 3, v{vT0}")
    A("s_lshl_b32 s48, s21, 5")
    A("s_add_u32 s48, s48, 0x4000")
    A(f"v_add_u32 v{vPw}, s48, v{vT0}")
    A(f"v_bfe_u32 v{vT0}, v{vL}, 1, 3")
    A(f"v_xor_b32 v{vT0}, v{vT0}, v{vH}")
    A(f"v_lshlrev_b32 v{vT0}, 4, v{vT0}")
    A(f"v_lshl_add_u32 v{vT0}, v{vL31}, 7, v{vT0}")
    A(f"s_lshl_b32 s48, s22, 13")
    A(f"v_add_u32 v{vXr}, s48, v{vT0}")
    for s in range(1, 4):
        A(f"v_xor_b32 v{vXr+s}, {(2*s) << 4}, v{vXr}")
    A(f"v_bfe_u32 v{vT0}, v{vL}, 2, 2")
    A(f"v_lshl_add_u32 v{vT1}, v{vH}, 3, v{vT0}")
    A(f"v_lshlrev_b32 v{vT1}, 8, v{vT1}")
    A(f"s_lshl_b32 s48, s21, 1")
    A(f"v_xor_b32 v{vT0}, s48, v{vT0}")
    A(f"v_lshl_add_u32 v{vT1}, v{vT0}, 6, v{vT1}")
    A(f"v_bfe_u32 v{vT0}, v{vL}, 4, 1")
    A(f"v_lshl_add_u32 v{vT1}, v{vT0}, 5, v{vT1}")
    A(f"v_and_b32 v{vT0}, 3, v{vL}")
    A(f"v_lshl_add_u32 v{vT1}, v{vT0}, 3, v{vT1}")
    A(f"v_add_u32 v{vWr}, 0x4000, v{vT1}")
    A(f"v_xor_b32 v{vWr+1}, 64, v{vWr}")
    for i in range(0, 8, 2):
        A(f"v_mov_b64 {vr(PACC+i,2)}, 0")
    for i in range(0, 64, 2):
        A(f"v_mov_b64 {vr(ACC+i,2)}, 0")
    side = []
    side.append(f"v_mov_b32 v{vIDX}, 0xdddddddd")
    side += [f"v_and_b32 v{vT0}, 15, v{vL}", f"v_mov_b32 v{vT1}, 0x3f803f80", f"v_cmp_eq_u32 vcc, 0, v{vT0}", "s_nop 1",
             f"v_cndmask_b32 v{vT2}, 0, v{vT1}, vcc", f"v_cmp_eq_u32 vcc, 4, v{vT0}", "s_nop 1",
             f"v_cndmask_b32 v{vT1}, 0, v{vT1}, vcc",
             f"v_accvgpr_write_b32 a{SEL}, v{vT2}", f"v_accvgpr_write_b32 a{SEL+1}, v{vT2}",
             f"v_accvgpr_write_b32 a{SEL+2}, v{vT1}", f"v_accvgpr_write_b32 a{SEL+3}, v{vT1}"]
    side += [f"v_accvgpr_write_b32 a{L0+i}, 0" for i in range(16)]
    side += [f"v_accvgpr_write_b32 a{VB0+8+i}, 0" for i in range(8)]
    side.append(f"v_mov_b32 v{vKV}, v{vLane16}")
    A(f"v_bfe_u32 v{vT0}, v6, 2, 1")
    A(f"v_bfe_u32 v{vT1}, v6, 3, 1")
    A(f"v_and_b32 v{vRed+8}, 3, v6")
    A(f"v_lshl_add_u32 v{vRed+8}, v{vT0}, 3, v{vRed+8}")
    A(f"v_lshl_add_u32 v{vRed+8}, v{vT1}, 2, v{vRed+8}")
    A("s_cmp_eq_u32 s31, 1")
    A("s_cselect_b64 vcc, -1, 0")
    A("s_cselect_b32 s50, s21, s22")
    A("s_cselect_b32 s51, s22, s21")
    A(f"v_cndmask_b32 v{vRed+8}, v{vRed+8}, v6, vcc")
    A(f"v_and_b32 v{vT0}, 1, v7")
    A(f"v_lshl_add_u32 v{vRed+8}, v{vT0}, 5, v{vRed+8}")
    A(f"v_lshlrev_b32 v{vRed+8}, 4, v{vRed+8}")
    A(f"v_lshl_add_u32 v{vRed+8}, v{vH}, 3, v{vRed+8}")
    A("s_lshl_b32 s50, s50, 8")
    A("s_lshl_b32 s51, s51, 10")
    A("s_add_u32 s50, s50, s51")
    A("s_lshl_b32 s51, s33, 12")
    A("s_add_u32 s50, s50, s51")
    A("s_lshl_b32 s51, s31, 11")
    A("s_add_u32 s50, s50, s51")
    A(f"v_add_u32 v{vRed+8}, s50, v{vRed+8}")
    A("s_lshl_b32 s50, s33, 7")
    A("s_lshl_b32 s51, s22, 6")
    A("s_add_u32 s50, s50, s51")
    A(f"s_add_u32 s50, s50, {WS_G}")
    A("s_cmp_eq_u32 s70, 0")
    A(f"s_cselect_b32 s50, s50, {WS_USED}")
    A(f"v_lshl_add_u32 v{vRed+9}, v6, 2, s50")
    A(f"v_lshl_add_u32 v{vRed+9}, v7, 24, v{vRed+9}")
    A("s_lshl_b32 s69, s29, 7")
    A("s_lshl_b32 s51, s28, 5")
    A("s_add_u32 s69, s69, s51")
    A("s_lshl_b32 s51, s30, 2")
    A("s_add_u32 s69, s69, s51")
    A(f"s_add_u32 s69, s69, {WS_FL}")
    A("s_cmp_lg_u32 s20, 0")
    A("s_cbranch_scc1 L_at_nofr")
    A(f"v_mov_b32 v{vT0}, 0")
    A("s_mov_b64 exec, 1")
    A(f"buffer_atomic_swap v{vT0}, v{vT0}, s[16:19], s69 offen sc1")
    A("s_mov_b64 exec, -1")
    A.label("L_at_nofr")
    tstamp_init(A, 26, 27, 20, 0)
    tstamp(A)
    fstamp(A, 3)
    A("s_mov_b32 s3, s34")
    def gate_loads():
        A("s_cmp_lg_u32 s70, 0")
        A("s_cbranch_scc1 L_at_nogf")
        A(f"v_and_b32 v{vT0}, 0x30, v{vL}")
        A("s_mov_b32 s50, s3")
        A("s_mov_b32 exec_lo, 0x00010001")
        A("s_mov_b32 exec_hi, 0x00010001")
        for q in range(4):
            A("s_lshl_b32 s51, s50, 9")
            for ks in range(8):
                A(f"buffer_load_dwordx4 {ar(GF+32*q+4*ks,4)}, v{vT0}, s[56:59], s51 offen offset:{64*ks}")
            A("s_add_u32 s50, s50, 1")
            A("s_and_b32 s50, s50, 3")
        A("s_mov_b64 exec, -1")
        A.label("L_at_nogf")
    gate_loads()
    flat(dma(1))
    if "wtch" in VAR:
        A(f"v_lshlrev_b32 v{vT0}, 11, v7")
        A(f"v_lshl_add_u32 v{vT0}, v6, 4, v{vT0}")
        A("s_add_u32 s48, s37, s22")
        A("s_and_b32 s48, s48, 15")
        A("s_lshl_b32 s48, s48, 17")
        A("s_add_u32 s48, s48, s39")
        A("s_lshl_b32 s49, s23, 15")
        A("s_add_u32 s48, s48, s49")
        A("s_lshl_b32 s49, s21, 14")
        A("s_add_u32 s48, s48, s49")
        A("s_add_u32 m0, s36, 0x20000")
        A("s_add_u32 s49, s48, 0x2000")
        A(f"buffer_load_dwordx4 v{vT0}, s[12:15], s48 offen lds")
        A(f"buffer_load_dwordx4 v{vT0}, s[12:15], s49 offen lds")
    A("s_cmp_lg_u32 s20, s23")
    A("s_cbranch_scc1 L_at_pro")
    flat(dma(2)); flat(dma(3))
    A.label("L_at_pro")
    fstamp(A, 4)
    stamp(A, 1)
    def rd_P(n):
        off = ((n % 5) % 2) * 0x8000
        R = []
        for ks in range(8):
            b = O0 + 8*ks
            R.append(f"ds_read_b128 {vr(b,4)}, v{vPr+(ks%4)} offset:{off+256*(ks//4)}")
            R.append(f"ds_read_b64_tr_b16 {vr(b+4,2)}, v{vPw} offset:{off+2048*ks}")
            R.append(f"ds_read_b64_tr_b16 {vr(b+6,2)}, v{vPw} offset:{off+2048*ks+256}")
        return R
    def mf_P(n):
        A("s_cmp_eq_u32 s31, 1")
        A(f"s_cbranch_scc1 L_at_pv{n}")
        for ks in range(8):
            A(f"v_mfma_f32_16x16x32_bf16 {vr(PACC,4)}, {vr(O0+8*ks+4,4)}, {vr(O0+8*ks,4)}, {vr(PACC,4)}")
        A("s_cmp_lg_u32 s70, 0")
        A(f"s_cbranch_scc1 L_at_pj{n}")
        for ks in range(8):
            A(f"v_mfma_f32_16x16x32_bf16 {vr(GACC,4)}, {ar(GF+32*PIDX[n]+4*ks,4)}, {vr(O0+8*ks,4)}, {vr(GACC,4)}")
        A(f"s_branch L_at_pj{n}")
        A.label(f"L_at_pv{n}")
        for ks in range(8):
            A(f"v_mfma_f32_16x16x32_bf16 {vr(PACC,4)}, {vr(O0+8*ks,4)}, {vr(O0+8*ks+4,4)}, {vr(PACC,4)}")
        A.label(f"L_at_pj{n}")
    def rd_G(n):
        off = ((n % 5) % 2) * 0x8000
        b = FR + 64*(n % 2)
        R = []
        for s in range(4):
            p = b + 16*s
            R.append(f"ds_read_b128 {ar(p,4)}, v{vXr+s} offset:{off}")
            wr, wo = vWr, off
            R.append(f"ds_read_b64_tr_b16 {ar(p+8,2)}, v{wr} offset:{wo+4096*s}")
            R.append(f"ds_read_b64_tr_b16 {ar(p+10,2)}, v{wr} offset:{wo+4096*s+1024}")
            R.append(f"ds_read_b128 {ar(p+4,4)}, v{vXr+s} offset:{off+4096}")
            R.append(f"ds_read_b64_tr_b16 {ar(p+12,2)}, v{wr+1} offset:{wo+4096*s}")
            R.append(f"ds_read_b64_tr_b16 {ar(p+14,2)}, v{wr+1} offset:{wo+4096*s+1024}")
        return R
    def mf_G(n, by_u=False):
        b = FR + 64*(n % 2)
        M = []
        order = [(s, a, t) for s in range(4) for a in range(2) for t in range(2)]
        if by_u: order = [(s, a, t) for a in range(2) for t in range(2) for s in range(4)]
        for (s, a, t) in order:
            p = b + 16*s; u = 2*a + t
            if "fake16" in VAR:
                q = ACC + 16*u + 8*(s % 2)
                p2 = b + 16*(s ^ 1)
                M.append(f"v_mfma_f32_16x16x32_bf16 {vr(q,4)}, {ar(p+8+4*a,4)}, {ar(p+4*t,4)}, {vr(q,4)}\n"
                         f"v_mfma_f32_16x16x32_bf16 {vr(q+4,4)}, {ar(p+8+4*a,4)}, {ar(p2+4*t,4)}, {vr(q+4,4)}")
                continue
            M.append(f"v_mfma_f32_32x32x16_bf16 {vr(ACC+16*u,16)}, {ar(p+8+4*a,4)}, {ar(p+4*t,4)}, {vr(ACC+16*u,16)}")
        return M
    def toggle(regs, d):
        return [f"v_add_u32 v{r}, {(d*0x10000) & 0xffffffff:#x}, v{r}" for r in regs]
    Pregs = [vPr+s for s in range(4)] + [vPw]
    Gregs = [vXr+s for s in range(4)] + [vWr, vWr+1]
    hi = {"P": 0, "G": 0}
    for n in range(20):
        A.comment(f"---- iteration {n} ({ORDER[n]})")
        cnt = 10 if n in (7, 8) else (9 if n == 17 else 8)
        if "wtch" in VAR and n in (0, 1): cnt = 10
        A("s_cmp_eq_u32 s20, s23")
        A(f"s_waitcnt vmcnt({16 if n == 9 else 24}) lgkmcnt(0)")
        A(f"s_cbranch_scc1 L_at_w{n}")
        A(f"s_waitcnt vmcnt({cnt})")
        A.label(f"L_at_w{n}")
        A("s_barrier")
        tstamp(A)
        if n == (18 if os.environ.get("FINE3") else 6): stamp(A, 2)
        if n == 0: fstamp(A, 5)
        if n == 1: fstamp(A, 6)
        D = dma(n + 2)
        if n == 16:
            A("s_cmp_eq_u32 s20, s23")
            A("s_cselect_b32 s10, 0, s10")
            A("s_cselect_b32 s14, 0, s14")
            A("s_cselect_b32 s71, 0x30000, s71")
        win = lambda k: (k % 5) // 2
        assert hi[ORDER[n]] == win(n)
        R = rd_P(n) if ORDER[n] == "P" else rd_G(n)
        V = []
        T = []
        if n + 1 < 20 and hi[ORDER[n+1]] != win(n + 1):
            T = toggle(Pregs if ORDER[n+1] == "P" else Gregs, win(n + 1) - hi[ORDER[n+1]])
            hi[ORDER[n+1]] = win(n + 1)
        if n == 18:
            A("s_waitcnt vmcnt(8)")
            A(f"v_cmp_gt_u32 vcc, 4, v{vPoll}")
            A("s_nop 4")
            A("s_cmp_eq_u64 vcc, 0")
            A("s_cbranch_scc1 L_at_flags_ok")
            A("s_mov_b32 s50, 0")
            A.label("L_at_spin")
            A("s_add_u32 s50, s50, 1")
            A("s_cmp_gt_u32 s50, 0x40000")
            A("s_cbranch_scc1 L_at_flags_ok")
            A("s_sleep 8")
            A(f"buffer_load_dword v{vPoll}, v{vT2}, s[60:63], 0 offen sc1")
            A("s_waitcnt vmcnt(0)")
            A(f"v_cmp_gt_u32 vcc, 4, v{vPoll}")
            A("s_nop 4")
            A("s_cmp_eq_u64 vcc, 0")
            A("s_cbranch_scc0 L_at_spin")
            A.label("L_at_flags_ok")
            if os.environ.get("FINE3"): stamp(A, 3)
        def mixrd(R, D, k):
            while R or D:
                if D: flat([D.pop(0)])
                for _ in range(k):
                    if R: A(R.pop(0))
        if n == 0 or 2 <= n <= 5:
            if n in (2, 3):
                if n >= 3: mf_P(n - 1)
                A("s_cmp_eq_u32 s20, s23")
                A(f"s_cbranch_scc1 L_at_ds{n}")
                mixrd(list(R), D, 3)
                A(f"s_branch L_at_dj{n}")
                A.label(f"L_at_ds{n}")
                mixrd(R, dma_G(), 3)
                A.label(f"L_at_dj{n}")
            else:
                flat(D[:2]); del D[:2]
                if n >= 3: mf_P(n - 1)
                mixrd(R, D, 4)
            for x in T: A(x)
            continue
        post = []
        if n == 6:
            mf_P(5)
            V += ["s_nop 0", "s_nop 0"]
            V.append(["s_mov_b32 s50, 1.0", "s_cmp_eq_u32 s31, 1", f"s_cselect_b32 s50, s50, {KSCALE:#x}"])
            V.append([f"v_mul_f32 v{PACC+e}, s50, v{PACC+e}" for e in range(4)])
            V.append([f"v_cvt_pk_bf16_f32 v{Q0+8}, v{Q0}, v{Q0+1}", f"v_cvt_pk_bf16_f32 v{Q0+9}, v{Q0+2}, v{Q0+3}"])
            V.append([f"v_mul_f32 v{GACC}, {LOG2E ^ 0x80000000:#x}, v{GACC}", f"v_exp_f32 v{GACC}, v{GACC}"])
            V.append([f"v_add_f32 v{GACC}, 1.0, v{GACC}", f"v_rcp_f32 v{GACC}, v{GACC}"])
            post.append(f"buffer_store_dwordx2 {vr(Q0+8,2)}, v{vRed+8}, s[44:47], 0 offen sc1")
            post.append(f"buffer_store_dword v{GACC}, v{vRed+9}, s[16:19], 0 offen sc1")
        if 10 <= n <= 11 or n == 14:
            V += take_(side, 16)
        if n == 9:
            post.append("s_cmp_lg_u32 s20, 0")
            post.append("s_cbranch_scc1 L_at_nosig")
            post.append("s_and_b32 s50, s2, 63")
            post.append("s_lshl_b32 s50, s50, 2")
            post.append(f"v_mov_b32 v{vT0}, 1")
            post.append(f"v_mov_b32 v{vT1}, 0")
            post.append("s_mov_b64 exec, 1")
            post.append(f"buffer_atomic_add v{vT0}, v{vT1}, s[60:63], s50 offen sc1")
            post.append("s_mov_b64 exec, -1")
            post.append("L_at_nosig:")
        if n == 16:
            assert not side
            V.append(f"v_lshlrev_b32 v{vT2}, 2, v{vL}")
            post.append(f"buffer_load_dword v{vPoll}, v{vT2}, s[60:63], 0 offen sc1")
        if n == 18:
            V += [f"v_lshrrev_b32 v{vT0}, 3, v{vL}", f"v_lshl_add_u32 v{vT0}, v{vW_}, 5, v{vT0}", f"v_lshlrev_b32 v{vT0}, 11, v{vT0}",
                  f"v_bfe_u32 v{vT1}, v{vL}, 4, 1", f"v_lshlrev_b32 v{vT1}, 2, v{vT1}", f"v_and_b32 v5, 7, v{vL}",
                  f"v_xor_b32 v5, v5, v{vT1}", f"v_lshl_add_u32 v{vWd}, v5, 4, v{vT0}",
                  ["s_lshl_b32 s31, s28, 3", "s_add_u32 s31, s31, s30", "s_lshl_b32 s31, s31, 7"],
                  f"v_add_u32 v{vWd}, s31, v{vWd}"]
            V += [f"v_add_u32 v{vWd+t}, {t*(16384-1024)}, v{vWd}" for t in range(1, 4)]
        if n == 19:
            V += [f"v_mov_b32 v{vXd+t}, v{vLin}" for t in range(4)]
            V += ["s_mov_b32 s14, 0x200000"]
            V += [["s_lshl_b32 s40, s29, 2", "s_lshl_b32 s41, s22, 1", "s_add_u32 s40, s40, s41"],
                  ["s_lshl_b32 s40, s40, 17", "s_lshl_b32 s41, s28, 5", "s_lshl_b32 s50, s30, 2"],
                  ["s_add_u32 s41, s41, s50", "s_lshl_b32 s50, s21, 1", "s_add_u32 s41, s41, s50"],
                  ["s_lshl_b32 s41, s41, 11", "s_add_u32 s40, s40, s41", f"s_add_u32 s40, s40, {WS_OF}"],
                  ["s_add_u32 s41, s40, 0x20000", "s_mov_b32 s42, s40"],
                  ["s_mov_b32 s56, s64", "s_mov_b32 s57, s65", f"s_mov_b32 s58, {2048*1024*2}"],
                  ["s_lshl_b32 s43, s29, 18", "s_lshl_b32 s50, s20, 16", "s_add_u32 s43, s43, s50"],
                  ["s_add_u32 s43, s43, s31"],
                  ["s_lshl_b32 s50, s29, 2", "s_add_u32 s50, s50, s20", "s_lshl_b32 s50, s50, 17", f"s_add_u32 s50, s50, {WS_OF}",
                   "s_lshl_b32 s51, s28, 16", "s_add_u32 s7, s50, s51"],
                  ["s_add_u32 s8, s26, s7", "s_addc_u32 s9, s27, 0", "s_mov_b32 s10, 0x10000", "s_xor_b32 s51, s51, 0x10000",
                   "s_add_u32 s7, s50, s51", "s_add_u32 s4, s26, s7", "s_addc_u32 s5, s27, 0"],
                  ["s_lshl_b32 s3, s30, 13", "s_lshl_b32 s6, s29, 7", f"s_add_u32 s6, s6, {WS_FL}", "s_lshl_b32 s7, s28, 3",
                   "s_mov_b32 s12, s72", "s_mov_b32 s13, s73"]]
            T += [[f"v_bfe_u32 v{vT0}, v{vL}, 2, 2", f"v_lshl_add_u32 v{vT1}, v{vH}, 2, v{vT0}", f"v_lshlrev_b32 v{vT1}, 7, v{vT1}"],
                  [f"v_bfe_u32 v{vT0}, v{vL}, 3, 1", f"v_lshl_add_u32 v{vT1}, v{vT0}, 6, v{vT1}"],
                  [f"v_bfe_u32 v{vT0}, v{vL}, 4, 1", f"v_lshl_add_u32 v{vT1}, v{vT0}, 5, v{vT1}"],
                  [f"v_and_b32 v{vT0}, 1, v{vL}", f"v_lshl_add_u32 v{vT1}, v{vT0}, 4, v{vT1}"],
                  [f"v_bfe_u32 v{vT0}, v{vL}, 1, 1", f"v_lshl_add_u32 v16, v{vT0}, 3, v{vT1}", f"v_xor_b32 v17, 64, v16"],
                  [f"v_add_u32 v{vT0}, s30, v{vL}", f"v_and_b32 v{vT0}, 7, v{vT0}"]]
            post += [f"v_xor_b32 v{vT1}, s7, v{vL}", f"v_and_b32 v{vT1}, 8, v{vT1}", f"v_or_b32 v{vT0}, v{vT0}, v{vT1}",
                     f"v_lshlrev_b32 v18, 2, v{vT0}"]
        if n in (12, 13):
            V += [f"v_mov_b64 {vr(O0+32*(n-12)+i,2)}, 0" for i in range(0, 32, 2)]
        M = mf_G(n - 1 if n != 6 else 1)
        weave(A, M, [(R, lambda k: 2), (D, lambda k: 1 if (k % 2 == 0 or k == 15) else 0), (V, lambda k: 1), (T, lambda k: 2 if k >= 12 else 0)])
        for x in post: A(x)
        if n == 1 and PARK:
            A.comment("---- iteration 1b")
            A("s_waitcnt lgkmcnt(0)")
            weave(A, mf_G(1), [(dma(3), lambda k: 1 if k % 2 == 1 else 0)])
    A("s_waitcnt vmcnt(8) lgkmcnt(0)")
    A("s_barrier")
    if not os.environ.get("FINE3"): stamp(A, 3)
    tstamp(A)
    def cvtQ(u):
        return [f"v_cvt_pk_bf16_f32 v{Q0+8*u+j}, v{ACC+16*u+2*j}, v{ACC+16*u+2*j+1}" for j in range(8)]
    def QK(u, c):
        return [f"v_mfma_f32_32x32x16_bf16 {vr(S0+16*u,16)}, {ar(KB0,4)}, {vr(Q0+8*u,4)}, {c}",
                f"v_mfma_f32_32x32x16_bf16 {vr(S0+16*u,16)}, {ar(KB0+4,4)}, {vr(Q0+8*u+4,4)}, {vr(S0+16*u,16)}"]
    def max16(b):
        L = [f"v_max3_f32 v{b}, v{b}, v{b+1}, v{b+2}"]
        for j in range(3, 15, 2):
            L.append(f"v_max3_f32 v{b}, v{b}, v{b+j}, v{b+j+1}")
        L.append(f"v_max_f32 v{b}, v{b}, v{b+15}")
        return L
    def fill_C(u, b):
        L = [f"v_mov_b32 v{b+1}, v{b}", "s_nop 1", f"v_permlane32_swap_b32 v{b}, v{b+1}", "s_nop 1",
             f"v_max_f32 v{b}, v{b}, v{b+1}", f"v_sub_f32 v{C0+16*u}, 0, v{b}", f"v_sub_f32 v{C0+16*u+1}, 0, v{b}"]
        for j in range(2, 16, 2):
            L.append(f"v_mov_b64 {vr(C0+16*u+j,2)}, {vr(C0+16*u,2)}")
        return L
    G = mf_G(19, by_u=True)
    ldc = lambda t: f"buffer_load_dwordx4 v{vXd+t}, s[44:47], s32 offen offset:{1024*t} sc1 lds"
    ldw = lambda t: f"buffer_load_dwordx4 v{vWd+t}, s[12:15], s34 offen offset:{1024*t} lds"
    misc = [f"ds_read_b128 {ar(KB0,4)}, v{vKV}", f"ds_read_b128 {ar(KB0+4,4)}, v{vKV} offset:1024",
            f"ds_read_b128 {ar(VB0,4)}, v{vKV} offset:2048", f"ds_read_b128 {ar(VB0+4,4)}, v{vKV} offset:3072",
            f"v_lshlrev_b32 v{vT0}, 2, v{vL31}", "s_lshl_b32 s50, s29, 9", "s_lshl_b32 s51, s22, 8", "s_add_u32 s50, s50, s51",
            f"s_add_u32 s50, s50, {WS_G}", f"buffer_load_dword v{vG}, v{vT0}, s[16:19], s50 offen sc1",
            f"buffer_load_dword v{vG+1}, v{vT0}, s[16:19], s50 offen offset:128 sc1",
            "s_add_u32 m0, s36, 0x10000", "s_mov_b32 s32, 0x10000", ldc(0), ldc(1), ldc(2), ldc(3),
            "s_mov_b32 s37, 0x18000", "s_mov_b32 s39, 0", "s_mov_b32 s71, 0", "s_mov_b32 s33, 0x4000", "s_mov_b32 s38, -1"]
    def emit(L):
        for x in L: A(x)
    def take(L, n):
        r = L[:n]; del L[:n]; return r
    for k in range(0, 7):
        A(G[k]); emit(take(misc, 4 if k < 5 else 1))
    emit(misc)
    c0 = cvtQ(0)
    A(G[7]); emit(take(c0, 5))
    A(G[8]); emit(c0); A("s_waitcnt lgkmcnt(0)")
    A(G[9])
    q = QK(0, "0"); A(q[0]); A(q[1])
    c1 = cvtQ(1)
    A(G[10]); emit(take(c1, 5))
    A(G[11]); emit(c1)
    A(G[12])
    q = QK(1, "0"); A(q[0]); A(q[1])
    m0_ = max16(S0)
    A(G[13]); emit(take(m0_, 5))
    A(G[14]); emit(m0_)
    f0 = fill_C(0, S0)
    A(G[15]); emit(take(f0, 4))
    emit(cvtQ(2))
    emit(take(f0, 3))
    q = QK(2, "0"); A(q[0]); emit(take(f0, 4)); A(q[1]); emit(f0)
    emit(cvtQ(3))
    m1_ = max16(S0+16)
    emit(take(m1_, 2))
    q = QK(3, "0"); A(q[0]); emit(take(m1_, 4)); A(q[1]); emit(m1_)
    f1 = fill_C(1, S0+16)
    emit(take(f1, 3))
    q = QK(0, vr(C0, 16) if 'czero' not in VAR else "0"); A(q[0]); emit(take(f1, 5)); A(q[1]); emit(f1)
    emit(max16(S0+32)); emit(fill_C(2, S0+32))
    emit(max16(S0+48)); emit(fill_C(3, S0+48))
    for i in range(0, 16, 2):
        A(f"v_mov_b64 {vr(S0+48+i,2)}, 0")
    A("s_waitcnt vmcnt(6)")
    A("s_barrier")
    def PV(u0, p0):
        return [
            f"v_smfmac_f32_32x32x32_bf16 {vr(O0+16*u0,16)}, {ar(VB0+8*p0,4)}, {vr(S0+16*u0,8)}, v{vIDX}",
            f"v_smfmac_f32_32x32x32_bf16 {vr(O0+16*u0,16)}, {ar(VB0+8*p0+4,4)}, {vr(S0+16*u0+8,8)}, v{vIDX}",
            f"v_smfmac_f32_16x16x64_bf16 {ar(L0+4*u0,4)}, {ar(SEL,4)}, {vr(S0+16*u0,8)}, v{vIDX}",
            f"v_smfmac_f32_16x16x64_bf16 {ar(L0+4*u0,4)}, {ar(SEL,4)}, {vr(S0+16*u0+8,8)}, v{vIDX}",
        ]
    stamp(A, 4)
    body = []
    for i in range(8):
        for u in range(4):
            u1 = (u + 1) % 4; i1 = i + (1 if u == 3 else 0)
            u0 = (u + 3) % 4; i0 = i - (1 if u == 0 else 0)
            P = PV(u0, i0 % 2)
            M = [
                f"v_mfma_f32_32x32x16_bf16 {vr(S0+16*u1,16)}, {ar(KB0+8*(i1%2),4)}, {vr(Q0+8*u1,4)}, {vr(C0+16*u1,16) if 'czero' not in VAR else 0}",
                P[0],
                f"v_mfma_f32_32x32x16_bf16 {vr(S0+16*u1,16)}, {ar(KB0+8*(i1%2)+4,4)}, {vr(Q0+8*u1+4,4)}, {vr(S0+16*u1,16)}",
                P[1], P[2], P[3],
            ]
            X = [[] for _ in range(6)]
            tt = (i + 1) % 8
            pn = (i + 1) % 2
            if u == 0:
                X[3].append("s_waitcnt lgkmcnt(0)")
                X[4].append(f"ds_read_b128 {ar(KB0+8*pn,4)}, v{vKV} offset:{4096*tt}")
                X[5].append(f"ds_read_b128 {ar(KB0+8*pn+4,4)}, v{vKV} offset:{4096*tt+1024}")
            if u == 2:
                X[3].append("s_waitcnt lgkmcnt(0)")
                X[4].append(f"ds_read_b128 {ar(VB0+8*pn,4)}, v{vKV} offset:{4096*tt+2048}")
                X[5].append(f"ds_read_b128 {ar(VB0+8*pn+4,4)}, v{vKV} offset:{4096*tt+3072}")
            if i in (1, 3) and u == 1:
                X[2].append(f"s_add_u32 m0, s36, 0x20000")
                X[4].append(f"buffer_load_dwordx4 v{vLane16}, s[52:55], s68 offen lds")
                X[5].append("s_add_u32 s68, s68, 0x800")
            if i == 3 and u == 3:
                X[3].append("s_cmp_eq_u32 s39, 7")
                X[5].append("@EXIT")
            if i == 6 and u == 3:
                X[1].append("s_cmp_eq_u32 s39, 5")
                X[1].append("s_cselect_b64 vcc, -1, 0")
            if i == 7 and u == 0:
                X[0].append("s_add_u32 s71, s71, 0x8000")
                X[1].append("s_and_b32 s71, s71, 0x1ffff")
                X[1].append("s_add_u32 s39, s39, 1")
                X[2].append("s_bitcmp1_b32 0x54, s39")
                X[3].append("@TOP")
            if i == 7 and u == 1:
                X[1].append("s_add_u32 m0, s37, s36")
                X[1].append("s_add_u32 s37, s37, 0x8000")
                X[3].append("s_and_b32 s37, s37, 0x1ffff")
                X[4].append(ldc(0)); X[5].append(ldc(1))
            if i == 7 and u == 3:
                X[4].append(ldc(2)); X[5].append(ldc(3))
            if i == 0 and u == 1:
                X[4].append(ldc(0)); X[5].append(ldc(1))
            if i == 0 and u == 3:
                X[4].append(ldc(2)); X[5].append(ldc(3))
            if i == 1 and u == 1:
                X[1].append("s_add_u32 s32, s32, s33")
                X[1].append("s_and_b32 s32, s32, s38")
            E = [f"v_exp_f32 v{S0+16*u+j}, v{S0+16*u+j}" for j in range(16)]
            ne = [3, 3, 3, 3, 2, 2]
            order = {"": [0, 1, 2, 3, 4, 5], "A": [0, 2, 1, 3, 4, 5], "B": [0, 2, 4, 1, 3, 5], "C": [0, 2, 1, 4, 3, 5]}[os.environ.get("MORD", "")]
            if order != [0, 1, 2, 3, 4, 5]:
                S_ = X[0] + X[1] + X[2] + X[3]
                slots = order[:order.index(4)]
                for k in range(4): X[k] = []
                cap = {0: 1, 2: 1, 1: 2, 3: 2}
                for k in reversed(slots):
                    n_ = cap[k] + (1 if S_ and S_[-1] == "@TOP" else 0)
                    X[k] = S_[-n_:] if k != slots[0] else S_
                    S_ = S_[:-n_] if k != slots[0] else []
            for k in order:
                body.append(M[k])
                body += X[k]
                for _ in range(ne[k]): body.append(E.pop(0))
    top = body.index("@TOP")
    first, second = body[:top], body[top+1:]
    A("s_branch L_at_pre_entry")
    A.label("L_at_switch")
    for t in range(4):
        A(f"v_mov_b32 v{vXd+t}, v{vWd+t}")
    A("s_mov_b32 s44, s72")
    A("s_mov_b32 s45, s73")
    A("s_mov_b32 s46, 0x200000")
    A("s_lshl_b32 s32, s30, 18")
    A("s_mov_b32 s33, 0x40000")
    A("s_mov_b32 s38, 0x1fffff")
    A("s_branch L_at_top_bar")
    A.raw(".p2align 6")
    A.label("L_at_top_bar")
    A(f"s_waitcnt vmcnt(2)")
    A("s_barrier")
    A.label("L_at_top")
    tstamp(A)
    A(f"v_add_u32 v{vKV}, s71, v{vLane16}")
    for x in second: A(x)
    A.label("L_at_pre_entry")
    A(first[0]); A("s_add_u32 m0, m0, 0x4000")
    for x in first[1:5]: A(x)
    A("s_add_u32 s32, s32, s33")
    A("s_and_b32 s32, s32, s38")
    rest = first[5:]
    ex = rest.index("@EXIT")
    for x in rest[:ex]: A(x)
    A("s_cbranch_scc1 L_at_exit")
    for x in rest[ex+1:]: A(x)
    A("s_cbranch_scc0 L_at_top")
    A("s_cbranch_vccz L_at_top_bar")
    A("s_branch L_at_switch")
    A.label("L_at_exit")
    for x in rest[ex+1:ex+3]: A(x)
    TU = [(60, u) for u in range(4)] + [(t, u) for u in range(4) for t in (61, 62, 63)]
    kreg = lambda t: KB0 if t == 60 else 64 + 16*(t - 61)
    vreg = lambda t: (VB0 + 8 if t == 59 else VB0) if t <= 60 else 64 + 16*(t - 61) + 8
    def PVt(p):
        t, u = TU[p] if p >= 0 else (59, 3)
        sb = S0 + 16*(p % 4)
        return [
            f"v_smfmac_f32_32x32x32_bf16 {vr(O0+16*u,16)}, {ar(vreg(t),4)}, {vr(sb,8)}, v{vIDX}",
            f"v_smfmac_f32_32x32x32_bf16 {vr(O0+16*u,16)}, {ar(vreg(t)+4,4)}, {vr(sb+8,8)}, v{vIDX}",
            f"v_smfmac_f32_16x16x64_bf16 {ar(L0+4*u,4)}, {ar(SEL,4)}, {vr(sb,8)}, v{vIDX}",
            f"v_smfmac_f32_16x16x64_bf16 {ar(L0+4*u,4)}, {ar(SEL,4)}, {vr(sb+8,8)}, v{vIDX}",
        ]
    vSc, vSum = vT0, vT2
    def fin_valu(u):
        L = [f"v_accvgpr_read_b32 v{vSc}, a{L0+4*u}", f"v_accvgpr_read_b32 v{vSc+1}, a{L0+4*u}", "s_nop 1",
             f"v_permlane32_swap_b32 v{vSc}, v{vSc+1}", "s_nop 1",
             f"v_add_f32 v{vSum}, v{vSum}, v{vSc}", f"v_rcp_f32 v{vSc}, v{vSc}", "s_nop 0",
             f"v_mul_f32 v{vSc}, v{vSc}, v{vG+(u&1)}"]
        for j in range(0, 16, 2):
            L.append(f"v_pk_mul_f32 {vr(O0+16*u+j,2)}, {vr(O0+16*u+j,2)}, {vr(vSc,2)} op_sel_hi:[1,0]")
        for j in range(8):
            L.append(f"v_cvt_pk_bf16_f32 v{C0+16*u+j}, v{O0+16*u+2*j}, v{O0+16*u+2*j+1}")
        return L
    def fin_st(u):
        a, t = u >> 1, u & 1
        return [f"buffer_store_dwordx4 {vr(C0+16*u+4*f,4)}, v{vLane16}, s[16:19], s{40+t} offen offset:{2048*a+1024*f} sc1" for f in range(2)]
    rdK = lambda t: [f"ds_read_b128 {ar(kreg(t)+4*f,4)}, v{vKV} offset:{4096*(t-56)+1024*f}" for f in range(2)]
    rdV = lambda t: [f"ds_read_b128 {ar(vreg(t)+4*f,4)}, v{vKV} offset:{4096*(t-56)+2048+1024*f}" for f in range(2)]
    RD = [rdK(61), rdK(62), rdV(61), rdK(63), rdV(62), rdV(63)]
    nxt = ["s_add_u32 s34, s34, 0x40000", "s_and_b32 s34, s34, 0x1fffff"]
    def wpair(dst, pre=()):
        return [(list(pre) + [f"s_add_u32 m0, s36, {dst}"], ldw(0)), ([], ldw(1)), ([], ldw(2)), ([], ldw(3))]
    WA = wpair(0x20000, ["s_mov_b32 s34, s32"]) + wpair(0x24000, nxt)
    WB = wpair(0x10000, nxt) + wpair(0x14000, nxt)
    WB += wpair(0x18000, nxt + ["s_mov_b32 s12, s74", "s_mov_b32 s13, s75"]) + wpair(0x1c000, nxt)
    for p in range(16):
        t, u = TU[p]
        P = PVt(p - 1)
        if p < 15:
            t1, u1 = TU[p + 1]; sb = S0 + 16*((p + 1) % 4)
            q0 = f"v_mfma_f32_32x32x16_bf16 {vr(sb,16)}, {ar(kreg(t1),4)}, {vr(Q0+8*u1,4)}, {vr(C0+16*u1,16)}"
            q1 = f"v_mfma_f32_32x32x16_bf16 {vr(sb,16)}, {ar(kreg(t1)+4,4)}, {vr(Q0+8*u1+4,4)}, {vr(sb,16)}"
        else: q0 = q1 = None
        M = [q0, P[0], q1, P[1], P[2], P[3]]
        X = [[] for _ in range(6)]
        XV = [[] for _ in range(6)]
        if p <= 6: X[3].append("s_waitcnt lgkmcnt(0)")
        if p < 6: X[4].append(RD[p][0]); X[5].append(RD[p][1])
        def put(W, k):
            pre, ld = W.pop(0)
            X[k-1] += pre; X[k].append(ld)
        if 1 <= p <= 4: put(WA, 1); put(WA, 3)
        if p == 0:
            X[1] += ["s_cmp_eq_u32 s28, 0", "s_cselect_b32 s50, 1.0, -1.0"]
            X[2] += ["s_cselect_b32 s51, 0, 1.0"]
            XV[3] += [f"v_mov_b32 v{vSum}, s51", f"v_fma_f32 v{vG}, v{vG}, s50, v{vSum}", f"v_fma_f32 v{vG+1}, v{vG+1}, s50, v{vSum}",
                      f"v_mov_b32 v{vSum}, 0"]
        if p == 6:
            X[3] = ["s_waitcnt vmcnt(9) lgkmcnt(0)", "s_barrier"]
        if p == int(os.environ.get("TPOLL", "13")): X[1].append(f"buffer_load_dword v{vPoll}, v18, s[16:19], s6 offen sc1")
        fu = {8: 0, 11: 1, 14: 2}.get(p)
        if p >= 6:
            if WB: put(WB, 4)
            if fu is None:
                if WB: put(WB, 5)
            else:
                X[5] += fin_st(fu)
        if fu is not None:
            FV = [x for x in fin_valu(fu) if x != "s_nop 1"]
            XV[1] += FV[:2]; XV[2] += FV[2:3]; XV[3] += FV[3:15]; XV[4] += FV[15:]
        E = [f"v_exp_f32 v{S0+16*(p%4)+j}, v{S0+16*(p%4)+j}" for j in range(16)]
        ne = [3, 3, 3, 3, 2, 2]
        for k in range(6):
            if M[k]: A(M[k])
            emit(X[k])
            for _ in range(ne[k]): A(E.pop(0))
            emit(XV[k])
    assert not WA and not WB
    stamp(A, 5)
    gstamp(A, 0)
    tstamp(A, "2")
    P3 = PVt(15)
    A(P3[2]); emit(nxt); A(P3[3]); A(P3[0]); A(P3[1])
    A("s_nop 5")
    FV = fin_valu(3)
    emit(FV[:7])
    A(f"v_cmp_ngt_f32 vcc, {0x4e800000 if 'forceslow' not in VAR else 0x3f000000:#x}, v{vSum}")
    emit(FV[8:])
    emit(fin_st(3))
    A("s_cmp_lg_u64 vcc, 0")
    if "lx" not in VAR: A("s_cbranch_scc1 L_at_slow")
    A.label("L_at_done")
    gen_out(A)
    A.label("L_at_slow")
    A("s_waitcnt vmcnt(0) lgkmcnt(0)")
    A("s_lshl_b32 s39, s28, 18")
    A("s_add_u32 s44, s26, s39")
    A("s_addc_u32 s45, s27, 0")
    A("s_mov_b32 s46, 0x40000")
    for u in range(4):
        A(f"v_mov_b32 v{O0+u}, 0xff7fffff")
    A("s_mov_b32 s39, 0")
    A.label("L_at_slow1")
    A(f"buffer_load_dwordx4 {ar(KB0,4)}, v{vLane16}, s[44:47], s39 offen sc1")
    A(f"buffer_load_dwordx4 {ar(KB0+4,4)}, v{vLane16}, s[44:47], s39 offen offset:1024 sc1")
    A("s_waitcnt vmcnt(0)")
    for u in range(4):
        for x in QK(u, "0"): A(x)
    A("s_nop 15")
    for u in range(4):
        for j in range(0, 16, 2):
            A(f"v_max3_f32 v{O0+u}, v{O0+u}, v{S0+16*u+j}, v{S0+16*u+j+1}")
    A("s_add_u32 s39, s39, 0x1000")
    A("s_cmp_lt_u32 s39, 0x40000")
    A("s_cbranch_scc1 L_at_slow1")
    for u in range(4):
        A(f"v_mov_b32 v{S0+16*u}, v{O0+u}")
        emit(fill_C(u, S0+16*u))
    for i in range(16):
        A(f"v_accvgpr_write_b32 a{L0+i}, 0")
    for i in range(64):
        A(f"v_mov_b32 v{O0+i}, 0")
    A("s_mov_b32 s39, 0")
    A.label("L_at_slow2")
    A(f"buffer_load_dwordx4 {ar(KB0,4)}, v{vLane16}, s[44:47], s39 offen sc1")
    A(f"buffer_load_dwordx4 {ar(KB0+4,4)}, v{vLane16}, s[44:47], s39 offen offset:1024 sc1")
    A(f"buffer_load_dwordx4 {ar(VB0,4)}, v{vLane16}, s[44:47], s39 offen offset:2048 sc1")
    A(f"buffer_load_dwordx4 {ar(VB0+4,4)}, v{vLane16}, s[44:47], s39 offen offset:3072 sc1")
    A("s_waitcnt vmcnt(0)")
    for u in range(4):
        for x in QK(u, vr(C0+16*u, 16)): A(x)
    A("s_nop 15")
    for j in range(64):
        A(f"v_exp_f32 v{S0+j}, v{S0+j}")
    A("s_nop 1")
    for u in range(4):
        for x in PV(u, 0): A(x)
    A("s_nop 15")
    A("s_add_u32 s39, s39, 0x1000")
    A("s_cmp_lt_u32 s39, 0x40000")
    A("s_cbranch_scc1 L_at_slow2")
    A("s_nop 15")
    for u in range(4):
        emit(fin_valu(u)); emit(fin_st(u))
    A("s_branch L_at_done")
    A.label("L_at_end")
    A("s_endpgm")
    return kernel_desc(name, 512, 256, 102)

def gen_out(A):
    LD = 8
    vL, vH, vL31, vW_ = 1, 2, 3, 4
    vOd, vWd = 28, 12
    vWr, vWr0 = 8, 16
    vT0, vT1, vPl = 18, 19, 27
    ACC = 32
    WF = 128
    OFr = 192
    def wreg(st, s, c, n=4, o=0):
        i = 8*s + 4*c + o
        if st < 2: return vr(WF + 32*st + i, n)
        if st < 10: return ar(32*(st - 2) + i, n)
        return vr(64 + 32*(st - 10) + i, n)
    def stash(st):
        R = []
        for s in range(4):
            for c in range(2):
                wo = (st % 8)*0x2000 + 2048*s
                R += [f"ds_read_b64_tr_b16 {wreg(st,s,c,2,0)}, v{vWr+c} offset:{wo}",
                      f"ds_read_b64_tr_b16 {wreg(st,s,c,2,2)}, v{vWr+c} offset:{wo+1024}"]
        return R
    gstamp(A, 2)
    def dma_W():
        ldw = lambda t: f"buffer_load_dwordx4 v{vWd+t}, s[12:15], s34 offen offset:{1024*t} lds"
        return [["s_mov_b32 m0, s35", "s_add_u32 s35, s35, 0x4000", ldw(0)], [ldw(1)], [ldw(2)],
                [ldw(3), "s_add_u32 s34, s34, 0x40000", "s_and_b32 s34, s34, 0x1fffff"]]
    def fl(I):
        for x in I:
            for y in x: A(y)
    def mix(R, D, k):
        while R or D:
            for _ in range(k):
                if R: A(R.pop(0))
            if D:
                for y in D.pop(0): A(y)
    A(f"v_mov_b32 v{vWr}, v{vWr0}")
    A(f"v_mov_b32 v{vWr+1}, v{vWr0+1}")
    A("s_cmp_eq_u32 s20, 0")
    A("s_cselect_b32 s53, 0, -1")
    A("s_mov_b32 s35, s36")
    for st in (2, 3, 1, 0):
        for x in stash(st): A(x)
    gstamp(A, 3)
    A("s_waitcnt vmcnt(0) lgkmcnt(0)")
    A("s_barrier")
    gstamp(A, 4)
    tstamp(A, "2")
    stamp(A, 6)
    A("s_cmp_lg_u32 s20, 0")
    A("s_cbranch_scc1 L_o_nosig")
    A(f"v_mov_b32 v{vT1}, 1")
    A(f"v_mov_b32 v{vPl}, 0")
    A("s_mov_b64 exec, 1")
    A(f"buffer_atomic_swap v{vT1}, v{vPl}, s[16:19], s69 offen sc1")
    A("s_mov_b64 exec, -1")
    A.label("L_o_nosig")
    def ld_O(j):
        I = [f"buffer_load_dwordx4 {vr(OFr+4*(j%16),4)}, v{vOd}, s[8:11], s3 offen offset:{1024*(j%4)} sc1"]
        if j % 4 == 3: I += ["s_add_u32 s3, s3, 0x1000", "s_and_b32 s3, s3, 0xffff"]
        return I
    for j in range(8):
        for y in ld_O(j): A(y)
    mix(stash(4) + stash(5) + stash(6) + stash(7), dma_W() + dma_W(), 8)
    A(f"v_add_u32 v{vWr}, 0x20000, v{vWr0}")
    A(f"v_add_u32 v{vWr+1}, 0x20000, v{vWr0+1}")
    A("s_waitcnt lgkmcnt(0)")
    A("s_barrier")
    mix(stash(8) + stash(9) + stash(10) + stash(11), dma_W() + dma_W(), 8)
    def mf(st, s, c, j):
        w = wreg(st, s, c) if st < 12 else vr(WF + 32*(st % 2) + 8*s + 4*c, 4)
        if "fakeo16" in VAR:
            q = ACC + 16*c + 8*(j % 2)
            return (f"v_mfma_f32_16x16x32_bf16 {vr(q,4)}, {w}, {vr(OFr+4*(j%16),4)}, {vr(q,4)}\n"
                    f"v_mfma_f32_16x16x32_bf16 {vr(q+4,4)}, {w}, {vr(OFr+4*((j+15)%16),4)}, {vr(q+4,4)}")
        return f"v_mfma_f32_32x32x16_bf16 {vr(ACC+16*c,16)}, {w}, {vr(OFr+4*(j%16),4)}, {vr(ACC+16*c,16) if (st, s) != (0, 0) else 0}"
    gstamp(A, 5)
    A("s_add_u32 s35, s36, 0x20000")
    A("s_waitcnt vmcnt(16) lgkmcnt(0)")
    A("s_barrier")
    A("s_cmp_lg_u32 s20, 0")
    A("s_cbranch_scc1 L_o_nopoll")
    A(f"buffer_load_dword v{vPl}, v{vT0}, s[16:19], s6 offen sc1")
    A.label("L_o_nopoll")
    D = dma_W() + dma_W()
    for j in range(8):
        A(mf(j // 4, j % 4, 0, j)); A(mf(j // 4, j % 4, 1, j))
        for y in D.pop(0): A(y)
    gstamp(A, 6)
    A("s_mov_b32 s54, 0xff")
    A("s_cmp_lg_u32 s20, 0")
    A("s_cbranch_scc1 L_o_ready0")
    A("s_waitcnt vmcnt(8)")
    A(f"v_cmp_eq_u32 vcc, 1, v{vPl}")
    A("s_nop 4")
    A("s_mov_b32 s53, vcc_lo")
    A("s_and_b32 s50, s53, s54")
    A("s_cmp_lg_u32 s50, s54")
    A("s_cbranch_scc1 L_o_poll0")
    A.label("L_o_ready0")
    A("s_barrier")
    gstamp(A, 7)
    stamp(A, 7)
    tstamp(A, "2")
    for j in range(8, 16):
        for y in ld_O(j): A(y)
    def rd_W(st):
        R = []
        for s in range(4):
            for c in range(2):
                b = WF + 32*(st % 2) + 8*s + 4*c
                wo = st*0x2000 + 2048*s
                R += [f"ds_read_b64_tr_b16 {vr(b,2)}, v{vWr+c} offset:{wo}",
                      f"ds_read_b64_tr_b16 {vr(b+2,2)}, v{vWr+c} offset:{wo+1024}"]
        return R
    def stage(st, stw, rd, extra=None):
        for s in range(4):
            j = 4*st + s
            A(f"s_waitcnt vmcnt(7) lgkmcnt(12)" if stw >= 12 else "s_waitcnt vmcnt(7)")
            for c in range(2):
                A(mf(stw, s, c, j))
                for _ in range(2):
                    if rd: A(rd.pop(0))
                if c == 0:
                    for y in ld_O(j + LD): A(y)
                elif extra:
                    for y in extra.pop(0): A(y)
    A(f"v_add_u32 v{vWr}, 0x10000, v{vWr0}")
    A(f"v_add_u32 v{vWr+1}, 0x10000, v{vWr0+1}")
    A("s_mov_b32 s37, 0x10000")
    A("s_mov_b32 s39, 3")
    if "otouch" in VAR:
        A(f"v_lshlrev_b32 v21, 11, v{vL31}")
    if "fulline" in VAR:
        A(f"v_and_b32 v24, 7, v{vL31}")
        A(f"v_xor_b32 v24, v24, v{vH}")
        A(f"v_lshlrev_b32 v24, 4, v24")
        A(f"v_lshl_add_u32 v24, v{vL31}, 7, v24")
        A("s_add_u32 s50, s36, 0x10000")
        A(f"v_add_u32 v20, s50, v24")
        for k in range(1, 4):
            A(f"v_xor_b32 v{20+k}, {32*k}, v20")
        A(f"v_add_u32 v24, s50, v{vOd}")
        A(f"v_lshrrev_b32 v25, 3, v{vL}")
        A(f"v_and_b32 v26, 7, v{vL}")
        A(f"v_xor_b32 v26, v26, v25")
        A(f"v_lshlrev_b32 v26, 4, v26")
        A(f"v_lshl_add_u32 v25, v25, 11, v26")
    for st in range(2, 12):
        stage(st % 4, st, rd_W(0) if st == 11 else None)
    A("s_mov_b32 s54, 0xffff")
    A("s_and_b32 s50, s53, s54")
    A("s_cmp_lg_u32 s50, s54")
    A("s_cbranch_scc1 L_o_poll1")
    A.label("L_o_ready1")
    A("s_barrier")
    if "otouch" in VAR:
        A(f"buffer_load_dword v22, v21, s[56:59], s43 offen")
    A.raw(".p2align 6")
    A.label("L_o_loop")
    tstamp(A, "2")
    stage(0, 12, rd_W(1), [["s_add_u32 s37, s37, 0x8000", "s_and_b32 s37, s37, 0x1ffff"], ["s_cmp_eq_u32 s39, 6", "s_cselect_b32 s37, 0x20000, s37"]])
    stage(1, 13, rd_W(2))
    A("s_mov_b32 s8, s4")
    A("s_mov_b32 s9, s5")
    A("s_cmp_eq_u32 s39, 7")
    A("s_cbranch_scc1 L_o_tail")
    stage(2, 14, rd_W(3), [["s_add_u32 s39, s39, 1"]])
    A(f"v_add_u32 v{vWr}, s37, v{vWr0}")
    A(f"v_add_u32 v{vWr+1}, s37, v{vWr0+1}")
    stage(3, 15, rd_W(0))
    A("s_branch L_o_loop")
    A.label("L_o_tail")
    if "fulline" in VAR: A("s_barrier")
    R3 = rd_W(3)
    for j in range(8, 16):
        st, sq = j // 4, j % 4
        A(f"s_waitcnt vmcnt({15 - j}) lgkmcnt({12 if j < 12 else 4*(15-j)})")
        for c in range(2):
            A(mf(12 + st, sq, c, j))
            for _ in range(2):
                if R3: A(R3.pop(0))
    A("s_mov_b32 s40, s43")
    A("s_nop 2")
    OST = os.environ.get('OST', 'nt')
    if "fulline" not in VAR:
        A(f"v_lshlrev_b32 v{vT0}, 11, v{vL31}")
        A(f"v_lshl_add_u32 v{vT0}, v{vH}, 4, v{vT0}")
        A("s_nop 7")
        for c in range(2):
            for j in range(8):
                A(f"v_cvt_pk_bf16_f32 v{64+8*c+j}, v{ACC+16*c+2*j}, v{ACC+16*c+2*j+1}")
            for f in range(2):
                A(f"buffer_store_dwordx4 {vr(64+8*c+4*f,4)}, v{vT0}, s[56:59], s40 offen offset:{64*c+32*f} {OST}")
    else:
        A("s_nop 7")
        for c in range(2):
            for j in range(8):
                A(f"v_cvt_pk_bf16_f32 v{64+8*c+j}, v{ACC+16*c+2*j}, v{ACC+16*c+2*j+1}")
            for f in range(2):
                A(f"ds_write_b128 v{20+2*c+f}, {vr(64+8*c+4*f,4)}")
        A("s_waitcnt lgkmcnt(0)")
        for i in range(4):
            A(f"ds_read_b128 {vr(80+4*i,4)}, v24 offset:{1024*i}")
        for i in range(4):
            A(f"s_waitcnt lgkmcnt({3-i})")
            A(f"buffer_store_dwordx4 {vr(80+4*i,4)}, v25, s[56:59], s40 offen {OST}")
            A("s_add_u32 s40, s40, 0x4000")
    if TS == "2":
        tstamp(A, "2")
        A("s_waitcnt vmcnt(0)")
        tstamp(A, "2")
    if STAMP:
        A("s_waitcnt vmcnt(0)")
        _stamp(A, 1)
        stamp_flush(A, 0, 8, 26, 27, 20)
    A("s_endpgm")
    for k in (1, 0):
        tgt = f"L_o_ready{k}"
        A.label(f"L_o_poll{k}")
        A("s_mov_b32 s48, 0")
        A.label(f"L_o_spin{k}")
        A(f"buffer_load_dword v{vPl}, v{vT0}, s[16:19], s6 offen sc1")
        A("s_waitcnt vmcnt(0)")
        A(f"v_cmp_eq_u32 vcc, 1, v{vPl}")
        A("s_add_u32 s48, s48, 1")
        A("s_cmp_gt_u32 s48, 0x40000")
        A(f"s_cbranch_scc1 {tgt}")
        A("s_nop 2")
        A("s_mov_b32 s53, vcc_lo")
        A("s_and_b32 s50, s53, s54")
        A("s_cmp_eq_u32 s50, s54")
        A(f"s_cbranch_scc1 {tgt}")
        A(f"s_sleep {int(os.environ.get('SLEEP', '2'))}")
        A(f"s_branch L_o_spin{k}")

DESCR = """
"""

def main(path):
    ref = open("cdna_kernels/" + NAME + ".s.ref").read().split("\n")
    hdr = [l for l in ref if l.startswith(";") and "@launch" not in l and "Override" not in l and "grid=ceil" not in l]
    B = Asm()
    d1 = gen_attn(B)
    A = Asm()
    for l in hdr: A.raw(l)
    A.raw(f"; @launch grid=(256,1,1) block=(256,1,1) lds={LDS_ATTN}")
    for l in DESCR.strip("\n").split("\n"): A.raw(l)
    A.raw('.amdgcn_target "amdgcn-amd-amdhsa--gfx950"')
    A.raw(".text")
    A.lines += B.lines
    A.raw("L_code_end:")
    A.raw('.section .rodata,"a"')
    for d in (d1,):
        A.raw(".p2align 6")
        A.raw(d)
    open(path, "w").write(A.text())

if __name__ == "__main__":
    main(sys.argv[1] if len(sys.argv) > 1 else "cdna_kernels/" + NAME + ".s")
```
